```python
import torch

def _softmax(x, axis=-1):
    return torch.softmax(x, dim=axis)
def _gelu(x):
    return torch.nn.functional.gelu(x, approximate="tanh")
def _silu(x):
    return torch.nn.functional.silu(x)
def _sigmoid(x):
    return torch.sigmoid(x)
def _layernorm(x, axis=-1, eps=1e-5):
    m = x.mean(dim=axis, keepdim=True)
    v = x.var(dim=axis, keepdim=True, unbiased=False)
    return (x - m) / torch.sqrt(v + eps)
def _scatter_add(tgt, idx, src, axis=0):
    return tgt.clone().index_add_(axis, idx, src)
def _segment_sum(src, seg, n):
    out = torch.zeros((n,) + src.shape[1:], dtype=src.dtype)
    return out.index_add_(0, seg, src)
def _pad(x, pw):
    flat = tuple(v for pair in reversed(pw) for v in pair)
    return torch.nn.functional.pad(x, flat)

kernel_name = 'sequential_preLN__linear_attn_block__glu_gated_glu__prompt'

def setup_inputs():

    _w = (lambda a: (lambda t: t.to(torch.bfloat16) if t.is_floating_point() else t)(torch.as_tensor(a)))
    def _A_setup():
        B, S, D = 1, 2048, 448
        return {
            "x": _w((lambda *s: torch.randn(*s, dtype=torch.bfloat16) * 0.05)(B, S, D)),
            "wqkv": _w((lambda *s: torch.randn(*s, dtype=torch.bfloat16) * 0.1)(D, 3 * D)),
            "wo": _w((lambda *s: torch.randn(*s, dtype=torch.bfloat16) * 0.05)(D, D)),
        }
    _A_in = _A_setup()

    def _B_setup():
        B, S, D, F = 1, 2048, 448, 1792
        return {
            "x": _w((lambda *s: torch.randn(*s, dtype=torch.bfloat16) * 0.05)(B, S, D)),
            "w_gate": _w((lambda *s: torch.randn(*s, dtype=torch.bfloat16) * 0.05)(D, F)),
            "w_up": _w((lambda *s: torch.randn(*s, dtype=torch.bfloat16) * 0.05)(D, F)),
            "w_down": _w((lambda *s: torch.randn(*s, dtype=torch.bfloat16) * 0.05)(F, D)),
        }
    _B_in = _B_setup()

    return {
        "A_x": _A_in["x"],
        "A_wqkv": _A_in["wqkv"],
        "A_wo": _A_in["wo"],
        "B_x": _B_in["x"],
        "B_w_gate": _B_in["w_gate"],
        "B_w_up": _B_in["w_up"],
        "B_w_down": _B_in["w_down"],
    }

def reference(A_x, A_wqkv, A_wo, B_x, B_w_gate, B_w_up, B_w_down):
    def _A_ref(x, wqkv, wo):
        B, S, D = x.shape
        H = 16; Dh = D // H
        qkv = (lambda x, *d: x.permute(*d))((x @ wqkv).reshape(B, S, 3, H, Dh), 2, 0, 3, 1, 4)
        q, k, v = qkv[0], qkv[1], qkv[2]
        phi = lambda t: torch.where(t > 0, t + 1, torch.exp(t)) + 1e-6
        pq, pk = phi(q), phi(k)
        kv = torch.einsum("bhsd,bhse->bhde", pk, v)
        z = torch.einsum("bhsd->bhd", pk)
        num = torch.einsum("bhqd,bhde->bhqe", pq, kv)
        den = torch.einsum("bhqd,bhd->bhq", pq, z)[..., None] + 1e-6
        o = num / den
        return (lambda x, *d: x.permute(*d))(o, 0, 2, 1, 3).reshape(B, S, D) @ wo

    def _B_ref(x, w_gate, w_up, w_down):
        g = torch.einsum("bsd,df->bsf", x, w_gate)
        u = torch.einsum("bsd,df->bsf", x, w_up)
        h = _sigmoid(g) * u
        return torch.einsum("bsf,fd->bsd", h, w_down)

    x = A_x
    h = x + _A_ref(_layernorm(x, axis=-1), A_wqkv, A_wo)
    h2 = h + _B_ref(_layernorm(h, axis=-1), B_w_gate, B_w_up, B_w_down)
    return h2
```

```python
import re

REG = re.compile(r'\b([vas])(\d+)\b|\b([vas])\[(\d+):(\d+)\]')
TRANS = ('v_exp_f32', 'v_log_f32', 'v_rcp_f32', 'v_rsq_f32', 'v_sqrt_f32')


def regs_of(tok):
    out = set()
    for m in REG.finditer(tok):
        if m.group(1):
            out.add((m.group(1), int(m.group(2))))
        else:
            for i in range(int(m.group(4)), int(m.group(5)) + 1):
                out.add((m.group(3), i))
    if re.search(r'\bvcc\b', tok):
        out.add(('s', 'vcc'))
    if re.search(r'\bm0\b', tok):
        out.add(('s', 'm0'))
    if re.search(r'\bexec\b', tok):
        out.add(('s', 'exec'))
    return out


class I:
    __slots__ = ('text', 'op', 'rd', 'wr', 'kind', 'tag', 'raw', 'srcc', 'ahead')

    def __init__(self, text, tag=None, raw=False, ahead=0):
        self.text = text
        self.tag = tag
        self.raw = raw
        self.ahead = ahead
        self.srcc = set()
        t = text.split(';')[0].strip()
        self.rd, self.wr = set(), set()
        if not t or t.endswith(':') or t.startswith('.'):
            self.op = ''
            self.kind = 'label' if t.endswith(':') else 'dir'
            return
        sp = t.split(None, 1)
        op = self.op = sp[0]
        rest = sp[1] if len(sp) > 1 else ''
        ops = [o.strip() for o in rest.split(',')] if rest else []
        R = [regs_of(o) for o in ops]
        allr = set().union(*R) if R else set()
        k = None
        if op.startswith('v_mfma'):
            k = 'mfma'
            self.wr = R[0]
            self.rd = R[1] | R[2] | R[3]
            self.srcc = R[3]
        elif op.startswith('buffer_load') and re.search(r'\blds\b', rest):
            k = 'dma'
            self.rd = allr | {('s', 'm0')}
        elif op.startswith('buffer_load') or op.startswith('global_load'):
            k = 'vload'
            self.wr = R[0]
            self.rd = set().union(*R[1:])
        elif op.startswith('buffer_store') or op.startswith('global_store'):
            k = 'vstore'
            self.rd = allr
        elif op.startswith('buffer_atomic'):
            k = 'vstore'
            self.rd = allr
            if re.search(r'\bsc0\b', rest):
                k = 'vload'
                self.wr = R[0]
        elif op.startswith('ds_read'):
            k = 'dsread'
            self.wr = R[0]
            self.rd = set().union(*R[1:])
        elif op.startswith('ds_write'):
            k = 'dswrite'
            self.rd = allr
        elif op.startswith('s_load') or op in ('s_memrealtime', 's_memtime'):
            k = 'smem'
            self.wr = R[0]
            self.rd = set().union(*R[1:]) if len(R) > 1 else set()
        elif op == 's_waitcnt':
            k = 'wait'
        elif op == 's_barrier':
            k = 'barrier'
        elif op == 's_nop':
            k = 'nop'
        elif op.startswith('s_cbranch') or op in ('s_branch', 's_endpgm', 's_sleep', 's_setprio'):
            k = 'sctl'
        elif op.startswith('s_cmp'):
            k = 'salu'
            self.rd = allr
        elif op.startswith('s_'):
            k = 'salu'
            self.wr = R[0]
            self.rd = set().union(*R[1:]) if len(R) > 1 else set()
            if op in ('s_addk_i32', 's_mulk_i32'):
                self.rd |= R[0]
            if 'saveexec' in op:
                self.wr |= {('s', 'exec')}
        elif op.startswith('v_'):
            k = 'valu'
            self.wr = R[0]
            self.rd = set().union(*R[1:]) if len(R) > 1 else set()
            if op.startswith('v_permlane32_swap'):
                self.wr = R[0] | R[1]
                self.rd = R[0] | R[1]
            if op.startswith('v_fmac') or op.startswith('v_dot2c') or op.startswith('v_pk_fmac'):
                self.rd |= R[0]
            if op.startswith('v_add_co') or op.startswith('v_addc_co') or op.startswith('v_sub_co'):
                self.wr = R[0] | R[1]
                self.rd = set().union(*R[2:])
        elif op.startswith('@'):
            k = 'pseudo'
        else:
            raise ValueError('unknown op: ' + text)
        self.kind = k

    def __repr__(self):
        return self.text


def is_v(r):
    return r[0] in 'va'


class Prog:
    def __init__(self):
        self.ins = []

    def e(self, text, **kw):
        for ln in text.strip().split('\n'):
            ln = ln.strip()
            if ln:
                self.ins.append(I(ln, **kw))
        return self.ins[-1]

    def add(self, lst):
        for x in lst:
            self.ins.append(x if isinstance(x, I) else I(x))

    def finalize(self, verbose=False):
        out = []
        vmq = []
        lgq = []
        smem_pending = set()
        hist = []
        state = 0
        stats = {'nops': 0, 'waits': 0}

        def emit(i):
            nonlocal state
            out.append(i)
            if i.kind in ('label', 'dir'):
                return
            if i.kind == 'nop':
                n = int(i.text.split()[1], 0) + 1
            else:
                n = 1
            hist.append((state, i))
            state += n
            if len(hist) > 40:
                hist.pop(0)

        def do_wait(vm=None, lg=None):
            parts = []
            if vm is not None:
                vm = min(vm, 63)
                if len(vmq) > vm:
                    del vmq[:len(vmq) - vm]
                    parts.append('vmcnt(%d)' % vm)
            if lg is not None:
                lg = min(lg, 15)
                if len(lgq) > lg or (lg == 0 and smem_pending):
                    if smem_pending:
                        lg = 0
                    del lgq[:len(lgq) - lg]
                    if lg == 0:
                        smem_pending.clear()
                    parts.append('lgkmcnt(%d)' % lg)
            if parts:
                stats['waits'] += 1
                emit(I('s_waitcnt ' + ' '.join(parts)))

        def need_states(i):
            need = 0
            for st, p in hist:
                d = state - st - 1
                if p.kind == 'nop':
                    continue
                req = 0
                pw = p.wr
                if p.kind == 'valu':
                    vw = {r for r in pw if is_v(r)}
                    sw = {r for r in pw if r[0] == 's'}
                    if i.kind == 'mfma' and vw & i.rd:
                        req = max(req, 2)
                    if i.op.startswith('v_permlane') and vw & i.rd:
                        req = max(req, 2)
                    if 'dpp' in i.text and vw & i.rd:
                        req = max(req, 2)
                    if i.op.startswith('v_readfirstlane') or i.op.startswith('v_readlane'):
                        if vw & i.rd:
                            req = max(req, 1)
                    if p.op.rstrip('_e32').rstrip('_e64') in TRANS or p.op in TRANS:
                        if i.kind == 'valu' and vw & (i.rd | i.wr) and i.op not in TRANS:
                            req = max(req, 1)
                        if i.kind == 'valu' and vw & i.rd:
                            req = max(req, 1)
                    if p.op.startswith('v_dot2'):
                        if vw & (i.rd | i.wr) and i.kind in ('valu', 'mfma', 'vstore', 'dswrite', 'vload', 'dsread', 'dma'):
                            same = (i.op == p.op)
                            if same and i.op.startswith('v_dot2c'):
                                ops = [o.strip() for o in i.text.split(None, 1)[1].split(',')]
                                ab = regs_of(ops[1]) | regs_of(ops[2])
                                req = max(req, 3 if vw & ab else 0)
                            elif same:
                                ops = [o.strip() for o in i.text.split(None, 1)[1].split(',')]
                                ab = regs_of(ops[1]) | regs_of(ops[2])
                                req = max(req, 3 if vw & ab else 0)
                            else:
                                req = max(req, 3)
                    if sw:
                        if i.kind == 'valu' and sw & i.rd:
                            req = max(req, 2)
                        if i.kind == 'valu' and ('s', 'vcc') in sw and i.op.startswith('v_cndmask') and 'vcc' in i.text:
                            req = max(req, 2)
                        if i.kind in ('vload', 'vstore', 'dma') and sw & i.rd:
                            req = max(req, 5)
                        if i.kind == 'salu' and sw & i.rd:
                            req = max(req, 1)
                if p.kind == 'salu':
                    if ('s', 'm0') in pw and i.kind == 'dma':
                        req = max(req, 1)
                if p.kind == 'mfma':
                    if i.kind == 'mfma':
                        ab = i.rd - i.srcc
                        if pw & ab:
                            req = max(req, 12)
                        if pw & i.srcc and i.srcc != pw:
                            req = max(req, 10)
                        if pw & i.wr and not (pw & i.srcc):
                            req = max(req, 10)
                    elif i.kind in ('valu', 'vstore', 'dswrite', 'vload', 'dsread', 'dma'):
                        if pw & (i.rd | i.wr):
                            req = max(req, 12)
                        if i.kind == 'valu' and p.srcc & i.wr:
                            req = max(req, 7)
                if p.kind == 'vstore' and ('x4' in p.op or 'x3' in p.op):
                    ops = [o.strip() for o in p.text.split(None, 1)[1].split(',')]
                    data = regs_of(ops[0]) if p.op.startswith('buffer') else regs_of(ops[1])
                    if data & i.wr:
                        req = max(req, 2)
                need = max(need, req - d)
            return need

        for i in self.ins:
            if i.kind == 'pseudo':
                p = i.text.split()
                if p[0] == '@waitvm':
                    tags = set(p[1:])
                    idx = -1
                    for n, q in enumerate(vmq):
                        if q.tag in tags:
                            idx = n
                    if idx >= 0:
                        do_wait(vm=len(vmq) - 1 - idx)
                elif p[0] == '@waitvm0':
                    do_wait(vm=0)
                elif p[0] == '@waitlg0':
                    do_wait(lg=0)
                elif p[0] == '@drained':
                    pass
                else:
                    raise ValueError(i.text)
                continue
            if i.kind in ('label', 'dir'):
                emit(i)
                continue
            if not i.raw:
                touch = i.rd | i.wr
                vm = lg = None
                for n, q in enumerate(vmq):
                    if q.kind == 'vload' and q.wr & touch:
                        vm = len(vmq) - 1 - n
                for n, q in enumerate(lgq):
                    if q.kind == 'dsread' and q.wr & touch:
                        lg = len(lgq) - 1 - n
                if lg is not None and i.ahead:
                    lg = max(0, lg - i.ahead)
                if smem_pending & touch:
                    lg = 0
                if vm is not None or lg is not None:
                    do_wait(vm, lg)
            if i.kind == 'wait':
                m = re.search(r'vmcnt\((\d+)\)', i.text)
                if m and not i.raw:
                    n = int(m.group(1))
                    if len(vmq) > n:
                        del vmq[:len(vmq) - n]
                m = re.search(r'lgkmcnt\((\d+)\)', i.text)
                if m and not i.raw:
                    n = int(m.group(1))
                    if len(lgq) > n:
                        del lgq[:len(lgq) - n]
                    if n == 0:
                        smem_pending.clear()
                emit(i)
                continue
            n = need_states(i)
            if n > 0:
                stats['nops'] += 1
                while n > 0:
                    c = min(n, 16)
                    emit(I('s_nop %d' % (c - 1)))
                    n -= c
            emit(i)
            if i.raw:
                continue
            if i.kind in ('vload', 'vstore', 'dma'):
                vmq.append(i)
            elif i.kind in ('dsread', 'dswrite'):
                lgq.append(i)
            elif i.kind == 'smem':
                smem_pending |= i.wr
        self.out = out
        self.stats = stats
        return out

    def text(self):
        lines = []
        for i in self.out:
            if i.kind == 'label':
                lines.append(i.text)
            else:
                lines.append('    ' + i.text)
        return '\n'.join(lines)


def interleave(main, fill, start=0, per=None, end=None):
    mf = [n for n, x in enumerate(main) if x.kind == 'mfma']
    if end is None:
        end = len(mf)
    slots = list(range(start, end))
    assert slots
    groups = {s: [] for s in slots}
    nf = len(fill)
    if per is None:
        for j, f in enumerate(fill):
            s = slots[min(len(slots) - 1, j * len(slots) // nf)]
            groups[s].append(f)
    else:
        j = 0
        for s in slots:
            for _ in range(per):
                if j < nf:
                    groups[s].append(fill[j])
                    j += 1
        while j < nf:
            groups[slots[-1]].append(fill[j])
            j += 1
    out = []
    cnt = 0
    for x in main:
        out.append(x)
        if x.kind == 'mfma':
            for f in groups.get(cnt, []):
                if isinstance(f, list):
                    out.extend(f)
                else:
                    out.append(f)
            cnt += 1
    return out
```

```python
import sys
from asmlib import Prog, I, interleave

NAME = 'sequential_preLN__linear_attn_block__glu_gated_glu__prompt_kernel'

OPT = dict(diag=0, stop=99, passes=(4, 2, 2), spin=200000)
for a in sys.argv[2:]:
    k, v = a.split('=')
    OPT[k] = eval(v)
DIAG = OPT['diag']
STOP = OPT['stop']

WS_CNT = 0
WS_KVP = 0x20000
WS_O = 0x120000
WS_H = 0x320000
WS_ST = 0x520000
WS_HH = 0x560000
WS_TS = 0xC60000
WS_SIZE = 0xD00000
C_O, C_H, C_KV, C_HH = 0, 8, 12, 16

sX, sQKV, sWO, sGU, sWD, sOUT, sWS, sDBG, sCODE = 24, 28, 32, 36, 40, 44, 48, 52, 56
sG, sM, sW, sIdx, sWK, sHalf, sCs, sTh, sKh, sCnt = 60, 61, 62, 63, 64, 65, 66, 67, 68, 69
sCh = 70
sT = [3, 4, 5, 6, 7, 8, 9, 10, 11, 12, 13]
sMaskHi = 14
sMask28 = 16
sOff = 18
sOff2 = 19
sIter = 20
sPoll = 21
sTT = 22
sTS = 78


def S4(b):
    return 's[%d:%d]' % (b, b + 3)


def V(b, n=1):
    return 'v%d' % b if n == 1 else 'v[%d:%d]' % (b, b + n - 1)


def A(b, n=1):
    return 'a%d' % b if n == 1 else 'a[%d:%d]' % (b, b + n - 1)


vL16, vOne, vP, vDummy = 1, 2, 3, 4
vOffX = 5
vAdX = 9
vAdC = 9
vOffKV, vAdK, vAdV, vOffQ, vAdQ = 13, 14, 15, 16, 17
vAdD = 14
vOffWO, vOffXR, vOffGU, vOffWD = 18, 19, 20, 21
vAdWO, vAdWOp = 22, 24
vT = 26
vY = 32
vX = 64
vF = 128
vU = 240
aW = 0
aH = 32
aB = 40

PG = 4096
LOG2E = 0x3fb8aa3b
EPS6 = 0x358637bd
EPS5 = 0x3727c5ac
INV448 = 0x3b124925

p = Prog()
e = p.e
nstamp = [0]
nlab = [0]


def stamp(name=''):
    if not DIAG:
        return
    early = ('x0 landed', 'x read', 'normalised', 'A1 mfma', 'kv stored', 'q done', 'kv flag', 'kv loaded')
    late = ('h flag', 'P1', 'P2', 'P3', 'P4', 'hh stored', 'D mfma', 'D0', 'D1')
    if (DIAG == 1 and name in late) or (DIAG == 2 and name in early):
        return
    n = nstamp[0]
    assert n < 12
    e('s_memrealtime s[%d:%d] ; %s' % (sTS + 2 * n, sTS + 2 * n + 1, name))
    nstamp[0] += 1


def L(x):
    return [I(t.strip()) for t in x.strip().split('\n') if t.strip()]


def dma(voff, srd, soff, page_off, tag, imm=0, wave_stride=True):
    r = []
    if wave_stride:
        r.append(I('s_add_u32 m0, s%d, 0x%x' % (sWK, page_off)))
    if isinstance(soff, int):
        if soff == 0:
            so = '0'
        else:
            r.append(I('s_mov_b32 s%d, 0x%x' % (sOff, soff)))
            so = 's%d' % sOff
    elif isinstance(soff, str):
        so = soff
    else:
        r += [I(t) for t in soff]
        so = 's%d' % sOff
    r.append(I('buffer_load_dwordx4 v%d, %s, %s offen%s lds' % (voff, S4(srd), so, ' offset:%d' % imm if imm else ''), tag=tag))
    return r


def poll_issue(cnt_text):
    r = [I(t) for t in cnt_text]
    r.append(I('buffer_load_dword v%d, off, %s, s%d sc1' % (vP, S4(sWS), sPoll)))
    return r


def poll_check(expect, srd=None, soff=None):
    srd = sWS if srd is None else srd
    soff = ('s%d' % sPoll) if soff is None else soff
    n = nlab[0]
    nlab[0] += 1
    t = sT[0]
    r = L('''
    v_readfirstlane_b32 s%d, v%d
    s_cmp_ge_u32 s%d, %d
    s_cbranch_scc1 L_ok%d
    s_mov_b32 s%d, %d
    ''' % (t, vP, t, expect, n, sIter, OPT['spin']))
    r.append(I('L_spin%d:' % n))
    for x in ['buffer_load_dword v%d, off, %s, %s sc1' % (vP, S4(srd), soff),
              's_waitcnt vmcnt(0)',
              'v_readfirstlane_b32 s%d, v%d' % (t, vP),
              's_nop 0',
              's_cmp_ge_u32 s%d, %d' % (t, expect),
              's_cbranch_scc1 L_ok%d' % n,
              's_sub_u32 s%d, s%d, 1' % (sIter, sIter),
              's_cmp_lg_u32 s%d, 0' % sIter,
              's_cbranch_scc1 L_spin%d' % n]:
        r.append(I(x, raw=True))
    r.append(I('L_ok%d:' % n))
    return r


def signal(cnt_text):
    r = [I(t) for t in cnt_text]
    r += L('''
    s_mov_b64 exec, 1
    buffer_atomic_add v%d, off, %s, s%d
    s_mov_b64 exec, -1
    ''' % (vOne, S4(sWS), sT[1]))
    return r


def mfma(d, a, b, first=False):
    return I('v_mfma_f32_32x32x16_bf16 %s, %s, %s, %s' % (V(d, 16), a, b, '0' if first else V(d, 16)))


class WStream:
    def __init__(self, look=3, nbuf=8):
        self.items = []
        self.look = look
        self.nbuf = nbuf
        self.n = 0

    def step(self, addr0, off0, addr1, off1, mk, pre=None):
        q = aW + 4 * (self.n % self.nbuf)
        self.n += 1
        rd = list(pre or [])
        rd.append(I('ds_read_b64_tr_b16 %s, v%d offset:%d' % (A(q, 2), addr0, off0)))
        rd.append(I('ds_read_b64_tr_b16 %s, v%d offset:%d' % (A(q + 2, 2), addr1, off1)))
        self.items.append((rd, mk(A(q, 4))))

    def build(self):
        out = []
        n = len(self.items)
        for i in range(min(self.look, n)):
            out += self.items[i][0]
        for i in range(n):
            if i + self.look < n:
                out += self.items[i + self.look][0]
            m = self.items[i][1]
            if i % 2 == 0 and i + 1 < n:
                m.ahead = 2
            out.append(m)
        return out


e('s_cmp_ge_u32 s2, 256')
e('s_cbranch_scc1 L_end')
e('s_load_dwordx16 s[80:95], s[0:1], 0')
e('s_load_dwordx4 s[96:99], s[0:1], 64')
stamp('start')
e('s_getpc_b64 s[%d:%d]' % (sCODE, sCODE + 1))
e('L_pc:')
t0, t1, t2, t3, t4, t5 = range(vT, vT + 6)
u = [vU + i for i in range(16)]
e('v_lshrrev_b32 v%d, 6, v0' % t0)
e('v_and_b32 v0, 63, v0')
e('v_readfirstlane_b32 s%d, v%d' % (sW, t0))
e('''
s_and_b32 s3, s2, 7
s_lshr_b32 s{idx}, s2, 3
s_and_b32 s{g}, s{idx}, 1
s_lshl_b32 s3, s3, 1
s_add_u32 s{g}, s{g}, s3
s_lshr_b32 s{m}, s{idx}, 1
s_lshl_b32 s{wk}, s{w}, 10
s_lshl_b32 s{cnt}, s{g}, 13
s_and_b32 s{th}, s{w}, 1
s_lshr_b32 s{kh}, s{w}, 1
s_cmp_ge_u32 s{m}, 7
s_cselect_b32 s{half}, 1, 0
s_mul_i32 s3, s{half}, 7
s_sub_u32 s{cs}, s{m}, s3
'''.format(idx=sIdx, g=sG, m=sM, w=sW, wk=sWK, cnt=sCnt, th=sTh, kh=sKh, half=sHalf, cs=sCs))
e('''
s_cmp_ge_u32 s{cs}, 7
s_cselect_b32 s3, 7, 0
s_sub_u32 s{c0}, s{cs}, s3
'''.format(cs=sCs, c0=sCh))
for i in range(1, 7):
    e('s_add_u32 s%d, s%d, 1' % (sCh + i, sCh + i - 1))
    e('s_cmp_ge_u32 s%d, 7' % (sCh + i))
    e('s_cselect_b32 s%d, 0, s%d' % (sCh + i, sCh + i))
e('''
v_lshlrev_b32 v{l16}, 4, v0
v_mov_b32 v{one}, 1
v_lshrrev_b32 v{u0}, 3, v0
v_and_b32 v{u1}, 7, v0
v_lshrrev_b32 v{u2}, 4, v0
v_and_b32 v{u3}, 31, v0
v_lshrrev_b32 v{u4}, 5, v0
v_bfe_u32 v{u5}, v0, 2, 2
v_and_b32 v{u6}, 3, v0
v_bfe_u32 v{u7}, v0, 4, 1
'''.format(l16=vL16, one=vOne, u0=u[0], u1=u[1], u2=u[2], u3=u[3], u4=u[4], u5=u[5], u6=u[6], u7=u[7]))
e('''
s_lshl_b32 s3, s{g}, 2
s_add_u32 s3, s3, s{w}
s_mul_i32 s3, s3, 28672
s_movk_i32 s{k}, 896
v_mul_u32_u24 v{t0}, s{k}, v{u0}
v_add_u32 v{t0}, s3, v{t0}
v_xor_b32 v{t1}, v{u1}, v{u2}
v_lshl_add_u32 v{x0}, v{t1}, 4, v{t0}
v_xor_b32 v{t1}, 4, v{t1}
v_lshl_add_u32 v{x1}, v{t1}, 4, v{t0}
v_add_u32 v{x2}, 12288, v{x0}
v_add_u32 v{x3}, 18432, v{x1}
v_add_u32 v{x1}, 6144, v{x1}
'''.format(g=sG, w=sW, k=sOff, t0=t0, t1=t1, u0=u[0], u1=u[1], u2=u[2], x0=vOffX, x1=vOffX + 1, x2=vOffX + 2, x3=vOffX + 3))
e('''
s_mul_i32 s3, s{idx}, 14
s_lshl_b32 s{k}, s{w}, 2
s_add_u32 s3, s3, s{k}
v_add_u32 v{t2}, s3, v{u2}
s_movk_i32 s{k}, 2688
v_mul_u32_u24 v{t2}, s{k}, v{t2}
v_and_b32 v{t3}, 15, v0
v_lshl_add_u32 v{t2}, v{t3}, 7, v{t2}
'''.format(idx=sIdx, w=sW, k=sOff, t2=t2, t3=t3, u2=u[2]))
e('@waitlg0')
for srd, ptr, size in ((sX, 80, 1835008), (sQKV, 82, 1204224), (sWO, 84, 401408), (sWD, 92, 1605632),
                       (sOUT, 94, 1835008), (sDBG, 96, 256), (sWS, 98, WS_SIZE)):
    e('s_mov_b32 s%d, s%d' % (srd, ptr))
    e('s_mov_b32 s%d, s%d' % (srd + 1, ptr + 1))
    e('s_mov_b32 s%d, 0x%x' % (srd + 2, size))
    e('s_mov_b32 s%d, 0x20000' % (srd + 3))
    if srd == sQKV:
        e('buffer_load_dword v%d, v%d, %s, 0 offen offset:896' % (vDummy, t2, S4(sQKV)))
e('''
s_cmp_eq_u32 s{m}, 15
s_cselect_b32 s3, 1, 0
s_cmp_eq_u32 s{w}, 0
s_cselect_b32 s23, s3, 0
s_cmp_eq_u32 s23, 0
s_cbranch_scc1 L_nozero
v_lshlrev_b32 v{t3}, 7, v0
v_mov_b32 v{t4}, 0
'''.format(m=sM, w=sW, t3=t3, t4=t4))
e('buffer_store_dword v%d, v%d, %s, s%d offen sc1' % (t4, t3, S4(sWS), sCnt), raw=True)
e('L_nozero:')
XP0 = 12
e('s_mul_i32 s%d, s%d, %d' % (sOff2, sW, 7 * PG))
e('s_add_u32 s%d, s%d, %d' % (sOff2, sOff2, XP0 * PG))


def xdma(i):
    r = L('s_add_u32 m0, s%d, %d\ns_lshl_b32 s%d, s%d, 7' % (sOff2, i * PG, sOff, sCh + i))
    for q in range(4):
        r.append(I('buffer_load_dwordx4 v%d, %s, s%d offen%s lds' % (vOffX + q, S4(sX), sOff, ' offset:%d' % (q * 1024) if q else ''), tag='x%d' % i))
    return r


for i in range(2):
    p.add(xdma(i))
e('''
s_cmp_lt_u32 s{w}, 2
s_cselect_b32 s{gu}, s88, s90
s_cselect_b32 s{gu1}, s89, s91
s_mov_b32 s{gu2}, 1605632
s_mov_b32 s{gu3}, 0x20000
'''.format(w=sW, gu=sGU, gu1=sGU + 1, gu2=sGU + 2, gu3=sGU + 3))
e('''
s_mov_b32 s{c2}, L_end-L_pc
s_mov_b32 s{c3}, 0x20000
s_lshl_b32 s3, s{idx}, 11
s_lshl_b32 s{k}, s{w}, 9
s_add_u32 s3, s3, s{k}
v_lshl_add_u32 v{t3}, v{u6}, 7, s3
buffer_load_dword v{d}, v{t3}, {code}, 0 offen
'''.format(c2=sCODE + 2, c3=sCODE + 3, idx=sIdx, w=sW, k=sOff, t3=t3, u6=u[6], d=t5, code=S4(sCODE)))
for i in range(2, 4):
    p.add(xdma(i))
e('v_cmp_lt_u32 s[%d:%d], 31, v0' % (sMaskHi, sMaskHi + 1))
e('v_cmp_eq_u32 s[%d:%d], 28, v%d' % (sMask28, sMask28 + 1, u[3]))
e('''
v_lshlrev_b32 v{t0}, 7, v{u3}
v_add_u32 v{t0}, s{xb}, v{t0}
v_bfe_u32 v{t1}, v0, 1, 3
v_xor_b32 v{t1}, v{t1}, v{u4}
'''.format(t0=t0, t1=t1, u3=u[3], u4=u[4], xb=sOff2))
for ks in range(4):
    e('v_xor_b32 v%d, %d, v%d' % (t2, 2 * ks, t1))
    e('v_lshl_add_u32 v%d, v%d, 4, v%d' % (vAdX + ks, t2, t0))
e('''
v_lshlrev_b32 v{t0}, 2, v{u7}
v_xor_b32 v{t0}, v{t0}, v{u1}
v_lshrrev_b32 v{t1}, 2, v{t0}
v_and_b32 v{t0}, 3, v{t0}
v_lshlrev_b32 v{t2}, 1, v{t0}
v_min_u32 v{t2}, 5, v{t2}
v_lshlrev_b32 v{t2}, 3, v{t2}
s_movk_i32 s{k}, 896
v_mad_u32_u24 v{t2}, v{t1}, s{k}, v{t2}
s_lshl_b32 s3, s{w}, 3
v_add_u32 v{t3}, s3, v{u0}
s_movk_i32 s{k}, 2688
v_mad_u32_u24 v{t2}, v{t3}, s{k}, v{t2}
s_mul_i32 s3, s{m}, 56
s_add_u32 s4, s3, 896
v_add_u32 v{kv}, s4, v{t2}
'''.format(t0=t0, t1=t1, t2=t2, t3=t3, u0=u[0], u1=u[1], u7=u[7], k=sOff, w=sW, m=sM, kv=vOffKV))
e('''
v_lshlrev_b32 v{t2}, 1, v{u6}
v_min_u32 v{t2}, 5, v{t2}
v_lshlrev_b32 v{t2}, 3, v{t2}
v_lshrrev_b32 v{t3}, 2, v0
s_lshl_b32 s4, s{w}, 4
v_add_u32 v{t3}, s4, v{t3}
v_mad_u32_u24 v{t2}, v{t3}, s{k}, v{t2}
v_add_u32 v{q}, s3, v{t2}
'''.format(t2=t2, t3=t3, u6=u[6], k=sOff, w=sW, q=vOffQ))
WQP = 14
e('''
v_lshlrev_b32 v{t0}, 3, v{u6}
v_lshl_add_u32 v{t0}, v{u7}, 5, v{t0}
v_lshrrev_b32 v{t1}, 1, v{u6}
v_and_b32 v{t1}, v{t1}, v{u7}
v_lshlrev_b32 v{t1}, 3, v{t1}
v_xor_b32 v{t1}, v{t0}, v{t1}
v_lshrrev_b32 v{t2}, 1, v{u5}
v_lshlrev_b32 v{t2}, 6, v{t2}
v_lshl_add_u32 v{t3}, v{u4}, 3, v{u5}
v_xor_b32 v{t4}, v{t1}, v{t2}
v_lshl_add_u32 v{ak}, v{t3}, 7, v{t4}
v_xor_b32 v{av}, 64, v{ak}
v_lshl_add_u32 v{aq}, v{t3}, 6, v{t1}
v_add_u32 v{aq}, {qb}, v{aq}
'''.format(t0=t0, t1=t1, t2=t2, t3=t3, t4=t4, u4=u[4], u5=u[5], u6=u[6], u7=u[7], ak=vAdK, av=vAdV, aq=vAdQ, qb=WQP * PG))
e('''
v_xor_b32 v{t4}, v{t0}, v{t2}
v_lshl_add_u32 v{t4}, v{u5}, 7, v{t4}
s_mul_i32 s3, s{kh}, 28672
v_add_u32 v{p0}, s3, v{t4}
v_xor_b32 v{p1}, 64, v{p0}
v_lshl_add_u32 v{a0}, v{u4}, 9, v{p0}
v_xor_b32 v{a1}, 64, v{a0}
'''.format(t0=t0, t2=t2, t4=t4, u4=u[4], u5=u[5], kh=sKh, p0=vAdWOp, p1=vAdWOp + 1, a0=vAdWO, a1=vAdWO + 1))
e('''
v_lshlrev_b32 v{t0}, 2, v{u7}
v_xor_b32 v{t0}, v{t0}, v{u1}
v_lshlrev_b32 v{t0}, 4, v{t0}
s_movk_i32 s{k}, 896
v_mad_u32_u24 v{t0}, v{u0}, s{k}, v{t0}
s_lshl_b32 s3, s{cs}, 7
s_mul_i32 s4, s{w}, 7168
s_add_u32 s4, s4, s3
v_add_u32 v{wo}, s4, v{t0}
s_mul_i32 s4, s{kh}, 802816
s_mul_i32 s5, s{th}, 7168
s_add_u32 s4, s4, s5
s_add_u32 s4, s4, s3
v_add_u32 v{wd}, s4, v{t0}
'''.format(t0=t0, u0=u[0], u1=u[1], u7=u[7], k=sOff, cs=sCs, w=sW, kh=sKh, th=sTh, wo=vOffWO, wd=vOffWD))
e('''
s_lshl_b32 s4, s{g}, 7
s_lshl_b32 s5, s{half}, 6
s_add_u32 s4, s4, s5
s_lshl_b32 s5, s{w}, 3
s_add_u32 s4, s4, s5
s_mul_i32 s4, s4, 896
s_add_u32 s4, s4, s3
s_lshl_b32 s5, s{th}, 2
v_xor_b32 v{t0}, v{u1}, v{u2}
v_xor_b32 v{t0}, s5, v{t0}
v_lshlrev_b32 v{t0}, 4, v{t0}
v_mad_u32_u24 v{t0}, v{u0}, s{k}, v{t0}
v_add_u32 v{xr}, s4, v{t0}
s_lshl_b32 s{tt}, s{half}, 1
s_add_u32 s{tt}, s{tt}, s{th}
'''.format(t0=t0, u0=u[0], u1=u[1], u2=u[2], k=sOff, g=sG, half=sHalf, w=sW, th=sTh, xr=vOffXR, tt=sTT))
e('''
s_lshl_b32 s4, s{kh}, 2
v_lshl_add_u32 v{t0}, v{u7}, 1, s4
v_xor_b32 v{t0}, v{t0}, v{u1}
v_lshlrev_b32 v{t0}, 4, v{t0}
s_movk_i32 s{k}, 3584
v_mad_u32_u24 v{t0}, v{u0}, s{k}, v{t0}
s_mul_i32 s4, s{th}, 28672
s_lshl_b32 s5, s{m}, 8
s_add_u32 s4, s4, s5
v_add_u32 v{gu}, s4, v{t0}
'''.format(t0=t0, u0=u[0], u1=u[1], u7=u[7], k=sOff, kh=sKh, th=sTh, m=sM, gu=vOffGU))


def kvdma(pg):
    i, hfp = pg >> 1, pg & 1
    so = ['s_mul_i32 s%d, s%d, 172032' % (sOff, sCh + i)]
    if hfp:
        so.append('s_add_u32 s%d, s%d, 86016' % (sOff, sOff))
    return dma(vOffKV, sQKV, so, pg * PG, 'kv%d' % pg)


def qdma(i):
    return dma(vOffQ, sQKV, ['s_mul_i32 s%d, s%d, 172032' % (sOff, sCh + i)], (WQP + i) * PG, 'q%d' % i)


vS, vQ2, vOnes = u[8], u[9], u[10]
e('v_mov_b32 v%d, 0' % vS)
e('v_mov_b32 v%d, 0' % vQ2)
e('v_mov_b32 v%d, 0x3f803f80' % vOnes)


def xdots(i):
    r = []
    for j in range(16):
        reg = vF + 16 * i + j
        r.append(I('v_dot2c_f32_bf16 v%d, v%d, v%d' % (vS, reg, vOnes)))
        r.append(I('v_dot2c_f32_bf16 v%d, v%d, v%d' % (vQ2, reg, reg)))
    return r


kv_next = 0
for i in range(7):
    e('@waitvm x%d' % i)
    if i == 0:
        stamp('x0 landed')
        e('s_cmp_eq_u32 s23, 0')
        e('s_cbranch_scc1 L_nozero2')
        e('s_mov_b64 exec, 1')
        e('buffer_atomic_add v%d, off, %s, 0' % (vOne, S4(sDBG)), raw=True)
        e('s_mov_b64 exec, -1')
        e('L_nozero2:')
    for ks in range(4):
        e('ds_read_b128 %s, v%d offset:%d' % (V(vF + 16 * i + 4 * ks, 4), vAdX + ks, i * PG))
    if i + 4 < 7:
        p.add(xdma(i + 4))
    else:
        p.add(kvdma(kv_next))
        kv_next += 1
    if i > 0:
        p.add(xdots(i - 1))
p.add(kvdma(kv_next))
kv_next += 1
p.add(xdots(6))
e('s_barrier')
stamp('x read')
p.add(kvdma(kv_next))
kv_next += 1


def ln_consts(s, q, r, c):
    a, b = t0, t1
    return L('''
    v_mul_f32 v{a}, 0x{i:x}, v{s}
    v_mul_f32 v{b}, 0x{i:x}, v{q}
    v_fma_f32 v{b}, -v{a}, v{a}, v{b}
    v_max_f32 v{b}, 0, v{b}
    v_cvt_pk_bf16_f32 v{a}, v{a}, v{b}
    v_and_b32 v{b}, 0xffff0000, v{a}
    v_lshlrev_b32 v{a}, 16, v{a}
    v_add_f32 v{b}, 0x{e:x}, v{b}
    v_cvt_pk_bf16_f32 v{b}, v{b}, v{b}
    v_lshlrev_b32 v{b}, 16, v{b}
    v_sqrt_f32 v{b}, v{b}
    v_cvt_pk_bf16_f32 v{b}, v{b}, v{b}
    v_lshlrev_b32 v{b}, 16, v{b}
    v_rcp_f32 v{r}, v{b}
    v_mul_f32 v{c}, v{a}, v{r}
    v_sub_f32 v{c}, 0, v{c}
    '''.format(a=a, b=b, s=s, q=q, r=r, c=c, i=INV448, e=EPS5))


def halves_sum(x):
    return L('''
    v_mov_b32 v{t}, v{x}
    v_permlane32_swap_b32 v{t}, v{x}
    v_add_f32 v{x}, v{t}, v{x}
    '''.format(t=t2, x=x))


vR, vC = u[12], u[14]
p.add(halves_sum(vS))
p.add(halves_sum(vQ2))
p.add(ln_consts(vS, vQ2, vR, vC))


def norm4(reg, tp):
    return L('''
    v_lshlrev_b32 v{a}, 16, v{x}
    v_and_b32 v{b}, 0xffff0000, v{x}
    v_pk_fma_f32 v[{a}:{b}], v[{a}:{b}], v[{r}:{r1}], v[{c}:{c1}] op_sel_hi:[1,0,0]
    v_cvt_pk_bf16_f32 v{x}, v{a}, v{b}
    '''.format(a=tp, b=tp + 1, x=reg, r=vR, r1=vR + 1, c=vC, c1=vC + 1))


def norm5(reg, tp):
    return L('''
    v_lshlrev_b32 v{a}, 16, v{x}
    v_and_b32 v{b}, 0xffff0000, v{x}
    v_fma_f32 v{a}, v{a}, v{r}, v{c}
    v_fma_f32 v{b}, v{b}, v{r}, v{c}
    v_cvt_pk_bf16_f32 v{x}, v{a}, v{b}
    '''.format(a=tp, b=tp + 1, x=reg, r=vR, c=vC))


def zip_groups(groups):
    out = []
    n = max(len(g) for g in groups)
    for k in range(n):
        for g in groups:
            if k < len(g):
                out.append(g[k])
    return out


for i in range(7):
    for j in range(0, 16, 2):
        p.add(zip_groups([norm4(vF + 16 * i + j, u[0]), norm4(vF + 16 * i + j + 1, u[2])]))
        if j in (2, 10) and kv_next < 14 and (i >= 2 or j == 2):
            p.add(kvdma(kv_next))
            kv_next += 1
assert kv_next == 14, kv_next
stamp('normalised')

aK, aV = vX, vX + 16
ws = WStream()
for pg in range(14):
    for ks2 in range(2):
        k = 2 * pg + ks2
        for (acc, ad) in ((aK, vAdK), (aV, vAdV)):
            pre = None
            if ks2 == 0 and acc == aK:
                if pg == 0:
                    pre = L('@waitvm ' + ' '.join('kv%d' % j for j in range(8)) + '\ns_barrier')
                elif pg >= 8:
                    pre = L('@waitvm kv%d\ns_barrier' % pg)
            off = pg * PG + ks2 * 2048
            ws.step(ad, off, ad, off + 512, lambda a, acc=acc, k=k: mfma(acc, V(vF + 4 * k, 4), a, first=(k == 0)), pre)
a1 = ws.build()
a1 = interleave(a1, [qdma(i) for i in range(5)], start=8, end=48)
p.add(a1)
stamp('A1 mfma')


def phi(acc, dst):
    r = []
    cl = u[4]
    r += L('v_mov_b32 v%d, 0x%x' % (cl, LOG2E))
    for j in range(0, 16, 4):
        g = []
        for jj in (j, j + 2):
            a = acc + jj
            tp = u[0] + (jj & 2)
            g.append(L('''
            v_pk_mul_f32 v[{t}:{t1}], v[{a}:{a1}], v[{c}:{c1}] op_sel_hi:[1,0]
            v_min_f32 v{t}, 0, v{t}
            v_min_f32 v{t1}, 0, v{t1}
            v_exp_f32 v{t}, v{t}
            v_exp_f32 v{t1}, v{t1}
            v_max_f32 v{a}, 0x{e:x}, v{a}
            v_max_f32 v{a1}, 0x{e:x}, v{a1}
            v_pk_add_f32 v[{a}:{a1}], v[{a}:{a1}], v[{t}:{t1}]
            v_cvt_pk_bf16_f32 v{d}, v{a}, v{a1}
            '''.format(t=tp, t1=tp + 1, a=a, a1=a + 1, c=cl, c1=cl + 1, e=EPS6, d=dst + jj // 2)))
        r += zip_groups(g)
    return r


vPK, vVV, aKV = vY, vY + 8, vX + 32
for j in range(8):
    e('v_cvt_pk_bf16_f32 v%d, v%d, v%d' % (vVV + j, aV + 2 * j, aV + 2 * j + 1))
for j in range(8):
    e('v_cndmask_b32 v%d, v%d, v%d, s[%d:%d]' % (vVV + j, vVV + j, vOnes, sMask28, sMask28 + 1))
p.add(phi(aK, vPK))
p.add([mfma(aKV, V(vPK, 4), V(vVV, 4), first=True), mfma(aKV, V(vPK + 4, 4), V(vVV + 4, 4))])
SCR = 21
e('s_lshl_b32 s3, s%d, 12' % sW)
e('s_add_u32 s3, s3, %d' % (SCR * PG))
e('v_add_u32 v%d, s3, v%d' % (t0, vL16))
e('s_add_u32 s3, s%d, %d' % (sWK, SCR * PG))
e('v_add_u32 v%d, s3, v%d' % (t1, vL16))
e('buffer_load_dword v%d, off, %s, 0 sc1' % (vP, S4(sDBG)))
for q in range(4):
    e('ds_write_b128 v%d, %s offset:%d' % (t0, V(aKV + 4 * q, 4), q * 1024))
e('@waitlg0')
e('s_barrier')
for j in range(4):
    e('ds_read_b128 %s, v%d offset:%d' % (V(vX + 4 * j, 4), t1, j * PG))
e('''
s_lshl_b32 s3, s{m}, 4
s_add_u32 s3, s3, s{g}
s_lshl_b32 s3, s3, 12
s_add_u32 s3, s3, s{wk}
s_add_u32 s{o}, s3, {base}
'''.format(m=sM, g=sG, wk=sWK, o=sOff, base=WS_KVP))
e('v_pk_add_f32 v[%d:%d], v[%d:%d], v[%d:%d]' % (vX, vX + 1, vX, vX + 1, vX + 4, vX + 5))
e('v_pk_add_f32 v[%d:%d], v[%d:%d], v[%d:%d]' % (vX + 2, vX + 3, vX + 2, vX + 3, vX + 6, vX + 7))
e('v_pk_add_f32 v[%d:%d], v[%d:%d], v[%d:%d]' % (vX + 8, vX + 9, vX + 8, vX + 9, vX + 12, vX + 13))
e('v_pk_add_f32 v[%d:%d], v[%d:%d], v[%d:%d]' % (vX + 10, vX + 11, vX + 10, vX + 11, vX + 14, vX + 15))
e('v_pk_add_f32 v[%d:%d], v[%d:%d], v[%d:%d]' % (vX, vX + 1, vX, vX + 1, vX + 8, vX + 9))
e('v_pk_add_f32 v[%d:%d], v[%d:%d], v[%d:%d]' % (vX + 2, vX + 3, vX + 2, vX + 3, vX + 10, vX + 11))
e('buffer_store_dwordx4 %s, v%d, %s, s%d offen sc1' % (V(vX, 4), vL16, S4(sWS), sOff), tag='kvp')
stamp('kv stored')

aQ = vX + 16
ws = WStream()
for i in range(7):
    for ks in range(4):
        k = 4 * i + ks
        pre = None
        if ks == 0 and i == 0:
            pre = L('@waitvm q0 q1 q2 q3 q4\ns_barrier')
        if ks == 0 and i == 5:
            pre = L('@waitvm q5 q6\ns_barrier')
        off = i * PG + ks * 1024
        ws.step(vAdQ, off, vAdQ, off + 256, lambda a, k=k: mfma(aQ, a, V(vF + 4 * k, 4), first=(k == 0)), pre)
a2 = ws.build()
kvsig = L('@waitvm kvp') + poll_check(16, sDBG, '0') + signal([
    's_lshl_b32 s%d, s%d, 13' % (sT[1], sM), 's_lshl_b32 s%d, s%d, 7' % (sT[2], sW),
    's_add_u32 s%d, s%d, s%d' % (sT[1], sT[1], sT[2]), 's_add_u32 s%d, s%d, %d' % (sT[1], sT[1], C_KV * 128)])
a2 = interleave(a2, [kvsig + qdma(5) + qdma(6)], start=12, end=13)
p.add(a2)

WOP, XRP = 0, 26
W1PG = {}
W2PG = {}


def wodma(pg):
    return dma(vOffWO, sWO, pg * 28672, (WOP + pg) * PG, 'wo')


def xrdma(uu):
    return dma(vOffXR, sX, uu * 28672, (XRP + uu) * PG, 'xr')


def gudma(half, k, page):
    (W2PG if half else W1PG)[k] = page
    return dma(vOffGU, sGU, k * 57344 + half * 128, page * PG, 'gu%d_%d' % (half, k))


e('s_cmp_ge_u32 s%d, 14' % sM)
e('s_cbranch_scc1 L_skip_pf1')
pf1 = []
for pg in range(14):
    pf1 += wodma(pg)
pf1 += xrdma(0) + xrdma(1)
for x in pf1:
    x.raw = True
p.add(pf1)
e('L_skip_pf1:')
p.add(poll_issue(['s_lshl_b32 s%d, s%d, 13' % (sPoll, sM), 's_lshl_b32 s%d, s%d, 7' % (sT[2], sW),
                  's_add_u32 s%d, s%d, s%d' % (sPoll, sPoll, sT[2]), 's_add_u32 s%d, s%d, %d' % (sPoll, sPoll, C_KV * 128)]))
vPQ = vY
p.add(phi(aQ, vPQ))
e('v_cndmask_b32 v%d, v%d, 0, s[%d:%d]' % (vPQ + 6, vPQ + 6, sMaskHi, sMaskHi + 1))
e('v_cndmask_b32 v%d, v%d, 0, s[%d:%d]' % (vPQ + 7, vPQ + 7, sMaskHi, sMaskHi + 1))
stamp('q done')
e('@waitvm0')
p.add(poll_check(16))
stamp('kv flag')
e('''
s_lshl_b32 s3, s{m}, 16
s_add_u32 s3, s3, s{wk}
s_add_u32 s{o}, s3, {base}
'''.format(m=sM, wk=sWK, o=sOff, base=WS_KVP))
for gg in range(16):
    if gg:
        e('s_add_u32 s%d, s%d, 4096' % (sOff, sOff))
    e('buffer_load_dwordx4 %s, v%d, %s, s%d offen sc1' % (V(vX + 4 * gg, 4), vL16, S4(sWS), sOff))
KVS = 25
e('s_lshl_b32 s3, s%d, 9' % sW)
e('s_add_u32 s3, s3, %d' % (KVS * PG))
e('v_lshrrev_b32 v%d, 1, v%d' % (t1, vL16))
e('v_add_u32 v%d, s3, v%d' % (t0, t1))
e('v_add_u32 v%d, %d, v%d' % (t1, KVS * PG, t1))
for st in (1, 2, 4, 8):
    for gg in range(0, 16, 2 * st):
        for hh in (0, 2):
            a, b = vX + 4 * gg + hh, vX + 4 * (gg + st) + hh
            e('v_pk_add_f32 v[%d:%d], v[%d:%d], v[%d:%d]' % (a, a + 1, a, a + 1, b, b + 1))
e('v_cvt_pk_bf16_f32 v%d, v%d, v%d' % (vX, vX, vX + 1))
e('v_cvt_pk_bf16_f32 v%d, v%d, v%d' % (vX + 1, vX + 2, vX + 3))
e('ds_write_b64 v%d, %s' % (t0, V(vX, 2)))
e('@waitlg0')
e('s_barrier')
vKVF = vY + 8
for q in range(4):
    e('ds_read_b64 %s, v%d offset:%d' % (V(vKVF + 2 * q, 2), t1, q * 512))
aO = vX + 16
p.add([mfma(aO, V(vKVF, 4), V(vPQ, 4), first=True), mfma(aO, V(vKVF + 4, 4), V(vPQ + 4, 4))])
e('''
s_lshl_b32 s3, s{g}, 2
s_add_u32 s3, s3, s{w}
s_lshl_b32 s3, s3, 15
s_lshl_b32 s4, s{m}, 11
s_add_u32 s3, s3, s4
s_add_u32 s{o}, s3, {base}
'''.format(g=sG, w=sW, m=sM, o=sOff, base=WS_O))
e('''
v_mov_b32 v{a}, v{d}
v_mov_b32 v{b}, v{d}
v_permlane32_swap_b32 v{a}, v{b}
v_add_f32 v{b}, 0x{eps:x}, v{b}
v_rcp_f32 v{r}, v{b}
v_cndmask_b32 v{r2}, v{r}, 0, s[{mh}:{mh1}]
'''.format(a=t2, b=t3, d=aO + 12, eps=EPS6, r=u[0], r2=u[2], mh=sMaskHi, mh1=sMaskHi + 1))
for j in range(0, 16, 2):
    r = u[2] if j >= 12 else u[0]
    e('v_pk_mul_f32 v[%d:%d], v[%d:%d], v[%d:%d] op_sel_hi:[1,0]' % (aO + j, aO + j + 1, aO + j, aO + j + 1, r, r + 1))
for j in range(8):
    e('v_cvt_pk_bf16_f32 v%d, v%d, v%d' % (vX + j, aO + 2 * j, aO + 2 * j + 1))
e('buffer_store_dwordx4 %s, v%d, %s, s%d offen sc1' % (V(vX, 4), vL16, S4(sWS), sOff))
e('buffer_store_dwordx4 %s, v%d, %s, s%d offen offset:1024 sc1' % (V(vX + 4, 4), vL16, S4(sWS), sOff))
e('@waitvm0')
p.add(signal(['s_lshl_b32 s%d, s%d, 8' % (sT[1], sW), 's_add_u32 s%d, s%d, s%d' % (sT[1], sT[1], sCnt),
              's_lshr_b32 s%d, s%d, 3' % (sT[2], sM), 's_lshl_b32 s%d, s%d, 7' % (sT[2], sT[2]),
              's_add_u32 s%d, s%d, s%d' % (sT[1], sT[1], sT[2])]))
stamp('o stored')
e('s_cmp_ge_u32 s%d, 14' % sM)
e('s_cbranch_scc1 L_fin')
if STOP <= 1:
    e('s_branch L_fin')

free = list(range(28, 40)) + list(range(14, 21))
for k in range(12):
    p.add(gudma(0, k, free[k]))
p.add(poll_issue(['s_lshl_b32 s%d, s%d, 8' % (sPoll, sTT), 's_add_u32 s%d, s%d, s%d' % (sPoll, sPoll, sCnt),
                  's_lshl_b32 s%d, s%d, 7' % (sT[2], sKh), 's_add_u32 s%d, s%d, s%d' % (sPoll, sPoll, sT[2])]))
p.add(poll_check(8))
stamp('o flag')
e('''
s_lshl_b32 s3, s{g}, 2
s_add_u32 s3, s3, s{tt}
s_lshl_b32 s3, s3, 15
s_lshl_b32 s4, s{kh}, 14
s_add_u32 s3, s3, s4
s_add_u32 s{o}, s3, {base}
'''.format(g=sG, tt=sTT, kh=sKh, o=sOff2, base=WS_O))
for j in range(16):
    if j and j % 4 == 0:
        e('s_add_u32 s%d, s%d, 4096' % (sOff2, sOff2))
    e('buffer_load_dwordx4 %s, v%d, %s, s%d offen%s sc1' % (A(aB + 4 * j, 4), vL16, S4(sWS), sOff2, ' offset:%d' % (1024 * (j % 4)) if j % 4 else ''))
e('s_barrier')
aB0, aB1 = vX, vX + 16
ws = WStream()
for j in range(16):
    hh, s = j >> 1, j & 1
    for ft in range(2):
        row0 = 28 * hh + 16 * s
        a1_ = (vAdWOp if s == 1 else vAdWO) + ft
        ws.step(vAdWO + ft, WOP * PG + row0 * 128, a1_, WOP * PG + (row0 + 8) * 128,
                lambda a, ft=ft, j=j: mfma(vX + 16 * ft, a, A(aB + 4 * j, 4), first=(j == 0)))
b = ws.build()
b = interleave(b, [gudma(0, k, free[k]) for k in range(12, 19)], start=4, end=30)
p.add(b)
e('s_lshl_b32 s3, s%d, 12' % sW)
e('s_add_u32 s3, s3, %d' % (SCR * PG))
e('v_add_u32 v%d, s3, v%d' % (t0, vL16))
e('s_xor_b32 s4, s%d, 2' % sW)
e('s_lshl_b32 s4, s4, 12')
e('s_add_u32 s4, s4, %d' % (SCR * PG))
e('v_add_u32 v%d, s4, v%d' % (t1, vL16))


e('s_nop 7')
e('s_nop 3')
e('s_cmp_eq_u32 s%d, 0' % sKh)
e('s_cbranch_scc1 L_prB0')
for q in range(4):
    e('ds_write_b128 v%d, %s offset:%d' % (t0, V(vX + 4 * q, 4), q * 1024), raw=True)
for j in range(0, 16, 2):
    e('v_pk_mul_f32 v[%d:%d], v[%d:%d], 1.0 op_sel_hi:[1,0]' % (vX + j, vX + j + 1, vX + 16 + j, vX + 17 + j), raw=True)
e('s_branch L_prB1')
e('L_prB0:')
for q in range(4):
    e('ds_write_b128 v%d, %s offset:%d' % (t0, V(vX + 16 + 4 * q, 4), q * 1024), raw=True)
e('L_prB1:')
e('''
v_and_b32 v{a}, 31, v0
v_bfe_u32 v{b}, v0, 1, 3
s_lshl_b32 s3, s{kh}, 2
v_xor_b32 v{b}, s3, v{b}
v_lshlrev_b32 v{a}, 7, v{a}
v_lshrrev_b32 v{c}, 5, v0
v_lshl_add_u32 v{a}, v{c}, 3, v{a}
s_lshl_b32 s3, s{th}, 12
s_add_u32 s3, s3, {xb}
v_add_u32 v{a}, s3, v{a}
'''.format(a=t2, b=t3, c=t4, kh=sKh, th=sTh, xb=XRP * PG))
for bq in range(4):
    e('v_xor_b32 v%d, %d, v%d' % (t4, bq, t3))
    e('v_lshl_add_u32 v%d, v%d, 4, v%d' % (t4, t4, t2))
    e('ds_read_b64 %s, v%d' % (V(vY + 2 * bq, 2), t4))
e('s_waitcnt lgkmcnt(0)')
e('s_barrier')
for q in range(4):
    e('ds_read_b128 %s, v%d offset:%d' % (V(vX + 16 + 4 * q, 4), t1, q * 1024))
nxt = [(0, k) for k in range(19, 28)] + [(1, k) for k in range(5)]
for j in range(8):
    e('v_lshlrev_b32 v%d, 16, v%d' % (vX + 32 + 2 * j, vY + j))
    e('v_and_b32 v%d, 0xffff0000, v%d' % (vX + 33 + 2 * j, vY + j))
for j in range(0, 16, 2):
    e('v_pk_add_f32 v[%d:%d], v[%d:%d], v[%d:%d]' % (vX + j, vX + j + 1, vX + j, vX + j + 1, vX + 32 + j, vX + 33 + j))
for j in range(0, 16, 2):
    e('v_pk_add_f32 v[%d:%d], v[%d:%d], v[%d:%d]' % (vX + j, vX + j + 1, vX + j, vX + j + 1, vX + 16 + j, vX + 17 + j))
for j in range(8):
    e('v_cvt_pk_bf16_f32 v%d, v%d, v%d' % (vY + j, vX + 2 * j, vX + 2 * j + 1))
e('''
s_lshl_b32 s3, s{g}, 2
s_add_u32 s3, s3, s{tt}
s_lshl_b32 s4, s{cs}, 1
s_add_u32 s4, s4, s{kh}
s_lshl_b32 s5, s3, 15
s_lshl_b32 s6, s4, 11
s_add_u32 s5, s5, s6
s_add_u32 s{o}, s5, {hb}
s_lshl_b32 s5, s3, 12
s_lshl_b32 s6, s4, 8
s_add_u32 s5, s5, s6
s_add_u32 s{o2}, s5, {sb}
'''.format(g=sG, tt=sTT, cs=sCs, kh=sKh, o=sOff, o2=sOff2, hb=WS_H, sb=WS_ST))
e('buffer_store_dwordx4 %s, v%d, %s, s%d offen sc1' % (V(vY, 4), vL16, S4(sWS), sOff))
e('buffer_store_dwordx4 %s, v%d, %s, s%d offen offset:1024 sc1' % (V(vY + 4, 4), vL16, S4(sWS), sOff))
vS, vQ2 = u[8], u[9]
e('v_mov_b32 v%d, 0' % vS)
e('v_mov_b32 v%d, 0' % vQ2)
for j in range(8):
    e('v_dot2c_f32_bf16 v%d, v%d, v%d' % (vS, vY + j, vOnes))
    e('v_dot2c_f32_bf16 v%d, v%d, v%d' % (vQ2, vY + j, vY + j))
e('v_and_b32 v%d, 31, v0' % t4)
e('v_lshlrev_b32 v%d, 3, v%d' % (t4, t4))
p.add(halves_sum(vS))
p.add(halves_sum(vQ2))
e('buffer_store_dwordx2 %s, v%d, %s, s%d offen sc1' % (V(vS, 2), t4, S4(sWS), sOff2))
for j in range(8):
    e('v_accvgpr_write_b32 a%d, v%d' % (aH + j, vY + j))
e('@waitvm0')
p.add(signal(['s_lshl_b32 s%d, s%d, 7' % (sT[1], sTT), 's_add_u32 s%d, s%d, s%d' % (sT[1], sT[1], sCnt),
              's_add_u32 s%d, s%d, %d' % (sT[1], sT[1], C_H * 128)]))
stamp('h stored')
if STOP <= 2:
    e('s_branch L_fin')

for n, (hf_, k) in enumerate(nxt):
    p.add(gudma(hf_, k, n))
p.add(poll_issue(['s_lshl_b32 s%d, s%d, 7' % (sPoll, sW), 's_add_u32 s%d, s%d, s%d' % (sPoll, sPoll, sCnt),
                  's_add_u32 s%d, s%d, %d' % (sPoll, sPoll, C_H * 128)]))
e('''
v_bfe_u32 v{r}, v0, 2, 2
v_bfe_u32 v{iu}, v0, 4, 1
v_lshrrev_b32 v{hf}, 5, v0
v_lshl_add_u32 v{a}, v{hf}, 2, v{r}
v_lshlrev_b32 v{a}, 7, v{a}
v_lshl_add_u32 v{a}, v{iu}, 11, v{a}
v_and_b32 v{b}, 1, v0
v_lshl_add_u32 v{a}, v{b}, 3, v{a}
v_lshrrev_b32 v{b}, 1, v{r}
v_lshl_add_u32 v{b}, v{iu}, 1, v{b}
v_lshlrev_b32 v{b}, 1, v{b}
v_bfe_u32 v{c}, v0, 1, 1
v_xor_b32 v{b}, v{b}, v{c}
'''.format(r=u[0], iu=u[1], hf=u[2], a=t0, b=t1, c=t2))
for t in range(4):
    e('v_xor_b32 v%d, %d, v%d' % (t2, 2 * t, t1))
    e('v_lshl_add_u32 v%d, v%d, 4, v%d' % (vAdC + t, t2, t0))
e('''
s_mul_i32 s3, s{kh}, 26624
v_subrev_u32 v{d0}, s3, v{w0}
v_subrev_u32 v{d1}, s3, v{w1}
v_and_b32 v{a}, 31, v0
v_lshlrev_b32 v{a}, 3, v{a}
s_movk_i32 s3, 1792
v_mad_u32_u24 v{a}, v{hf}, s3, v{a}
s_lshl_b32 s3, s{g}, 2
s_add_u32 s3, s3, s{w}
s_lshl_b32 s4, s3, 12
s_add_u32 s{o}, s4, {sb}
s_lshl_b32 s4, s3, 15
s_add_u32 s{o2}, s4, {hb}
'''.format(kh=sKh, d0=vAdD, d1=vAdD + 1, w0=vAdWO, w1=vAdWO + 1, a=t4, hf=u[2], g=sG, w=sW, o=sT[8], o2=sOff2, sb=WS_ST, hb=WS_H))
e('s_barrier')
for n in range(7):
    p.add(gudma(1, 5 + n, 21 + n))
p.add(poll_check(14))
stamp('h flag')
for i in range(7):
    e('buffer_load_dwordx2 %s, v%d, %s, s%d offen offset:%d sc1' % (V(vY + 2 * i, 2), t4, S4(sWS), sT[8], 256 * i))
for k in range(28):
    if k and k % 4 == 0:
        e('s_add_u32 s%d, s%d, 4096' % (sOff2, sOff2))
    e('buffer_load_dwordx4 %s, v%d, %s, s%d offen%s sc1' % (V(vF + 4 * k, 4), vL16, S4(sWS), sOff2, ' offset:%d' % (1024 * (k % 4)) if k % 4 else ''))
for (a, b) in ((0, 2), (4, 6), (8, 10), (0, 4), (8, 12), (0, 8)):
    e('v_pk_add_f32 v[%d:%d], v[%d:%d], v[%d:%d]' % (vY + a, vY + a + 1, vY + a, vY + a + 1, vY + b, vY + b + 1))
p.add(halves_sum(vY))
p.add(halves_sum(vY + 1))
p.add(ln_consts(vY, vY + 1, vR, vC))
e('''
s_lshl_b32 s3, s{g}, 2
s_add_u32 s3, s3, s{w}
s_mul_i32 s3, s3, 112
s_lshl_b32 s4, s{m}, 3
s_add_u32 s3, s3, s4
s_lshl_b32 s3, s3, 10
s_add_u32 s{o}, s3, {base}
'''.format(g=sG, w=sW, m=sM, o=sT[9], base=WS_HH))
sHHst = sT[9]


class Win:
    def __init__(self, regs):
        self.regs = regs
        self.cur = {r: 0 for r in regs}

    def fix(self, reg, off):
        w = (off // 61440)
        base = w * 61440
        pre = []
        if self.cur[reg] != base:
            d = base - self.cur[reg]
            if d > 0:
                pre.append(I('v_add_u32 v%d, %d, v%d' % (reg, d, reg)))
            else:
                pre.append(I('v_subrev_u32 v%d, %d, v%d' % (reg, -d, reg)))
            self.cur[reg] = base
        return pre, off - base


winC = Win([vAdC + t for t in range(4)])
winD = Win([vAdD, vAdD + 1])
NEGL = 0xbfb8aa3b


def epilogue(tile, acc):
    g = []
    for j in range(0, 8, 2):
        tp = u[0] + (j & 2)
        a = acc + j
        g += L('''
        v_mul_f32 v{t}, 0x{c:x}, v{a}
        v_mul_f32 v{t1}, 0x{c:x}, v{a1}
        v_exp_f32 v{t}, v{t}
        v_exp_f32 v{t1}, v{t1}
        v_add_f32 v{t}, 1.0, v{t}
        v_add_f32 v{t1}, 1.0, v{t1}
        v_rcp_f32 v{t}, v{t}
        v_rcp_f32 v{t1}, v{t1}
        v_mul_f32 v{t}, v{t}, v{b}
        v_mul_f32 v{t1}, v{t1}, v{b1}
        v_cvt_pk_bf16_f32 v{d}, v{t}, v{t1}
        '''.format(t=tp, t1=tp + 1, a=a, a1=a + 1, b=a + 8, b1=a + 9, c=NEGL, d=u[4] + (tile & 1) * 4 + j // 2))
    d = u[4] + (tile & 1) * 4
    if tile >= 4:
        g.append([I('s_add_u32 s%d, s%d, 4096' % (sOff, sHHst)),
                  I('buffer_store_dwordx4 %s, v%d, %s, s%d offen%s sc1' % (V(d, 4), vL16, S4(sWS), sOff, ' offset:%d' % (1024 * (tile - 4)) if tile > 4 else ''), tag='hh%d' % tile)])
    else:
        g.append(I('buffer_store_dwordx4 %s, v%d, %s, s%d offen%s sc1' % (V(d, 4), vL16, S4(sWS), sHHst, ' offset:%d' % (1024 * tile) if tile else ''), tag='hh%d' % tile))
    return g


def hhsig(stage, tiles):
    return L('@waitvm ' + ' '.join('hh%d' % t for t in tiles)) + signal([
        's_lshl_b32 s%d, s%d, 10' % (sT[1], sW), 's_add_u32 s%d, s%d, s%d' % (sT[1], sT[1], sCnt),
        's_lshl_b32 s%d, s%d, 9' % (sT[2], sHalf), 's_add_u32 s%d, s%d, s%d' % (sT[1], sT[1], sT[2]),
        's_add_u32 s%d, s%d, %d' % (sT[1], sT[1], (C_HH + stage) * 128)])


PASSES = OPT['passes']
assert sum(PASSES) == 8 and PASSES[0] == 4
tiles_of = []
t_ = 0
for n in PASSES:
    tiles_of.append(list(range(t_, t_ + n)))
    t_ += n
acc_of = {0: vX, 1: vX + 16, 2: vX + 32, 3: vX + 48}
if PASSES == (4, 2, 2):
    acc_of.update({4: vY, 5: vY + 16, 6: vX, 7: vX + 16})
else:
    raise NotImplementedError
D_ORDER = []
for st, tl in enumerate(tiles_of):
    for t in tl:
        for j in range(7):
            D_ORDER.append((j, t, st))
WDPG = {}
wd_next = [0]


def wddma(page):
    n = wd_next[0]
    wd_next[0] += 1
    j, t, st = D_ORDER[n]
    WDPG[n] = page
    return dma(vOffWD, sWD, (128 * j + 16 * t) * 896, page * PG, 'wd%d' % n)


for j in range(8):
    p.add(zip_groups([norm4(vF + j, u[0])]))
ws = WStream()
BSTEP = 4
w2_todo = list(range(12, 28))
fills = {}


def addfill(idx, grp):
    fills.setdefault(idx, []).append(grp)


def apply_fills(stream):
    out = []
    c = 0
    for x in stream:
        out.append(x)
        if x.kind == 'mfma':
            for f in fills.get(c, []):
                if isinstance(f, list):
                    out.extend(f)
                else:
                    out.append(f)
            c += 1
    fills.clear()
    return out


for k in range(28):
    for t in range(4):
        pre = []
        if t == 0 and k == 0:
            pre += L('@waitvm ' + ' '.join('gu0_%d' % j for j in range(28)) + '\ns_barrier')
        pr, off = winC.fix(vAdC + t, W1PG[k] * PG)
        pre += pr
        ws.step(vAdC + t, off, vAdC + t, off + 1024, lambda a, t=t, k=k: mfma(acc_of[t], a, V(vF + 4 * k, 4), first=(k == 0)), pre)
    if k + 2 < 28:
        for j in range(4):
            for x in norm5(vF + 4 * (k + 2) + j, u[0] + 2 * (j & 1)):
                addfill(4 * k + j, x)
    if k % BSTEP == BSTEP - 1:
        grp = L('s_barrier')
        addfill(4 * k + 3, grp)
        pages = [W1PG[kk] for kk in range(k - BSTEP + 1, k + 1)]
        if k < 27:
            for n, pg in enumerate(pages):
                if w2_todo:
                    addfill(4 * (k + 1) + 3 * n + 1, gudma(1, w2_todo.pop(0), pg))
                else:
                    addfill(4 * (k + 1) + 3 * n + 1, wddma(pg))
        else:
            carry = pages
p.add(apply_fills(ws.build()))
stamp('P1')

for ps in range(1, len(PASSES)):
    tl = tiles_of[ps]
    last = ps == len(PASSES) - 1
    ws = WStream()
    nm = 28 * len(tl)
    for n, pg in enumerate(carry):
        addfill(2 + 3 * n, wddma(pg))
    carry = []
    for k in range(28):
        for t in tl:
            pre = []
            if ps == 1 and t == tl[0] and k in (0, 12, 20):
                hi = {0: 12, 12: 20, 20: 28}[k]
                pre += L('@waitvm ' + ' '.join('gu1_%d' % j for j in range(k, hi)) + '\ns_barrier')
            pr, off = winC.fix(vAdC + t - 4, W2PG[k] * PG)
            pre += pr
            ws.step(vAdC + t - 4, off, vAdC + t - 4, off + 1024, lambda a, t=t, k=k: mfma(acc_of[t], a, V(vF + 4 * k, 4), first=(k == 0)), pre)
        if last and k % BSTEP == BSTEP - 1:
            addfill(len(tl) * (k + 1) - 1, L('s_barrier'))
            pages = [W2PG[kk] for kk in range(k - BSTEP + 1, k + 1)]
            if k < 27:
                for n, pg in enumerate(pages):
                    addfill(len(tl) * (k + 1) + 2 * n, wddma(pg))
            else:
                carry = pages
    ep = []
    for t in tiles_of[ps - 1]:
        ep += epilogue(t, acc_of[t])
    span = nm - 4
    for n, x in enumerate(ep):
        addfill(1 + n * span // len(ep), x)
    if ps >= 2:
        addfill(10, hhsig(ps - 2, tiles_of[ps - 2]))
    p.add(apply_fills(ws.build()))
    stamp('P%d' % (ps + 1))
nst = len(PASSES)
for pg in carry:
    p.add(wddma(pg))
carry = []
ep = []
for t in tiles_of[-1]:
    ep += epilogue(t, acc_of[t])
half_ep = len(ep) // 2
for x in ep[:half_ep]:
    p.add(x if isinstance(x, list) else [x])
p.add(hhsig(nst - 2, tiles_of[-2]))
for x in ep[half_ep:]:
    p.add(x if isinstance(x, list) else [x])
if STOP <= 3:
    p.add(hhsig(nst - 1, tiles_of[-1]))
    e('s_branch L_fin')

sHHld = sT[8]
e('''
s_lshl_b32 s3, s{g}, 2
s_add_u32 s3, s3, s{tt}
s_mul_i32 s3, s3, 112
s_mul_i32 s4, s{kh}, 56
s_add_u32 s3, s3, s4
s_lshl_b32 s3, s3, 10
s_add_u32 s{o}, s3, {base}
'''.format(g=sG, tt=sTT, kh=sKh, o=sHHld, base=WS_HH))


def hhpoll(stage):
    return poll_issue(['s_lshl_b32 s%d, s%d, 10' % (sPoll, sTT), 's_add_u32 s%d, s%d, s%d' % (sPoll, sPoll, sCnt),
                       's_lshl_b32 s%d, s%d, 9' % (sT[2], sKh), 's_add_u32 s%d, s%d, s%d' % (sPoll, sPoll, sT[2]),
                       's_add_u32 s%d, s%d, %d' % (sPoll, sPoll, (C_HH + stage) * 128)])


NQ = 54


def hhload(n):
    j, t, st = D_ORDER[n]
    ko = (8 * j + t) * 1024
    r = [I('s_add_u32 s%d, s%d, %d' % (sOff2, sHHld, ko & ~4095))]
    r.append(I('buffer_load_dwordx4 %s, v%d, %s, s%d offen%s sc1' % (A(aB + 4 * (n % NQ), 4), vL16, S4(sWS), sOff2, ' offset:%d' % (ko & 4095) if ko & 4095 else '')))
    return r


p.add(hhpoll(0))
p.add(hhsig(nst - 1, tiles_of[-1]))
stamp('hh stored')
p.add(poll_check(7))
stage_start = {}
for n, (j, t, st) in enumerate(D_ORDER):
    stage_start.setdefault(st, n)
stage_start[nst] = 56
for n in range(stage_start[1]):
    p.add(hhload(n))
p.add(hhpoll(1))
ws = WStream()
DB = 8
resident = wd_next[0]
assert resident == 40
wpts = {0: 16, 16: resident, resident: 56}
for n in range(56):
    for ft in range(2):
        pre = []
        if ft == 0 and n in wpts:
            pre += L('@waitvm ' + ' '.join('wd%d' % q for q in range(n, wpts[n])) + '\ns_barrier')
        pr, off = winD.fix(vAdD + ft, WDPG[n] * PG)
        pre += pr
        ws.step(vAdD + ft, off, vAdD + ft, off + 1024, lambda a, ft=ft, n=n: mfma(vX + 32 + 16 * ft, a, A(aB + 4 * (n % NQ), 4), first=(n == 0)), pre)
    if n % DB == DB - 1 and wd_next[0] < 56:
        addfill(2 * n + 1, L('s_barrier'))
        for q, nn in enumerate(range(n - DB + 1, n + 1)):
            if wd_next[0] < 56:
                addfill(2 * n + 2 + q, wddma(WDPG[nn]))
for st in range(1, nst):
    at = max(0, 2 * stage_start[st] - 30) if st == 1 else 2 * stage_start[st] - 16
    grp = poll_check(7)
    for n in range(stage_start[st], stage_start[st + 1]):
        grp = grp + hhload(n)
    if st + 1 < nst:
        grp = grp + hhpoll(st + 1)
    addfill(at, grp)
p.add(apply_fills(ws.build()))
stamp('D mfma')
e('s_barrier')
RP = 0
e('s_lshl_b32 s3, s%d, 12' % sW)
e('v_add_u32 v%d, s3, v%d' % (t0, vL16))
e('s_xor_b32 s4, s3, 8192')
e('v_add_u32 v%d, s4, v%d' % (t1, vL16))
D0 = vX + 32
e('s_nop 7')
e('s_cmp_eq_u32 s%d, 0' % sKh)
e('s_cbranch_scc1 L_prD0')
for q in range(4):
    e('ds_write_b128 v%d, %s offset:%d' % (t0, V(D0 + 4 * q, 4), q * 1024), raw=True)
for j in range(0, 16, 2):
    e('v_pk_mul_f32 v[%d:%d], v[%d:%d], 1.0 op_sel_hi:[1,0]' % (D0 + j, D0 + j + 1, D0 + 16 + j, D0 + 17 + j), raw=True)
e('s_branch L_prD1')
e('L_prD0:')
for q in range(4):
    e('ds_write_b128 v%d, %s offset:%d' % (t0, V(D0 + 16 + 4 * q, 4), q * 1024), raw=True)
e('L_prD1:')
for j in range(8):
    e('v_accvgpr_read_b32 v%d, a%d' % (vY + j, aH + j))
e('s_waitcnt lgkmcnt(0)')
e('s_barrier')
for q in range(4):
    e('ds_read_b128 %s, v%d offset:%d' % (V(vX + 4 * q, 4), t1, q * 1024))
for j in range(8):
    e('v_lshlrev_b32 v%d, 16, v%d' % (vX + 16 + 2 * j, vY + j))
    e('v_and_b32 v%d, 0xffff0000, v%d' % (vX + 17 + 2 * j, vY + j))
for j in range(0, 16, 2):
    e('v_pk_add_f32 v[%d:%d], v[%d:%d], v[%d:%d]' % (D0 + j, D0 + j + 1, D0 + j, D0 + j + 1, vX + 16 + j, vX + 17 + j))
e('''
s_lshl_b32 s3, s{g}, 2
s_add_u32 s3, s3, s{tt}
s_mul_i32 s3, s3, 28672
s_lshl_b32 s4, s{cs}, 7
s_add_u32 s3, s3, s4
s_lshl_b32 s4, s{kh}, 6
s_add_u32 s{o}, s3, s4
v_and_b32 v{a}, 31, v0
s_movk_i32 s3, 896
v_mul_u32_u24 v{a}, s3, v{a}
v_lshrrev_b32 v{b}, 5, v0
v_lshl_add_u32 v{a}, v{b}, 4, v{a}
'''.format(g=sG, tt=sTT, cs=sCs, kh=sKh, o=sOff, a=t2, b=t3))
for j in range(0, 16, 2):
    e('v_pk_add_f32 v[%d:%d], v[%d:%d], v[%d:%d]' % (D0 + j, D0 + j + 1, D0 + j, D0 + j + 1, vX + j, vX + j + 1))
for j in range(8):
    e('v_cvt_pk_bf16_f32 v%d, v%d, v%d' % (vY + j, D0 + 2 * j, D0 + 2 * j + 1))
for bb in (0, 4):
    e('v_permlane32_swap_b32 v%d, v%d' % (vY + bb, vY + bb + 2))
    e('v_permlane32_swap_b32 v%d, v%d' % (vY + bb + 1, vY + bb + 3))
e('buffer_store_dwordx4 %s, v%d, %s, s%d offen' % (V(vY, 4), t2, S4(sOUT), sOff))
e('buffer_store_dwordx4 %s, v%d, %s, s%d offen offset:32' % (V(vY + 4, 4), t2, S4(sOUT), sOff))
e('L_fin:')
if DIAG:
    e('s_waitcnt vmcnt(0)')
    e('s_memrealtime s[76:77]')
    e('s_waitcnt lgkmcnt(0)')
    e('s_lshl_b32 s3, s2, 2')
    e('s_add_u32 s3, s3, s%d' % sW)
    e('s_lshl_b32 s3, s3, 6')
    e('s_add_u32 s3, s3, %d' % WS_TS)
    for n in range(12):
        e('v_mov_b32 v%d, s%d' % (vX + n, sTS + 2 * n))
    e('v_mov_b32 v%d, s76' % (vX + 12))
    e('s_getreg_b32 s4, hwreg(HW_REG_XCC_ID)')
    e('v_mov_b32 v%d, s4' % (vX + 13))
    e('s_mov_b64 exec, 1')
    for q in range(4):
        e('buffer_store_dwordx4 %s, off, %s, s3 offset:%d' % (V(vX + 4 * q, 4), S4(sWS), 16 * q))
e('s_waitcnt vmcnt(0) lgkmcnt(0)')
e('L_end:')
e('s_endpgm')

p.finalize()
hdr = open('sequential_preLN__linear_attn_block__glu_gated_glu__prompt.s.ref').read().split('\n')
head = [l for l in hdr if l.startswith(';') and '@launch' not in l and 'Override' not in l and 'grid=ceil' not in l]
out = '\n'.join(head) + '''
; @launch grid=(256,1,1) block=(256,1,1) lds=163840
.amdgcn_target "amdgcn-amd-amdhsa--gfx950"
.text
.globl {n}
.p2align 8
.type {n},@function
{n}:
{body}
.section .rodata,"a"
.p2align 6
.amdhsa_kernel {n}
  .amdhsa_next_free_vgpr 512
  .amdhsa_next_free_sgpr 102
  .amdhsa_accum_offset 256
  .amdhsa_group_segment_fixed_size 0
  .amdhsa_kernarg_size 80
  .amdhsa_user_sgpr_count 2
  .amdhsa_user_sgpr_kernarg_segment_ptr 1
  .amdhsa_system_sgpr_workgroup_id_x 1
  .amdhsa_float_denorm_mode_32 3
.end_amdhsa_kernel
'''.format(n=NAME, body=p.text())
open(sys.argv[1], 'w').write(out)
kinds = {}
for i in p.out:
    kinds[i.kind] = kinds.get(i.kind, 0) + 1
print(kinds, p.stats, file=sys.stderr)
```

```python
import sys
from asmlib import Prog, I, interleave

NAME = 'sequential_preLN__linear_attn_block__glu_gated_glu__prompt_kernel'

OPT = dict(diag=0, stop=99, passes=(4, 2, 2), spin=200000, abl='', cyc=0, st=None)
for a in sys.argv[2:]:
    k, v = a.split('=')
    OPT[k] = eval(v)
DIAG = OPT['diag']
STOP = OPT['stop']

WS_CNT = 0
WS_KVP = 0x20000
WS_O = 0x120000
WS_H = 0x320000
WS_ST = 0x520000
WS_HH = 0x560000
WS_TS = 0xC60000
WS_SIZE = 0xD00000
C_O, C_H, C_KV, C_HH = 0, 8, 12, 16

sX, sQKV, sWO, sGU, sWD, sOUT, sWS, sDBG, sCODE = 24, 28, 32, 36, 40, 44, 48, 52, 56
sG, sM, sW, sIdx, sWK, sHalf, sCs, sTh, sKh, sCnt = 60, 61, 62, 63, 64, 65, 66, 67, 68, 69
sCh = 70
sT = [3, 4, 5, 6, 7, 8, 9, 10, 11, 12, 13]
sMaskHi = 14
sMask28 = 16
sOff = 18
sOff2 = 19
sIter = 20
sPoll = 21
sTT = 22
sTS = 78


def S4(b):
    return 's[%d:%d]' % (b, b + 3)


def V(b, n=1):
    return 'v%d' % b if n == 1 else 'v[%d:%d]' % (b, b + n - 1)


def A(b, n=1):
    return 'a%d' % b if n == 1 else 'a[%d:%d]' % (b, b + n - 1)


vL16, vOne, vP, vDummy = 1, 2, 3, 4
vOffX = 5
vAdX = 9
vAdC = 9
vOffKV, vAdK, vAdV, vOffQ, vAdQ = 13, 14, 15, 16, 17
vAdD = 14
vOffWO, vOffXR, vOffGU, vOffWD = 18, 19, 20, 21
vAdWO, vAdWOp = 22, 24
vT = 26
vY = 32
vX = 64
vF = 128
vU = 240
aW = 0
aH = 32
aB = 40

PG = 4096
LOG2E = 0x3fb8aa3b
EPS6 = 0x358637bd
EPS5 = 0x3727c5ac
INV448 = 0x3b124925

p = Prog()
e = p.e
nstamp = [0]
nlab = [0]


def stamp(name=''):
    if not DIAG:
        return
    early = ('o flag', 'x0 landed', 'x read', 'normalised', 'A1 mfma', 'kv stored', 'q done', 'kv flag', 'kv loaded')
    late = ('h stored', 'h flag', 'P1', 'P2', 'P3', 'P4', 'hh stored', 'D mfma', 'D0', 'D1')
    if OPT['st'] is not None:
        if name != 'start' and name not in OPT['st']:
            return
    elif (DIAG == 1 and name in late) or (DIAG == 2 and name in early) or name.startswith('_'):
        return
    n = nstamp[0]
    assert n < 11
    e('%s s[%d:%d] ; @%s' % ('s_memtime' if OPT['cyc'] else 's_memrealtime', sTS + 2 * n, sTS + 2 * n + 1, name))
    nstamp[0] += 1


def L(x):
    return [I(t.strip()) for t in x.strip().split('\n') if t.strip()]


def dma(voff, srd, soff, page_off, tag, imm=0, wave_stride=True):
    r = []
    if wave_stride:
        r.append(I('s_add_u32 m0, s%d, 0x%x' % (sWK, page_off)))
    if isinstance(soff, int):
        if soff == 0:
            so = '0'
        else:
            r.append(I('s_mov_b32 s%d, 0x%x' % (sOff, soff)))
            so = 's%d' % sOff
    elif isinstance(soff, str):
        so = soff
    else:
        r += [I(t) for t in soff]
        so = 's%d' % sOff
    r.append(I('buffer_load_dwordx4 v%d, %s, %s offen%s lds' % (voff, S4(srd), so, ' offset:%d' % imm if imm else ''), tag=tag))
    return r


def poll_issue(cnt_text):
    r = [I(t) for t in cnt_text]
    r.append(I('buffer_load_dword v%d, off, %s, s%d sc1' % (vP, S4(sWS), sPoll)))
    return r


def poll_check(expect, srd=None, soff=None):
    srd = sWS if srd is None else srd
    soff = ('s%d' % sPoll) if soff is None else soff
    n = nlab[0]
    nlab[0] += 1
    t = sT[0]
    r = L('''
    v_readfirstlane_b32 s%d, v%d
    s_cmp_ge_u32 s%d, %d
    s_cbranch_scc1 L_ok%d
    s_mov_b32 s%d, %d
    ''' % (t, vP, t, expect, n, sIter, OPT['spin']))
    r.append(I('L_spin%d:' % n))
    for x in ['buffer_load_dword v%d, off, %s, %s sc1' % (vP, S4(srd), soff),
              's_waitcnt vmcnt(0)',
              'v_readfirstlane_b32 s%d, v%d' % (t, vP),
              's_nop 0',
              's_cmp_ge_u32 s%d, %d' % (t, expect),
              's_cbranch_scc1 L_ok%d' % n,
              's_sub_u32 s%d, s%d, 1' % (sIter, sIter),
              's_cmp_lg_u32 s%d, 0' % sIter,
              's_cbranch_scc1 L_spin%d' % n]:
        r.append(I(x, raw=True))
    r.append(I('L_ok%d:' % n))
    return r


def signal(cnt_text):
    r = [I(t) for t in cnt_text]
    r += L('''
    s_mov_b64 exec, 1
    buffer_atomic_add v%d, off, %s, s%d
    s_mov_b64 exec, -1
    ''' % (vOne, S4(sWS), sT[1]))
    return r


def mfma(d, a, b, first=False):
    return I('v_mfma_f32_32x32x16_bf16 %s, %s, %s, %s' % (V(d, 16), a, b, '0' if first else V(d, 16)))


class WStream:
    def __init__(self, look=3, nbuf=8):
        self.items = []
        self.look = look
        self.nbuf = nbuf
        self.n = 0

    def step(self, addr0, off0, addr1, off1, mk, pre=None):
        q = aW + 4 * (self.n % self.nbuf)
        self.n += 1
        rd = list(pre or [])
        rd.append(I('ds_read_b64_tr_b16 %s, v%d offset:%d' % (A(q, 2), addr0, off0)))
        rd.append(I('ds_read_b64_tr_b16 %s, v%d offset:%d' % (A(q + 2, 2), addr1, off1)))
        self.items.append((rd, mk(A(q, 4))))

    def build(self):
        out = []
        n = len(self.items)
        for i in range(min(self.look, n)):
            out += self.items[i][0]
        for i in range(n):
            if i + self.look < n:
                out += self.items[i + self.look][0]
            m = self.items[i][1]
            if i % 2 == 0 and i + 1 < n:
                m.ahead = 2
            out.append(m)
        return out


e('s_cmp_ge_u32 s2, 256')
e('s_cbranch_scc1 L_end')
e('s_load_dwordx16 s[80:95], s[0:1], 0')
e('s_load_dwordx4 s[96:99], s[0:1], 64')
stamp('start')
if DIAG:
    e('s_memtime s[100:101]')
e('s_getpc_b64 s[%d:%d]' % (sCODE, sCODE + 1))
e('L_pc:')
t0, t1, t2, t3, t4, t5 = range(vT, vT + 6)
u = [vU + i for i in range(16)]
e('v_lshrrev_b32 v%d, 6, v0' % t0)
e('v_and_b32 v0, 63, v0')
e('v_readfirstlane_b32 s%d, v%d' % (sW, t0))
e('''
s_and_b32 s3, s2, 7
s_lshr_b32 s{idx}, s2, 3
s_and_b32 s{g}, s{idx}, 1
s_lshl_b32 s3, s3, 1
s_add_u32 s{g}, s{g}, s3
s_lshr_b32 s{m}, s{idx}, 1
s_lshl_b32 s{wk}, s{w}, 10
s_lshl_b32 s{cnt}, s{g}, 13
s_and_b32 s{th}, s{w}, 1
s_lshr_b32 s{kh}, s{w}, 1
s_cmp_ge_u32 s{m}, 7
s_cselect_b32 s{half}, 1, 0
s_mul_i32 s3, s{half}, 7
s_sub_u32 s{cs}, s{m}, s3
'''.format(idx=sIdx, g=sG, m=sM, w=sW, wk=sWK, cnt=sCnt, th=sTh, kh=sKh, half=sHalf, cs=sCs))
e('''
s_cmp_ge_u32 s{cs}, 7
s_cselect_b32 s3, 7, 0
s_sub_u32 s{c0}, s{cs}, s3
'''.format(cs=sCs, c0=sCh))
for i in range(1, 7):
    e('s_add_u32 s%d, s%d, 1' % (sCh + i, sCh + i - 1))
    e('s_cmp_ge_u32 s%d, 7' % (sCh + i))
    e('s_cselect_b32 s%d, 0, s%d' % (sCh + i, sCh + i))
e('''
v_lshlrev_b32 v{l16}, 4, v0
v_mov_b32 v{one}, 1
v_lshrrev_b32 v{u0}, 3, v0
v_and_b32 v{u1}, 7, v0
v_lshrrev_b32 v{u2}, 4, v0
v_and_b32 v{u3}, 31, v0
v_lshrrev_b32 v{u4}, 5, v0
v_bfe_u32 v{u5}, v0, 2, 2
v_and_b32 v{u6}, 3, v0
v_bfe_u32 v{u7}, v0, 4, 1
'''.format(l16=vL16, one=vOne, u0=u[0], u1=u[1], u2=u[2], u3=u[3], u4=u[4], u5=u[5], u6=u[6], u7=u[7]))
e('''
s_lshl_b32 s3, s{g}, 2
s_add_u32 s3, s3, s{w}
s_mul_i32 s3, s3, 28672
s_movk_i32 s{k}, 896
v_mul_u32_u24 v{t0}, s{k}, v{u0}
v_add_u32 v{t0}, s3, v{t0}
v_xor_b32 v{t1}, v{u1}, v{u2}
v_lshl_add_u32 v{x0}, v{t1}, 4, v{t0}
v_xor_b32 v{t1}, 4, v{t1}
v_lshl_add_u32 v{x1}, v{t1}, 4, v{t0}
v_add_u32 v{x2}, 12288, v{x0}
v_add_u32 v{x3}, 18432, v{x1}
v_add_u32 v{x1}, 6144, v{x1}
'''.format(g=sG, w=sW, k=sOff, t0=t0, t1=t1, u0=u[0], u1=u[1], u2=u[2], x0=vOffX, x1=vOffX + 1, x2=vOffX + 2, x3=vOffX + 3))
e('''
s_mul_i32 s3, s{idx}, 14
s_lshl_b32 s{k}, s{w}, 2
s_add_u32 s3, s3, s{k}
v_add_u32 v{t2}, s3, v{u2}
s_movk_i32 s{k}, 2688
v_mul_u32_u24 v{t2}, s{k}, v{t2}
v_and_b32 v{t3}, 15, v0
v_lshl_add_u32 v{t2}, v{t3}, 7, v{t2}
'''.format(idx=sIdx, w=sW, k=sOff, t2=t2, t3=t3, u2=u[2]))
e('@waitlg0')
for srd, ptr, size in ((sX, 80, 1835008), (sQKV, 82, 1204224), (sWO, 84, 401408), (sWD, 92, 1605632),
                       (sOUT, 94, 1835008), (sDBG, 96, 256), (sWS, 98, WS_SIZE)):
    e('s_mov_b32 s%d, s%d' % (srd, ptr))
    e('s_mov_b32 s%d, s%d' % (srd + 1, ptr + 1))
    e('s_mov_b32 s%d, 0x%x' % (srd + 2, size))
    e('s_mov_b32 s%d, 0x20000' % (srd + 3))
    if srd == sQKV:
        e('buffer_load_dword v%d, v%d, %s, 0 offen offset:896' % (vDummy, t2, S4(sQKV)))
e('''
s_cmp_eq_u32 s{m}, 15
s_cselect_b32 s3, 1, 0
s_cmp_eq_u32 s{w}, 0
s_cselect_b32 s23, s3, 0
s_cmp_eq_u32 s23, 0
s_cbranch_scc1 L_nozero
v_lshlrev_b32 v{t3}, 7, v0
v_mov_b32 v{t4}, 0
'''.format(m=sM, w=sW, t3=t3, t4=t4))
e('buffer_store_dword v%d, v%d, %s, s%d offen sc1' % (t4, t3, S4(sWS), sCnt), raw=True)
e('L_nozero:')
XP0 = 12
e('s_mul_i32 s%d, s%d, %d' % (sOff2, sW, 7 * PG))
e('s_add_u32 s%d, s%d, %d' % (sOff2, sOff2, XP0 * PG))


def xdma(i):
    r = L('s_add_u32 m0, s%d, %d\ns_lshl_b32 s%d, s%d, 7' % (sOff2, i * PG, sOff, sCh + i))
    for q in range(4):
        r.append(I('buffer_load_dwordx4 v%d, %s, s%d offen%s lds' % (vOffX + q, S4(sX), sOff, ' offset:%d' % (q * 1024) if q else ''), tag='x%d' % i))
    return r


for i in range(2):
    p.add(xdma(i))
e('''
s_cmp_lt_u32 s{w}, 2
s_cselect_b32 s{gu}, s88, s90
s_cselect_b32 s{gu1}, s89, s91
s_mov_b32 s{gu2}, 1605632
s_mov_b32 s{gu3}, 0x20000
'''.format(w=sW, gu=sGU, gu1=sGU + 1, gu2=sGU + 2, gu3=sGU + 3))
e('''
s_mov_b32 s{c2}, L_end-L_pc
s_mov_b32 s{c3}, 0x20000
s_lshl_b32 s3, s{idx}, 11
s_lshl_b32 s{k}, s{w}, 9
s_add_u32 s3, s3, s{k}
v_lshl_add_u32 v{t3}, v{u6}, 7, s3
buffer_load_dword v{d}, v{t3}, {code}, 0 offen
'''.format(c2=sCODE + 2, c3=sCODE + 3, idx=sIdx, w=sW, k=sOff, t3=t3, u6=u[6], d=t5, code=S4(sCODE)))
for i in range(2, 4):
    p.add(xdma(i))
e('v_cmp_lt_u32 s[%d:%d], 31, v0' % (sMaskHi, sMaskHi + 1))
e('v_cmp_eq_u32 s[%d:%d], 28, v%d' % (sMask28, sMask28 + 1, u[3]))
e('''
v_lshlrev_b32 v{t0}, 7, v{u3}
v_add_u32 v{t0}, s{xb}, v{t0}
v_bfe_u32 v{t1}, v0, 1, 3
v_xor_b32 v{t1}, v{t1}, v{u4}
'''.format(t0=t0, t1=t1, u3=u[3], u4=u[4], xb=sOff2))
for ks in range(4):
    e('v_xor_b32 v%d, %d, v%d' % (t2, 2 * ks, t1))
    e('v_lshl_add_u32 v%d, v%d, 4, v%d' % (vAdX + ks, t2, t0))
e('''
v_lshlrev_b32 v{t0}, 2, v{u7}
v_xor_b32 v{t0}, v{t0}, v{u1}
v_lshrrev_b32 v{t1}, 2, v{t0}
v_and_b32 v{t0}, 3, v{t0}
v_lshlrev_b32 v{t2}, 1, v{t0}
v_min_u32 v{t2}, 5, v{t2}
v_lshlrev_b32 v{t2}, 3, v{t2}
s_movk_i32 s{k}, 896
v_mad_u32_u24 v{t2}, v{t1}, s{k}, v{t2}
s_lshl_b32 s3, s{w}, 3
v_add_u32 v{t3}, s3, v{u0}
s_movk_i32 s{k}, 2688
v_mad_u32_u24 v{t2}, v{t3}, s{k}, v{t2}
s_mul_i32 s3, s{m}, 56
s_add_u32 s4, s3, 896
v_add_u32 v{kv}, s4, v{t2}
'''.format(t0=t0, t1=t1, t2=t2, t3=t3, u0=u[0], u1=u[1], u7=u[7], k=sOff, w=sW, m=sM, kv=vOffKV))
e('''
v_lshlrev_b32 v{t2}, 1, v{u6}
v_min_u32 v{t2}, 5, v{t2}
v_lshlrev_b32 v{t2}, 3, v{t2}
v_lshrrev_b32 v{t3}, 2, v0
s_lshl_b32 s4, s{w}, 4
v_add_u32 v{t3}, s4, v{t3}
v_mad_u32_u24 v{t2}, v{t3}, s{k}, v{t2}
v_add_u32 v{q}, s3, v{t2}
'''.format(t2=t2, t3=t3, u6=u[6], k=sOff, w=sW, q=vOffQ))
WQP = 14
e('''
v_lshlrev_b32 v{t0}, 3, v{u6}
v_lshl_add_u32 v{t0}, v{u7}, 5, v{t0}
v_lshrrev_b32 v{t1}, 1, v{u6}
v_and_b32 v{t1}, v{t1}, v{u7}
v_lshlrev_b32 v{t1}, 3, v{t1}
v_xor_b32 v{t1}, v{t0}, v{t1}
v_lshrrev_b32 v{t2}, 1, v{u5}
v_lshlrev_b32 v{t2}, 6, v{t2}
v_lshl_add_u32 v{t3}, v{u4}, 3, v{u5}
v_xor_b32 v{t4}, v{t1}, v{t2}
v_lshl_add_u32 v{ak}, v{t3}, 7, v{t4}
v_xor_b32 v{av}, 64, v{ak}
v_lshl_add_u32 v{aq}, v{t3}, 6, v{t1}
v_add_u32 v{aq}, {qb}, v{aq}
'''.format(t0=t0, t1=t1, t2=t2, t3=t3, t4=t4, u4=u[4], u5=u[5], u6=u[6], u7=u[7], ak=vAdK, av=vAdV, aq=vAdQ, qb=WQP * PG))
e('''
v_xor_b32 v{t4}, v{t0}, v{t2}
v_lshl_add_u32 v{t4}, v{u5}, 7, v{t4}
s_mul_i32 s3, s{kh}, 28672
v_add_u32 v{p0}, s3, v{t4}
v_xor_b32 v{p1}, 64, v{p0}
v_lshl_add_u32 v{a0}, v{u4}, 9, v{p0}
v_xor_b32 v{a1}, 64, v{a0}
'''.format(t0=t0, t2=t2, t4=t4, u4=u[4], u5=u[5], kh=sKh, p0=vAdWOp, p1=vAdWOp + 1, a0=vAdWO, a1=vAdWO + 1))
e('''
v_lshlrev_b32 v{t0}, 2, v{u7}
v_xor_b32 v{t0}, v{t0}, v{u1}
v_lshlrev_b32 v{t0}, 4, v{t0}
s_movk_i32 s{k}, 896
v_mad_u32_u24 v{t0}, v{u0}, s{k}, v{t0}
s_lshl_b32 s3, s{cs}, 7
s_mul_i32 s4, s{w}, 7168
s_add_u32 s4, s4, s3
v_add_u32 v{wo}, s4, v{t0}
s_mul_i32 s4, s{kh}, 802816
s_mul_i32 s5, s{th}, 7168
s_add_u32 s4, s4, s5
s_add_u32 s4, s4, s3
v_add_u32 v{wd}, s4, v{t0}
'''.format(t0=t0, u0=u[0], u1=u[1], u7=u[7], k=sOff, cs=sCs, w=sW, kh=sKh, th=sTh, wo=vOffWO, wd=vOffWD))
e('''
s_lshl_b32 s4, s{g}, 7
s_lshl_b32 s5, s{half}, 6
s_add_u32 s4, s4, s5
s_lshl_b32 s5, s{w}, 3
s_add_u32 s4, s4, s5
s_mul_i32 s4, s4, 896
s_add_u32 s4, s4, s3
s_lshl_b32 s5, s{th}, 2
v_xor_b32 v{t0}, v{u1}, v{u2}
v_xor_b32 v{t0}, s5, v{t0}
v_lshlrev_b32 v{t0}, 4, v{t0}
v_mad_u32_u24 v{t0}, v{u0}, s{k}, v{t0}
v_add_u32 v{xr}, s4, v{t0}
s_lshl_b32 s{tt}, s{half}, 1
s_add_u32 s{tt}, s{tt}, s{th}
'''.format(t0=t0, u0=u[0], u1=u[1], u2=u[2], k=sOff, g=sG, half=sHalf, w=sW, th=sTh, xr=vOffXR, tt=sTT))
e('''
s_lshl_b32 s4, s{kh}, 2
v_lshl_add_u32 v{t0}, v{u7}, 1, s4
v_xor_b32 v{t0}, v{t0}, v{u1}
v_lshlrev_b32 v{t0}, 4, v{t0}
s_movk_i32 s{k}, 3584
v_mad_u32_u24 v{t0}, v{u0}, s{k}, v{t0}
s_mul_i32 s4, s{th}, 28672
s_lshl_b32 s5, s{m}, 8
s_add_u32 s4, s4, s5
v_add_u32 v{gu}, s4, v{t0}
'''.format(t0=t0, u0=u[0], u1=u[1], u7=u[7], k=sOff, kh=sKh, th=sTh, m=sM, gu=vOffGU))


def kvdma(pg):
    i, hfp = pg >> 1, pg & 1
    so = ['s_mul_i32 s%d, s%d, 172032' % (sOff, sCh + i)]
    if hfp:
        so.append('s_add_u32 s%d, s%d, 86016' % (sOff, sOff))
    return dma(vOffKV, sQKV, so, pg * PG, 'kv%d' % pg)


def qdma(i):
    return dma(vOffQ, sQKV, ['s_mul_i32 s%d, s%d, 172032' % (sOff, sCh + i)], (WQP + i) * PG, 'q%d' % i)


vS, vQ2, vOnes = u[8], u[9], u[10]
e('v_mov_b32 v%d, 0' % vS)
e('v_mov_b32 v%d, 0' % vQ2)
e('v_mov_b32 v%d, 0x3f803f80' % vOnes)


def xdots(i):
    r = []
    for j in range(16):
        reg = vF + 16 * i + j
        r.append(I('v_dot2c_f32_bf16 v%d, v%d, v%d' % (vS, reg, vOnes)))
        r.append(I('v_dot2c_f32_bf16 v%d, v%d, v%d' % (vQ2, reg, reg)))
    return r


kv_next = 0
for i in range(7):
    e('@waitvm x%d' % i)
    if i == 0:
        stamp('x0 landed')
        e('s_cmp_eq_u32 s23, 0')
        e('s_cbranch_scc1 L_nozero2')
        e('s_mov_b64 exec, 1')
        e('buffer_atomic_add v%d, off, %s, 0' % (vOne, S4(sDBG)), raw=True)
        e('s_mov_b64 exec, -1')
        e('L_nozero2:')
    for ks in range(4):
        e('ds_read_b128 %s, v%d offset:%d' % (V(vF + 16 * i + 4 * ks, 4), vAdX + ks, i * PG))
    if i + 4 < 7:
        p.add(xdma(i + 4))
    else:
        p.add(kvdma(kv_next))
        kv_next += 1
    if i > 0:
        p.add(xdots(i - 1))
p.add(kvdma(kv_next))
kv_next += 1
p.add(xdots(6))
e('s_barrier')
stamp('x read')
p.add(kvdma(kv_next))
kv_next += 1


def ln_consts(s, q, r, c):
    a, b = t0, t1
    return L('''
    v_mul_f32 v{a}, 0x{i:x}, v{s}
    v_mul_f32 v{b}, 0x{i:x}, v{q}
    v_fma_f32 v{b}, -v{a}, v{a}, v{b}
    v_max_f32 v{b}, 0, v{b}
    v_cvt_pk_bf16_f32 v{a}, v{a}, v{b}
    v_and_b32 v{b}, 0xffff0000, v{a}
    v_lshlrev_b32 v{a}, 16, v{a}
    v_add_f32 v{b}, 0x{e:x}, v{b}
    v_cvt_pk_bf16_f32 v{b}, v{b}, v{b}
    v_lshlrev_b32 v{b}, 16, v{b}
    v_sqrt_f32 v{b}, v{b}
    v_cvt_pk_bf16_f32 v{b}, v{b}, v{b}
    v_lshlrev_b32 v{b}, 16, v{b}
    v_rcp_f32 v{r}, v{b}
    v_mul_f32 v{c}, v{a}, v{r}
    v_sub_f32 v{c}, 0, v{c}
    '''.format(a=a, b=b, s=s, q=q, r=r, c=c, i=INV448, e=EPS5))


def halves_sum(x):
    return L('''
    v_mov_b32 v{t}, v{x}
    v_permlane32_swap_b32 v{t}, v{x}
    v_add_f32 v{x}, v{t}, v{x}
    '''.format(t=t2, x=x))


vR, vC = u[12], u[14]
p.add(halves_sum(vS))
p.add(halves_sum(vQ2))
p.add(ln_consts(vS, vQ2, vR, vC))


def norm4(reg, tp):
    return L('''
    v_lshlrev_b32 v{a}, 16, v{x}
    v_and_b32 v{b}, 0xffff0000, v{x}
    v_pk_fma_f32 v[{a}:{b}], v[{a}:{b}], v[{r}:{r1}], v[{c}:{c1}] op_sel_hi:[1,0,0]
    v_cvt_pk_bf16_f32 v{x}, v{a}, v{b}
    '''.format(a=tp, b=tp + 1, x=reg, r=vR, r1=vR + 1, c=vC, c1=vC + 1))


def norm5(reg, tp):
    return L('''
    v_lshlrev_b32 v{a}, 16, v{x}
    v_and_b32 v{b}, 0xffff0000, v{x}
    v_fma_f32 v{a}, v{a}, v{r}, v{c}
    v_fma_f32 v{b}, v{b}, v{r}, v{c}
    v_cvt_pk_bf16_f32 v{x}, v{a}, v{b}
    '''.format(a=tp, b=tp + 1, x=reg, r=vR, c=vC))


def zip_groups(groups):
    out = []
    n = max(len(g) for g in groups)
    for k in range(n):
        for g in groups:
            if k < len(g):
                out.append(g[k])
    return out


for i in range(7):
    for j in range(0, 16, 2):
        p.add(zip_groups([norm4(vF + 16 * i + j, u[0]), norm4(vF + 16 * i + j + 1, u[2])]))
        if j in (2, 10) and kv_next < 14 and (i >= 2 or j == 2):
            p.add(kvdma(kv_next))
            kv_next += 1
assert kv_next == 14, kv_next
stamp('normalised')

aK, aV = vX, vX + 16
ws = WStream()
for pg in range(14):
    for ks2 in range(2):
        k = 2 * pg + ks2
        for (acc, ad) in ((aK, vAdK), (aV, vAdV)):
            pre = None
            if ks2 == 0 and acc == aK:
                if pg == 0:
                    pre = L('@waitvm ' + ' '.join('kv%d' % j for j in range(8)) + '\ns_barrier')
                elif pg >= 8:
                    pre = L('@waitvm kv%d\ns_barrier' % pg)
            off = pg * PG + ks2 * 2048
            ws.step(ad, off, ad, off + 512, lambda a, acc=acc, k=k: mfma(acc, V(vF + 4 * k, 4), a, first=(k == 0)), pre)
a1 = ws.build()
a1 = interleave(a1, [qdma(i) for i in range(5)], start=8, end=48)
p.add(a1)
stamp('A1 mfma')


def phi(acc, dst):
    r = []
    cl = u[4]
    r += L('v_mov_b32 v%d, 0x%x' % (cl, LOG2E))
    for j in range(0, 16, 4):
        g = []
        for jj in (j, j + 2):
            a = acc + jj
            tp = u[0] + (jj & 2)
            g.append(L('''
            v_pk_mul_f32 v[{t}:{t1}], v[{a}:{a1}], v[{c}:{c1}] op_sel_hi:[1,0]
            v_min_f32 v{t}, 0, v{t}
            v_min_f32 v{t1}, 0, v{t1}
            v_exp_f32 v{t}, v{t}
            v_exp_f32 v{t1}, v{t1}
            v_max_f32 v{a}, 0x{e:x}, v{a}
            v_max_f32 v{a1}, 0x{e:x}, v{a1}
            v_pk_add_f32 v[{a}:{a1}], v[{a}:{a1}], v[{t}:{t1}]
            v_cvt_pk_bf16_f32 v{d}, v{a}, v{a1}
            '''.format(t=tp, t1=tp + 1, a=a, a1=a + 1, c=cl, c1=cl + 1, e=EPS6, d=dst + jj // 2)))
        r += zip_groups(g)
    return r


vPK, vVV, aKV = vY, vY + 8, vX + 32
for j in range(8):
    e('v_cvt_pk_bf16_f32 v%d, v%d, v%d' % (vVV + j, aV + 2 * j, aV + 2 * j + 1))
for j in range(8):
    e('v_cndmask_b32 v%d, v%d, v%d, s[%d:%d]' % (vVV + j, vVV + j, vOnes, sMask28, sMask28 + 1))
p.add(phi(aK, vPK))
p.add([mfma(aKV, V(vPK, 4), V(vVV, 4), first=True), mfma(aKV, V(vPK + 4, 4), V(vVV + 4, 4))])
SCR = 21
e('s_lshl_b32 s3, s%d, 12' % sW)
e('s_add_u32 s3, s3, %d' % (SCR * PG))
e('v_add_u32 v%d, s3, v%d' % (t0, vL16))
e('s_add_u32 s3, s%d, %d' % (sWK, SCR * PG))
e('v_add_u32 v%d, s3, v%d' % (t1, vL16))
e('buffer_load_dword v%d, off, %s, 0 sc1' % (vP, S4(sDBG)))
for q in range(4):
    e('ds_write_b128 v%d, %s offset:%d' % (t0, V(aKV + 4 * q, 4), q * 1024))
e('@waitlg0')
e('s_barrier')
for j in range(4):
    e('ds_read_b128 %s, v%d offset:%d' % (V(vX + 4 * j, 4), t1, j * PG))
e('''
s_lshl_b32 s3, s{m}, 4
s_add_u32 s3, s3, s{g}
s_lshl_b32 s3, s3, 12
s_add_u32 s3, s3, s{wk}
s_add_u32 s{o}, s3, {base}
'''.format(m=sM, g=sG, wk=sWK, o=sOff, base=WS_KVP))
e('v_pk_add_f32 v[%d:%d], v[%d:%d], v[%d:%d]' % (vX, vX + 1, vX, vX + 1, vX + 4, vX + 5))
e('v_pk_add_f32 v[%d:%d], v[%d:%d], v[%d:%d]' % (vX + 2, vX + 3, vX + 2, vX + 3, vX + 6, vX + 7))
e('v_pk_add_f32 v[%d:%d], v[%d:%d], v[%d:%d]' % (vX + 8, vX + 9, vX + 8, vX + 9, vX + 12, vX + 13))
e('v_pk_add_f32 v[%d:%d], v[%d:%d], v[%d:%d]' % (vX + 10, vX + 11, vX + 10, vX + 11, vX + 14, vX + 15))
e('v_pk_add_f32 v[%d:%d], v[%d:%d], v[%d:%d]' % (vX, vX + 1, vX, vX + 1, vX + 8, vX + 9))
e('v_pk_add_f32 v[%d:%d], v[%d:%d], v[%d:%d]' % (vX + 2, vX + 3, vX + 2, vX + 3, vX + 10, vX + 11))
e('buffer_store_dwordx4 %s, v%d, %s, s%d offen sc1' % (V(vX, 4), vL16, S4(sWS), sOff), tag='kvp')
stamp('kv stored')

aQ = vX + 16
ws = WStream()
for i in range(7):
    for ks in range(4):
        k = 4 * i + ks
        pre = None
        if ks == 0 and i == 0:
            pre = L('@waitvm q0 q1 q2 q3 q4\ns_barrier')
        if ks == 0 and i == 5:
            pre = L('@waitvm q5 q6\ns_barrier')
        off = i * PG + ks * 1024
        ws.step(vAdQ, off, vAdQ, off + 256, lambda a, k=k: mfma(aQ, a, V(vF + 4 * k, 4), first=(k == 0)), pre)
a2 = ws.build()
kvsig = L('@waitvm kvp') + poll_check(16, sDBG, '0') + signal([
    's_lshl_b32 s%d, s%d, 13' % (sT[1], sM), 's_lshl_b32 s%d, s%d, 7' % (sT[2], sW),
    's_add_u32 s%d, s%d, s%d' % (sT[1], sT[1], sT[2]), 's_add_u32 s%d, s%d, %d' % (sT[1], sT[1], C_KV * 128)])
a2 = interleave(a2, [kvsig + qdma(5) + qdma(6)], start=12, end=13)
p.add(a2)

WOP, XRP = 0, 26
W1PG = {}
W2PG = {}


def wodma(pg):
    return dma(vOffWO, sWO, pg * 28672, (WOP + pg) * PG, 'wo')


def xrdma(uu):
    return dma(vOffXR, sX, uu * 28672, (XRP + uu) * PG, 'xr')


def gudma(half, k, page):
    (W2PG if half else W1PG)[k] = page
    return dma(vOffGU, sGU, k * 57344 + half * 128, page * PG, 'gu%d_%d' % (half, k))


e('s_cmp_ge_u32 s%d, 14' % sM)
e('s_cbranch_scc1 L_skip_pf1')
pf1 = []
for pg in range(14):
    pf1 += wodma(pg)
pf1 += xrdma(0) + xrdma(1)
for x in pf1:
    x.raw = True
p.add(pf1)
e('L_skip_pf1:')
p.add(poll_issue(['s_lshl_b32 s%d, s%d, 13' % (sPoll, sM), 's_lshl_b32 s%d, s%d, 7' % (sT[2], sW),
                  's_add_u32 s%d, s%d, s%d' % (sPoll, sPoll, sT[2]), 's_add_u32 s%d, s%d, %d' % (sPoll, sPoll, C_KV * 128)]))
vPQ = vY
p.add(phi(aQ, vPQ))
e('v_cndmask_b32 v%d, v%d, 0, s[%d:%d]' % (vPQ + 6, vPQ + 6, sMaskHi, sMaskHi + 1))
e('v_cndmask_b32 v%d, v%d, 0, s[%d:%d]' % (vPQ + 7, vPQ + 7, sMaskHi, sMaskHi + 1))
stamp('q done')
e('@waitvm0')
p.add(poll_check(16))
stamp('kv flag')
e('''
s_lshl_b32 s3, s{m}, 16
s_add_u32 s3, s3, s{wk}
s_add_u32 s{o}, s3, {base}
'''.format(m=sM, wk=sWK, o=sOff, base=WS_KVP))
for gg in range(16):
    if gg:
        e('s_add_u32 s%d, s%d, 4096' % (sOff, sOff))
    e('buffer_load_dwordx4 %s, v%d, %s, s%d offen sc1' % (V(vX + 4 * gg, 4), vL16, S4(sWS), sOff))
KVS = 25
e('s_lshl_b32 s3, s%d, 9' % sW)
e('s_add_u32 s3, s3, %d' % (KVS * PG))
e('v_lshrrev_b32 v%d, 1, v%d' % (t1, vL16))
e('v_add_u32 v%d, s3, v%d' % (t0, t1))
e('v_add_u32 v%d, %d, v%d' % (t1, KVS * PG, t1))
for st in (1, 2, 4, 8):
    for gg in range(0, 16, 2 * st):
        for hh in (0, 2):
            a, b = vX + 4 * gg + hh, vX + 4 * (gg + st) + hh
            e('v_pk_add_f32 v[%d:%d], v[%d:%d], v[%d:%d]' % (a, a + 1, a, a + 1, b, b + 1))
e('v_cvt_pk_bf16_f32 v%d, v%d, v%d' % (vX, vX, vX + 1))
e('v_cvt_pk_bf16_f32 v%d, v%d, v%d' % (vX + 1, vX + 2, vX + 3))
e('ds_write_b64 v%d, %s' % (t0, V(vX, 2)))
e('@waitlg0')
e('s_barrier')
vKVF = vY + 8
for q in range(4):
    e('ds_read_b64 %s, v%d offset:%d' % (V(vKVF + 2 * q, 2), t1, q * 512))
aO = vX + 16
p.add([mfma(aO, V(vKVF, 4), V(vPQ, 4), first=True), mfma(aO, V(vKVF + 4, 4), V(vPQ + 4, 4))])
e('''
s_lshl_b32 s3, s{g}, 2
s_add_u32 s3, s3, s{w}
s_lshl_b32 s3, s3, 15
s_lshl_b32 s4, s{m}, 11
s_add_u32 s3, s3, s4
s_add_u32 s{o}, s3, {base}
'''.format(g=sG, w=sW, m=sM, o=sOff, base=WS_O))
e('''
v_mov_b32 v{a}, v{d}
v_mov_b32 v{b}, v{d}
v_permlane32_swap_b32 v{a}, v{b}
v_add_f32 v{b}, 0x{eps:x}, v{b}
v_rcp_f32 v{r}, v{b}
v_cndmask_b32 v{r2}, v{r}, 0, s[{mh}:{mh1}]
'''.format(a=t2, b=t3, d=aO + 12, eps=EPS6, r=u[0], r2=u[2], mh=sMaskHi, mh1=sMaskHi + 1))
for j in range(0, 16, 2):
    r = u[2] if j >= 12 else u[0]
    e('v_pk_mul_f32 v[%d:%d], v[%d:%d], v[%d:%d] op_sel_hi:[1,0]' % (aO + j, aO + j + 1, aO + j, aO + j + 1, r, r + 1))
for j in range(8):
    e('v_cvt_pk_bf16_f32 v%d, v%d, v%d' % (vX + j, aO + 2 * j, aO + 2 * j + 1))
e('buffer_store_dwordx4 %s, v%d, %s, s%d offen sc1' % (V(vX, 4), vL16, S4(sWS), sOff))
e('buffer_store_dwordx4 %s, v%d, %s, s%d offen offset:1024 sc1' % (V(vX + 4, 4), vL16, S4(sWS), sOff))
e('@waitvm0')
p.add(signal(['s_lshl_b32 s%d, s%d, 8' % (sT[1], sW), 's_add_u32 s%d, s%d, s%d' % (sT[1], sT[1], sCnt),
              's_lshr_b32 s%d, s%d, 3' % (sT[2], sM), 's_lshl_b32 s%d, s%d, 7' % (sT[2], sT[2]),
              's_add_u32 s%d, s%d, s%d' % (sT[1], sT[1], sT[2])]))
stamp('o stored')
e('s_cmp_ge_u32 s%d, 14' % sM)
e('s_cbranch_scc1 L_fin')
if STOP <= 1:
    e('s_branch L_fin')

free = list(range(28, 40)) + list(range(14, 21))
for k in range(12):
    p.add(gudma(0, k, free[k]))
p.add(poll_issue(['s_lshl_b32 s%d, s%d, 8' % (sPoll, sTT), 's_add_u32 s%d, s%d, s%d' % (sPoll, sPoll, sCnt),
                  's_lshl_b32 s%d, s%d, 7' % (sT[2], sKh), 's_add_u32 s%d, s%d, s%d' % (sPoll, sPoll, sT[2])]))
p.add(poll_check(8))
stamp('o flag')
e('''
s_lshl_b32 s3, s{g}, 2
s_add_u32 s3, s3, s{tt}
s_lshl_b32 s3, s3, 15
s_lshl_b32 s4, s{kh}, 14
s_add_u32 s3, s3, s4
s_add_u32 s{o}, s3, {base}
'''.format(g=sG, tt=sTT, kh=sKh, o=sOff2, base=WS_O))
for j in range(16):
    if j and j % 4 == 0:
        e('s_add_u32 s%d, s%d, 4096' % (sOff2, sOff2))
    e('buffer_load_dwordx4 %s, v%d, %s, s%d offen%s sc1' % (A(aB + 4 * j, 4), vL16, S4(sWS), sOff2, ' offset:%d' % (1024 * (j % 4)) if j % 4 else ''))
e('s_barrier')
aB0, aB1 = vX, vX + 16
ws = WStream()
for j in range(16):
    hh, s = j >> 1, j & 1
    for ft in range(2):
        row0 = 28 * hh + 16 * s
        a1_ = (vAdWOp if s == 1 else vAdWO) + ft
        ws.step(vAdWO + ft, WOP * PG + row0 * 128, a1_, WOP * PG + (row0 + 8) * 128,
                lambda a, ft=ft, j=j: mfma(vX + 16 * ft, a, A(aB + 4 * j, 4), first=(j == 0)))
b = ws.build()
b = interleave(b, [gudma(0, k, free[k]) for k in range(12, 19)], start=4, end=30)
p.add(b)
e('s_lshl_b32 s3, s%d, 12' % sW)
e('s_add_u32 s3, s3, %d' % (SCR * PG))
e('v_add_u32 v%d, s3, v%d' % (t0, vL16))
e('s_xor_b32 s4, s%d, 2' % sW)
e('s_lshl_b32 s4, s4, 12')
e('s_add_u32 s4, s4, %d' % (SCR * PG))
e('v_add_u32 v%d, s4, v%d' % (t1, vL16))


e('s_nop 7')
e('s_nop 3')
e('s_cmp_eq_u32 s%d, 0' % sKh)
e('s_cbranch_scc1 L_prB0')
for q in range(4):
    e('ds_write_b128 v%d, %s offset:%d' % (t0, V(vX + 4 * q, 4), q * 1024), raw=True)
for j in range(0, 16, 2):
    e('v_pk_mul_f32 v[%d:%d], v[%d:%d], 1.0 op_sel_hi:[1,0]' % (vX + j, vX + j + 1, vX + 16 + j, vX + 17 + j), raw=True)
e('s_branch L_prB1')
e('L_prB0:')
for q in range(4):
    e('ds_write_b128 v%d, %s offset:%d' % (t0, V(vX + 16 + 4 * q, 4), q * 1024), raw=True)
e('L_prB1:')
e('''
v_and_b32 v{a}, 31, v0
v_bfe_u32 v{b}, v0, 1, 3
s_lshl_b32 s3, s{kh}, 2
v_xor_b32 v{b}, s3, v{b}
v_lshlrev_b32 v{a}, 7, v{a}
v_lshrrev_b32 v{c}, 5, v0
v_lshl_add_u32 v{a}, v{c}, 3, v{a}
s_lshl_b32 s3, s{th}, 12
s_add_u32 s3, s3, {xb}
v_add_u32 v{a}, s3, v{a}
'''.format(a=t2, b=t3, c=t4, kh=sKh, th=sTh, xb=XRP * PG))
for bq in range(4):
    e('v_xor_b32 v%d, %d, v%d' % (t4, bq, t3))
    e('v_lshl_add_u32 v%d, v%d, 4, v%d' % (t4, t4, t2))
    e('ds_read_b64 %s, v%d' % (V(vY + 2 * bq, 2), t4))
e('s_waitcnt lgkmcnt(0)')
e('s_barrier')
for q in range(4):
    e('ds_read_b128 %s, v%d offset:%d' % (V(vX + 16 + 4 * q, 4), t1, q * 1024))
nxt = [(0, k) for k in range(19, 28)] + [(1, k) for k in range(5)]
for j in range(8):
    e('v_lshlrev_b32 v%d, 16, v%d' % (vX + 32 + 2 * j, vY + j))
    e('v_and_b32 v%d, 0xffff0000, v%d' % (vX + 33 + 2 * j, vY + j))
for j in range(0, 16, 2):
    e('v_pk_add_f32 v[%d:%d], v[%d:%d], v[%d:%d]' % (vX + j, vX + j + 1, vX + j, vX + j + 1, vX + 32 + j, vX + 33 + j))
for j in range(0, 16, 2):
    e('v_pk_add_f32 v[%d:%d], v[%d:%d], v[%d:%d]' % (vX + j, vX + j + 1, vX + j, vX + j + 1, vX + 16 + j, vX + 17 + j))
for j in range(8):
    e('v_cvt_pk_bf16_f32 v%d, v%d, v%d' % (vY + j, vX + 2 * j, vX + 2 * j + 1))
e('''
s_lshl_b32 s3, s{g}, 2
s_add_u32 s3, s3, s{tt}
s_lshl_b32 s4, s{cs}, 1
s_add_u32 s4, s4, s{kh}
s_lshl_b32 s5, s3, 15
s_lshl_b32 s6, s4, 11
s_add_u32 s5, s5, s6
s_add_u32 s{o}, s5, {hb}
s_lshl_b32 s5, s3, 12
s_lshl_b32 s6, s4, 8
s_add_u32 s5, s5, s6
s_add_u32 s{o2}, s5, {sb}
'''.format(g=sG, tt=sTT, cs=sCs, kh=sKh, o=sOff, o2=sOff2, hb=WS_H, sb=WS_ST))
e('buffer_store_dwordx4 %s, v%d, %s, s%d offen sc1' % (V(vY, 4), vL16, S4(sWS), sOff))
e('buffer_store_dwordx4 %s, v%d, %s, s%d offen offset:1024 sc1' % (V(vY + 4, 4), vL16, S4(sWS), sOff))
vS, vQ2 = u[8], u[9]
e('v_mov_b32 v%d, 0' % vS)
e('v_mov_b32 v%d, 0' % vQ2)
for j in range(8):
    e('v_dot2c_f32_bf16 v%d, v%d, v%d' % (vS, vY + j, vOnes))
    e('v_dot2c_f32_bf16 v%d, v%d, v%d' % (vQ2, vY + j, vY + j))
e('v_and_b32 v%d, 31, v0' % t4)
e('v_lshlrev_b32 v%d, 3, v%d' % (t4, t4))
p.add(halves_sum(vS))
p.add(halves_sum(vQ2))
e('buffer_store_dwordx2 %s, v%d, %s, s%d offen sc1' % (V(vS, 2), t4, S4(sWS), sOff2))
for j in range(8):
    e('v_accvgpr_write_b32 a%d, v%d' % (aH + j, vY + j))
e('@waitvm0')
p.add(signal(['s_lshl_b32 s%d, s%d, 7' % (sT[1], sTT), 's_add_u32 s%d, s%d, s%d' % (sT[1], sT[1], sCnt),
              's_add_u32 s%d, s%d, %d' % (sT[1], sT[1], C_H * 128)]))
stamp('h stored')
if STOP <= 2:
    e('s_branch L_fin')

for n, (hf_, k) in enumerate(nxt):
    p.add(gudma(hf_, k, n))
p.add(poll_issue(['s_lshl_b32 s%d, s%d, 7' % (sPoll, sW), 's_add_u32 s%d, s%d, s%d' % (sPoll, sPoll, sCnt),
                  's_add_u32 s%d, s%d, %d' % (sPoll, sPoll, C_H * 128)]))
e('''
v_bfe_u32 v{r}, v0, 2, 2
v_bfe_u32 v{iu}, v0, 4, 1
v_lshrrev_b32 v{hf}, 5, v0
v_lshl_add_u32 v{a}, v{hf}, 2, v{r}
v_lshlrev_b32 v{a}, 7, v{a}
v_lshl_add_u32 v{a}, v{iu}, 11, v{a}
v_and_b32 v{b}, 1, v0
v_lshl_add_u32 v{a}, v{b}, 3, v{a}
v_lshrrev_b32 v{b}, 1, v{r}
v_lshl_add_u32 v{b}, v{iu}, 1, v{b}
v_lshlrev_b32 v{b}, 1, v{b}
v_bfe_u32 v{c}, v0, 1, 1
v_xor_b32 v{b}, v{b}, v{c}
'''.format(r=u[0], iu=u[1], hf=u[2], a=t0, b=t1, c=t2))
for t in range(4):
    e('v_xor_b32 v%d, %d, v%d' % (t2, 2 * t, t1))
    e('v_lshl_add_u32 v%d, v%d, 4, v%d' % (vAdC + t, t2, t0))
e('''
s_mul_i32 s3, s{kh}, 26624
v_subrev_u32 v{d0}, s3, v{w0}
v_subrev_u32 v{d1}, s3, v{w1}
v_and_b32 v{a}, 31, v0
v_lshlrev_b32 v{a}, 3, v{a}
s_movk_i32 s3, 1792
v_mad_u32_u24 v{a}, v{hf}, s3, v{a}
s_lshl_b32 s3, s{g}, 2
s_add_u32 s3, s3, s{w}
s_lshl_b32 s4, s3, 12
s_add_u32 s{o}, s4, {sb}
s_lshl_b32 s4, s3, 15
s_add_u32 s{o2}, s4, {hb}
'''.format(kh=sKh, d0=vAdD, d1=vAdD + 1, w0=vAdWO, w1=vAdWO + 1, a=t4, hf=u[2], g=sG, w=sW, o=sT[8], o2=sOff2, sb=WS_ST, hb=WS_H))
e('s_barrier')
for n in range(7):
    p.add(gudma(1, 5 + n, 21 + n))
p.add(poll_check(14))
stamp('h flag')
for i in range(7):
    e('buffer_load_dwordx2 %s, v%d, %s, s%d offen offset:%d sc1' % (V(vY + 2 * i, 2), t4, S4(sWS), sT[8], 256 * i))
for k in range(28):
    if k and k % 4 == 0:
        e('s_add_u32 s%d, s%d, 4096' % (sOff2, sOff2))
    e('buffer_load_dwordx4 %s, v%d, %s, s%d offen%s sc1' % (V(vF + 4 * k, 4), vL16, S4(sWS), sOff2, ' offset:%d' % (1024 * (k % 4)) if k % 4 else ''))
for (a, b) in ((0, 2), (4, 6), (8, 10), (0, 4), (8, 12), (0, 8)):
    e('v_pk_add_f32 v[%d:%d], v[%d:%d], v[%d:%d]' % (vY + a, vY + a + 1, vY + a, vY + a + 1, vY + b, vY + b + 1))
p.add(halves_sum(vY))
p.add(halves_sum(vY + 1))
p.add(ln_consts(vY, vY + 1, vR, vC))
e('''
s_lshl_b32 s3, s{g}, 2
s_add_u32 s3, s3, s{w}
s_mul_i32 s3, s3, 112
s_lshl_b32 s4, s{m}, 3
s_add_u32 s3, s3, s4
s_lshl_b32 s3, s3, 10
s_add_u32 s{o}, s3, {base}
'''.format(g=sG, w=sW, m=sM, o=sT[9], base=WS_HH))
sHHst = sT[9]


class Win:
    def __init__(self, regs):
        self.regs = regs
        self.cur = {r: 0 for r in regs}

    def fix(self, reg, off):
        w = (off // 61440)
        base = w * 61440
        pre = []
        if self.cur[reg] != base:
            d = base - self.cur[reg]
            if d > 0:
                pre.append(I('v_add_u32 v%d, %d, v%d' % (reg, d, reg)))
            else:
                pre.append(I('v_subrev_u32 v%d, %d, v%d' % (reg, -d, reg)))
            self.cur[reg] = base
        return pre, off - base


winC = Win([vAdC + t for t in range(4)])
winD = Win([vAdD, vAdD + 1])
NEGL = 0xbfb8aa3b


def epilogue(tile, acc):
    g = []
    for j in range(0, 8, 2):
        tp = u[0] + (j & 2)
        a = acc + j
        g += L('''
        v_mul_f32 v{t}, 0x{c:x}, v{a}
        v_mul_f32 v{t1}, 0x{c:x}, v{a1}
        v_exp_f32 v{t}, v{t}
        v_exp_f32 v{t1}, v{t1}
        v_add_f32 v{t}, 1.0, v{t}
        v_add_f32 v{t1}, 1.0, v{t1}
        v_rcp_f32 v{t}, v{t}
        v_rcp_f32 v{t1}, v{t1}
        v_mul_f32 v{t}, v{t}, v{b}
        v_mul_f32 v{t1}, v{t1}, v{b1}
        v_cvt_pk_bf16_f32 v{d}, v{t}, v{t1}
        '''.format(t=tp, t1=tp + 1, a=a, a1=a + 1, b=a + 8, b1=a + 9, c=NEGL, d=u[4] + (tile & 1) * 4 + j // 2))
    d = u[4] + (tile & 1) * 4
    if tile >= 4:
        g.append([I('s_add_u32 s%d, s%d, 4096' % (sOff, sHHst)),
                  I('buffer_store_dwordx4 %s, v%d, %s, s%d offen%s sc1' % (V(d, 4), vL16, S4(sWS), sOff, ' offset:%d' % (1024 * (tile - 4)) if tile > 4 else ''), tag='hh%d' % tile)])
    else:
        g.append(I('buffer_store_dwordx4 %s, v%d, %s, s%d offen%s sc1' % (V(d, 4), vL16, S4(sWS), sHHst, ' offset:%d' % (1024 * tile) if tile else ''), tag='hh%d' % tile))
    return g


def hhsig(stage, tiles):
    return L('@waitvm ' + ' '.join('hh%d' % t for t in tiles)) + signal([
        's_lshl_b32 s%d, s%d, 10' % (sT[1], sW), 's_add_u32 s%d, s%d, s%d' % (sT[1], sT[1], sCnt),
        's_lshl_b32 s%d, s%d, 9' % (sT[2], sHalf), 's_add_u32 s%d, s%d, s%d' % (sT[1], sT[1], sT[2]),
        's_add_u32 s%d, s%d, %d' % (sT[1], sT[1], (C_HH + stage) * 128)])


PASSES = OPT['passes']
assert sum(PASSES) == 8 and PASSES[0] == 4
tiles_of = []
t_ = 0
for n in PASSES:
    tiles_of.append(list(range(t_, t_ + n)))
    t_ += n
acc_of = {0: vX, 1: vX + 16, 2: vX + 32, 3: vX + 48}
if PASSES == (4, 2, 2):
    acc_of.update({4: vY, 5: vY + 16, 6: vX, 7: vX + 16})
else:
    raise NotImplementedError
D_ORDER = []
for st, tl in enumerate(tiles_of):
    for t in tl:
        for j in range(7):
            D_ORDER.append((j, t, st))
WDPG = {}
wd_next = [0]


def wddma(page):
    n = wd_next[0]
    wd_next[0] += 1
    j, t, st = D_ORDER[n]
    WDPG[n] = page
    return dma(vOffWD, sWD, (128 * j + 16 * t) * 896, page * PG, 'wd%d' % n)


for j in range(8):
    p.add(zip_groups([norm4(vF + j, u[0])]))
ws = WStream()
BSTEP = 4
w2_todo = list(range(12, 28))
fills = {}


def addfill(idx, grp):
    ab = OPT['abl']
    if ab:
        g = grp if isinstance(grp, list) else [grp]
        iscontrol = any(x.kind in ('label', 'sctl') or 'exec' in x.text for x in g)
        if not iscontrol:
            if 'v' in ab:
                g = [x for x in g if x.kind != 'valu']
            if 'd' in ab and any(x.kind == 'dma' for x in g):
                g = []
            if 'b' in ab:
                g = [x for x in g if x.kind != 'barrier']
            if 's' in ab:
                g = [x for x in g if x.kind != 'vstore']
        grp = g
    fills.setdefault(idx, []).append(grp)


def apply_fills(stream):
    out = []
    c = 0
    for x in stream:
        out.append(x)
        if x.kind == 'mfma':
            for f in fills.get(c, []):
                if isinstance(f, list):
                    out.extend(f)
                else:
                    out.append(f)
            c += 1
    fills.clear()
    return out


for k in range(28):
    for t in range(4):
        pre = []
        if t == 0 and k == 0:
            pre += L('@waitvm ' + ' '.join('gu0_%d' % j for j in range(28)) + '\ns_barrier')
        pr, off = winC.fix(vAdC + t, W1PG[k] * PG)
        pre += pr
        ws.step(vAdC + t, off, vAdC + t, off + 1024, lambda a, t=t, k=k: mfma(acc_of[t], a, V(vF + 4 * k, 4), first=(k == 0)), pre)
    if k + 2 < 28:
        for j in range(4):
            for x in norm5(vF + 4 * (k + 2) + j, u[0] + 2 * (j & 1)):
                addfill(4 * k + j, x)
    if k % BSTEP == BSTEP - 1:
        grp = L('s_barrier')
        addfill(4 * k + 3, grp)
        pages = [W1PG[kk] for kk in range(k - BSTEP + 1, k + 1)]
        if k < 27:
            for n, pg in enumerate(pages):
                if w2_todo:
                    addfill(4 * (k + 1) + 3 * n + 1, gudma(1, w2_todo.pop(0), pg))
                else:
                    addfill(4 * (k + 1) + 3 * n + 1, wddma(pg))
        else:
            carry = pages
p.add(apply_fills(ws.build()))
stamp('P1')

for ps in range(1, len(PASSES)):
    tl = tiles_of[ps]
    last = ps == len(PASSES) - 1
    ws = WStream()
    nm = 28 * len(tl)
    for n, pg in enumerate(carry):
        addfill(2 + 3 * n, wddma(pg))
    carry = []
    for k in range(28):
        for t in tl:
            pre = []
            if ps == 1 and t == tl[0] and k in (0, 12, 20):
                hi = {0: 12, 12: 20, 20: 28}[k]
                pre += L('@waitvm ' + ' '.join('gu1_%d' % j for j in range(k, hi)) + '\ns_barrier')
            pr, off = winC.fix(vAdC + t - 4, W2PG[k] * PG)
            pre += pr
            ws.step(vAdC + t - 4, off, vAdC + t - 4, off + 1024, lambda a, t=t, k=k: mfma(acc_of[t], a, V(vF + 4 * k, 4), first=(k == 0)), pre)
        if last and k % BSTEP == BSTEP - 1:
            addfill(len(tl) * (k + 1) - 1, L('s_barrier'))
            pages = [W2PG[kk] for kk in range(k - BSTEP + 1, k + 1)]
            if k < 27:
                for n, pg in enumerate(pages):
                    addfill(len(tl) * (k + 1) + 2 * n, wddma(pg))
            else:
                carry = pages
    ep = []
    for t in tiles_of[ps - 1]:
        ep += epilogue(t, acc_of[t])
    span = nm - 4
    for n, x in enumerate(ep):
        addfill(1 + n * span // len(ep), x)
    if ps >= 2:
        addfill(10, hhsig(ps - 2, tiles_of[ps - 2]))
    p.add(apply_fills(ws.build()))
    stamp('P%d' % (ps + 1))
nst = len(PASSES)
for pg in carry:
    p.add(wddma(pg))
carry = []
ep = []
for t in tiles_of[-1]:
    ep += epilogue(t, acc_of[t])
half_ep = len(ep) // 2
for x in ep[:half_ep]:
    p.add(x if isinstance(x, list) else [x])
p.add(hhsig(nst - 2, tiles_of[-2]))
for x in ep[half_ep:]:
    p.add(x if isinstance(x, list) else [x])
if STOP <= 3:
    p.add(hhsig(nst - 1, tiles_of[-1]))
    e('s_branch L_fin')

sHHld = sT[8]
e('''
s_lshl_b32 s3, s{g}, 2
s_add_u32 s3, s3, s{tt}
s_mul_i32 s3, s3, 112
s_mul_i32 s4, s{kh}, 56
s_add_u32 s3, s3, s4
s_lshl_b32 s3, s3, 10
s_add_u32 s{o}, s3, {base}
'''.format(g=sG, tt=sTT, kh=sKh, o=sHHld, base=WS_HH))


def hhpoll(stage):
    return poll_issue(['s_lshl_b32 s%d, s%d, 10' % (sPoll, sTT), 's_add_u32 s%d, s%d, s%d' % (sPoll, sPoll, sCnt),
                       's_lshl_b32 s%d, s%d, 9' % (sT[2], sKh), 's_add_u32 s%d, s%d, s%d' % (sPoll, sPoll, sT[2]),
                       's_add_u32 s%d, s%d, %d' % (sPoll, sPoll, (C_HH + stage) * 128)])


NQ = 54


def hhload(n):
    j, t, st = D_ORDER[n]
    ko = (8 * j + t) * 1024
    r = [I('s_add_u32 s%d, s%d, %d' % (sOff2, sHHld, ko & ~4095))]
    r.append(I('buffer_load_dwordx4 %s, v%d, %s, s%d offen%s sc1' % (A(aB + 4 * (n % NQ), 4), vL16, S4(sWS), sOff2, ' offset:%d' % (ko & 4095) if ko & 4095 else '')))
    return r


p.add(hhpoll(0))
p.add(hhsig(nst - 1, tiles_of[-1]))
stamp('hh stored')
p.add(poll_check(7))
stage_start = {}
for n, (j, t, st) in enumerate(D_ORDER):
    stage_start.setdefault(st, n)
stage_start[nst] = 56
for n in range(stage_start[1]):
    p.add(hhload(n))
p.add(hhpoll(1))
ws = WStream()
DB = 8
resident = wd_next[0]
assert resident == 40
wpts = {0: 16, 16: resident, resident: 56}
for n in range(56):
    for ft in range(2):
        pre = []
        if ft == 0 and n in wpts:
            pre += L('@waitvm ' + ' '.join('wd%d' % q for q in range(n, wpts[n])) + '\ns_barrier')
        pr, off = winD.fix(vAdD + ft, WDPG[n] * PG)
        pre += pr
        ws.step(vAdD + ft, off, vAdD + ft, off + 1024, lambda a, ft=ft, n=n: mfma(vX + 32 + 16 * ft, a, A(aB + 4 * (n % NQ), 4), first=(n == 0)), pre)
    if n % DB == DB - 1 and wd_next[0] < 56:
        addfill(2 * n + 1, L('s_barrier'))
        for q, nn in enumerate(range(n - DB + 1, n + 1)):
            if wd_next[0] < 56:
                addfill(2 * n + 2 + q, wddma(WDPG[nn]))
for st in range(1, nst):
    at = max(0, 2 * stage_start[st] - 30) if st == 1 else 2 * stage_start[st] - 16
    grp = poll_check(7)
    for n in range(stage_start[st], stage_start[st + 1]):
        grp = grp + hhload(n)
    if st + 1 < nst:
        grp = grp + hhpoll(st + 1)
    addfill(at, grp)
p.add(apply_fills(ws.build()))
stamp('D mfma')
e('s_barrier')
RP = 0
e('s_lshl_b32 s3, s%d, 12' % sW)
e('v_add_u32 v%d, s3, v%d' % (t0, vL16))
e('s_xor_b32 s4, s3, 8192')
e('v_add_u32 v%d, s4, v%d' % (t1, vL16))
D0 = vX + 32
e('s_nop 7')
e('s_cmp_eq_u32 s%d, 0' % sKh)
e('s_cbranch_scc1 L_prD0')
for q in range(4):
    e('ds_write_b128 v%d, %s offset:%d' % (t0, V(D0 + 4 * q, 4), q * 1024), raw=True)
for j in range(0, 16, 2):
    e('v_pk_mul_f32 v[%d:%d], v[%d:%d], 1.0 op_sel_hi:[1,0]' % (D0 + j, D0 + j + 1, D0 + 16 + j, D0 + 17 + j), raw=True)
e('s_branch L_prD1')
e('L_prD0:')
for q in range(4):
    e('ds_write_b128 v%d, %s offset:%d' % (t0, V(D0 + 16 + 4 * q, 4), q * 1024), raw=True)
e('L_prD1:')
for j in range(8):
    e('v_accvgpr_read_b32 v%d, a%d' % (vY + j, aH + j))
e('s_waitcnt lgkmcnt(0)')
e('s_barrier')
for q in range(4):
    e('ds_read_b128 %s, v%d offset:%d' % (V(vX + 4 * q, 4), t1, q * 1024))
for j in range(8):
    e('v_lshlrev_b32 v%d, 16, v%d' % (vX + 16 + 2 * j, vY + j))
    e('v_and_b32 v%d, 0xffff0000, v%d' % (vX + 17 + 2 * j, vY + j))
for j in range(0, 16, 2):
    e('v_pk_add_f32 v[%d:%d], v[%d:%d], v[%d:%d]' % (D0 + j, D0 + j + 1, D0 + j, D0 + j + 1, vX + 16 + j, vX + 17 + j))
e('''
s_lshl_b32 s3, s{g}, 2
s_add_u32 s3, s3, s{tt}
s_mul_i32 s3, s3, 28672
s_lshl_b32 s4, s{cs}, 7
s_add_u32 s3, s3, s4
s_lshl_b32 s4, s{kh}, 6
s_add_u32 s{o}, s3, s4
v_and_b32 v{a}, 31, v0
s_movk_i32 s3, 896
v_mul_u32_u24 v{a}, s3, v{a}
v_lshrrev_b32 v{b}, 5, v0
v_lshl_add_u32 v{a}, v{b}, 4, v{a}
'''.format(g=sG, tt=sTT, cs=sCs, kh=sKh, o=sOff, a=t2, b=t3))
for j in range(0, 16, 2):
    e('v_pk_add_f32 v[%d:%d], v[%d:%d], v[%d:%d]' % (D0 + j, D0 + j + 1, D0 + j, D0 + j + 1, vX + j, vX + j + 1))
for j in range(8):
    e('v_cvt_pk_bf16_f32 v%d, v%d, v%d' % (vY + j, D0 + 2 * j, D0 + 2 * j + 1))
for bb in (0, 4):
    e('v_permlane32_swap_b32 v%d, v%d' % (vY + bb, vY + bb + 2))
    e('v_permlane32_swap_b32 v%d, v%d' % (vY + bb + 1, vY + bb + 3))
e('buffer_store_dwordx4 %s, v%d, %s, s%d offen' % (V(vY, 4), t2, S4(sOUT), sOff))
e('buffer_store_dwordx4 %s, v%d, %s, s%d offen offset:32' % (V(vY + 4, 4), t2, S4(sOUT), sOff))
e('L_fin:')
if DIAG:
    e('s_waitcnt vmcnt(0)')
    e('s_memtime s[76:77]' if OPT['cyc'] else 's_memrealtime s[76:77]')
    e('s_memtime s[74:75]')
    e('s_waitcnt lgkmcnt(0)')
    e('s_sub_u32 s74, s74, s100')
    e('v_mov_b32 v%d, s74' % (vX + 14))
    e('s_lshl_b32 s3, s2, 2')
    e('s_add_u32 s3, s3, s%d' % sW)
    e('s_lshl_b32 s3, s3, 6')
    e('s_add_u32 s3, s3, %d' % WS_TS)
    for n in range(12):
        e('v_mov_b32 v%d, s%d' % (vX + n, sTS + 2 * n))
    e('v_mov_b32 v%d, s76' % (vX + 12))
    e('s_getreg_b32 s4, hwreg(HW_REG_XCC_ID)')
    e('v_mov_b32 v%d, s4' % (vX + 13))
    e('s_mov_b64 exec, 1')
    for q in range(4):
        e('buffer_store_dwordx4 %s, off, %s, s3 offset:%d' % (V(vX + 4 * q, 4), S4(sWS), 16 * q))
    if OPT.get('dbgts'):
        e('v_not_b32 v%d, v%d' % (vX + 20, vX))
        e('buffer_atomic_umax v%d, off, %s, 0 offset:16' % (vX + 20, S4(sDBG)))
        for n in range(1, 11):
            if n < nstamp[0]:
                e('s_cmp_ge_u32 s%d, 14' % sM)
                e('s_cbranch_scc1 L_nodbg%d' % n)
                e('buffer_atomic_umax v%d, off, %s, 0 offset:%d' % (vX + n, S4(sDBG), 16 + 4 * n), raw=True)
                e('L_nodbg%d:' % n)
        e('buffer_atomic_umax v%d, off, %s, 0 offset:60' % (vX + 12, S4(sDBG)))
e('s_waitcnt vmcnt(0) lgkmcnt(0)')
e('L_end:')
e('s_endpgm')

p.finalize()
hdr = open('sequential_preLN__linear_attn_block__glu_gated_glu__prompt.s.ref').read().split('\n')
head = [l for l in hdr if l.startswith(';') and '@launch' not in l and 'Override' not in l and 'grid=ceil' not in l]
out = '\n'.join(head) + '''
; @launch grid=(256,1,1) block=(256,1,1) lds=163840
.amdgcn_target "amdgcn-amd-amdhsa--gfx950"
.text
.globl {n}
.p2align 8
.type {n},@function
{n}:
{body}
.section .rodata,"a"
.p2align 6
.amdhsa_kernel {n}
  .amdhsa_next_free_vgpr 512
  .amdhsa_next_free_sgpr 102
  .amdhsa_accum_offset 256
  .amdhsa_group_segment_fixed_size 0
  .amdhsa_kernarg_size 80
  .amdhsa_user_sgpr_count 2
  .amdhsa_user_sgpr_kernarg_segment_ptr 1
  .amdhsa_system_sgpr_workgroup_id_x 1
  .amdhsa_float_denorm_mode_32 3
.end_amdhsa_kernel
'''.format(n=NAME, body=p.text())
open(sys.argv[1], 'w').write(out)
kinds = {}
for i in p.out:
    kinds[i.kind] = kinds.get(i.kind, 0) + 1
print(kinds, p.stats, file=sys.stderr)
```

```python
import sys
from asmlib import Prog, I, interleave

NAME = 'sequential_preLN__linear_attn_block__glu_gated_glu__prompt_kernel'

OPT = dict(diag=0, stop=99, passes=(4, 2, 2), spin=200000, abl='', cyc=0, st=None)
for a in sys.argv[2:]:
    k, v = a.split('=')
    OPT[k] = eval(v)
DIAG = OPT['diag']
STOP = OPT['stop']

WS_CNT = 0
WS_KVP = 0x20000
WS_O = 0x120000
WS_H = 0x320000
WS_ST = 0x520000
WS_HH = 0x560000
WS_TS = 0xC60000
WS_SIZE = 0xD00000
C_O, C_H, C_KV, C_HH = 0, 8, 12, 16

sX, sQKV, sWO, sGU, sWD, sOUT, sWS, sDBG, sCODE = 24, 28, 32, 36, 40, 44, 48, 52, 4
sG, sM, sW, sCs, sWK, sHalf, sA, sTh, sKh, sCnt = 60, 61, 62, 63, 64, 65, 66, 67, 68, 69
sCh = 70
sIdx = 77
sT = [3, 4, 5, 6, 7, 8, 9, 10, 11, 12, 13]
sMaskHi = 14
sMask28 = 16
sOff = 56
sOff2 = 57
sIter = 58
sPoll = 59
sGl = 18
sTT = 22
sTS = 78


def S4(b):
    return 's[%d:%d]' % (b, b + 3)


def V(b, n=1):
    return 'v%d' % b if n == 1 else 'v[%d:%d]' % (b, b + n - 1)


def A(b, n=1):
    return 'a%d' % b if n == 1 else 'a[%d:%d]' % (b, b + n - 1)


vL16, vOne, vP, vL8 = 1, 2, 3, 4
vOffX = 5
vAdX = 9
vAdC = 9
vOffKV, vAdK, vAdV, vOffQ, vAdQ = 13, 14, 15, 16, 17
vAdD = 14
vOffWO, vOffXR, vOffGU, vOffWD = 18, 19, 20, 21
vAdWO, vAdWOp = 22, 24
vT = 26
vY = 32
vX = 64
vF = 128
vU = 240
aW = 0
aH = 32
aB = 40

PG = 4096
LOG2E = 0x3fb8aa3b
EPS6 = 0x358637bd
EPS5 = 0x3727c5ac
INV448 = 0x3b124925

p = Prog()
e = p.e
nstamp = [0]
nlab = [0]


def stamp(name=''):
    if not DIAG:
        return
    early = ('o flag', 'x0 landed', 'x read', 'normalised', 'A1 mfma', 'kv stored', 'q done', 'kv flag', 'kv loaded')
    late = ('h stored', 'h flag', 'P1', 'P2', 'P3', 'P4', 'hh stored', 'D mfma', 'D0', 'D1', 'D2')
    if OPT['st'] is not None:
        if name != 'start' and name not in OPT['st']:
            return
    elif (DIAG == 1 and name in late) or (DIAG == 2 and name in early) or name.startswith('_'):
        return
    n = nstamp[0]
    assert n < 11
    e('%s s[%d:%d] ; @%s' % ('s_memtime' if OPT['cyc'] else 's_memrealtime', sTS + 2 * n, sTS + 2 * n + 1, name))
    nstamp[0] += 1


def L(x):
    return [I(t.strip()) for t in x.strip().split('\n') if t.strip()]


def dma(voff, srd, soff, page_off, tag, imm=0, wave_stride=True):
    r = []
    if wave_stride:
        r.append(I('s_add_u32 m0, s%d, 0x%x' % (sWK, page_off)))
    if isinstance(soff, int):
        if soff == 0:
            so = '0'
        else:
            r.append(I('s_mov_b32 s%d, 0x%x' % (sOff, soff)))
            so = 's%d' % sOff
    elif isinstance(soff, str):
        so = soff
    else:
        r += [I(t) for t in soff]
        so = 's%d' % sOff
    r.append(I('buffer_load_dwordx4 v%d, %s, %s offen%s lds' % (voff, S4(srd), so, ' offset:%d' % imm if imm else ''), tag=tag))
    return r


def poll_issue(cnt_text):
    r = [I(t) for t in cnt_text]
    r.append(I('buffer_load_dword v%d, off, %s, s%d sc1' % (vP, S4(sWS), sPoll)))
    return r


def poll_check(expect, srd=None, soff=None):
    srd = sWS if srd is None else srd
    soff = ('s%d' % sPoll) if soff is None else soff
    n = nlab[0]
    nlab[0] += 1
    t = sT[0]
    r = L('''
    v_readfirstlane_b32 s%d, v%d
    s_cmp_ge_u32 s%d, %d
    s_cbranch_scc1 L_ok%d
    s_mov_b32 s%d, %d
    ''' % (t, vP, t, expect, n, sIter, OPT['spin']))
    r.append(I('L_spin%d:' % n))
    for x in ['buffer_load_dword v%d, off, %s, %s sc1' % (vP, S4(srd), soff),
              's_waitcnt vmcnt(0)',
              'v_readfirstlane_b32 s%d, v%d' % (t, vP),
              's_nop 0',
              's_cmp_ge_u32 s%d, %d' % (t, expect),
              's_cbranch_scc1 L_ok%d' % n,
              's_sub_u32 s%d, s%d, 1' % (sIter, sIter),
              's_cmp_lg_u32 s%d, 0' % sIter,
              's_cbranch_scc1 L_spin%d' % n]:
        r.append(I(x, raw=True))
    r.append(I('L_ok%d:' % n))
    return r


def signal(cnt_text):
    r = [I(t) for t in cnt_text]
    r += L('''
    s_mov_b64 exec, 1
    buffer_atomic_add v%d, off, %s, s%d
    s_mov_b64 exec, -1
    ''' % (vOne, S4(sWS), sT[1]))
    return r


def mfma(d, a, b, first=False):
    return I('v_mfma_f32_32x32x16_bf16 %s, %s, %s, %s' % (V(d, 16), a, b, '0' if first else V(d, 16)))


class WStream:
    def __init__(self, look=7, nbuf=8, wper=4):
        self.items = []
        self.look = look
        self.nbuf = nbuf
        self.wper = wper
        self.n = 0
        self.fills = {}

    def step(self, addr0, off0, addr1, off1, mk, pre=None):
        q = aW + 4 * (self.n % self.nbuf)
        self.n += 1
        rd = list(pre or [])
        rd.append(I('ds_read_b64_tr_b16 %s, v%d offset:%d' % (A(q, 2), addr0, off0)))
        rd.append(I('ds_read_b64_tr_b16 %s, v%d offset:%d' % (A(q + 2, 2), addr1, off1)))
        self.items.append((rd, mk(A(q, 4))))

    def fill(self, idx, grp):
        g = grp if isinstance(grp, list) else [grp]
        ab = OPT['abl']
        if ab and not any(x.kind in ('label', 'sctl') or 'exec' in x.text for x in g):
            if 'v' in ab:
                g = [x for x in g if x.kind != 'valu']
            if 'd' in ab and any(x.kind == 'dma' for x in g):
                g = []
            if 'b' in ab:
                g = [x for x in g if x.kind != 'barrier']
        self.fills.setdefault(idx, []).append(g)

    def build(self):
        out = []
        n = len(self.items)
        for i in range(min(self.look, n)):
            out += self.items[i][0]
        for i in range(n):
            m = self.items[i][1]
            if i % self.wper == 0:
                m.ahead = 2 * min(self.wper - 1, n - 1 - i)
            out.append(m)
            gs = self.fills.pop(i, [])
            first = [g for g in gs if g and g[0].kind == 'barrier']
            rest = [g for g in gs if g and g[0].kind != 'barrier']
            for g in first:
                out += g
            if i + self.look < n:
                out += self.items[i + self.look][0]
            for g in rest:
                if not all(x.kind == 'valu' for x in g):
                    out += g
            for g in rest:
                if all(x.kind == 'valu' for x in g):
                    out += g
        assert not self.fills, list(self.fills)
        return out


e('s_cmp_ge_u32 s2, 256')
e('s_cbranch_scc1 L_end')
stamp('start')
if DIAG:
    e('s_memtime s[100:101]')

e('s_load_dwordx4 s[4:7], s[0:1], 0')
e('s_load_dwordx2 s[%d:%d], s[0:1], 16' % (sWO, sWO + 1))
e('s_load_dwordx8 s[8:15], s[0:1], 32')
e('s_load_dwordx4 s[20:23], s[0:1], 64')
t0, t1, t2, t3, t4, t5 = range(vT, vT + 6)
u = [vU + i for i in range(16)]
XP0 = 12
e("""
v_lshrrev_b32 v{t0}, 6, v0
v_and_b32 v0, 63, v0
v_readfirstlane_b32 s{w}, v{t0}
s_lshr_b32 s{idx}, s2, 3
s_bfe_u32 s3, s2, 0x20001
s_and_b32 s{gl}, s{idx}, 3
s_lshr_b32 s{cs}, s{idx}, 2
s_lshl2_add_u32 s{g}, s3, s{gl}
s_lshl1_add_u32 s{c0}, s{gl}, s{cs}
s_add_u32 s{c0}, s{c0}, s3
s_mul_i32 s3, s{c0}, 37
s_lshr_b32 s3, s3, 8
s_mul_i32 s3, s3, 7
s_sub_u32 s{c0}, s{c0}, s3
v_lshrrev_b32 v{u0}, 3, v0
v_and_b32 v{u1}, 7, v0
v_lshrrev_b32 v{u2}, 4, v0
s_lshl2_add_u32 s3, s{g}, s{w}
s_mul_i32 s3, s3, 28672
v_mul_u32_u24 v{t0}, 896, v{u0}
v_xor_b32 v{t1}, v{u1}, v{u2}
v_add_u32 v{t0}, s3, v{t0}
v_lshl_add_u32 v{x0}, v{t1}, 4, v{t0}
v_xor_b32 v{t1}, 4, v{t1}
v_lshl_add_u32 v{x1}, v{t1}, 4, v{t0}
v_add_u32 v{x2}, 12288, v{x0}
v_add_u32 v{x3}, 18432, v{x1}
v_add_u32 v{x1}, 6144, v{x1}
s_mul_i32 s{o2}, s{w}, {xs}
s_add_u32 s{o2}, s{o2}, {xb}
s_mov_b32 s{X2}, 1835008
s_mov_b32 s{X3}, 0x20000
""".format(t0=t0, t1=t1, w=sW, idx=sIdx, gl=sGl, cs=sCs, g=sG, c0=sCh, u0=u[0], u1=u[1], u2=u[2],
           x0=vOffX, x1=vOffX + 1, x2=vOffX + 2, x3=vOffX + 3, o2=sOff2, xs=7 * PG, xb=XP0 * PG, X2=sX + 2, X3=sX + 3))


def nextch(i):
    e('s_add_u32 s%d, s%d, 1' % (sCh + i, sCh + i - 1))
    e('s_cmp_ge_u32 s%d, 7' % (sCh + i))
    e('s_cselect_b32 s%d, 0, s%d' % (sCh + i, sCh + i))


def xdma(i):
    r = L('s_add_u32 m0, s%d, %d\ns_lshl_b32 s%d, s%d, 7' % (sOff2, i * PG, sOff, sCh + i))
    for q in range(4):
        r.append(I('buffer_load_dwordx4 v%d, %s, s%d offen%s lds' % (vOffX + q, S4(sX), sOff, ' offset:%d' % (q * 1024) if q else ''), tag='x%d' % i))
    return r


nextch(1)
stamp('_prek')
e('@waitlg0')
stamp('_karg')
e('s_mov_b32 s%d, s4' % sX)
e('s_mov_b32 s%d, s5' % (sX + 1))
p.add(xdma(0))
p.add(xdma(1))
stamp('_x01')
for i in range(2, 7):
    nextch(i)
e("""
s_and_b32 s{half}, s2, 1
s_lshl3_add_u32 s{m}, s{half}, s{cs}
s_sub_u32 s{a}, s{m}, s{half}
s_lshl_b32 s{wk}, s{w}, 10
s_lshl_b32 s{cnt}, s{g}, 13
s_and_b32 s{th}, s{w}, 1
s_lshr_b32 s{kh}, s{w}, 1
s_mov_b32 s{q}, s6
s_mov_b32 s{q1}, s7
s_cmp_lt_u32 s{w}, 2
s_cselect_b32 s{gu}, s8, s10
s_cselect_b32 s{gu1}, s9, s11
s_mov_b32 s{wd}, s12
s_mov_b32 s{wd1}, s13
s_mov_b32 s{out}, s14
s_mov_b32 s{out1}, s15
s_mov_b32 s{dbg}, s20
s_mov_b32 s{dbg1}, s21
s_mov_b32 s{ws}, s22
s_mov_b32 s{ws1}, s23
s_cmp_lt_u32 s{cs}, 7
s_cselect_b32 s{wo2}, 401408, 0
s_cselect_b32 s{gu2}, 1605632, 0
""".format(half=sHalf, m=sM, cs=sCs, a=sA, wk=sWK, w=sW, cnt=sCnt, g=sG, th=sTh, kh=sKh, q=sQKV, q1=sQKV + 1,
           gu=sGU, gu1=sGU + 1, wd=sWD, wd1=sWD + 1, out=sOUT, out1=sOUT + 1, dbg=sDBG, dbg1=sDBG + 1,
           ws=sWS, ws1=sWS + 1, wo2=sWO + 2, gu2=sGU + 2))
for srd, size in ((sQKV, 1204224), (sWO, None), (sWD, 1605632), (sGU, None), (sOUT, 1835008), (sDBG, 256), (sWS, WS_SIZE)):
    if size:
        e('s_mov_b32 s%d, 0x%x' % (srd + 2, size))
    e('s_mov_b32 s%d, 0x20000' % (srd + 3))
e("""
v_lshlrev_b32 v{l16}, 4, v0
v_mov_b32 v{one}, 1
v_and_b32 v{u3}, 31, v0
v_lshrrev_b32 v{u4}, 5, v0
v_bfe_u32 v{u5}, v0, 2, 2
v_and_b32 v{u6}, 3, v0
v_bfe_u32 v{u7}, v0, 4, 1
""".format(l16=vL16, one=vOne, u3=u[3], u4=u[4], u5=u[5], u6=u[6], u7=u[7]))
e("""
s_cmp_eq_u32 s{m}, 15
s_cselect_b32 s3, 1, 0
s_cmp_eq_u32 s{w}, 0
s_cselect_b32 s23, s3, 0
s_cmp_eq_u32 s23, 0
s_cbranch_scc1 L_nozero
v_lshlrev_b32 v{t3}, 7, v0
v_mov_b32 v{t4}, 0
""".format(m=sM, w=sW, t3=t3, t4=t4))
e('buffer_store_dword v%d, v%d, %s, s%d offen sc1' % (t4, t3, S4(sWS), sCnt), raw=True)
e('L_nozero:')
if OPT.get('cpf', 1):
    e('s_getpc_b64 s[%d:%d]' % (sCODE, sCODE + 1))
    e('L_pc:')
    e("""
    s_mov_b32 s{c2}, L_end-L_pc
    s_mov_b32 s{c3}, 0x20000
    s_lshl_b32 s3, s{idx}, 2
    s_add_u32 s3, s3, s{w}
    s_lshl_b32 s3, s3, 9
    v_lshlrev_b32 v{t3}, 7, v{u6}
    buffer_load_dword v{d}, v{t3}, {code}, s3 offen
    """.format(c2=sCODE + 2, c3=sCODE + 3, idx=sIdx, w=sW, t3=t3, u6=u[6], d=t5, code=S4(sCODE)))
for i in range(2, 4):
    p.add(xdma(i))
stamp('_x23')
e('v_cmp_lt_u32 s[%d:%d], 31, v0' % (sMaskHi, sMaskHi + 1))
e('v_cmp_eq_u32 s[%d:%d], 28, v%d' % (sMask28, sMask28 + 1, u[3]))
e('''
v_lshlrev_b32 v{t0}, 7, v{u3}
v_add_u32 v{t0}, s{xb}, v{t0}
v_bfe_u32 v{t1}, v0, 1, 3
v_xor_b32 v{t1}, v{t1}, v{u4}
'''.format(t0=t0, t1=t1, u3=u[3], u4=u[4], xb=sOff2))
for ks in range(4):
    e('v_xor_b32 v%d, %d, v%d' % (t2, 2 * ks, t1))
    e('v_lshl_add_u32 v%d, v%d, 4, v%d' % (vAdX + ks, t2, t0))
e('''
v_lshlrev_b32 v{t0}, 2, v{u7}
v_xor_b32 v{t0}, v{t0}, v{u1}
v_lshrrev_b32 v{t1}, 2, v{t0}
v_and_b32 v{t0}, 3, v{t0}
v_lshlrev_b32 v{t2}, 1, v{t0}
v_min_u32 v{t2}, 5, v{t2}
v_lshlrev_b32 v{t2}, 3, v{t2}
s_movk_i32 s{k}, 896
v_mad_u32_u24 v{t2}, v{t1}, s{k}, v{t2}
s_lshl_b32 s3, s{w}, 3
v_add_u32 v{t3}, s3, v{u0}
s_movk_i32 s{k}, 2688
v_mad_u32_u24 v{t2}, v{t3}, s{k}, v{t2}
s_mul_i32 s3, s{m}, 56
s_add_u32 s4, s3, 896
v_add_u32 v{kv}, s4, v{t2}
'''.format(t0=t0, t1=t1, t2=t2, t3=t3, u0=u[0], u1=u[1], u7=u[7], k=sOff, w=sW, m=sM, kv=vOffKV))
e('''
v_lshlrev_b32 v{t2}, 1, v{u6}
v_min_u32 v{t2}, 5, v{t2}
v_lshlrev_b32 v{t2}, 3, v{t2}
v_lshrrev_b32 v{t3}, 2, v0
s_lshl_b32 s4, s{w}, 4
v_add_u32 v{t3}, s4, v{t3}
v_mad_u32_u24 v{t2}, v{t3}, s{k}, v{t2}
v_add_u32 v{q}, s3, v{t2}
'''.format(t2=t2, t3=t3, u6=u[6], k=sOff, w=sW, q=vOffQ))
WQP = 14
e('''
v_lshlrev_b32 v{t0}, 3, v{u6}
v_lshl_add_u32 v{t0}, v{u7}, 5, v{t0}
v_lshrrev_b32 v{t1}, 1, v{u6}
v_and_b32 v{t1}, v{t1}, v{u7}
v_lshlrev_b32 v{t1}, 3, v{t1}
v_xor_b32 v{t1}, v{t0}, v{t1}
v_lshrrev_b32 v{t2}, 1, v{u5}
v_lshlrev_b32 v{t2}, 6, v{t2}
v_lshl_add_u32 v{t3}, v{u4}, 3, v{u5}
v_xor_b32 v{t4}, v{t1}, v{t2}
v_lshl_add_u32 v{ak}, v{t3}, 7, v{t4}
v_xor_b32 v{av}, 64, v{ak}
v_lshl_add_u32 v{aq}, v{t3}, 6, v{t1}
v_add_u32 v{aq}, {qb}, v{aq}
'''.format(t0=t0, t1=t1, t2=t2, t3=t3, t4=t4, u4=u[4], u5=u[5], u6=u[6], u7=u[7], ak=vAdK, av=vAdV, aq=vAdQ, qb=WQP * PG))
e('''
v_xor_b32 v{t4}, v{t0}, v{t2}
v_lshl_add_u32 v{t4}, v{u5}, 7, v{t4}
s_mul_i32 s3, s{kh}, 28672
v_add_u32 v{p0}, s3, v{t4}
v_xor_b32 v{p1}, 64, v{p0}
v_lshl_add_u32 v{a0}, v{u4}, 9, v{p0}
v_xor_b32 v{a1}, 64, v{a0}
'''.format(t0=t0, t2=t2, t4=t4, u4=u[4], u5=u[5], kh=sKh, p0=vAdWOp, p1=vAdWOp + 1, a0=vAdWO, a1=vAdWO + 1))
e('''
v_lshlrev_b32 v{t0}, 2, v{u7}
v_xor_b32 v{t0}, v{t0}, v{u1}
v_lshlrev_b32 v{t0}, 4, v{t0}
s_movk_i32 s{k}, 896
v_mad_u32_u24 v{t0}, v{u0}, s{k}, v{t0}
s_lshl_b32 s3, s{cs}, 7
s_mul_i32 s4, s{w}, 7168
s_add_u32 s4, s4, s3
v_add_u32 v{wo}, s4, v{t0}
s_mul_i32 s4, s{kh}, 802816
s_mul_i32 s5, s{th}, 7168
s_add_u32 s4, s4, s5
s_add_u32 s4, s4, s3
v_add_u32 v{wd}, s4, v{t0}
'''.format(t0=t0, u0=u[0], u1=u[1], u7=u[7], k=sOff, cs=sCs, w=sW, kh=sKh, th=sTh, wo=vOffWO, wd=vOffWD))
e('''
s_lshl_b32 s4, s{g}, 7
s_lshl_b32 s5, s{half}, 6
s_add_u32 s4, s4, s5
s_lshl_b32 s5, s{w}, 3
s_add_u32 s4, s4, s5
s_mul_i32 s4, s4, 896
s_add_u32 s4, s4, s3
s_lshl_b32 s5, s{th}, 2
v_xor_b32 v{t0}, v{u1}, v{u2}
v_xor_b32 v{t0}, s5, v{t0}
v_lshlrev_b32 v{t0}, 4, v{t0}
v_mad_u32_u24 v{t0}, v{u0}, s{k}, v{t0}
v_add_u32 v{xr}, s4, v{t0}
s_lshl_b32 s{tt}, s{half}, 1
s_add_u32 s{tt}, s{tt}, s{th}
'''.format(t0=t0, u0=u[0], u1=u[1], u2=u[2], k=sOff, g=sG, half=sHalf, w=sW, th=sTh, xr=vOffXR, tt=sTT))
e('''
s_lshl_b32 s4, s{kh}, 2
v_lshl_add_u32 v{t0}, v{u7}, 1, s4
v_xor_b32 v{t0}, v{t0}, v{u1}
v_lshlrev_b32 v{t0}, 4, v{t0}
s_movk_i32 s{k}, 3584
v_mad_u32_u24 v{t0}, v{u0}, s{k}, v{t0}
s_mul_i32 s4, s{th}, 28672
s_lshl_b32 s5, s{m}, 8
s_add_u32 s4, s4, s5
v_add_u32 v{gu}, s4, v{t0}
'''.format(t0=t0, u0=u[0], u1=u[1], u7=u[7], k=sOff, kh=sKh, th=sTh, m=sA, gu=vOffGU))


def kvdma(pg):
    i, hfp = pg >> 1, pg & 1
    so = ['s_mul_i32 s%d, s%d, 172032' % (sOff, sCh + i)]
    if hfp:
        so.append('s_add_u32 s%d, s%d, 86016' % (sOff, sOff))
    return dma(vOffKV, sQKV, so, pg * PG, 'kv%d' % pg)


def qdma(i):
    return dma(vOffQ, sQKV, ['s_mul_i32 s%d, s%d, 172032' % (sOff, sCh + i)], (WQP + i) * PG, 'q%d' % i)


vS, vQ2, vOnes = u[8], u[9], u[10]
e('v_mov_b32 v%d, 0' % vS)
e('v_mov_b32 v%d, 0' % vQ2)
e('v_mov_b32 v%d, 0x3f803f80' % vOnes)


def xdots(i):
    r = []
    for j in range(16):
        reg = vF + 16 * i + j
        r.append(I('v_dot2c_f32_bf16 v%d, v%d, v%d' % (vS, reg, vOnes)))
        r.append(I('v_dot2c_f32_bf16 v%d, v%d, v%d' % (vQ2, reg, reg)))
    return r


kv_next = 0
stamp('_addr')
for i in range(7):
    e('@waitvm x%d' % i)
    stamp('_xl%d' % i)
    if i == 0:
        stamp('x0 landed')
    if i == 2:
        e('s_cmp_eq_u32 s23, 0')
        e('s_cbranch_scc1 L_nozero2')
        e('s_mov_b64 exec, 1')
        e('buffer_atomic_add v%d, off, %s, 0' % (vOne, S4(sDBG)), raw=True)
        e('s_mov_b64 exec, -1')
        e('L_nozero2:')
    for ks in range(4):
        e('ds_read_b128 %s, v%d offset:%d' % (V(vF + 16 * i + 4 * ks, 4), vAdX + ks, i * PG))
    if i + 4 < 7:
        p.add(xdma(i + 4))
    else:
        p.add(kvdma(kv_next))
        kv_next += 1
    if i > 0:
        p.add(xdots(i - 1))
p.add(kvdma(kv_next))
kv_next += 1
p.add(xdots(6))
e('s_barrier')
stamp('x read')
p.add(kvdma(kv_next))
kv_next += 1


def ln_consts(s, q, r, c):
    a, b = t0, t1
    return L('''
    v_mul_f32 v{a}, 0x{i:x}, v{s}
    v_mul_f32 v{b}, 0x{i:x}, v{q}
    v_fma_f32 v{b}, -v{a}, v{a}, v{b}
    v_max_f32 v{b}, 0, v{b}
    v_cvt_pk_bf16_f32 v{a}, v{a}, v{b}
    v_and_b32 v{b}, 0xffff0000, v{a}
    v_lshlrev_b32 v{a}, 16, v{a}
    v_add_f32 v{b}, 0x{e:x}, v{b}
    v_cvt_pk_bf16_f32 v{b}, v{b}, v{b}
    v_lshlrev_b32 v{b}, 16, v{b}
    v_sqrt_f32 v{b}, v{b}
    v_cvt_pk_bf16_f32 v{b}, v{b}, v{b}
    v_lshlrev_b32 v{b}, 16, v{b}
    v_rcp_f32 v{r}, v{b}
    v_mul_f32 v{c}, v{a}, v{r}
    v_sub_f32 v{c}, 0, v{c}
    '''.format(a=a, b=b, s=s, q=q, r=r, c=c, i=INV448, e=EPS5))


def halves_sum(x):
    return L('''
    v_mov_b32 v{t}, v{x}
    v_permlane32_swap_b32 v{t}, v{x}
    v_add_f32 v{x}, v{t}, v{x}
    '''.format(t=t2, x=x))


vR, vC = u[12], u[14]
p.add(halves_sum(vS))
p.add(halves_sum(vQ2))
p.add(ln_consts(vS, vQ2, vR, vC))


def norm4(reg, tp):
    return L('''
    v_lshlrev_b32 v{a}, 16, v{x}
    v_and_b32 v{b}, 0xffff0000, v{x}
    v_pk_fma_f32 v[{a}:{b}], v[{a}:{b}], v[{r}:{r1}], v[{c}:{c1}] op_sel_hi:[1,0,0]
    v_cvt_pk_bf16_f32 v{x}, v{a}, v{b}
    '''.format(a=tp, b=tp + 1, x=reg, r=vR, r1=vR + 1, c=vC, c1=vC + 1))


def norm5(reg, tp):
    return L('''
    v_lshlrev_b32 v{a}, 16, v{x}
    v_and_b32 v{b}, 0xffff0000, v{x}
    v_fma_f32 v{a}, v{a}, v{r}, v{c}
    v_fma_f32 v{b}, v{b}, v{r}, v{c}
    v_cvt_pk_bf16_f32 v{x}, v{a}, v{b}
    '''.format(a=tp, b=tp + 1, x=reg, r=vR, c=vC))


def zip_groups(groups):
    out = []
    n = max(len(g) for g in groups)
    for k in range(n):
        for g in groups:
            if k < len(g):
                out.append(g[k])
    return out


for i in range(7):
    for j in range(0, 16, 2):
        p.add(zip_groups([norm4(vF + 16 * i + j, u[0]), norm4(vF + 16 * i + j + 1, u[2])]))
        if j in (2, 10) and kv_next < 14 and (i >= 2 or j == 2):
            p.add(kvdma(kv_next))
            kv_next += 1
assert kv_next == 14, kv_next
stamp('normalised')

aK, aV = vX, vX + 16
ws = WStream()
for pg in range(14):
    for ks2 in range(2):
        k = 2 * pg + ks2
        for (acc, ad) in ((aK, vAdK), (aV, vAdV)):
            pre = None
            if ks2 == 0 and acc == aK:
                if pg == 0:
                    pre = L('@waitvm ' + ' '.join('kv%d' % j for j in range(8)) + '\ns_barrier')
                elif pg >= 8:
                    pre = L('@waitvm kv%d\ns_barrier' % pg)
            off = pg * PG + ks2 * 2048
            ws.step(ad, off, ad, off + 512, lambda a, acc=acc, k=k: mfma(acc, V(vF + 4 * k, 4), a, first=(k == 0)), pre)
for i in range(5):
    ws.fill(8 + 8 * i, qdma(i))
p.add(ws.build())
stamp('A1 mfma')


def phi(acc, dst):
    r = []
    cl = u[4]
    r += L('v_mov_b32 v%d, 0x%x' % (cl, LOG2E))
    for j in range(0, 16, 4):
        g = []
        for jj in (j, j + 2):
            a = acc + jj
            tp = u[0] + (jj & 2)
            g.append(L('''
            v_pk_mul_f32 v[{t}:{t1}], v[{a}:{a1}], v[{c}:{c1}] op_sel_hi:[1,0]
            v_min_f32 v{t}, 0, v{t}
            v_min_f32 v{t1}, 0, v{t1}
            v_exp_f32 v{t}, v{t}
            v_exp_f32 v{t1}, v{t1}
            v_max_f32 v{a}, 0x{e:x}, v{a}
            v_max_f32 v{a1}, 0x{e:x}, v{a1}
            v_pk_add_f32 v[{a}:{a1}], v[{a}:{a1}], v[{t}:{t1}]
            v_cvt_pk_bf16_f32 v{d}, v{a}, v{a1}
            '''.format(t=tp, t1=tp + 1, a=a, a1=a + 1, c=cl, c1=cl + 1, e=EPS6, d=dst + jj // 2)))
        r += zip_groups(g)
    return r


vPK, vVV, aKV = vY, vY + 8, vX + 32
for j in range(8):
    e('v_cvt_pk_bf16_f32 v%d, v%d, v%d' % (vVV + j, aV + 2 * j, aV + 2 * j + 1))
for j in range(8):
    e('v_cndmask_b32 v%d, v%d, v%d, s[%d:%d]' % (vVV + j, vVV + j, vOnes, sMask28, sMask28 + 1))
p.add(phi(aK, vPK))
p.add([mfma(aKV, V(vPK, 4), V(vVV, 4), first=True), mfma(aKV, V(vPK + 4, 4), V(vVV + 4, 4))])
SCR = 21
e('s_lshl_b32 s3, s%d, 12' % sW)
e('s_add_u32 s3, s3, %d' % (SCR * PG))
e('v_add_u32 v%d, s3, v%d' % (t0, vL16))
e('s_add_u32 s3, s%d, %d' % (sWK, SCR * PG))
e('v_add_u32 v%d, s3, v%d' % (t1, vL16))
e('buffer_load_dword v%d, off, %s, 0 sc1' % (vP, S4(sDBG)))
for q in range(4):
    e('ds_write_b128 v%d, %s offset:%d' % (t0, V(aKV + 4 * q, 4), q * 1024))
e('@waitlg0')
e('s_barrier')
for j in range(4):
    e('ds_read_b128 %s, v%d offset:%d' % (V(vX + 4 * j, 4), t1, j * PG))
e("""
s_lshl4_add_u32 s3, s{m}, s{g}
s_lshl2_add_u32 s3, s3, s{w}
s_lshl_b32 s3, s3, 9
s_add_u32 s{o}, s3, {base}
v_lshrrev_b32 v{l8}, 1, v{l16}
""".format(m=sM, g=sG, w=sW, o=sOff, base=WS_KVP, l8=vL8, l16=vL16))
for (a, b) in ((0, 4), (2, 6), (8, 12), (10, 14), (0, 8), (2, 10)):
    e('v_pk_add_f32 v[%d:%d], v[%d:%d], v[%d:%d]' % (vX + a, vX + a + 1, vX + a, vX + a + 1, vX + b, vX + b + 1))
e('v_cvt_pk_bf16_f32 v%d, v%d, v%d' % (vX, vX, vX + 1))
e('v_cvt_pk_bf16_f32 v%d, v%d, v%d' % (vX + 1, vX + 2, vX + 3))
e('buffer_store_dwordx2 %s, v%d, %s, s%d offen sc1' % (V(vX, 2), vL8, S4(sWS), sOff), tag='kvp')
stamp('kv stored')

aQ = vX + 16
ws = WStream()
for i in range(7):
    for ks in range(4):
        k = 4 * i + ks
        pre = None
        if ks == 0 and i == 0:
            pre = L('@waitvm q0 q1 q2 q3 q4\ns_barrier')
        if ks == 0 and i == 5:
            pre = L('@waitvm q5 q6\ns_barrier')
        off = i * PG + ks * 1024
        ws.step(vAdQ, off, vAdQ, off + 256, lambda a, k=k: mfma(aQ, a, V(vF + 4 * k, 4), first=(k == 0)), pre)
wsq = ws
kvsig = L('@waitvm kvp') + poll_check(16, sDBG, '0') + signal([
    's_lshl_b32 s%d, s%d, 13' % (sT[1], sM), 's_lshl_b32 s%d, s%d, 7' % (sT[2], sW),
    's_add_u32 s%d, s%d, s%d' % (sT[1], sT[1], sT[2]), 's_add_u32 s%d, s%d, %d' % (sT[1], sT[1], C_KV * 128)])

WOP, XRP = 0, 26
W1PG = {}
W2PG = {}


def wodma(n):
    c, uu = sCh + (n >> 1), n & 1
    r = L("""
    s_lshl_b32 s{t}, s{c}, 13
    s_add_u32 s{t}, s{t}, s{wk}
    s_add_u32 m0, s{t}, {lo}
    s_mul_i32 s{o}, s{c}, 57344
    """.format(t=sT[3], c=c, wk=sWK, lo=WOP * PG + uu * PG, o=sOff))
    if uu:
        r += L('s_add_u32 s%d, s%d, 28672' % (sOff, sOff))
    return r + dma(vOffWO, sWO, 's%d' % sOff, 0, 'wo', wave_stride=False)


def xrdma(uu):
    return dma(vOffXR, sX, uu * 28672, (XRP + uu) * PG, 'xr')


def gudma(half, k, page):
    (W2PG if half else W1PG)[k] = page
    so = ['s_mul_i32 s%d, s%d, 229376' % (sOff, sCh + (k >> 2))]
    c = (k & 3) * 57344 + half * 128
    if c:
        so.append('s_add_u32 s%d, s%d, %d' % (sOff, sOff, c))
    return dma(vOffGU, sGU, so, page * PG, 'gu%d_%d' % (half, k))


def spread(main, fill):
    out = []
    n, m = len(main), len(fill)
    j = 0
    for i, x in enumerate(main):
        out.append(x)
        while j < m and (j + 1) * n <= (i + 1) * (m + 1):
            out.extend(fill[j])
            j += 1
    while j < m:
        out.extend(fill[j])
        j += 1
    return out


pf = kvsig + qdma(5) + qdma(6)
for n in range(6):
    pf += wodma(n)
wsq.fill(12, pf)
p.add(wsq.build())
vPQ = vY
p.add(spread(phi(aQ, vPQ), [wodma(n) for n in range(6, 14)] + [xrdma(0), xrdma(1)]))
p.add(poll_issue(['s_lshl_b32 s%d, s%d, 13' % (sPoll, sM), 's_lshl_b32 s%d, s%d, 7' % (sT[2], sW),
                  's_add_u32 s%d, s%d, s%d' % (sPoll, sPoll, sT[2]), 's_add_u32 s%d, s%d, %d' % (sPoll, sPoll, C_KV * 128)]))
e('v_cndmask_b32 v%d, v%d, 0, s[%d:%d]' % (vPQ + 6, vPQ + 6, sMaskHi, sMaskHi + 1))
e('v_cndmask_b32 v%d, v%d, 0, s[%d:%d]' % (vPQ + 7, vPQ + 7, sMaskHi, sMaskHi + 1))
e("""
s_lshl_b32 s3, s{m}, 15
s_lshl_b32 s4, s{w}, 9
s_add_u32 s3, s3, s4
s_add_u32 s{o2}, s3, {base}
s_lshl_b32 s5, s{gl}, 13
v_mov_b32 v{e0}, 0x3f80
v_mov_b32 v{e1}, 0x3f800000
""".format(m=sM, w=sW, o2=sOff2, base=WS_KVP, gl=sGl, e0=u[0], e1=u[1]))
for j in range(4):
    e('v_mov_b32 v%d, 0' % (vX + 32 + j))
stamp('q done')
p.add(poll_check(16))
stamp('kv flag')
for gg in range(16):
    if gg % 2 == 0:
        if gg:
            e('s_add_u32 s5, s5, 4096')
            e('s_and_b32 s5, s5, 0x7fff')
        e('s_add_u32 s%d, s%d, s5' % (sOff, sOff2))
    e('buffer_load_dwordx2 %s, v%d, %s, s%d offen%s sc1' % (V(vX + 2 * gg, 2), vL8, S4(sWS), sOff, ' offset:2048' if gg & 1 else ''))
free = list(range(28, 40)) + list(range(14, 21))
NA = OPT.get('na', 6)
for k in range(NA):
    p.add(gudma(0, k, free[k]))
KVS = 25
e('s_lshl_b32 s3, s%d, 9' % sW)
e('s_add_u32 s3, s3, %d' % (KVS * PG))
e('v_add_u32 v%d, s3, v%d' % (t0, vL8))
e('v_add_u32 v%d, %d, v%d' % (t1, KVS * PG, vL8))
for gg in range(16):
    for d in range(2):
        e('v_dot2c_f32_bf16 v%d, v%d, v%d' % (vX + 32 + 2 * d, vX + 2 * gg + d, u[0]))
        e('v_dot2c_f32_bf16 v%d, v%d, v%d' % (vX + 33 + 2 * d, vX + 2 * gg + d, u[1]))
stamp('kv loaded')
e('v_cvt_pk_bf16_f32 v%d, v%d, v%d' % (vX, vX + 32, vX + 33))
e('v_cvt_pk_bf16_f32 v%d, v%d, v%d' % (vX + 1, vX + 34, vX + 35))
e('ds_write_b64 v%d, %s' % (t0, V(vX, 2)))
e('@waitlg0')
e('s_barrier')
vKVF = vY + 8
for q in range(4):
    e('ds_read_b64 %s, v%d offset:%d' % (V(vKVF + 2 * q, 2), t1, q * 512))
aO = vX + 16
p.add([mfma(aO, V(vKVF, 4), V(vPQ, 4), first=True), mfma(aO, V(vKVF + 4, 4), V(vPQ + 4, 4))])
e('''
s_lshl_b32 s3, s{g}, 2
s_add_u32 s3, s3, s{w}
s_lshl_b32 s3, s3, 15
s_lshl_b32 s4, s{m}, 11
s_add_u32 s3, s3, s4
s_add_u32 s{o}, s3, {base}
'''.format(g=sG, w=sW, m=sM, o=sOff, base=WS_O))
e('''
v_mov_b32 v{a}, v{d}
v_mov_b32 v{b}, v{d}
v_permlane32_swap_b32 v{a}, v{b}
v_add_f32 v{b}, 0x{eps:x}, v{b}
v_rcp_f32 v{r}, v{b}
v_cndmask_b32 v{r2}, v{r}, 0, s[{mh}:{mh1}]
'''.format(a=t2, b=t3, d=aO + 12, eps=EPS6, r=u[0], r2=u[2], mh=sMaskHi, mh1=sMaskHi + 1))
for j in range(0, 16, 2):
    r = u[2] if j >= 12 else u[0]
    e('v_pk_mul_f32 v[%d:%d], v[%d:%d], v[%d:%d] op_sel_hi:[1,0]' % (aO + j, aO + j + 1, aO + j, aO + j + 1, r, r + 1))
for j in range(8):
    e('v_cvt_pk_bf16_f32 v%d, v%d, v%d' % (vX + j, aO + 2 * j, aO + 2 * j + 1))
e('buffer_store_dwordx4 %s, v%d, %s, s%d offen sc1' % (V(vX, 4), vL16, S4(sWS), sOff))
e('buffer_store_dwordx4 %s, v%d, %s, s%d offen offset:1024 sc1' % (V(vX + 4, 4), vL16, S4(sWS), sOff))
e('@waitvm0')
p.add(signal(['s_lshl_b32 s%d, s%d, 8' % (sT[1], sW), 's_add_u32 s%d, s%d, s%d' % (sT[1], sT[1], sCnt),
              's_lshl_b32 s%d, s%d, 7' % (sT[2], sHalf),
              's_add_u32 s%d, s%d, s%d' % (sT[1], sT[1], sT[2])]))
stamp('o stored')
e('s_cmp_ge_u32 s%d, 7' % sCs)
e('s_cbranch_scc1 L_fin')
if STOP <= 1:
    e('s_branch L_fin')

for k in range(NA, 19):
    p.add(gudma(0, k, free[k]))
p.add(poll_issue(['s_lshl_b32 s%d, s%d, 8' % (sPoll, sTT), 's_add_u32 s%d, s%d, s%d' % (sPoll, sPoll, sCnt),
                  's_lshl_b32 s%d, s%d, 7' % (sT[2], sKh), 's_add_u32 s%d, s%d, s%d' % (sPoll, sPoll, sT[2])]))
p.add(poll_check(8))
stamp('o flag')
e('''
s_lshl_b32 s3, s{g}, 2
s_add_u32 s3, s3, s{tt}
s_lshl_b32 s3, s3, 15
s_lshl_b32 s4, s{kh}, 14
s_add_u32 s3, s3, s4
s_add_u32 s{o}, s3, {base}
'''.format(g=sG, tt=sTT, kh=sKh, o=sOff2, base=WS_O))


def oload(j):
    r = []
    if j and j % 4 == 0:
        r.append(I('s_add_u32 s%d, s%d, 4096' % (sOff2, sOff2)))
    r.append(I('buffer_load_dwordx4 %s, v%d, %s, s%d offen%s sc1' % (A(aB + 4 * j, 4), vL16, S4(sWS), sOff2, ' offset:%d' % (1024 * (j % 4)) if j % 4 else '')))
    return r


for j in range(8):
    p.add(oload(j))
aB0, aB1 = vX, vX + 16
ws = WStream()
for j in range(16):
    hh, s = j >> 1, j & 1
    for ft in range(2):
        row0 = 28 * hh + 16 * s
        a1_ = (vAdWOp if s == 1 else vAdWO) + ft
        ws.step(vAdWO + ft, WOP * PG + row0 * 128, a1_, WOP * PG + (row0 + 8) * 128,
                lambda a, ft=ft, j=j: mfma(vX + 16 * ft, a, A(aB + 4 * j, 4), first=(j == 0)))
for j in range(8, 16):
    ws.fill(2 * (j - 8), oload(j))
p.add(ws.build())
e('s_lshl_b32 s3, s%d, 12' % sW)
e('s_add_u32 s3, s3, %d' % (SCR * PG))
e('v_add_u32 v%d, s3, v%d' % (t0, vL16))
e('s_xor_b32 s4, s%d, 2' % sW)
e('s_lshl_b32 s4, s4, 12')
e('s_add_u32 s4, s4, %d' % (SCR * PG))
e('v_add_u32 v%d, s4, v%d' % (t1, vL16))


e('s_nop 7')
e('s_nop 3')
e('s_cmp_eq_u32 s%d, 0' % sKh)
e('s_cbranch_scc1 L_prB0')
for q in range(4):
    e('ds_write_b128 v%d, %s offset:%d' % (t0, V(vX + 4 * q, 4), q * 1024), raw=True)
for j in range(0, 16, 2):
    e('v_pk_mul_f32 v[%d:%d], v[%d:%d], 1.0 op_sel_hi:[1,0]' % (vX + j, vX + j + 1, vX + 16 + j, vX + 17 + j), raw=True)
e('s_branch L_prB1')
e('L_prB0:')
for q in range(4):
    e('ds_write_b128 v%d, %s offset:%d' % (t0, V(vX + 16 + 4 * q, 4), q * 1024), raw=True)
e('L_prB1:')
e('''
v_and_b32 v{a}, 31, v0
v_bfe_u32 v{b}, v0, 1, 3
s_lshl_b32 s3, s{kh}, 2
v_xor_b32 v{b}, s3, v{b}
v_lshlrev_b32 v{a}, 7, v{a}
v_lshrrev_b32 v{c}, 5, v0
v_lshl_add_u32 v{a}, v{c}, 3, v{a}
s_lshl_b32 s3, s{th}, 12
s_add_u32 s3, s3, {xb}
v_add_u32 v{a}, s3, v{a}
'''.format(a=t2, b=t3, c=t4, kh=sKh, th=sTh, xb=XRP * PG))
for bq in range(4):
    e('v_xor_b32 v%d, %d, v%d' % (t4, bq, t3))
    e('v_lshl_add_u32 v%d, v%d, 4, v%d' % (t4, t4, t2))
    e('ds_read_b64 %s, v%d' % (V(vY + 2 * bq, 2), t4))
e('s_waitcnt lgkmcnt(0)')
e('s_barrier')
for q in range(4):
    e('ds_read_b128 %s, v%d offset:%d' % (V(vX + 16 + 4 * q, 4), t1, q * 1024))
nxt = [(0, k) for k in range(19, 28)] + [(1, k) for k in range(5)]
for j in range(8):
    e('v_lshlrev_b32 v%d, 16, v%d' % (vX + 32 + 2 * j, vY + j))
    e('v_and_b32 v%d, 0xffff0000, v%d' % (vX + 33 + 2 * j, vY + j))
for j in range(0, 16, 2):
    e('v_pk_add_f32 v[%d:%d], v[%d:%d], v[%d:%d]' % (vX + j, vX + j + 1, vX + j, vX + j + 1, vX + 32 + j, vX + 33 + j))
for j in range(0, 16, 2):
    e('v_pk_add_f32 v[%d:%d], v[%d:%d], v[%d:%d]' % (vX + j, vX + j + 1, vX + j, vX + j + 1, vX + 16 + j, vX + 17 + j))
for j in range(8):
    e('v_cvt_pk_bf16_f32 v%d, v%d, v%d' % (vY + j, vX + 2 * j, vX + 2 * j + 1))
e('''
s_lshl_b32 s3, s{g}, 2
s_add_u32 s3, s3, s{tt}
s_lshl_b32 s4, s{cs}, 1
s_add_u32 s4, s4, s{kh}
s_lshl_b32 s5, s3, 15
s_lshl_b32 s6, s4, 11
s_add_u32 s5, s5, s6
s_add_u32 s{o}, s5, {hb}
s_lshl_b32 s5, s3, 12
s_lshl_b32 s6, s4, 8
s_add_u32 s5, s5, s6
s_add_u32 s{o2}, s5, {sb}
'''.format(g=sG, tt=sTT, cs=sCs, kh=sKh, o=sOff, o2=sOff2, hb=WS_H, sb=WS_ST))
e('buffer_store_dwordx4 %s, v%d, %s, s%d offen sc1' % (V(vY, 4), vL16, S4(sWS), sOff))
e('buffer_store_dwordx4 %s, v%d, %s, s%d offen offset:1024 sc1' % (V(vY + 4, 4), vL16, S4(sWS), sOff))
vS, vQ2 = u[8], u[9]
e('v_mov_b32 v%d, 0' % vS)
e('v_mov_b32 v%d, 0' % vQ2)
for j in range(8):
    e('v_dot2c_f32_bf16 v%d, v%d, v%d' % (vS, vY + j, vOnes))
    e('v_dot2c_f32_bf16 v%d, v%d, v%d' % (vQ2, vY + j, vY + j))
e('v_and_b32 v%d, 31, v0' % t4)
e('v_lshlrev_b32 v%d, 3, v%d' % (t4, t4))
p.add(halves_sum(vS))
p.add(halves_sum(vQ2))
e('buffer_store_dwordx2 %s, v%d, %s, s%d offen sc1' % (V(vS, 2), t4, S4(sWS), sOff2))
for j in range(8):
    e('v_accvgpr_write_b32 a%d, v%d' % (aH + j, vY + j))
e('@waitvm0')
p.add(signal(['s_lshl_b32 s%d, s%d, 7' % (sT[1], sTT), 's_add_u32 s%d, s%d, s%d' % (sT[1], sT[1], sCnt),
              's_add_u32 s%d, s%d, %d' % (sT[1], sT[1], C_H * 128)]))
stamp('h stored')
if STOP <= 2:
    e('s_branch L_fin')

for n, (hf_, k) in enumerate(nxt):
    p.add(gudma(hf_, k, n))
p.add(poll_issue(['s_lshl_b32 s%d, s%d, 7' % (sPoll, sW), 's_add_u32 s%d, s%d, s%d' % (sPoll, sPoll, sCnt),
                  's_add_u32 s%d, s%d, %d' % (sPoll, sPoll, C_H * 128)]))
e('''
v_bfe_u32 v{r}, v0, 2, 2
v_bfe_u32 v{iu}, v0, 4, 1
v_lshrrev_b32 v{hf}, 5, v0
v_lshl_add_u32 v{a}, v{hf}, 2, v{r}
v_lshlrev_b32 v{a}, 7, v{a}
v_lshl_add_u32 v{a}, v{iu}, 11, v{a}
v_and_b32 v{b}, 1, v0
v_lshl_add_u32 v{a}, v{b}, 3, v{a}
v_lshrrev_b32 v{b}, 1, v{r}
v_lshl_add_u32 v{b}, v{iu}, 1, v{b}
v_lshlrev_b32 v{b}, 1, v{b}
v_bfe_u32 v{c}, v0, 1, 1
v_xor_b32 v{b}, v{b}, v{c}
'''.format(r=u[0], iu=u[1], hf=u[2], a=t0, b=t1, c=t2))
for t in range(4):
    e('v_xor_b32 v%d, %d, v%d' % (t2, 2 * t, t1))
    e('v_lshl_add_u32 v%d, v%d, 4, v%d' % (vAdC + t, t2, t0))
e('''
s_mul_i32 s3, s{kh}, 26624
v_subrev_u32 v{d0}, s3, v{w0}
v_subrev_u32 v{d1}, s3, v{w1}
v_and_b32 v{a}, 31, v0
v_lshlrev_b32 v{a}, 3, v{a}
s_movk_i32 s3, 1792
v_mad_u32_u24 v{a}, v{hf}, s3, v{a}
s_lshl_b32 s3, s{g}, 2
s_add_u32 s3, s3, s{w}
s_lshl_b32 s4, s3, 12
s_add_u32 s{o}, s4, {sb}
s_lshl_b32 s4, s3, 15
s_add_u32 s{o2}, s4, {hb}
'''.format(kh=sKh, d0=vAdD, d1=vAdD + 1, w0=vAdWO, w1=vAdWO + 1, a=t4, hf=u[2], g=sG, w=sW, o=sT[8], o2=sOff2, sb=WS_ST, hb=WS_H))
e('s_barrier')
for n in range(7):
    p.add(gudma(1, 5 + n, 21 + n))
p.add(poll_check(14))
stamp('h flag')
for i in range(7):
    e('buffer_load_dwordx2 %s, v%d, %s, s%d offen offset:%d sc1' % (V(vY + 2 * i, 2), t4, S4(sWS), sT[8], 256 * i))
sHb, sHo = sT[5], sT[6]
e('s_mov_b32 s%d, s%d' % (sHb, sOff2))


def hload(k):
    r = []
    if k % 4 == 0:
        r += L('s_lshl_b32 s%d, s%d, 12\ns_add_u32 s%d, s%d, s%d' % (sHo, sCh + k // 4, sHo, sHo, sHb))
    r.append(I('buffer_load_dwordx4 %s, v%d, %s, s%d offen%s sc1' % (V(vF + 4 * k, 4), vL16, S4(sWS), sHo, ' offset:%d' % (1024 * (k % 4)) if k % 4 else '')))
    return r


HL = OPT.get('hl', 8)
for k in range(HL):
    p.add(hload(k))
stamp('_hiss')
for (a, b) in ((0, 2), (4, 6), (8, 10), (0, 4), (8, 12), (0, 8)):
    e('v_pk_add_f32 v[%d:%d], v[%d:%d], v[%d:%d]' % (vY + a, vY + a + 1, vY + a, vY + a + 1, vY + b, vY + b + 1))
stamp('_st')
p.add(halves_sum(vY))
p.add(halves_sum(vY + 1))
p.add(ln_consts(vY, vY + 1, vR, vC))
e('''
s_lshl_b32 s3, s{g}, 2
s_add_u32 s3, s3, s{w}
s_mul_i32 s3, s3, 112
s_lshl_b32 s4, s{m}, 3
s_add_u32 s3, s3, s4
s_lshl_b32 s3, s3, 10
s_add_u32 s{o}, s3, {base}
'''.format(g=sG, w=sW, m=sA, o=sT[9], base=WS_HH))
sHHst = sT[9]


class Win:
    def __init__(self, regs):
        self.regs = regs
        self.cur = {r: 0 for r in regs}

    def fix(self, reg, off):
        w = (off // 61440)
        base = w * 61440
        pre = []
        if self.cur[reg] != base:
            d = base - self.cur[reg]
            if d > 0:
                pre.append(I('v_add_u32 v%d, %d, v%d' % (reg, d, reg)))
            else:
                pre.append(I('v_subrev_u32 v%d, %d, v%d' % (reg, -d, reg)))
            self.cur[reg] = base
        return pre, off - base


winC = Win([vAdC + t for t in range(4)])
winD = Win([vAdD, vAdD + 1])
NEGL = 0xbfb8aa3b


def hhstore(tile):
    d = u[8] + (tile & 1) * 4
    r = []
    so = sHHst
    if tile >= 4:
        r.append(I('s_add_u32 s%d, s%d, 4096' % (sOff, sHHst)))
        so = sOff
    r.append(I('buffer_store_dwordx4 %s, v%d, %s, s%d offen%s sc1' % (V(d, 4), vL16, S4(sWS), so, ' offset:%d' % (1024 * (tile & 3)) if tile & 3 else ''), tag='hh%d' % tile))
    return r


def eslots(tiles):
    slots = {}

    def put(sl, x):
        slots.setdefault(sl, []).append(x)
    n = 0
    for tile in tiles:
        acc = acc_of[tile]
        for el in range(8):
            tp = u[n % 6]
            put(2 * n, I('v_mul_f32 v%d, 0x%x, v%d' % (tp, NEGL, acc + el)))
            put(2 * n + 1, I('v_exp_f32 v%d, v%d' % (tp, tp)))
            put(2 * n + 2, I('v_add_f32 v%d, 1.0, v%d' % (tp, tp)))
            put(2 * n + 4, I('v_rcp_f32 v%d, v%d' % (tp, tp)))
            put(2 * n + 5, I('v_mul_f32 v%d, v%d, v%d' % (tp, tp, acc + 8 + el)))
            if el & 1:
                put(2 * n + 7, I('v_cvt_pk_bf16_f32 v%d, v%d, v%d' % (u[8] + (tile & 1) * 4 + el // 2, u[(n - 1) % 6], tp)))
            if el == 7:
                put(2 * n + 8, hhstore(tile))
            n += 1
    out = []
    for k in range(max(slots) + 1):
        sl = slots.get(k, [])
        sl.sort(key=lambda x: 0 if (not isinstance(x, list) and x.op in ('v_exp_f32', 'v_rcp_f32')) else 1)
        out.append(sl)
    return out


def efast(tile):
    acc = acc_of[tile]
    g = []
    for j in range(0, 8, 2):
        tp = u[0] + (j & 2)
        g.append(L("""
        v_pk_mul_f32 v[{t}:{t1}], v[{a}:{a1}], v[{c}:{c1}] op_sel_hi:[1,0]
        v_exp_f32 v{t}, v{t}
        v_exp_f32 v{t1}, v{t1}
        v_pk_add_f32 v[{t}:{t1}], v[{t}:{t1}], 1.0 op_sel_hi:[1,0]
        v_rcp_f32 v{t}, v{t}
        v_rcp_f32 v{t1}, v{t1}
        v_pk_mul_f32 v[{t}:{t1}], v[{t}:{t1}], v[{b}:{b1}]
        v_cvt_pk_bf16_f32 v{d}, v{t}, v{t1}
        """.format(t=tp, t1=tp + 1, a=acc + j, a1=acc + j + 1, b=acc + 8 + j, b1=acc + 9 + j, c=u[4], c1=u[5], d=u[8] + (tile & 1) * 4 + j // 2)))
    return zip_groups(g[0:2]) + zip_groups(g[2:4]) + hhstore(tile)


def hhsig(stage):
    return L('@waitvm hh%d hh%d' % (2 * stage, 2 * stage + 1)) + signal([
        's_lshl_b32 s%d, s%d, 10' % (sT[1], sW), 's_add_u32 s%d, s%d, s%d' % (sT[1], sT[1], sCnt),
        's_lshl_b32 s%d, s%d, 9' % (sT[2], sHalf), 's_add_u32 s%d, s%d, s%d' % (sT[1], sT[1], sT[2]),
        's_add_u32 s%d, s%d, %d' % (sT[1], sT[1], (C_HH + stage) * 128)])


acc_of = {0: vX, 1: vX + 16, 2: vX + 32, 3: vX + 48, 4: vY, 5: vY + 16, 6: vX, 7: vX + 16}
D_ORDER = [(j, t, t >> 1) for t in range(8) for j in range(7)]
WDPG = {}
wd_next = [0]


def wddma(page):
    n = wd_next[0]
    wd_next[0] += 1
    j, t, st = D_ORDER[n]
    WDPG[n] = page
    so = ['s_mul_i32 s%d, s%d, 114688' % (sOff, sCh + j)]
    if t:
        so.append('s_add_u32 s%d, s%d, %d' % (sOff, sOff, t * 14336))
    return dma(vOffWD, sWD, so, page * PG, 'wd%d' % n)


sHHld = sT[7]
NQ = 54


def hhpoll(stage):
    return poll_issue(['s_lshl_b32 s%d, s%d, 10' % (sPoll, sTT), 's_add_u32 s%d, s%d, s%d' % (sPoll, sPoll, sCnt),
                       's_lshl_b32 s%d, s%d, 9' % (sT[2], sKh), 's_add_u32 s%d, s%d, s%d' % (sPoll, sPoll, sT[2]),
                       's_add_u32 s%d, s%d, %d' % (sPoll, sPoll, (C_HH + stage) * 128)])


def hhload(n):
    j, t, st = D_ORDER[n]
    ko = (t & 3) * 1024
    r = L('s_lshl_b32 s%d, s%d, 13\ns_add_u32 s%d, s%d, s%d' % (sOff2, sCh + j, sOff2, sOff2, sHHld + (t >> 2)))
    r.append(I('buffer_load_dwordx4 %s, v%d, %s, s%d offen%s sc1' % (A(aB + 4 * (n % NQ), 4), vL16, S4(sWS), sOff2, ' offset:%d' % ko if ko else '')))
    return r


for j in range(8):
    p.add(norm4(vF + j, u[0] + 2 * (j & 1)))
e("""
s_lshl2_add_u32 s3, s{g}, s{tt}
s_mul_i32 s3, s3, 112
s_mul_i32 s4, s{kh}, 56
s_add_u32 s3, s3, s4
s_lshl_b32 s3, s3, 10
s_add_u32 s{o}, s3, {base}
s_add_u32 s{o1}, s{o}, 4096
""".format(g=sG, tt=sTT, kh=sKh, o=sHHld, o1=sHHld + 1, base=WS_HH))
ws = WStream()
BSTEP = 4
w2_todo = list(range(12, 28))
dslot = 2 * (28 - HL) - 1
for k in range(28):
    for t in range(4):
        pre = []
        if t == 0 and k == 0:
            pre += L('@waitvm ' + ' '.join('gu0_%d' % j for j in range(28)) + '\ns_barrier')
        pr, off = winC.fix(vAdC + t, W1PG[k] * PG)
        pre += pr
        ws.step(vAdC + t, off, vAdC + t, off + 1024, lambda a, t=t, k=k: mfma(acc_of[t], a, V(vF + 4 * k, 4), first=(k == 0)), pre)
    if k + HL < 28:
        ws.fill(2 * k, hload(k + HL))
    if k + 2 < 28:
        for j in range(4):
            for x in norm5(vF + 4 * (k + 2) + j, u[0] + 2 * (j & 1)):
                ws.fill(4 * k + j, x)
    if k % BSTEP == BSTEP - 1:
        ws.fill(4 * k + 3, L('s_barrier'))
        for n, kk in enumerate(range(k - BSTEP + 1, k + 1)):
            pg = W1PG[kk]
            dslot = max(dslot + 3, 4 * k + 4)
            ws.fill(dslot, gudma(1, w2_todo.pop(0), pg) if w2_todo else wddma(pg))
for nm, at in (('_m0', 0), ('_m16', 15), ('_m32', 31), ('_m56', 55), ('_m84', 83), ('P1', 111), ('_m140', 139), ('P2', 167), ('_m184', 183), ('_m196', 195), ('_m198', 197), ('_m210', 209)):
    n0 = len(p.ins)
    stamp(nm)
    if p.ins[n0:]:
        ws.fill(at, p.ins[n0:])
    del p.ins[n0:]
carry = []
for ps, tl in enumerate(((4, 5), (6, 7))):
    base = 112 + 56 * ps
    for k in range(28):
        for t in tl:
            pre = []
            if ps == 0 and t == tl[0] and k in (0, 12, 20):
                hi = {0: 12, 12: 20, 20: 28}[k]
                pre += L('@waitvm ' + ' '.join('gu1_%d' % j for j in range(k, hi)) + '\ns_barrier')
            pr, off = winC.fix(vAdC + t - 4, W2PG[k] * PG)
            pre += pr
            ws.step(vAdC + t - 4, off, vAdC + t - 4, off + 1024, lambda a, t=t, k=k: mfma(acc_of[t], a, V(vF + 4 * k, 4), first=(k == 0)), pre)
        if ps == 1 and k % BSTEP == BSTEP - 1:
            ws.fill(base + 2 * k + 1, L('s_barrier'))
            carry += [(base + 2 * k + 2, W2PG[kk]) for kk in range(k - BSTEP + 1, k + 1)]
E0 = 113
es = eslots(range(6))
assert E0 + 64 >= 168 + 1
for n, sl in enumerate(es):
    for x in sl:
        ws.fill(E0 + n, x)
SIGD = OPT.get('sigd', 14)
for st in range(3):
    at = E0 + 32 * (st + 1) + 6 + SIGD
    if at < 224:
        ws.fill(at, hhsig(st))
    else:
        assert st == 2
assert E0 + 96 + 6 + SIGD >= 224
H0 = OPT.get('h0', 194)
ws.fill(H0 - 8, hhpoll(0))
ws.fill(H0, poll_check(7))
for n in range(14):
    ws.fill(min(223, H0 + 1 + 2 * n), hhload(n))
g_ = 174
while True:
    g_ = max(g_ + 2, carry[0][0])
    if g_ >= H0 - 8:
        break
    ws.fill(g_, wddma(carry.pop(0)[1]))
p.add(ws.build())
stamp('P3')
e('v_mov_b32 v%d, 0x%x' % (u[4], NEGL))
ef = efast(6)
p.add(spread(ef[:-2], [wddma(carry.pop(0)[1]) for _ in range(6)]) + ef[-2:])
p.add(hhsig(2))
p.add(hhpoll(1))
p.add(efast(7))
for _ in range(8):
    p.add(wddma(carry.pop(0)[1]))
carry_dma = []
for _, pg in carry:
    carry_dma += wddma(pg)
if STOP <= 3:
    p.add(hhsig(3))
    e('s_branch L_fin')

ws = WStream()
DB = 8
resident = wd_next[0]
assert resident == 40
wpts = {0: 14, 14: 28, 28: 40, 40: 48, 48: 56}
for n in range(56):
    for ft in range(2):
        pre = []
        if ft == 0 and n in wpts:
            pre += L('@waitvm ' + ' '.join('wd%d' % q for q in range(n, wpts[n])) + '\ns_barrier')
        pr, off = winD.fix(vAdD + ft, WDPG[n] * PG)
        pre += pr
        ws.step(vAdD + ft, off, vAdD + ft, off + 1024, lambda a, ft=ft, n=n: mfma(vX + 32 + 16 * ft, a, A(aB + 4 * (n % NQ), 4), first=(n == 0)), pre)
    if n % DB == DB - 1 and wd_next[0] < 56:
        ws.fill(2 * n + 1, L('s_barrier'))
        for q, nn in enumerate(range(n - DB + 1, n + 1)):
            if wd_next[0] < 56:
                ws.fill(2 * n + 2 + q, wddma(WDPG[nn]))
n0 = len(p.ins)
stamp('hh stored')
ws.fill(OPT.get('d3', 8), hhsig(3) + p.ins[n0:])
del p.ins[n0:]
for st, at in ((1, OPT.get('d3', 8)), (2, OPT.get('d2', 26)), (3, OPT.get('d4', 54))):
    grp = poll_check(7)
    for n in range(14 * st, 14 * st + 14):
        grp = grp + hhload(n)
        if st < 3 and n == 14 * st + 6:
            grp = grp + hhpoll(st + 1)
    if st == 1:
        grp = grp + carry_dma
    ws.fill(at, grp)
for nm, at in (('D0', 27), ('D1', 55), ('D2', 83)):
    n0 = len(p.ins)
    stamp(nm)
    if p.ins[n0:]:
        ws.fill(at, p.ins[n0:])
    del p.ins[n0:]
p.add(ws.build())
stamp('D mfma')
e('s_barrier')
RP = 0
e('s_lshl_b32 s3, s%d, 12' % sW)
e('v_add_u32 v%d, s3, v%d' % (t0, vL16))
e('s_xor_b32 s4, s3, 8192')
e('v_add_u32 v%d, s4, v%d' % (t1, vL16))
D0 = vX + 32
e('s_nop 7')
e('s_cmp_eq_u32 s%d, 0' % sKh)
e('s_cbranch_scc1 L_prD0')
for q in range(4):
    e('ds_write_b128 v%d, %s offset:%d' % (t0, V(D0 + 4 * q, 4), q * 1024), raw=True)
for j in range(0, 16, 2):
    e('v_pk_mul_f32 v[%d:%d], v[%d:%d], 1.0 op_sel_hi:[1,0]' % (D0 + j, D0 + j + 1, D0 + 16 + j, D0 + 17 + j), raw=True)
e('s_branch L_prD1')
e('L_prD0:')
for q in range(4):
    e('ds_write_b128 v%d, %s offset:%d' % (t0, V(D0 + 16 + 4 * q, 4), q * 1024), raw=True)
e('L_prD1:')
for j in range(8):
    e('v_accvgpr_read_b32 v%d, a%d' % (vY + j, aH + j))
e('s_waitcnt lgkmcnt(0)')
e('s_barrier')
for q in range(4):
    e('ds_read_b128 %s, v%d offset:%d' % (V(vX + 4 * q, 4), t1, q * 1024))
for j in range(8):
    e('v_lshlrev_b32 v%d, 16, v%d' % (vX + 16 + 2 * j, vY + j))
    e('v_and_b32 v%d, 0xffff0000, v%d' % (vX + 17 + 2 * j, vY + j))
for j in range(0, 16, 2):
    e('v_pk_add_f32 v[%d:%d], v[%d:%d], v[%d:%d]' % (D0 + j, D0 + j + 1, D0 + j, D0 + j + 1, vX + 16 + j, vX + 17 + j))
e('''
s_lshl_b32 s3, s{g}, 2
s_add_u32 s3, s3, s{tt}
s_mul_i32 s3, s3, 28672
s_lshl_b32 s4, s{cs}, 7
s_add_u32 s3, s3, s4
s_lshl_b32 s4, s{kh}, 6
s_add_u32 s{o}, s3, s4
v_and_b32 v{a}, 31, v0
s_movk_i32 s3, 896
v_mul_u32_u24 v{a}, s3, v{a}
v_lshrrev_b32 v{b}, 5, v0
v_lshl_add_u32 v{a}, v{b}, 4, v{a}
'''.format(g=sG, tt=sTT, cs=sCs, kh=sKh, o=sOff, a=t2, b=t3))
for j in range(0, 16, 2):
    e('v_pk_add_f32 v[%d:%d], v[%d:%d], v[%d:%d]' % (D0 + j, D0 + j + 1, D0 + j, D0 + j + 1, vX + j, vX + j + 1))
for j in range(8):
    e('v_cvt_pk_bf16_f32 v%d, v%d, v%d' % (vY + j, D0 + 2 * j, D0 + 2 * j + 1))
for bb in (0, 4):
    e('v_permlane32_swap_b32 v%d, v%d' % (vY + bb, vY + bb + 2))
    e('v_permlane32_swap_b32 v%d, v%d' % (vY + bb + 1, vY + bb + 3))
e('buffer_store_dwordx4 %s, v%d, %s, s%d offen' % (V(vY, 4), t2, S4(sOUT), sOff))
e('buffer_store_dwordx4 %s, v%d, %s, s%d offen offset:32' % (V(vY + 4, 4), t2, S4(sOUT), sOff))
e('L_fin:')
if DIAG:
    e('s_waitcnt vmcnt(0)')
    e('s_memtime s[76:77]' if OPT['cyc'] else 's_memrealtime s[76:77]')
    e('s_memtime s[74:75]')
    e('s_waitcnt lgkmcnt(0)')
    e('s_sub_u32 s74, s74, s100')
    e('v_mov_b32 v%d, s74' % (vX + 14))
    e('s_lshl_b32 s3, s2, 2')
    e('s_add_u32 s3, s3, s%d' % sW)
    e('s_lshl_b32 s3, s3, 6')
    e('s_add_u32 s3, s3, %d' % WS_TS)
    for n in range(12):
        e('v_mov_b32 v%d, s%d' % (vX + n, sTS + 2 * n))
    e('v_mov_b32 v%d, s76' % (vX + 12))
    e('s_getreg_b32 s4, hwreg(HW_REG_XCC_ID)')
    e('v_mov_b32 v%d, s4' % (vX + 13))
    e('s_mov_b64 exec, 1')
    for q in range(4):
        e('buffer_store_dwordx4 %s, off, %s, s3 offset:%d' % (V(vX + 4 * q, 4), S4(sWS), 16 * q))
    if OPT.get('dbgts'):
        e('v_not_b32 v%d, v%d' % (vX + 20, vX))
        e('buffer_atomic_umax v%d, off, %s, 0 offset:16' % (vX + 20, S4(sDBG)))
        for n in range(1, 11):
            if n < nstamp[0]:
                e('s_cmp_ge_u32 s%d, 7' % sCs)
                e('s_cbranch_scc1 L_nodbg%d' % n)
                e('buffer_atomic_umax v%d, off, %s, 0 offset:%d' % (vX + n, S4(sDBG), 16 + 4 * n), raw=True)
                e('L_nodbg%d:' % n)
        e('buffer_atomic_umax v%d, off, %s, 0 offset:60' % (vX + 12, S4(sDBG)))
e('s_waitcnt vmcnt(0) lgkmcnt(0)')
e('L_end:')
e('s_endpgm')

p.finalize()
hdr = open('sequential_preLN__linear_attn_block__glu_gated_glu__prompt.s.ref').read().split('\n')
head = [l for l in hdr if l.startswith(';') and '@launch' not in l and 'Override' not in l and 'grid=ceil' not in l]
out = '\n'.join(head) + '''
; @launch grid=(256,1,1) block=(256,1,1) lds=163840
.amdgcn_target "amdgcn-amd-amdhsa--gfx950"
.text
.globl {n}
.p2align 8
.type {n},@function
{n}:
{body}
.section .rodata,"a"
.p2align 6
.amdhsa_kernel {n}
  .amdhsa_next_free_vgpr 512
  .amdhsa_next_free_sgpr 102
  .amdhsa_accum_offset 256
  .amdhsa_group_segment_fixed_size 0
  .amdhsa_kernarg_size 80
  .amdhsa_user_sgpr_count 2
  .amdhsa_user_sgpr_kernarg_segment_ptr 1
  .amdhsa_system_sgpr_workgroup_id_x 1
  .amdhsa_float_denorm_mode_32 3
.end_amdhsa_kernel
'''.format(n=NAME, body=p.text())
open(sys.argv[1], 'w').write(out)
kinds = {}
for i in p.out:
    kinds[i.kind] = kinds.get(i.kind, 0) + 1
print(kinds, p.stats, file=sys.stderr)
```

```python
import sys
from asmlib import Prog, I, interleave

NAME = 'sequential_preLN__linear_attn_block__glu_gated_glu__prompt_kernel'

OPT = dict(diag=0, stop=99, passes=(4, 2, 2), spin=200000, abl='', cyc=0, st=None)
for a in sys.argv[2:]:
    k, v = a.split('=')
    OPT[k] = eval(v)
DIAG = OPT['diag']
STOP = OPT['stop']

WS_CNT = 0
WS_KVP = 0x20000
WS_O = 0x120000
WS_H = 0x320000
WS_ST = 0x520000
WS_HH = 0x560000
WS_TS = 0xC60000
WS_SIZE = 0xD00000
C_O, C_H, C_KV, C_HH = 0, 8, 12, 16

sX, sQKV, sWO, sGU, sWD, sOUT, sWS, sDBG, sCODE = 24, 28, 32, 36, 40, 44, 48, 52, 4
sG, sM, sW, sCs, sWK, sHalf, sA, sTh, sKh, sCnt = 60, 61, 62, 63, 64, 65, 66, 67, 68, 69
sCh = 70
sIdx = 77
sT = [3, 4, 5, 6, 7, 8, 9, 10, 11, 12, 13]
sMaskHi = 14
sMask28 = 16
sOff = 56
sOff2 = 57
sIter = 58
sPoll = 59
sGl = 18
sTT = 22
sTS = 78


def S4(b):
    return 's[%d:%d]' % (b, b + 3)


def V(b, n=1):
    return 'v%d' % b if n == 1 else 'v[%d:%d]' % (b, b + n - 1)


def A(b, n=1):
    return 'a%d' % b if n == 1 else 'a[%d:%d]' % (b, b + n - 1)


vL16, vOne, vP, vL8 = 1, 2, 3, 4
vOffX = 5
vAdX = 9
vAdC = 9
vOffKV, vAdK, vAdV, vOffQ, vAdQ = 13, 14, 15, 16, 17
vAdD = 14
vOffWO, vOffXR, vOffGU, vOffWD = 18, 19, 20, 21
vAdWO, vAdWOp = 22, 24
vT = 26
vY = 32
vX = 64
vF = 128
vU = 240
aW = 0
aH = 32
aB = 40

PG = 4096
LOG2E = 0x3fb8aa3b
EPS6 = 0x358637bd
EPS5 = 0x3727c5ac
INV448 = 0x3b124925

p = Prog()
e = p.e
nstamp = [0]
nlab = [0]


def stamp(name=''):
    if not DIAG:
        return
    early = ('o flag', 'x0 landed', 'x read', 'normalised', 'A1 mfma', 'kv stored', 'q done', 'kv flag', 'kv loaded')
    late = ('h stored', 'h flag', 'P1', 'P2', 'P3', 'P4', 'hh stored', 'D mfma', 'D0', 'D1', 'D2')
    if OPT['st'] is not None:
        if name != 'start' and name not in OPT['st']:
            return
    elif (DIAG == 1 and name in late) or (DIAG == 2 and name in early) or name.startswith('_'):
        return
    n = nstamp[0]
    assert n < 11
    e('%s s[%d:%d] ; @%s' % ('s_memtime' if OPT['cyc'] else 's_memrealtime', sTS + 2 * n, sTS + 2 * n + 1, name))
    nstamp[0] += 1


def L(x):
    return [I(t.strip()) for t in x.strip().split('\n') if t.strip()]


def dma(voff, srd, soff, page_off, tag, imm=0, wave_stride=True):
    r = []
    if wave_stride:
        r.append(I('s_add_u32 m0, s%d, 0x%x' % (sWK, page_off)))
    if isinstance(soff, int):
        if soff == 0:
            so = '0'
        else:
            r.append(I('s_mov_b32 s%d, 0x%x' % (sOff, soff)))
            so = 's%d' % sOff
    elif isinstance(soff, str):
        so = soff
    else:
        r += [I(t) for t in soff]
        so = 's%d' % sOff
    r.append(I('buffer_load_dwordx4 v%d, %s, %s offen%s lds' % (voff, S4(srd), so, ' offset:%d' % imm if imm else ''), tag=tag))
    return r


def poll_issue(cnt_text):
    r = [I(t) for t in cnt_text]
    r.append(I('buffer_load_dword v%d, off, %s, s%d sc1' % (vP, S4(sWS), sPoll)))
    return r


def poll_check(expect, srd=None, soff=None):
    srd = sWS if srd is None else srd
    soff = ('s%d' % sPoll) if soff is None else soff
    n = nlab[0]
    nlab[0] += 1
    t = sT[0]
    r = L('''
    v_readfirstlane_b32 s%d, v%d
    s_cmp_ge_u32 s%d, %d
    s_cbranch_scc1 L_ok%d
    s_mov_b32 s%d, %d
    ''' % (t, vP, t, expect, n, sIter, OPT['spin']))
    r.append(I('L_spin%d:' % n))
    for x in ['buffer_load_dword v%d, off, %s, %s sc1' % (vP, S4(srd), soff),
              's_waitcnt vmcnt(0)',
              'v_readfirstlane_b32 s%d, v%d' % (t, vP),
              's_nop 0',
              's_cmp_ge_u32 s%d, %d' % (t, expect),
              's_cbranch_scc1 L_ok%d' % n,
              's_sub_u32 s%d, s%d, 1' % (sIter, sIter),
              's_cmp_lg_u32 s%d, 0' % sIter,
              's_cbranch_scc1 L_spin%d' % n]:
        r.append(I(x, raw=True))
    r.append(I('L_ok%d:' % n))
    return r


def signal(cnt_text):
    r = [I(t) for t in cnt_text]
    r += L('''
    s_mov_b64 exec, 1
    buffer_atomic_add v%d, off, %s, s%d
    s_mov_b64 exec, -1
    ''' % (vOne, S4(sWS), sT[1]))
    return r


def mfma(d, a, b, first=False):
    return I('v_mfma_f32_32x32x16_bf16 %s, %s, %s, %s' % (V(d, 16), a, b, '0' if first else V(d, 16)))


class WStream:
    def __init__(self, look=7, nbuf=8, wper=4):
        self.items = []
        self.look = look
        self.nbuf = nbuf
        self.wper = wper
        self.n = 0
        self.fills = {}

    def step(self, addr0, off0, addr1, off1, mk, pre=None):
        q = aW + 4 * (self.n % self.nbuf)
        self.n += 1
        rd = list(pre or [])
        rd.append(I('ds_read_b64_tr_b16 %s, v%d offset:%d' % (A(q, 2), addr0, off0)))
        rd.append(I('ds_read_b64_tr_b16 %s, v%d offset:%d' % (A(q + 2, 2), addr1, off1)))
        self.items.append((rd, mk(A(q, 4))))

    def fill(self, idx, grp):
        g = grp if isinstance(grp, list) else [grp]
        ab = OPT['abl']
        if ab and not any(x.kind in ('label', 'sctl') or 'exec' in x.text for x in g):
            if 'v' in ab:
                g = [x for x in g if x.kind != 'valu']
            if 'd' in ab and any(x.kind == 'dma' for x in g):
                g = []
            if 'b' in ab:
                g = [x for x in g if x.kind != 'barrier']
        self.fills.setdefault(idx, []).append(g)

    def build(self):
        out = []
        n = len(self.items)
        for i in range(min(self.look, n)):
            out += self.items[i][0]
        for i in range(n):
            m = self.items[i][1]
            if i % self.wper == 0:
                m.ahead = 2 * min(self.wper - 1, n - 1 - i)
            out.append(m)
            gs = self.fills.pop(i, [])
            first = [g for g in gs if g and g[0].kind == 'barrier']
            rest = [g for g in gs if g and g[0].kind != 'barrier']
            for g in first:
                out += g
            if i + self.look < n:
                out += self.items[i + self.look][0]
            for g in rest:
                if not all(x.kind == 'valu' for x in g):
                    out += g
            for g in rest:
                if all(x.kind == 'valu' for x in g):
                    out += g
        assert not self.fills, list(self.fills)
        return out


e('s_cmp_ge_u32 s2, 256')
e('s_cbranch_scc1 L_end')
if OPT.get('fixt'):
    e('s_memrealtime s[98:99]')
stamp('start')
if DIAG:
    e('s_memtime s[100:101]')

e('s_load_dwordx4 s[4:7], s[0:1], 0')
e('s_load_dwordx2 s[%d:%d], s[0:1], 16' % (sWO, sWO + 1))
e('s_load_dwordx8 s[8:15], s[0:1], 32')
e('s_load_dwordx4 s[20:23], s[0:1], 64')
t0, t1, t2, t3, t4, t5 = range(vT, vT + 6)
u = [vU + i for i in range(16)]
XP0 = 12
e("""
v_lshrrev_b32 v{t0}, 6, v0
v_and_b32 v0, 63, v0
v_readfirstlane_b32 s{w}, v{t0}
s_lshr_b32 s{idx}, s2, 3
s_bfe_u32 s3, s2, 0x20001
s_and_b32 s{gl}, s{idx}, 3
s_lshr_b32 s{cs}, s{idx}, 2
s_lshl2_add_u32 s{g}, s3, s{gl}
s_lshl1_add_u32 s{c0}, s{gl}, s{cs}
s_add_u32 s{c0}, s{c0}, s3
s_mul_i32 s3, s{c0}, 37
s_lshr_b32 s3, s3, 8
s_mul_i32 s3, s3, 7
s_sub_u32 s{c0}, s{c0}, s3
v_lshrrev_b32 v{u0}, 3, v0
v_and_b32 v{u1}, 7, v0
v_lshrrev_b32 v{u2}, 4, v0
s_lshl2_add_u32 s3, s{g}, s{w}
s_mul_i32 s3, s3, 28672
v_mul_u32_u24 v{t0}, 896, v{u0}
v_xor_b32 v{t1}, v{u1}, v{u2}
v_add_u32 v{t0}, s3, v{t0}
v_lshl_add_u32 v{x0}, v{t1}, 4, v{t0}
v_xor_b32 v{t1}, 4, v{t1}
v_lshl_add_u32 v{x1}, v{t1}, 4, v{t0}
v_add_u32 v{x2}, 12288, v{x0}
v_add_u32 v{x3}, 18432, v{x1}
v_add_u32 v{x1}, 6144, v{x1}
s_mul_i32 s{o2}, s{w}, {xs}
s_add_u32 s{o2}, s{o2}, {xb}
s_mov_b32 s{X2}, 1835008
s_mov_b32 s{X3}, 0x20000
""".format(t0=t0, t1=t1, w=sW, idx=sIdx, gl=sGl, cs=sCs, g=sG, c0=sCh, u0=u[0], u1=u[1], u2=u[2],
           x0=vOffX, x1=vOffX + 1, x2=vOffX + 2, x3=vOffX + 3, o2=sOff2, xs=7 * PG, xb=XP0 * PG, X2=sX + 2, X3=sX + 3))


def nextch(i):
    e('s_add_u32 s%d, s%d, 1' % (sCh + i, sCh + i - 1))
    e('s_cmp_ge_u32 s%d, 7' % (sCh + i))
    e('s_cselect_b32 s%d, 0, s%d' % (sCh + i, sCh + i))


def xdma(i):
    r = L('s_add_u32 m0, s%d, %d\ns_lshl_b32 s%d, s%d, 7' % (sOff2, i * PG, sOff, sCh + i))
    for q in range(4):
        r.append(I('buffer_load_dwordx4 v%d, %s, s%d offen%s lds' % (vOffX + q, S4(sX), sOff, ' offset:%d' % (q * 1024) if q else ''), tag='x%d' % i))
    return r


nextch(1)
stamp('_prek')
e('@waitlg0')
stamp('_karg')
e('s_mov_b32 s%d, s4' % sX)
e('s_mov_b32 s%d, s5' % (sX + 1))
p.add(xdma(0))
p.add(xdma(1))
stamp('_x01')
for i in range(2, 7):
    nextch(i)
e("""
s_and_b32 s{half}, s2, 1
s_lshl3_add_u32 s{m}, s{half}, s{cs}
s_sub_u32 s{a}, s{m}, s{half}
s_lshl_b32 s{wk}, s{w}, 10
s_lshl_b32 s{cnt}, s{g}, 13
s_and_b32 s{th}, s{w}, 1
s_lshr_b32 s{kh}, s{w}, 1
s_mov_b32 s{q}, s6
s_mov_b32 s{q1}, s7
s_cmp_lt_u32 s{w}, 2
s_cselect_b32 s{gu}, s8, s10
s_cselect_b32 s{gu1}, s9, s11
s_mov_b32 s{wd}, s12
s_mov_b32 s{wd1}, s13
s_mov_b32 s{out}, s14
s_mov_b32 s{out1}, s15
s_mov_b32 s{dbg}, s20
s_mov_b32 s{dbg1}, s21
s_mov_b32 s{ws}, s22
s_mov_b32 s{ws1}, s23
s_cmp_lt_u32 s{cs}, 7
s_cselect_b32 s{wo2}, 401408, 0
s_cselect_b32 s{gu2}, 1605632, 0
""".format(half=sHalf, m=sM, cs=sCs, a=sA, wk=sWK, w=sW, cnt=sCnt, g=sG, th=sTh, kh=sKh, q=sQKV, q1=sQKV + 1,
           gu=sGU, gu1=sGU + 1, wd=sWD, wd1=sWD + 1, out=sOUT, out1=sOUT + 1, dbg=sDBG, dbg1=sDBG + 1,
           ws=sWS, ws1=sWS + 1, wo2=sWO + 2, gu2=sGU + 2))
for srd, size in ((sQKV, 1204224), (sWO, None), (sWD, 1605632), (sGU, None), (sOUT, 1835008), (sDBG, 256), (sWS, WS_SIZE)):
    if size:
        e('s_mov_b32 s%d, 0x%x' % (srd + 2, size))
    e('s_mov_b32 s%d, 0x20000' % (srd + 3))
e("""
v_lshlrev_b32 v{l16}, 4, v0
v_mov_b32 v{one}, 1
v_and_b32 v{u3}, 31, v0
v_lshrrev_b32 v{u4}, 5, v0
v_bfe_u32 v{u5}, v0, 2, 2
v_and_b32 v{u6}, 3, v0
v_bfe_u32 v{u7}, v0, 4, 1
""".format(l16=vL16, one=vOne, u3=u[3], u4=u[4], u5=u[5], u6=u[6], u7=u[7]))
e("""
s_cmp_eq_u32 s{m}, 15
s_cselect_b32 s3, 1, 0
s_cmp_eq_u32 s{w}, 0
s_cselect_b32 s23, s3, 0
s_cmp_eq_u32 s23, 0
s_cbranch_scc1 L_nozero
v_lshlrev_b32 v{t3}, 7, v0
v_mov_b32 v{t4}, 0
""".format(m=sM, w=sW, t3=t3, t4=t4))
e('buffer_store_dword v%d, v%d, %s, s%d offen sc1' % (t4, t3, S4(sWS), sCnt), raw=True)
e('L_nozero:')
if OPT.get('cpf', 1):
    e('s_getpc_b64 s[%d:%d]' % (sCODE, sCODE + 1))
    e('L_pc:')
    e("""
    s_mov_b32 s{c2}, L_end-L_pc
    s_mov_b32 s{c3}, 0x20000
    s_lshl_b32 s3, s{idx}, 2
    s_add_u32 s3, s3, s{w}
    s_lshl_b32 s3, s3, 9
    v_lshlrev_b32 v{t3}, 7, v{u6}
    buffer_load_dword v{d}, v{t3}, {code}, s3 offen
    """.format(c2=sCODE + 2, c3=sCODE + 3, idx=sIdx, w=sW, t3=t3, u6=u[6], d=t5, code=S4(sCODE)))
for i in range(2, 4):
    p.add(xdma(i))
if OPT.get('tlb', 0):
    e('v_lshlrev_b32 v%d, %d, v0' % (t4, OPT['tlb']))
    for n, srd in enumerate((sWS, sWO, sGU, sWD, sOUT)):
        e('buffer_load_dword a%d, v%d, %s, 0 offen' % (250 + n, t4, S4(srd)))
stamp('_x23')
e('v_cmp_lt_u32 s[%d:%d], 31, v0' % (sMaskHi, sMaskHi + 1))
e('v_cmp_eq_u32 s[%d:%d], 28, v%d' % (sMask28, sMask28 + 1, u[3]))
e('''
v_lshlrev_b32 v{t0}, 7, v{u3}
v_add_u32 v{t0}, s{xb}, v{t0}
v_bfe_u32 v{t1}, v0, 1, 3
v_xor_b32 v{t1}, v{t1}, v{u4}
'''.format(t0=t0, t1=t1, u3=u[3], u4=u[4], xb=sOff2))
for ks in range(4):
    e('v_xor_b32 v%d, %d, v%d' % (t2, 2 * ks, t1))
    e('v_lshl_add_u32 v%d, v%d, 4, v%d' % (vAdX + ks, t2, t0))
e('''
v_lshlrev_b32 v{t0}, 2, v{u7}
v_xor_b32 v{t0}, v{t0}, v{u1}
v_lshrrev_b32 v{t1}, 2, v{t0}
v_and_b32 v{t0}, 3, v{t0}
v_lshlrev_b32 v{t2}, 1, v{t0}
v_min_u32 v{t2}, 5, v{t2}
v_lshlrev_b32 v{t2}, 3, v{t2}
s_movk_i32 s{k}, 896
v_mad_u32_u24 v{t2}, v{t1}, s{k}, v{t2}
s_lshl_b32 s3, s{w}, 3
v_add_u32 v{t3}, s3, v{u0}
s_movk_i32 s{k}, 2688
v_mad_u32_u24 v{t2}, v{t3}, s{k}, v{t2}
s_mul_i32 s3, s{m}, 56
s_add_u32 s4, s3, 896
v_add_u32 v{kv}, s4, v{t2}
'''.format(t0=t0, t1=t1, t2=t2, t3=t3, u0=u[0], u1=u[1], u7=u[7], k=sOff, w=sW, m=sM, kv=vOffKV))
e('''
v_lshlrev_b32 v{t2}, 1, v{u6}
v_min_u32 v{t2}, 5, v{t2}
v_lshlrev_b32 v{t2}, 3, v{t2}
v_lshrrev_b32 v{t3}, 2, v0
s_lshl_b32 s4, s{w}, 4
v_add_u32 v{t3}, s4, v{t3}
v_mad_u32_u24 v{t2}, v{t3}, s{k}, v{t2}
v_add_u32 v{q}, s3, v{t2}
'''.format(t2=t2, t3=t3, u6=u[6], k=sOff, w=sW, q=vOffQ))
WQP = 14
e('''
v_lshlrev_b32 v{t0}, 3, v{u6}
v_lshl_add_u32 v{t0}, v{u7}, 5, v{t0}
v_lshrrev_b32 v{t1}, 1, v{u6}
v_and_b32 v{t1}, v{t1}, v{u7}
v_lshlrev_b32 v{t1}, 3, v{t1}
v_xor_b32 v{t1}, v{t0}, v{t1}
v_lshrrev_b32 v{t2}, 1, v{u5}
v_lshlrev_b32 v{t2}, 6, v{t2}
v_lshl_add_u32 v{t3}, v{u4}, 3, v{u5}
v_xor_b32 v{t4}, v{t1}, v{t2}
v_lshl_add_u32 v{ak}, v{t3}, 7, v{t4}
v_xor_b32 v{av}, 64, v{ak}
v_lshl_add_u32 v{aq}, v{t3}, 6, v{t1}
v_add_u32 v{aq}, {qb}, v{aq}
'''.format(t0=t0, t1=t1, t2=t2, t3=t3, t4=t4, u4=u[4], u5=u[5], u6=u[6], u7=u[7], ak=vAdK, av=vAdV, aq=vAdQ, qb=WQP * PG))
e('''
v_xor_b32 v{t4}, v{t0}, v{t2}
v_lshl_add_u32 v{t4}, v{u5}, 7, v{t4}
s_mul_i32 s3, s{kh}, 28672
v_add_u32 v{p0}, s3, v{t4}
v_xor_b32 v{p1}, 64, v{p0}
v_lshl_add_u32 v{a0}, v{u4}, 9, v{p0}
v_xor_b32 v{a1}, 64, v{a0}
'''.format(t0=t0, t2=t2, t4=t4, u4=u[4], u5=u[5], kh=sKh, p0=vAdWOp, p1=vAdWOp + 1, a0=vAdWO, a1=vAdWO + 1))
e('''
v_lshlrev_b32 v{t0}, 2, v{u7}
v_xor_b32 v{t0}, v{t0}, v{u1}
v_lshlrev_b32 v{t0}, 4, v{t0}
s_movk_i32 s{k}, 896
v_mad_u32_u24 v{t0}, v{u0}, s{k}, v{t0}
s_lshl_b32 s3, s{cs}, 7
s_mul_i32 s4, s{w}, 7168
s_add_u32 s4, s4, s3
v_add_u32 v{wo}, s4, v{t0}
s_mul_i32 s4, s{kh}, 802816
s_mul_i32 s5, s{th}, 7168
s_add_u32 s4, s4, s5
s_add_u32 s4, s4, s3
v_add_u32 v{wd}, s4, v{t0}
'''.format(t0=t0, u0=u[0], u1=u[1], u7=u[7], k=sOff, cs=sCs, w=sW, kh=sKh, th=sTh, wo=vOffWO, wd=vOffWD))
e('''
s_lshl_b32 s4, s{g}, 7
s_lshl_b32 s5, s{half}, 6
s_add_u32 s4, s4, s5
s_lshl_b32 s5, s{w}, 3
s_add_u32 s4, s4, s5
s_mul_i32 s4, s4, 896
s_add_u32 s4, s4, s3
s_lshl_b32 s5, s{th}, 2
v_xor_b32 v{t0}, v{u1}, v{u2}
v_xor_b32 v{t0}, s5, v{t0}
v_lshlrev_b32 v{t0}, 4, v{t0}
v_mad_u32_u24 v{t0}, v{u0}, s{k}, v{t0}
v_add_u32 v{xr}, s4, v{t0}
s_lshl_b32 s{tt}, s{half}, 1
s_add_u32 s{tt}, s{tt}, s{th}
'''.format(t0=t0, u0=u[0], u1=u[1], u2=u[2], k=sOff, g=sG, half=sHalf, w=sW, th=sTh, xr=vOffXR, tt=sTT))
e('''
s_lshl_b32 s4, s{kh}, 2
v_lshl_add_u32 v{t0}, v{u7}, 1, s4
v_xor_b32 v{t0}, v{t0}, v{u1}
v_lshlrev_b32 v{t0}, 4, v{t0}
s_movk_i32 s{k}, 3584
v_mad_u32_u24 v{t0}, v{u0}, s{k}, v{t0}
s_mul_i32 s4, s{th}, 28672
s_lshl_b32 s5, s{m}, 8
s_add_u32 s4, s4, s5
v_add_u32 v{gu}, s4, v{t0}
'''.format(t0=t0, u0=u[0], u1=u[1], u7=u[7], k=sOff, kh=sKh, th=sTh, m=sA, gu=vOffGU))


def kvdma(pg):
    i, hfp = pg >> 1, pg & 1
    so = ['s_mul_i32 s%d, s%d, 172032' % (sOff, sCh + i)]
    if hfp:
        so.append('s_add_u32 s%d, s%d, 86016' % (sOff, sOff))
    return dma(vOffKV, sQKV, so, pg * PG, 'kv%d' % pg)


def qdma(i):
    return dma(vOffQ, sQKV, ['s_mul_i32 s%d, s%d, 172032' % (sOff, sCh + i)], (WQP + i) * PG, 'q%d' % i)


vS, vQ2, vOnes = u[8], u[9], u[10]
e('v_mov_b32 v%d, 0' % vS)
e('v_mov_b32 v%d, 0' % vQ2)
e('v_mov_b32 v%d, 0x3f803f80' % vOnes)


def xdots(i):
    r = []
    for j in range(16):
        reg = vF + 16 * i + j
        r.append(I('v_dot2c_f32_bf16 v%d, v%d, v%d' % (vS, reg, vOnes)))
        r.append(I('v_dot2c_f32_bf16 v%d, v%d, v%d' % (vQ2, reg, reg)))
    return r


kv_next = 0
stamp('_addr')
for i in range(7):
    e('@waitvm x%d' % i)
    stamp('_xl%d' % i)
    if i == 0:
        stamp('x0 landed')
    if i == 2:
        e('s_cmp_eq_u32 s23, 0')
        e('s_cbranch_scc1 L_nozero2')
        e('s_mov_b64 exec, 1')
        e('buffer_atomic_add v%d, off, %s, 0' % (vOne, S4(sDBG)), raw=True)
        e('s_mov_b64 exec, -1')
        e('L_nozero2:')
    for ks in range(4):
        e('ds_read_b128 %s, v%d offset:%d' % (V(vF + 16 * i + 4 * ks, 4), vAdX + ks, i * PG))
    if i + 4 < 7:
        p.add(xdma(i + 4))
    else:
        p.add(kvdma(kv_next))
        kv_next += 1
    if i > 0:
        p.add(xdots(i - 1))
p.add(kvdma(kv_next))
kv_next += 1
p.add(xdots(6))
e('s_barrier')
stamp('x read')
p.add(kvdma(kv_next))
kv_next += 1


def ln_consts(s, q, r, c):
    a, b = t0, t1
    return L('''
    v_mul_f32 v{a}, 0x{i:x}, v{s}
    v_mul_f32 v{b}, 0x{i:x}, v{q}
    v_fma_f32 v{b}, -v{a}, v{a}, v{b}
    v_max_f32 v{b}, 0, v{b}
    v_cvt_pk_bf16_f32 v{a}, v{a}, v{b}
    v_and_b32 v{b}, 0xffff0000, v{a}
    v_lshlrev_b32 v{a}, 16, v{a}
    v_add_f32 v{b}, 0x{e:x}, v{b}
    v_cvt_pk_bf16_f32 v{b}, v{b}, v{b}
    v_lshlrev_b32 v{b}, 16, v{b}
    v_sqrt_f32 v{b}, v{b}
    v_cvt_pk_bf16_f32 v{b}, v{b}, v{b}
    v_lshlrev_b32 v{b}, 16, v{b}
    v_rcp_f32 v{r}, v{b}
    v_mul_f32 v{c}, v{a}, v{r}
    v_sub_f32 v{c}, 0, v{c}
    '''.format(a=a, b=b, s=s, q=q, r=r, c=c, i=INV448, e=EPS5))


def halves_sum(x):
    return L('''
    v_mov_b32 v{t}, v{x}
    v_permlane32_swap_b32 v{t}, v{x}
    v_add_f32 v{x}, v{t}, v{x}
    '''.format(t=t2, x=x))


vR, vC = u[12], u[14]
p.add(halves_sum(vS))
p.add(halves_sum(vQ2))
p.add(ln_consts(vS, vQ2, vR, vC))


def norm4(reg, tp):
    return L('''
    v_lshlrev_b32 v{a}, 16, v{x}
    v_and_b32 v{b}, 0xffff0000, v{x}
    v_pk_fma_f32 v[{a}:{b}], v[{a}:{b}], v[{r}:{r1}], v[{c}:{c1}] op_sel_hi:[1,0,0]
    v_cvt_pk_bf16_f32 v{x}, v{a}, v{b}
    '''.format(a=tp, b=tp + 1, x=reg, r=vR, r1=vR + 1, c=vC, c1=vC + 1))


def norm5(reg, tp):
    return L('''
    v_lshlrev_b32 v{a}, 16, v{x}
    v_and_b32 v{b}, 0xffff0000, v{x}
    v_fma_f32 v{a}, v{a}, v{r}, v{c}
    v_fma_f32 v{b}, v{b}, v{r}, v{c}
    v_cvt_pk_bf16_f32 v{x}, v{a}, v{b}
    '''.format(a=tp, b=tp + 1, x=reg, r=vR, c=vC))


def zip_groups(groups):
    out = []
    n = max(len(g) for g in groups)
    for k in range(n):
        for g in groups:
            if k < len(g):
                out.append(g[k])
    return out


for i in range(7):
    for j in range(0, 16, 2):
        p.add(zip_groups([norm4(vF + 16 * i + j, u[0]), norm4(vF + 16 * i + j + 1, u[2])]))
        if j in (2, 10) and kv_next < 14 and (i >= 2 or j == 2):
            p.add(kvdma(kv_next))
            kv_next += 1
assert kv_next == 14, kv_next
stamp('normalised')

aK, aV = vX, vX + 16
ws = WStream()
for pg in range(14):
    for ks2 in range(2):
        k = 2 * pg + ks2
        for (acc, ad) in ((aK, vAdK), (aV, vAdV)):
            pre = None
            if ks2 == 0 and acc == aK:
                if pg == 0:
                    pre = L('@waitvm ' + ' '.join('kv%d' % j for j in range(8)) + '\ns_barrier')
                elif pg >= 8:
                    pre = L('@waitvm kv%d\ns_barrier' % pg)
            off = pg * PG + ks2 * 2048
            ws.step(ad, off, ad, off + 512, lambda a, acc=acc, k=k: mfma(acc, V(vF + 4 * k, 4), a, first=(k == 0)), pre)
for i in range(5):
    ws.fill(8 + 8 * i, qdma(i))
p.add(ws.build())
stamp('A1 mfma')


def phi(acc, dst):
    r = []
    cl = u[4]
    r += L('v_mov_b32 v%d, 0x%x' % (cl, LOG2E))
    for j in range(0, 16, 4):
        g = []
        for jj in (j, j + 2):
            a = acc + jj
            tp = u[0] + (jj & 2)
            g.append(L('''
            v_pk_mul_f32 v[{t}:{t1}], v[{a}:{a1}], v[{c}:{c1}] op_sel_hi:[1,0]
            v_min_f32 v{t}, 0, v{t}
            v_min_f32 v{t1}, 0, v{t1}
            v_exp_f32 v{t}, v{t}
            v_exp_f32 v{t1}, v{t1}
            v_max_f32 v{a}, 0x{e:x}, v{a}
            v_max_f32 v{a1}, 0x{e:x}, v{a1}
            v_pk_add_f32 v[{a}:{a1}], v[{a}:{a1}], v[{t}:{t1}]
            v_cvt_pk_bf16_f32 v{d}, v{a}, v{a1}
            '''.format(t=tp, t1=tp + 1, a=a, a1=a + 1, c=cl, c1=cl + 1, e=EPS6, d=dst + jj // 2)))
        r += zip_groups(g)
    return r


vPK, vVV, aKV = vY, vY + 8, vX + 32
for j in range(8):
    e('v_cvt_pk_bf16_f32 v%d, v%d, v%d' % (vVV + j, aV + 2 * j, aV + 2 * j + 1))
for j in range(8):
    e('v_cndmask_b32 v%d, v%d, v%d, s[%d:%d]' % (vVV + j, vVV + j, vOnes, sMask28, sMask28 + 1))
p.add(phi(aK, vPK))
p.add([mfma(aKV, V(vPK, 4), V(vVV, 4), first=True), mfma(aKV, V(vPK + 4, 4), V(vVV + 4, 4))])
SCR = 21
e('s_lshl_b32 s3, s%d, 12' % sW)
e('s_add_u32 s3, s3, %d' % (SCR * PG))
e('v_add_u32 v%d, s3, v%d' % (t0, vL16))
e('s_add_u32 s3, s%d, %d' % (sWK, SCR * PG))
e('v_add_u32 v%d, s3, v%d' % (t1, vL16))
e('buffer_load_dword v%d, off, %s, 0 sc1' % (vP, S4(sDBG)))
for q in range(4):
    e('ds_write_b128 v%d, %s offset:%d' % (t0, V(aKV + 4 * q, 4), q * 1024))
e('@waitlg0')
e('s_barrier')
for j in range(4):
    e('ds_read_b128 %s, v%d offset:%d' % (V(vX + 4 * j, 4), t1, j * PG))
e("""
s_lshl4_add_u32 s3, s{m}, s{g}
s_lshl2_add_u32 s3, s3, s{w}
s_lshl_b32 s3, s3, 9
s_add_u32 s{o}, s3, {base}
v_lshrrev_b32 v{l8}, 1, v{l16}
""".format(m=sM, g=sG, w=sW, o=sOff, base=WS_KVP, l8=vL8, l16=vL16))
for (a, b) in ((0, 4), (2, 6), (8, 12), (10, 14), (0, 8), (2, 10)):
    e('v_pk_add_f32 v[%d:%d], v[%d:%d], v[%d:%d]' % (vX + a, vX + a + 1, vX + a, vX + a + 1, vX + b, vX + b + 1))
e('v_cvt_pk_bf16_f32 v%d, v%d, v%d' % (vX, vX, vX + 1))
e('v_cvt_pk_bf16_f32 v%d, v%d, v%d' % (vX + 1, vX + 2, vX + 3))
e('buffer_store_dwordx2 %s, v%d, %s, s%d offen sc1' % (V(vX, 2), vL8, S4(sWS), sOff), tag='kvp')
stamp('kv stored')

aQ = vX + 16
ws = WStream()
for i in range(7):
    for ks in range(4):
        k = 4 * i + ks
        pre = None
        if ks == 0 and i == 0:
            pre = L('@waitvm q0 q1 q2 q3 q4\ns_barrier')
        if ks == 0 and i == 5:
            pre = L('@waitvm q5 q6\ns_barrier')
        off = i * PG + ks * 1024
        ws.step(vAdQ, off, vAdQ, off + 256, lambda a, k=k: mfma(aQ, a, V(vF + 4 * k, 4), first=(k == 0)), pre)
wsq = ws
kvsig = L('@waitvm kvp') + poll_check(16, sDBG, '0') + signal([
    's_lshl_b32 s%d, s%d, 13' % (sT[1], sM), 's_lshl_b32 s%d, s%d, 7' % (sT[2], sW),
    's_add_u32 s%d, s%d, s%d' % (sT[1], sT[1], sT[2]), 's_add_u32 s%d, s%d, %d' % (sT[1], sT[1], C_KV * 128)])

WOP, XRP = 0, 26
W1PG = {}
W2PG = {}


def wodma(n):
    c, uu = sCh + (n >> 1), n & 1
    r = L("""
    s_lshl_b32 s{t}, s{c}, 13
    s_add_u32 s{t}, s{t}, s{wk}
    s_add_u32 m0, s{t}, {lo}
    s_mul_i32 s{o}, s{c}, 57344
    """.format(t=sT[3], c=c, wk=sWK, lo=WOP * PG + uu * PG, o=sOff))
    if uu:
        r += L('s_add_u32 s%d, s%d, 28672' % (sOff, sOff))
    return r + dma(vOffWO, sWO, 's%d' % sOff, 0, 'wo', wave_stride=False)


def xrdma(uu):
    return dma(vOffXR, sX, uu * 28672, (XRP + uu) * PG, 'xr')


def gudma(half, k, page):
    (W2PG if half else W1PG)[k] = page
    so = ['s_mul_i32 s%d, s%d, 229376' % (sOff, sCh + (k >> 2))]
    c = (k & 3) * 57344 + half * 128
    if c:
        so.append('s_add_u32 s%d, s%d, %d' % (sOff, sOff, c))
    return dma(vOffGU, sGU, so, page * PG, 'gu%d_%d' % (half, k))


def spread(main, fill):
    out = []
    n, m = len(main), len(fill)
    j = 0
    for i, x in enumerate(main):
        out.append(x)
        while j < m and (j + 1) * n <= (i + 1) * (m + 1):
            out.extend(fill[j])
            j += 1
    while j < m:
        out.extend(fill[j])
        j += 1
    return out


pf = kvsig + qdma(5) + qdma(6)
for n in range(6):
    pf += wodma(n)
wsq.fill(12, pf)
p.add(wsq.build())
vPQ = vY
p.add(spread(phi(aQ, vPQ), [wodma(n) for n in range(6, 14)] + [xrdma(0), xrdma(1)]))
p.add(poll_issue(['s_lshl_b32 s%d, s%d, 13' % (sPoll, sM), 's_lshl_b32 s%d, s%d, 7' % (sT[2], sW),
                  's_add_u32 s%d, s%d, s%d' % (sPoll, sPoll, sT[2]), 's_add_u32 s%d, s%d, %d' % (sPoll, sPoll, C_KV * 128)]))
e('v_cndmask_b32 v%d, v%d, 0, s[%d:%d]' % (vPQ + 6, vPQ + 6, sMaskHi, sMaskHi + 1))
e('v_cndmask_b32 v%d, v%d, 0, s[%d:%d]' % (vPQ + 7, vPQ + 7, sMaskHi, sMaskHi + 1))
e("""
s_lshl_b32 s3, s{m}, 15
s_lshl_b32 s4, s{w}, 9
s_add_u32 s3, s3, s4
s_add_u32 s{o2}, s3, {base}
s_lshl_b32 s5, s{gl}, 13
v_mov_b32 v{e0}, 0x3f80
v_mov_b32 v{e1}, 0x3f800000
""".format(m=sM, w=sW, o2=sOff2, base=WS_KVP, gl=sGl, e0=u[0], e1=u[1]))
for j in range(4):
    e('v_mov_b32 v%d, 0' % (vX + 32 + j))
stamp('q done')
p.add(poll_check(16))
stamp('kv flag')
for gg in range(16):
    if gg % 2 == 0:
        if gg:
            e('s_add_u32 s5, s5, 4096')
            e('s_and_b32 s5, s5, 0x7fff')
        e('s_add_u32 s%d, s%d, s5' % (sOff, sOff2))
    e('buffer_load_dwordx2 %s, v%d, %s, s%d offen%s sc1' % (V(vX + 2 * gg, 2), vL8, S4(sWS), sOff, ' offset:2048' if gg & 1 else ''))
free = list(range(28, 40)) + list(range(14, 21))
NA = OPT.get('na', 6)
for k in range(NA):
    p.add(gudma(0, k, free[k]))
KVS = 25
e('s_lshl_b32 s3, s%d, 9' % sW)
e('s_add_u32 s3, s3, %d' % (KVS * PG))
e('v_add_u32 v%d, s3, v%d' % (t0, vL8))
e('v_add_u32 v%d, %d, v%d' % (t1, KVS * PG, vL8))
for gg in range(16):
    for d in range(2):
        e('v_dot2c_f32_bf16 v%d, v%d, v%d' % (vX + 32 + 2 * d, vX + 2 * gg + d, u[0]))
        e('v_dot2c_f32_bf16 v%d, v%d, v%d' % (vX + 33 + 2 * d, vX + 2 * gg + d, u[1]))
stamp('kv loaded')
e('v_cvt_pk_bf16_f32 v%d, v%d, v%d' % (vX, vX + 32, vX + 33))
e('v_cvt_pk_bf16_f32 v%d, v%d, v%d' % (vX + 1, vX + 34, vX + 35))
e('ds_write_b64 v%d, %s' % (t0, V(vX, 2)))
e('@waitlg0')
e('s_barrier')
vKVF = vY + 8
for q in range(4):
    e('ds_read_b64 %s, v%d offset:%d' % (V(vKVF + 2 * q, 2), t1, q * 512))
aO = vX + 16
p.add([mfma(aO, V(vKVF, 4), V(vPQ, 4), first=True), mfma(aO, V(vKVF + 4, 4), V(vPQ + 4, 4))])
e('''
s_lshl_b32 s3, s{g}, 2
s_add_u32 s3, s3, s{w}
s_lshl_b32 s3, s3, 15
s_lshl_b32 s4, s{m}, 11
s_add_u32 s3, s3, s4
s_add_u32 s{o}, s3, {base}
'''.format(g=sG, w=sW, m=sM, o=sOff, base=WS_O))
e('''
v_mov_b32 v{a}, v{d}
v_mov_b32 v{b}, v{d}
v_permlane32_swap_b32 v{a}, v{b}
v_add_f32 v{b}, 0x{eps:x}, v{b}
v_rcp_f32 v{r}, v{b}
v_cndmask_b32 v{r2}, v{r}, 0, s[{mh}:{mh1}]
'''.format(a=t2, b=t3, d=aO + 12, eps=EPS6, r=u[0], r2=u[2], mh=sMaskHi, mh1=sMaskHi + 1))
for j in range(0, 16, 2):
    r = u[2] if j >= 12 else u[0]
    e('v_pk_mul_f32 v[%d:%d], v[%d:%d], v[%d:%d] op_sel_hi:[1,0]' % (aO + j, aO + j + 1, aO + j, aO + j + 1, r, r + 1))
for j in range(8):
    e('v_cvt_pk_bf16_f32 v%d, v%d, v%d' % (vX + j, aO + 2 * j, aO + 2 * j + 1))
e('buffer_store_dwordx4 %s, v%d, %s, s%d offen sc1' % (V(vX, 4), vL16, S4(sWS), sOff))
e('buffer_store_dwordx4 %s, v%d, %s, s%d offen offset:1024 sc1' % (V(vX + 4, 4), vL16, S4(sWS), sOff))
e('@waitvm0')
p.add(signal(['s_lshl_b32 s%d, s%d, 8' % (sT[1], sW), 's_add_u32 s%d, s%d, s%d' % (sT[1], sT[1], sCnt),
              's_lshl_b32 s%d, s%d, 7' % (sT[2], sHalf),
              's_add_u32 s%d, s%d, s%d' % (sT[1], sT[1], sT[2])]))
stamp('o stored')
e('s_cmp_ge_u32 s%d, 7' % sCs)
e('s_cbranch_scc1 L_fin')
if STOP <= 1:
    e('s_branch L_fin')

for k in range(NA, 19):
    p.add(gudma(0, k, free[k]))
p.add(poll_issue(['s_lshl_b32 s%d, s%d, 8' % (sPoll, sTT), 's_add_u32 s%d, s%d, s%d' % (sPoll, sPoll, sCnt),
                  's_lshl_b32 s%d, s%d, 7' % (sT[2], sKh), 's_add_u32 s%d, s%d, s%d' % (sPoll, sPoll, sT[2])]))
p.add(poll_check(8))
stamp('o flag')
e('''
s_lshl_b32 s3, s{g}, 2
s_add_u32 s3, s3, s{tt}
s_lshl_b32 s3, s3, 15
s_lshl_b32 s4, s{kh}, 14
s_add_u32 s3, s3, s4
s_add_u32 s{o}, s3, {base}
'''.format(g=sG, tt=sTT, kh=sKh, o=sOff2, base=WS_O))


def oload(j):
    r = []
    if j and j % 4 == 0:
        r.append(I('s_add_u32 s%d, s%d, 4096' % (sOff2, sOff2)))
    r.append(I('buffer_load_dwordx4 %s, v%d, %s, s%d offen%s sc1' % (A(aB + 4 * j, 4), vL16, S4(sWS), sOff2, ' offset:%d' % (1024 * (j % 4)) if j % 4 else '')))
    return r


for j in range(8):
    p.add(oload(j))
aB0, aB1 = vX, vX + 16
ws = WStream()
for j in range(16):
    hh, s = j >> 1, j & 1
    for ft in range(2):
        row0 = 28 * hh + 16 * s
        a1_ = (vAdWOp if s == 1 else vAdWO) + ft
        ws.step(vAdWO + ft, WOP * PG + row0 * 128, a1_, WOP * PG + (row0 + 8) * 128,
                lambda a, ft=ft, j=j: mfma(vX + 16 * ft, a, A(aB + 4 * j, 4), first=(j == 0)))
for j in range(8, 16):
    ws.fill(2 * (j - 8), oload(j))
p.add(ws.build())
e('s_lshl_b32 s3, s%d, 12' % sW)
e('s_add_u32 s3, s3, %d' % (SCR * PG))
e('v_add_u32 v%d, s3, v%d' % (t0, vL16))
e('s_xor_b32 s4, s%d, 2' % sW)
e('s_lshl_b32 s4, s4, 12')
e('s_add_u32 s4, s4, %d' % (SCR * PG))
e('v_add_u32 v%d, s4, v%d' % (t1, vL16))


e('s_nop 7')
e('s_nop 3')
e('s_cmp_eq_u32 s%d, 0' % sKh)
e('s_cbranch_scc1 L_prB0')
for q in range(4):
    e('ds_write_b128 v%d, %s offset:%d' % (t0, V(vX + 4 * q, 4), q * 1024), raw=True)
for j in range(0, 16, 2):
    e('v_pk_mul_f32 v[%d:%d], v[%d:%d], 1.0 op_sel_hi:[1,0]' % (vX + j, vX + j + 1, vX + 16 + j, vX + 17 + j), raw=True)
e('s_branch L_prB1')
e('L_prB0:')
for q in range(4):
    e('ds_write_b128 v%d, %s offset:%d' % (t0, V(vX + 16 + 4 * q, 4), q * 1024), raw=True)
e('L_prB1:')
e('''
v_and_b32 v{a}, 31, v0
v_bfe_u32 v{b}, v0, 1, 3
s_lshl_b32 s3, s{kh}, 2
v_xor_b32 v{b}, s3, v{b}
v_lshlrev_b32 v{a}, 7, v{a}
v_lshrrev_b32 v{c}, 5, v0
v_lshl_add_u32 v{a}, v{c}, 3, v{a}
s_lshl_b32 s3, s{th}, 12
s_add_u32 s3, s3, {xb}
v_add_u32 v{a}, s3, v{a}
'''.format(a=t2, b=t3, c=t4, kh=sKh, th=sTh, xb=XRP * PG))
for bq in range(4):
    e('v_xor_b32 v%d, %d, v%d' % (t4, bq, t3))
    e('v_lshl_add_u32 v%d, v%d, 4, v%d' % (t4, t4, t2))
    e('ds_read_b64 %s, v%d' % (V(vY + 2 * bq, 2), t4))
e('s_waitcnt lgkmcnt(0)')
e('s_barrier')
for q in range(4):
    e('ds_read_b128 %s, v%d offset:%d' % (V(vX + 16 + 4 * q, 4), t1, q * 1024))
nxt = [(0, k) for k in range(19, 28)] + [(1, k) for k in range(5)]
for j in range(8):
    e('v_lshlrev_b32 v%d, 16, v%d' % (vX + 32 + 2 * j, vY + j))
    e('v_and_b32 v%d, 0xffff0000, v%d' % (vX + 33 + 2 * j, vY + j))
for j in range(0, 16, 2):
    e('v_pk_add_f32 v[%d:%d], v[%d:%d], v[%d:%d]' % (vX + j, vX + j + 1, vX + j, vX + j + 1, vX + 32 + j, vX + 33 + j))
for j in range(0, 16, 2):
    e('v_pk_add_f32 v[%d:%d], v[%d:%d], v[%d:%d]' % (vX + j, vX + j + 1, vX + j, vX + j + 1, vX + 16 + j, vX + 17 + j))
for j in range(8):
    e('v_cvt_pk_bf16_f32 v%d, v%d, v%d' % (vY + j, vX + 2 * j, vX + 2 * j + 1))
e('''
s_lshl_b32 s3, s{g}, 2
s_add_u32 s3, s3, s{tt}
s_lshl_b32 s4, s{cs}, 1
s_add_u32 s4, s4, s{kh}
s_lshl_b32 s5, s3, 15
s_lshl_b32 s6, s4, 11
s_add_u32 s5, s5, s6
s_add_u32 s{o}, s5, {hb}
s_lshl_b32 s5, s3, 12
s_lshl_b32 s6, s4, 8
s_add_u32 s5, s5, s6
s_add_u32 s{o2}, s5, {sb}
'''.format(g=sG, tt=sTT, cs=sCs, kh=sKh, o=sOff, o2=sOff2, hb=WS_H, sb=WS_ST))
e('buffer_store_dwordx4 %s, v%d, %s, s%d offen sc1' % (V(vY, 4), vL16, S4(sWS), sOff))
e('buffer_store_dwordx4 %s, v%d, %s, s%d offen offset:1024 sc1' % (V(vY + 4, 4), vL16, S4(sWS), sOff))
vS, vQ2 = u[8], u[9]
e('v_mov_b32 v%d, 0' % vS)
e('v_mov_b32 v%d, 0' % vQ2)
for j in range(8):
    e('v_dot2c_f32_bf16 v%d, v%d, v%d' % (vS, vY + j, vOnes))
    e('v_dot2c_f32_bf16 v%d, v%d, v%d' % (vQ2, vY + j, vY + j))
e('v_and_b32 v%d, 31, v0' % t4)
e('v_lshlrev_b32 v%d, 3, v%d' % (t4, t4))
p.add(halves_sum(vS))
p.add(halves_sum(vQ2))
e('buffer_store_dwordx2 %s, v%d, %s, s%d offen sc1' % (V(vS, 2), t4, S4(sWS), sOff2))
for j in range(8):
    e('v_accvgpr_write_b32 a%d, v%d' % (aH + j, vY + j))
e('@waitvm0')
p.add(signal(['s_lshl_b32 s%d, s%d, 7' % (sT[1], sTT), 's_add_u32 s%d, s%d, s%d' % (sT[1], sT[1], sCnt),
              's_add_u32 s%d, s%d, %d' % (sT[1], sT[1], C_H * 128)]))
stamp('h stored')
if STOP <= 2:
    e('s_branch L_fin')

for n, (hf_, k) in enumerate(nxt):
    p.add(gudma(hf_, k, n))
p.add(poll_issue(['s_lshl_b32 s%d, s%d, 7' % (sPoll, sW), 's_add_u32 s%d, s%d, s%d' % (sPoll, sPoll, sCnt),
                  's_add_u32 s%d, s%d, %d' % (sPoll, sPoll, C_H * 128)]))
e('''
v_bfe_u32 v{r}, v0, 2, 2
v_bfe_u32 v{iu}, v0, 4, 1
v_lshrrev_b32 v{hf}, 5, v0
v_lshl_add_u32 v{a}, v{hf}, 2, v{r}
v_lshlrev_b32 v{a}, 7, v{a}
v_lshl_add_u32 v{a}, v{iu}, 11, v{a}
v_and_b32 v{b}, 1, v0
v_lshl_add_u32 v{a}, v{b}, 3, v{a}
v_lshrrev_b32 v{b}, 1, v{r}
v_lshl_add_u32 v{b}, v{iu}, 1, v{b}
v_lshlrev_b32 v{b}, 1, v{b}
v_bfe_u32 v{c}, v0, 1, 1
v_xor_b32 v{b}, v{b}, v{c}
'''.format(r=u[0], iu=u[1], hf=u[2], a=t0, b=t1, c=t2))
for t in range(4):
    e('v_xor_b32 v%d, %d, v%d' % (t2, 2 * t, t1))
    e('v_lshl_add_u32 v%d, v%d, 4, v%d' % (vAdC + t, t2, t0))
e('''
s_mul_i32 s3, s{kh}, 26624
v_subrev_u32 v{d0}, s3, v{w0}
v_subrev_u32 v{d1}, s3, v{w1}
v_and_b32 v{a}, 31, v0
v_lshlrev_b32 v{a}, 3, v{a}
s_movk_i32 s3, 1792
v_mad_u32_u24 v{a}, v{hf}, s3, v{a}
s_lshl_b32 s3, s{g}, 2
s_add_u32 s3, s3, s{w}
s_lshl_b32 s4, s3, 12
s_add_u32 s{o}, s4, {sb}
s_lshl_b32 s4, s3, 15
s_add_u32 s{o2}, s4, {hb}
'''.format(kh=sKh, d0=vAdD, d1=vAdD + 1, w0=vAdWO, w1=vAdWO + 1, a=t4, hf=u[2], g=sG, w=sW, o=sT[8], o2=sOff2, sb=WS_ST, hb=WS_H))
e('s_barrier')
for n in range(7):
    p.add(gudma(1, 5 + n, 21 + n))
p.add(poll_check(14))
stamp('h flag')
for i in range(7):
    e('buffer_load_dwordx2 %s, v%d, %s, s%d offen offset:%d sc1' % (V(vY + 2 * i, 2), t4, S4(sWS), sT[8], 256 * i))
sHb, sHo = sT[5], sT[6]
e('s_mov_b32 s%d, s%d' % (sHb, sOff2))


def hload(k):
    r = []
    if k % 4 == 0:
        r += L('s_lshl_b32 s%d, s%d, 12\ns_add_u32 s%d, s%d, s%d' % (sHo, sCh + k // 4, sHo, sHo, sHb))
    r.append(I('buffer_load_dwordx4 %s, v%d, %s, s%d offen%s sc1' % (V(vF + 4 * k, 4), vL16, S4(sWS), sHo, ' offset:%d' % (1024 * (k % 4)) if k % 4 else '')))
    return r


HL = OPT.get('hl', 8)
for k in range(HL):
    p.add(hload(k))
stamp('_hiss')
for (a, b) in ((0, 2), (4, 6), (8, 10), (0, 4), (8, 12), (0, 8)):
    e('v_pk_add_f32 v[%d:%d], v[%d:%d], v[%d:%d]' % (vY + a, vY + a + 1, vY + a, vY + a + 1, vY + b, vY + b + 1))
stamp('_st')
p.add(halves_sum(vY))
p.add(halves_sum(vY + 1))
p.add(ln_consts(vY, vY + 1, vR, vC))
e('''
s_lshl_b32 s3, s{g}, 2
s_add_u32 s3, s3, s{w}
s_mul_i32 s3, s3, 112
s_lshl_b32 s4, s{m}, 3
s_add_u32 s3, s3, s4
s_lshl_b32 s3, s3, 10
s_add_u32 s{o}, s3, {base}
'''.format(g=sG, w=sW, m=sA, o=sT[9], base=WS_HH))
sHHst = sT[9]


class Win:
    def __init__(self, regs):
        self.regs = regs
        self.cur = {r: 0 for r in regs}

    def fix(self, reg, off):
        w = (off // 61440)
        base = w * 61440
        pre = []
        if self.cur[reg] != base:
            d = base - self.cur[reg]
            if d > 0:
                pre.append(I('v_add_u32 v%d, %d, v%d' % (reg, d, reg)))
            else:
                pre.append(I('v_subrev_u32 v%d, %d, v%d' % (reg, -d, reg)))
            self.cur[reg] = base
        return pre, off - base


winC = Win([vAdC + t for t in range(4)])
winD = Win([vAdD, vAdD + 1])
NEGL = 0xbfb8aa3b


def hhstore(tile):
    d = u[8] + (tile & 1) * 4
    r = []
    so = sHHst
    if tile >= 4:
        r.append(I('s_add_u32 s%d, s%d, 4096' % (sOff, sHHst)))
        so = sOff
    r.append(I('buffer_store_dwordx4 %s, v%d, %s, s%d offen%s sc1' % (V(d, 4), vL16, S4(sWS), so, ' offset:%d' % (1024 * (tile & 3)) if tile & 3 else ''), tag='hh%d' % tile))
    return r


def eslots(tiles):
    slots = {}

    def put(sl, x):
        slots.setdefault(sl, []).append(x)
    n = 0
    for tile in tiles:
        acc = acc_of[tile]
        for el in range(8):
            tp = u[n % 6]
            put(2 * n, I('v_mul_f32 v%d, 0x%x, v%d' % (tp, NEGL, acc + el)))
            put(2 * n + 1, I('v_exp_f32 v%d, v%d' % (tp, tp)))
            put(2 * n + 2, I('v_add_f32 v%d, 1.0, v%d' % (tp, tp)))
            put(2 * n + 4, I('v_rcp_f32 v%d, v%d' % (tp, tp)))
            put(2 * n + 5, I('v_mul_f32 v%d, v%d, v%d' % (tp, tp, acc + 8 + el)))
            if el & 1:
                put(2 * n + 7, I('v_cvt_pk_bf16_f32 v%d, v%d, v%d' % (u[8] + (tile & 1) * 4 + el // 2, u[(n - 1) % 6], tp)))
            if el == 7:
                put(2 * n + 8, hhstore(tile))
            n += 1
    out = []
    for k in range(max(slots) + 1):
        sl = slots.get(k, [])
        sl.sort(key=lambda x: 0 if (not isinstance(x, list) and x.op in ('v_exp_f32', 'v_rcp_f32')) else 1)
        out.append(sl)
    return out


def efast(tile):
    acc = acc_of[tile]
    g = []
    for j in range(0, 8, 2):
        tp = u[0] + (j & 2)
        g.append(L("""
        v_pk_mul_f32 v[{t}:{t1}], v[{a}:{a1}], v[{c}:{c1}] op_sel_hi:[1,0]
        v_exp_f32 v{t}, v{t}
        v_exp_f32 v{t1}, v{t1}
        v_pk_add_f32 v[{t}:{t1}], v[{t}:{t1}], 1.0 op_sel_hi:[1,0]
        v_rcp_f32 v{t}, v{t}
        v_rcp_f32 v{t1}, v{t1}
        v_pk_mul_f32 v[{t}:{t1}], v[{t}:{t1}], v[{b}:{b1}]
        v_cvt_pk_bf16_f32 v{d}, v{t}, v{t1}
        """.format(t=tp, t1=tp + 1, a=acc + j, a1=acc + j + 1, b=acc + 8 + j, b1=acc + 9 + j, c=u[4], c1=u[5], d=u[8] + (tile & 1) * 4 + j // 2)))
    return zip_groups(g[0:2]) + zip_groups(g[2:4]) + hhstore(tile)


def hhsig(stage):
    return L('@waitvm hh%d hh%d' % (2 * stage, 2 * stage + 1)) + signal([
        's_lshl_b32 s%d, s%d, 10' % (sT[1], sW), 's_add_u32 s%d, s%d, s%d' % (sT[1], sT[1], sCnt),
        's_lshl_b32 s%d, s%d, 9' % (sT[2], sHalf), 's_add_u32 s%d, s%d, s%d' % (sT[1], sT[1], sT[2]),
        's_add_u32 s%d, s%d, %d' % (sT[1], sT[1], (C_HH + stage) * 128)])


acc_of = {0: vX, 1: vX + 16, 2: vX + 32, 3: vX + 48, 4: vY, 5: vY + 16, 6: vX, 7: vX + 16}
D_ORDER = [(j, t, t >> 1) for t in range(8) for j in range(7)]
WDPG = {}
wd_next = [0]


def wddma(page):
    n = wd_next[0]
    wd_next[0] += 1
    j, t, st = D_ORDER[n]
    WDPG[n] = page
    so = ['s_mul_i32 s%d, s%d, 114688' % (sOff, sCh + j)]
    if t:
        so.append('s_add_u32 s%d, s%d, %d' % (sOff, sOff, t * 14336))
    return dma(vOffWD, sWD, so, page * PG, 'wd%d' % n)


sHHld = sT[7]
NQ = 54


def hhpoll(stage):
    return poll_issue(['s_lshl_b32 s%d, s%d, 10' % (sPoll, sTT), 's_add_u32 s%d, s%d, s%d' % (sPoll, sPoll, sCnt),
                       's_lshl_b32 s%d, s%d, 9' % (sT[2], sKh), 's_add_u32 s%d, s%d, s%d' % (sPoll, sPoll, sT[2]),
                       's_add_u32 s%d, s%d, %d' % (sPoll, sPoll, (C_HH + stage) * 128)])


def hhload(n):
    j, t, st = D_ORDER[n]
    ko = (t & 3) * 1024
    r = L('s_lshl_b32 s%d, s%d, 13\ns_add_u32 s%d, s%d, s%d' % (sOff2, sCh + j, sOff2, sOff2, sHHld + (t >> 2)))
    r.append(I('buffer_load_dwordx4 %s, v%d, %s, s%d offen%s sc1' % (A(aB + 4 * (n % NQ), 4), vL16, S4(sWS), sOff2, ' offset:%d' % ko if ko else '')))
    return r


for j in range(8):
    p.add(norm4(vF + j, u[0] + 2 * (j & 1)))
e("""
s_lshl2_add_u32 s3, s{g}, s{tt}
s_mul_i32 s3, s3, 112
s_mul_i32 s4, s{kh}, 56
s_add_u32 s3, s3, s4
s_lshl_b32 s3, s3, 10
s_add_u32 s{o}, s3, {base}
s_add_u32 s{o1}, s{o}, 4096
""".format(g=sG, tt=sTT, kh=sKh, o=sHHld, o1=sHHld + 1, base=WS_HH))
ws = WStream()
BSTEP = 4
w2_todo = list(range(12, 28))
dslot = 2 * (28 - HL) - 1
for k in range(28):
    for t in range(4):
        pre = []
        if t == 0 and k == 0:
            pre += L('@waitvm ' + ' '.join('gu0_%d' % j for j in range(28)) + '\ns_barrier')
        pr, off = winC.fix(vAdC + t, W1PG[k] * PG)
        pre += pr
        ws.step(vAdC + t, off, vAdC + t, off + 1024, lambda a, t=t, k=k: mfma(acc_of[t], a, V(vF + 4 * k, 4), first=(k == 0)), pre)
    if k + HL < 28:
        ws.fill(2 * k, hload(k + HL))
    if k + 2 < 28:
        for j in range(4):
            for x in norm5(vF + 4 * (k + 2) + j, u[0] + 2 * (j & 1)):
                ws.fill(4 * k + j, x)
    if k % BSTEP == BSTEP - 1:
        ws.fill(4 * k + 3, L('s_barrier'))
        for n, kk in enumerate(range(k - BSTEP + 1, k + 1)):
            pg = W1PG[kk]
            dslot = max(dslot + 3, 4 * k + 4)
            ws.fill(dslot, gudma(1, w2_todo.pop(0), pg) if w2_todo else wddma(pg))
for nm, at in (('_m0', 0), ('_m16', 15), ('_m32', 31), ('_m56', 55), ('_m84', 83), ('P1', 111), ('_m140', 139), ('P2', 167), ('_m184', 183), ('_m196', 195), ('_m198', 197), ('_m210', 209)):
    n0 = len(p.ins)
    stamp(nm)
    if p.ins[n0:]:
        ws.fill(at, p.ins[n0:])
    del p.ins[n0:]
carry = []
for ps, tl in enumerate(((4, 5), (6, 7))):
    base = 112 + 56 * ps
    for k in range(28):
        for t in tl:
            pre = []
            if ps == 0 and t == tl[0] and k in (0, 12, 20):
                hi = {0: 12, 12: 20, 20: 28}[k]
                pre += L('@waitvm ' + ' '.join('gu1_%d' % j for j in range(k, hi)) + '\ns_barrier')
            pr, off = winC.fix(vAdC + t - 4, W2PG[k] * PG)
            pre += pr
            ws.step(vAdC + t - 4, off, vAdC + t - 4, off + 1024, lambda a, t=t, k=k: mfma(acc_of[t], a, V(vF + 4 * k, 4), first=(k == 0)), pre)
        if ps == 1 and k % BSTEP == BSTEP - 1:
            ws.fill(base + 2 * k + 1, L('s_barrier'))
            carry += [(base + 2 * k + 2, W2PG[kk]) for kk in range(k - BSTEP + 1, k + 1)]
E0 = 113
es = eslots(range(6))
assert E0 + 64 >= 168 + 1
for n, sl in enumerate(es):
    for x in sl:
        ws.fill(E0 + n, x)
SIGD = OPT.get('sigd', 14)
for st in range(3):
    at = E0 + 32 * (st + 1) + 6 + SIGD
    if at < 224:
        ws.fill(at, hhsig(st))
    else:
        assert st == 2
assert E0 + 96 + 6 + SIGD >= 224
H0 = OPT.get('h0', 194)
ws.fill(H0 - 8, hhpoll(0))
ws.fill(H0, poll_check(7))
for n in range(14):
    ws.fill(min(223, H0 + 1 + 2 * n), hhload(n))
g_ = 174
while True:
    g_ = max(g_ + 2, carry[0][0])
    if g_ >= H0 - 8:
        break
    ws.fill(g_, wddma(carry.pop(0)[1]))
p.add(ws.build())
stamp('P3')
e('v_mov_b32 v%d, 0x%x' % (u[4], NEGL))
ef = efast(6)
p.add(spread(ef[:-2], [wddma(carry.pop(0)[1]) for _ in range(6)]) + ef[-2:])
p.add(hhsig(2))
p.add(hhpoll(1))
p.add(efast(7))
for _ in range(8):
    p.add(wddma(carry.pop(0)[1]))
carry_dma = []
for _, pg in carry:
    carry_dma += wddma(pg)
if STOP <= 3:
    p.add(hhsig(3))
    e('s_branch L_fin')

ws = WStream()
DB = 8
resident = wd_next[0]
assert resident == 40
wpts = {0: 14, 14: 28, 28: 40, 40: 48, 48: 56}
for n in range(56):
    for ft in range(2):
        pre = []
        if ft == 0 and n in wpts:
            pre += L('@waitvm ' + ' '.join('wd%d' % q for q in range(n, wpts[n])) + '\ns_barrier')
        pr, off = winD.fix(vAdD + ft, WDPG[n] * PG)
        pre += pr
        ws.step(vAdD + ft, off, vAdD + ft, off + 1024, lambda a, ft=ft, n=n: mfma(vX + 32 + 16 * ft, a, A(aB + 4 * (n % NQ), 4), first=(n == 0)), pre)
    if n % DB == DB - 1 and wd_next[0] < 56:
        ws.fill(2 * n + 1, L('s_barrier'))
        for q, nn in enumerate(range(n - DB + 1, n + 1)):
            if wd_next[0] < 56:
                ws.fill(2 * n + 2 + q, wddma(WDPG[nn]))
n0 = len(p.ins)
stamp('hh stored')
ws.fill(OPT.get('d3', 8), hhsig(3) + p.ins[n0:])
del p.ins[n0:]
for st, at in ((1, OPT.get('d3', 8)), (2, OPT.get('d2', 26)), (3, OPT.get('d4', 54))):
    grp = poll_check(7)
    for n in range(14 * st, 14 * st + 14):
        grp = grp + hhload(n)
        if st < 3 and n == 14 * st + 6:
            grp = grp + hhpoll(st + 1)
    if st == 1:
        grp = grp + carry_dma
    ws.fill(at, grp)
for nm, at in (('D0', 27), ('D1', 55), ('D2', 83)):
    n0 = len(p.ins)
    stamp(nm)
    if p.ins[n0:]:
        ws.fill(at, p.ins[n0:])
    del p.ins[n0:]
p.add(ws.build())
stamp('D mfma')
e('s_barrier')
RP = 0
e('s_lshl_b32 s3, s%d, 12' % sW)
e('v_add_u32 v%d, s3, v%d' % (t0, vL16))
e('s_xor_b32 s4, s3, 8192')
e('v_add_u32 v%d, s4, v%d' % (t1, vL16))
D0 = vX + 32
e('s_nop 7')
e('s_cmp_eq_u32 s%d, 0' % sKh)
e('s_cbranch_scc1 L_prD0')
for q in range(4):
    e('ds_write_b128 v%d, %s offset:%d' % (t0, V(D0 + 4 * q, 4), q * 1024), raw=True)
for j in range(0, 16, 2):
    e('v_pk_mul_f32 v[%d:%d], v[%d:%d], 1.0 op_sel_hi:[1,0]' % (D0 + j, D0 + j + 1, D0 + 16 + j, D0 + 17 + j), raw=True)
e('s_branch L_prD1')
e('L_prD0:')
for q in range(4):
    e('ds_write_b128 v%d, %s offset:%d' % (t0, V(D0 + 16 + 4 * q, 4), q * 1024), raw=True)
e('L_prD1:')
for j in range(8):
    e('v_accvgpr_read_b32 v%d, a%d' % (vY + j, aH + j))
e('s_waitcnt lgkmcnt(0)')
e('s_barrier')
for q in range(4):
    e('ds_read_b128 %s, v%d offset:%d' % (V(vX + 4 * q, 4), t1, q * 1024))
for j in range(8):
    e('v_lshlrev_b32 v%d, 16, v%d' % (vX + 16 + 2 * j, vY + j))
    e('v_and_b32 v%d, 0xffff0000, v%d' % (vX + 17 + 2 * j, vY + j))
for j in range(0, 16, 2):
    e('v_pk_add_f32 v[%d:%d], v[%d:%d], v[%d:%d]' % (D0 + j, D0 + j + 1, D0 + j, D0 + j + 1, vX + 16 + j, vX + 17 + j))
e('''
s_lshl_b32 s3, s{g}, 2
s_add_u32 s3, s3, s{tt}
s_mul_i32 s3, s3, 28672
s_lshl_b32 s4, s{cs}, 7
s_add_u32 s3, s3, s4
s_lshl_b32 s4, s{kh}, 6
s_add_u32 s{o}, s3, s4
v_and_b32 v{a}, 31, v0
s_movk_i32 s3, 896
v_mul_u32_u24 v{a}, s3, v{a}
v_lshrrev_b32 v{b}, 5, v0
v_lshl_add_u32 v{a}, v{b}, 4, v{a}
'''.format(g=sG, tt=sTT, cs=sCs, kh=sKh, o=sOff, a=t2, b=t3))
for j in range(0, 16, 2):
    e('v_pk_add_f32 v[%d:%d], v[%d:%d], v[%d:%d]' % (D0 + j, D0 + j + 1, D0 + j, D0 + j + 1, vX + j, vX + j + 1))
for j in range(8):
    e('v_cvt_pk_bf16_f32 v%d, v%d, v%d' % (vY + j, D0 + 2 * j, D0 + 2 * j + 1))
for bb in (0, 4):
    e('v_permlane32_swap_b32 v%d, v%d' % (vY + bb, vY + bb + 2))
    e('v_permlane32_swap_b32 v%d, v%d' % (vY + bb + 1, vY + bb + 3))
e('buffer_store_dwordx4 %s, v%d, %s, s%d offen' % (V(vY, 4), t2, S4(sOUT), sOff))
e('buffer_store_dwordx4 %s, v%d, %s, s%d offen offset:32' % (V(vY + 4, 4), t2, S4(sOUT), sOff))
e('L_fin:')
if OPT.get('fixt'):
    e('s_waitcnt vmcnt(0) lgkmcnt(0)')
    e('L_fix:')
    for x in ['s_memrealtime s[96:97]', 's_waitcnt lgkmcnt(0)', 's_sub_u32 s96, s96, s98', 's_cmp_lt_u32 s96, %d' % OPT['fixt'], 's_cbranch_scc1 L_fix']:
        e(x, raw=True)
if DIAG:
    e('s_waitcnt vmcnt(0)')
    e('s_memtime s[76:77]' if OPT['cyc'] else 's_memrealtime s[76:77]')
    e('s_memtime s[74:75]')
    e('s_waitcnt lgkmcnt(0)')
    e('s_sub_u32 s74, s74, s100')
    e('v_mov_b32 v%d, s74' % (vX + 14))
    e('s_lshl_b32 s3, s2, 2')
    e('s_add_u32 s3, s3, s%d' % sW)
    e('s_lshl_b32 s3, s3, 6')
    e('s_add_u32 s3, s3, %d' % WS_TS)
    for n in range(12):
        e('v_mov_b32 v%d, s%d' % (vX + n, sTS + 2 * n))
    e('v_mov_b32 v%d, s76' % (vX + 12))
    e('s_getreg_b32 s4, hwreg(HW_REG_XCC_ID)')
    e('v_mov_b32 v%d, s4' % (vX + 13))
    e('s_mov_b64 exec, 1')
    for q in range(4):
        e('buffer_store_dwordx4 %s, off, %s, s3 offset:%d' % (V(vX + 4 * q, 4), S4(sWS), 16 * q))
    if OPT.get('dbgts'):
        e('v_not_b32 v%d, v%d' % (vX + 20, vX))
        e('buffer_atomic_umax v%d, off, %s, 0 offset:16' % (vX + 20, S4(sDBG)))
        for n in range(1, 11):
            if n < nstamp[0]:
                e('s_cmp_ge_u32 s%d, 7' % sCs)
                e('s_cbranch_scc1 L_nodbg%d' % n)
                e('buffer_atomic_umax v%d, off, %s, 0 offset:%d' % (vX + n, S4(sDBG), 16 + 4 * n), raw=True)
                e('L_nodbg%d:' % n)
        e('buffer_atomic_umax v%d, off, %s, 0 offset:60' % (vX + 12, S4(sDBG)))
e('s_waitcnt vmcnt(0) lgkmcnt(0)')
e('L_end:')
e('s_endpgm')

p.finalize()
hdr = open('sequential_preLN__linear_attn_block__glu_gated_glu__prompt.s.ref').read().split('\n')
head = [l for l in hdr if l.startswith(';') and '@launch' not in l and 'Override' not in l and 'grid=ceil' not in l]
out = '\n'.join(head) + '''
; @launch grid=(256,1,1) block=(256,1,1) lds=163840
.amdgcn_target "amdgcn-amd-amdhsa--gfx950"
.text
.globl {n}
.p2align 8
.type {n},@function
{n}:
{body}
.section .rodata,"a"
.p2align 6
.amdhsa_kernel {n}
  .amdhsa_next_free_vgpr 512
  .amdhsa_next_free_sgpr 102
  .amdhsa_accum_offset 256
  .amdhsa_group_segment_fixed_size 0
  .amdhsa_kernarg_size 80
  .amdhsa_user_sgpr_count 2
  .amdhsa_user_sgpr_kernarg_segment_ptr 1
  .amdhsa_system_sgpr_workgroup_id_x 1
  .amdhsa_float_denorm_mode_32 3
.end_amdhsa_kernel
'''.format(n=NAME, body=p.text())
open(sys.argv[1], 'w').write(out)
kinds = {}
for i in p.out:
    kinds[i.kind] = kinds.get(i.kind, 0) + 1
print(kinds, p.stats, file=sys.stderr)
```

```python
import re

REG = re.compile(r'\b([vas])(\d+)\b|\b([vas])\[(\d+):(\d+)\]')
TRANS = ('v_exp_f32', 'v_log_f32', 'v_rcp_f32', 'v_rsq_f32', 'v_sqrt_f32')


def regs_of(tok):
    out = set()
    for m in REG.finditer(tok):
        if m.group(1):
            out.add((m.group(1), int(m.group(2))))
        else:
            for i in range(int(m.group(4)), int(m.group(5)) + 1):
                out.add((m.group(3), i))
    if re.search(r'\bvcc\b', tok):
        out.add(('s', 'vcc'))
    if re.search(r'\bm0\b', tok):
        out.add(('s', 'm0'))
    if re.search(r'\bexec\b', tok):
        out.add(('s', 'exec'))
    return out


class I:
    __slots__ = ('text', 'op', 'rd', 'wr', 'kind', 'tag', 'raw', 'srcc', 'ahead')

    def __init__(self, text, tag=None, raw=False, ahead=0):
        self.text = text
        self.tag = tag
        self.raw = raw
        self.ahead = ahead
        self.srcc = set()
        t = text.split(';')[0].strip()
        self.rd, self.wr = set(), set()
        if not t or t.endswith(':') or t.startswith('.'):
            self.op = ''
            self.kind = 'label' if t.endswith(':') else 'dir'
            return
        sp = t.split(None, 1)
        op = self.op = sp[0]
        rest = sp[1] if len(sp) > 1 else ''
        ops = [o.strip() for o in rest.split(',')] if rest else []
        R = [regs_of(o) for o in ops]
        allr = set().union(*R) if R else set()
        k = None
        if op.startswith('v_mfma'):
            k = 'mfma'
            self.wr = R[0]
            self.rd = R[1] | R[2] | R[3]
            self.srcc = R[3]
        elif op.startswith('buffer_load') and re.search(r'\blds\b', rest):
            k = 'dma'
            self.rd = allr | {('s', 'm0')}
        elif op.startswith('buffer_load') or op.startswith('global_load'):
            k = 'vload'
            self.wr = R[0]
            self.rd = set().union(*R[1:])
        elif op.startswith('buffer_store') or op.startswith('global_store'):
            k = 'vstore'
            self.rd = allr
        elif op.startswith('buffer_atomic'):
            k = 'vstore'
            self.rd = allr
            if re.search(r'\bsc0\b', rest):
                k = 'vload'
                self.wr = R[0]
        elif op.startswith('ds_read'):
            k = 'dsread'
            self.wr = R[0]
            self.rd = set().union(*R[1:])
        elif op.startswith('ds_write'):
            k = 'dswrite'
            self.rd = allr
        elif op.startswith('s_load') or op in ('s_memrealtime', 's_memtime'):
            k = 'smem'
            self.wr = R[0]
            self.rd = set().union(*R[1:]) if len(R) > 1 else set()
        elif op == 's_waitcnt':
            k = 'wait'
        elif op == 's_barrier':
            k = 'barrier'
        elif op == 's_nop':
            k = 'nop'
        elif op.startswith('s_cbranch') or op in ('s_branch', 's_endpgm', 's_sleep', 's_setprio'):
            k = 'sctl'
        elif op.startswith('s_cmp'):
            k = 'salu'
            self.rd = allr
        elif op.startswith('s_'):
            k = 'salu'
            self.wr = R[0]
            self.rd = set().union(*R[1:]) if len(R) > 1 else set()
            if op in ('s_addk_i32', 's_mulk_i32'):
                self.rd |= R[0]
            if 'saveexec' in op:
                self.wr |= {('s', 'exec')}
        elif op.startswith('v_'):
            k = 'valu'
            self.wr = R[0]
            self.rd = set().union(*R[1:]) if len(R) > 1 else set()
            if op.startswith('v_permlane32_swap') or op.startswith('v_permlane16_swap'):
                self.wr = R[0] | R[1]
                self.rd = R[0] | R[1]
            if op.startswith('v_fmac') or op.startswith('v_dot2c') or op.startswith('v_pk_fmac'):
                self.rd |= R[0]
            if op.startswith('v_add_co') or op.startswith('v_addc_co') or op.startswith('v_sub_co'):
                self.wr = R[0] | R[1]
                self.rd = set().union(*R[2:])
        elif op.startswith('@'):
            k = 'pseudo'
        else:
            raise ValueError('unknown op: ' + text)
        self.kind = k

    def __repr__(self):
        return self.text


def is_v(r):
    return r[0] in 'va'


class Prog:
    def __init__(self):
        self.ins = []

    def e(self, text, **kw):
        for ln in text.strip().split('\n'):
            ln = ln.strip()
            if ln:
                self.ins.append(I(ln, **kw))
        return self.ins[-1]

    def add(self, lst):
        for x in lst:
            self.ins.append(x if isinstance(x, I) else I(x))

    def finalize(self, verbose=False):
        out = []
        vmq = []
        lgq = []
        smem_pending = set()
        seen = set()
        hist = []
        state = 0
        stats = {'nops': 0, 'waits': 0}

        def emit(i):
            nonlocal state
            out.append(i)
            if i.kind in ('label', 'dir'):
                return
            if i.kind == 'nop':
                n = int(i.text.split()[1], 0) + 1
            else:
                n = 1
            hist.append((state, i))
            state += n
            if len(hist) > 40:
                hist.pop(0)

        def do_wait(vm=None, lg=None):
            parts = []
            if vm is not None:
                vm = min(vm, 63)
                if len(vmq) > vm:
                    del vmq[:len(vmq) - vm]
                    parts.append('vmcnt(%d)' % vm)
            if lg is not None:
                lg = min(lg, 15)
                if len(lgq) > lg or (lg == 0 and smem_pending):
                    if smem_pending:
                        lg = 0
                    del lgq[:len(lgq) - lg]
                    if lg == 0:
                        smem_pending.clear()
                    parts.append('lgkmcnt(%d)' % lg)
            if parts:
                stats['waits'] += 1
                emit(I('s_waitcnt ' + ' '.join(parts)))

        def need_states(i):
            need = 0
            for st, p in hist:
                d = state - st - 1
                if p.kind == 'nop':
                    continue
                req = 0
                pw = p.wr
                if p.kind == 'valu':
                    vw = {r for r in pw if is_v(r)}
                    sw = {r for r in pw if r[0] == 's'}
                    if i.kind == 'mfma' and vw & i.rd:
                        req = max(req, 2)
                    if i.op.startswith('v_permlane') and vw & i.rd:
                        req = max(req, 2)
                    if ('dpp' in i.text or 'row_' in i.text) and vw & i.rd:
                        req = max(req, 2)
                    if i.op.startswith('v_readfirstlane') or i.op.startswith('v_readlane'):
                        if vw & i.rd:
                            req = max(req, 1)
                    if p.op.rstrip('_e32').rstrip('_e64') in TRANS or p.op in TRANS:
                        if i.kind == 'valu' and vw & (i.rd | i.wr) and i.op not in TRANS:
                            req = max(req, 1)
                        if i.kind == 'valu' and vw & i.rd:
                            req = max(req, 1)
                    if p.op.startswith('v_dot2'):
                        if vw & (i.rd | i.wr) and i.kind in ('valu', 'mfma', 'vstore', 'dswrite', 'vload', 'dsread', 'dma'):
                            same = (i.op == p.op)
                            if same and i.op.startswith('v_dot2c'):
                                ops = [o.strip() for o in i.text.split(None, 1)[1].split(',')]
                                ab = regs_of(ops[1]) | regs_of(ops[2])
                                req = max(req, 3 if vw & ab else 0)
                            elif same:
                                ops = [o.strip() for o in i.text.split(None, 1)[1].split(',')]
                                ab = regs_of(ops[1]) | regs_of(ops[2])
                                req = max(req, 3 if vw & ab else 0)
                            else:
                                req = max(req, 3)
                    if sw:
                        if i.kind == 'valu' and sw & i.rd:
                            req = max(req, 2)
                        if i.kind == 'valu' and ('s', 'vcc') in sw and i.op.startswith('v_cndmask') and 'vcc' in i.text:
                            req = max(req, 2)
                        if i.kind in ('vload', 'vstore', 'dma') and sw & i.rd:
                            req = max(req, 5)
                        if i.kind == 'salu' and sw & i.rd:
                            req = max(req, 1)
                if p.kind == 'salu':
                    if ('s', 'm0') in pw and i.kind == 'dma':
                        req = max(req, 1)
                if p.kind == 'mfma':
                    small = '4x4x4' in p.op
                    if i.kind == 'mfma':
                        ab = i.rd - i.srcc
                        if pw & ab:
                            req = max(req, 5 if small else 12)
                        if pw & i.srcc:
                            if i.srcc != pw or i.op != p.op:
                                req = max(req, 4 if small else 10)
                            elif small:
                                req = max(req, 2)
                        if pw & i.wr and not (pw & i.srcc):
                            req = max(req, 4 if small else 10)
                    elif i.kind in ('valu', 'vstore', 'dswrite', 'vload', 'dsread', 'dma'):
                        if pw & (i.rd | i.wr):
                            req = max(req, 5 if small else 12)
                        if i.kind == 'valu' and p.srcc & i.wr:
                            req = max(req, 1 if small else 7)
                if p.kind == 'vstore' and ('x4' in p.op or 'x3' in p.op):
                    ops = [o.strip() for o in p.text.split(None, 1)[1].split(',')]
                    data = regs_of(ops[0]) if p.op.startswith('buffer') else regs_of(ops[1])
                    if data & i.wr:
                        req = max(req, 2)
                need = max(need, req - d)
            return need

        for i in self.ins:
            if i.kind == 'pseudo':
                p = i.text.split()
                if p[0] == '@waitvm':
                    tags = set(p[1:])
                    assert tags <= seen, ('wait for ops not issued yet', tags - seen)
                    idx = -1
                    for n, q in enumerate(vmq):
                        if q.tag in tags:
                            idx = n
                    if idx >= 0:
                        do_wait(vm=len(vmq) - 1 - idx)
                elif p[0] == '@waitvm0':
                    do_wait(vm=0)
                elif p[0] == '@waitlg0':
                    do_wait(lg=0)
                elif p[0] == '@assumevm0':
                    del vmq[:]
                elif p[0] == '@drained':
                    pass
                else:
                    raise ValueError(i.text)
                continue
            if i.kind in ('label', 'dir'):
                emit(i)
                continue
            if not i.raw:
                touch = i.rd | i.wr
                vm = lg = None
                for n, q in enumerate(vmq):
                    if q.kind == 'vload' and q.wr & touch:
                        vm = len(vmq) - 1 - n
                for n, q in enumerate(lgq):
                    if q.kind == 'dsread' and q.wr & touch:
                        lg = len(lgq) - 1 - n
                if lg is not None and i.ahead:
                    lg = max(0, lg - i.ahead)
                if smem_pending & touch:
                    lg = 0
                if vm is not None or lg is not None:
                    do_wait(vm, lg)
            if i.kind == 'wait':
                m = re.search(r'vmcnt\((\d+)\)', i.text)
                if m and not i.raw:
                    n = int(m.group(1))
                    if len(vmq) > n:
                        del vmq[:len(vmq) - n]
                m = re.search(r'lgkmcnt\((\d+)\)', i.text)
                if m and not i.raw:
                    n = int(m.group(1))
                    if len(lgq) > n:
                        del lgq[:len(lgq) - n]
                    if n == 0:
                        smem_pending.clear()
                emit(i)
                continue
            n = need_states(i)
            if n > 0:
                stats['nops'] += 1
                while n > 0:
                    c = min(n, 16)
                    emit(I('s_nop %d' % (c - 1)))
                    n -= c
            emit(i)
            if i.raw:
                continue
            if i.kind in ('vload', 'vstore', 'dma'):
                vmq.append(i)
                seen.add(i.tag)
            elif i.kind in ('dsread', 'dswrite'):
                lgq.append(i)
            elif i.kind == 'smem':
                smem_pending |= i.wr
        self.out = out
        self.stats = stats
        return out

    def text(self):
        lines = []
        for i in self.out:
            if i.kind == 'label':
                lines.append(i.text)
            else:
                lines.append('    ' + i.text)
        return '\n'.join(lines)


def interleave(main, fill, start=0, per=None, end=None):
    mf = [n for n, x in enumerate(main) if x.kind == 'mfma']
    if end is None:
        end = len(mf)
    slots = list(range(start, end))
    assert slots
    groups = {s: [] for s in slots}
    nf = len(fill)
    if per is None:
        for j, f in enumerate(fill):
            s = slots[min(len(slots) - 1, j * len(slots) // nf)]
            groups[s].append(f)
    else:
        j = 0
        for s in slots:
            for _ in range(per):
                if j < nf:
                    groups[s].append(fill[j])
                    j += 1
        while j < nf:
            groups[slots[-1]].append(fill[j])
            j += 1
    out = []
    cnt = 0
    for x in main:
        out.append(x)
        if x.kind == 'mfma':
            for f in groups.get(cnt, []):
                if isinstance(f, list):
                    out.extend(f)
                else:
                    out.append(f)
            cnt += 1
    return out
```

```python
import sys
from asmlib import Prog, I

NAME = 'sequential_preLN__linear_attn_block__glu_gated_glu__prompt_kernel'

OPT = dict(diag=0, stop=99, spin=200000, abl='', cyc=0, st=None)
for a in sys.argv[2:]:
    k, v = a.split('=')
    OPT[k] = eval(v)
DIAG = OPT['diag']
STOP = OPT['stop']

WS_CNT = 0
WS_KVP = 0x20000
WS_CS = 0xA0000
WS_O = 0x120000
WS_H = 0x320000
WS_ST = 0x520000
WS_HH = 0x560000
WS_TS = 0xC60000
WS_SIZE = 0xD00000
C_O, C_H, C_KV, C_HH, C_CS = 0, 8, 12, 16, 48

sX, sQKV, sWO, sGU, sWD, sOUT, sWS, sDBG = 24, 28, 32, 36, 40, 44, 48, 52
sOff, sOff2, sIter, sPoll = 56, 57, 58, 59
sG, sM, sW, sCs, sWK, sHalf, sA, sTh, sKh, sCnt = 60, 61, 62, 63, 64, 65, 66, 67, 68, 69
sCh = 70
sIdx = 77
sT = [3, 4, 5, 6, 7, 8, 9, 10, 11, 12, 13]
sMaskHi = 14
sMask28 = 16
sGl, sGood, sSig, sSt, sTT, sZero = 18, 19, 20, 21, 22, 23
sGUt = [28, 29, 30, 31, 52, 53, 54]
sWDt = [24, 25, 26, 27, 32, 33, 34]
sHHt = [0, 1, 16, 17, 19, 23, 55]
sTS = 78


def S4(b):
    return 's[%d:%d]' % (b, b + 3)


def V(b, n=1):
    return 'v%d' % b if n == 1 else 'v[%d:%d]' % (b, b + n - 1)


def A(b, n=1):
    return 'a%d' % b if n == 1 else 'a[%d:%d]' % (b, b + n - 1)


vL16, vOne, vP, vL8 = 1, 2, 3, 4
vOffX = 5
vAdX = 9
vAdC = 9
vOffKV, vAdK, vAdV, vOffQ, vAdQ = 13, 14, 15, 16, 17
vAdD = 14
vOffWO, vOffXR, vOffGU, vOffWD = 18, 19, 20, 21
vAdWO, vAdWOp = 22, 24
vT = 26
vY = 32
vX = 64
vF = 128
vGUo, vWDo, vL16b, vMF, vCc, vSt, vHH = 128, 136, 144, 148, 152, 156, 172
vU = 240
aW = 0
aH = 32
aF = 40
aCS = 152
aR = 172
t0, t1, t2, t3, t4, t5 = range(vT, vT + 6)
u = [vU + i for i in range(16)]

PG = 4096
LOG2E = 0x3fb8aa3b
NEGL = 0xbfb8aa3b
EPS6 = 0x358637bd
EPS5 = 0x3727c5ac
INV448 = 0x3b124925

p = Prog()
e = p.e
nstamp = [0]
nlab = [0]


def L(x):
    return [I(t.strip()) for t in x.strip().split('\n') if t.strip()]


def mkstamp(name):
    if not DIAG:
        return []
    early = ('o flag', 'x0 landed', 'x read', 'A1 mfma', 'kv stored', 'A2 mfma', 'q done', 'kv flag', 'kv loaded', 'o stored')
    if OPT['st'] is not None:
        if name != 'start' and name not in OPT['st']:
            return []
    elif name != 'start' and ((DIAG == 1) != (name in early) or name.startswith('_')):
        return []
    n = nstamp[0]
    assert n < 11
    nstamp[0] += 1
    return [I('%s s[%d:%d] ; @%s' % ('s_memtime' if OPT['cyc'] else 's_memrealtime', sTS + 2 * n, sTS + 2 * n + 1, name))]


def stamp(name):
    p.add(mkstamp(name))


def dma(voff, srd, so, m0, tag, pre=(), imm=0):
    r = []
    if m0 is not None:
        r.append(I('s_add_u32 m0, s%d, 0x%x' % (sWK, m0)))
    r += [I(t) for t in pre]
    r.append(I('buffer_load_dwordx4 v%d, %s, %s offen%s lds' % (voff, S4(srd), so, ' offset:%d' % imm if imm else ''), tag=tag))
    return r


def poll_issue(soff):
    return [I('buffer_load_dword v%d, off, %s, s%d sc1' % (vP, S4(sWS), soff))]


def poll_check(expect, soff, srd=sWS):
    n = nlab[0]
    nlab[0] += 1
    t = sT[0]
    so = soff if isinstance(soff, str) else 's%d' % soff
    r = L('''
    v_readfirstlane_b32 s%d, v%d
    s_cmp_ge_u32 s%d, %d
    s_cbranch_scc1 L_ok%d
    s_mov_b32 s%d, %d
    ''' % (t, vP, t, expect, n, sIter, OPT['spin']))
    r.append(I('L_spin%d:' % n))
    for x in ['buffer_load_dword v%d, off, %s, %s sc1' % (vP, S4(srd), so),
              's_waitcnt vmcnt(0)',
              'v_readfirstlane_b32 s%d, v%d' % (t, vP),
              's_nop 0',
              's_cmp_ge_u32 s%d, %d' % (t, expect),
              's_cbranch_scc1 L_ok%d' % n,
              's_sub_u32 s%d, s%d, 1' % (sIter, sIter),
              's_cmp_lg_u32 s%d, 0' % sIter,
              's_cbranch_scc1 L_spin%d' % n]:
        r.append(I(x, raw=True))
    r.append(I('L_ok%d:' % n))
    return r


def signal(soff, imm=0):
    return L('''
    s_mov_b64 exec, 1
    buffer_atomic_add v%d, off, %s, s%d%s
    s_mov_b64 exec, -1
    ''' % (vOne, S4(sWS), soff, ' offset:%d' % imm if imm else ''))


def mfma(d, a, b, c=None):
    return I('v_mfma_f32_32x32x16_bf16 %s, %s, %s, %s' % (V(d, 16), a, b, V(d, 16) if c is None else c))


def colsum4(acc, q, first):
    return [I('v_mfma_f32_4x4x4_16b_bf16 %s, %s, %s, %s' % (V(acc + 4 * h, 4), V(vOnes, 2), A(q + 2 * h, 2), '0' if first else V(acc + 4 * h, 4))) for h in range(2)]


class WStream:
    def __init__(self, look=7, nbuf=8, wper=4):
        self.items = []
        self.look = look
        self.nbuf = nbuf
        self.wper = wper
        self.n = 0
        self.fills = {}

    def step(self, addr0, off0, addr1, off1, mk, pre=None, post=None):
        q = aW + 4 * (self.n % self.nbuf)
        self.n += 1
        rd = list(pre or [])
        rd.append(I('ds_read_b64_tr_b16 %s, v%d offset:%d' % (A(q, 2), addr0, off0)))
        rd.append(I('ds_read_b64_tr_b16 %s, v%d offset:%d' % (A(q + 2, 2), addr1, off1)))
        self.items.append((rd, mk(A(q, 4)), post(q) if post else []))
        return len(self.items) - 1

    def extra(self, m):
        self.items.append(([], m, []))
        return len(self.items) - 1

    def fill(self, idx, grp):
        g = grp if isinstance(grp, list) else [grp]
        ab = OPT['abl']
        if ab and not any(x.kind in ('label', 'sctl') or 'exec' in x.text for x in g):
            if 'v' in ab:
                g = [x for x in g if x.kind != 'valu']
            if 'd' in ab and any(x.kind == 'dma' for x in g):
                g = []
            if 'b' in ab:
                g = [x for x in g if x.kind != 'barrier']
        if g:
            self.fills.setdefault(idx, []).append(g)

    def build(self):
        out = []
        n = len(self.items)
        withrd = [i for i in range(n) if self.items[i][0]]
        nxt = 0
        used = 0
        while nxt < min(self.look, len(withrd)):
            out += self.items[withrd[nxt]][0]
            nxt += 1
        for i in range(n):
            rd, m, post = self.items[i]
            if rd:
                if used % self.wper == 0:
                    m.ahead = 2 * min(self.wper - 1, nxt - used - 1)
                used += 1
            out.append(m)
            gs = self.fills.pop(i, [])
            first = [g for g in gs if g[0].kind == 'barrier']
            rest = [g for g in gs if g[0].kind != 'barrier']
            for g in first:
                out += g
            mem = [g for g in rest if not all(x.kind == 'valu' for x in g)]
            if mem and mem[0][0].kind == 'salu' and mem[0][-1].kind == 'dma':
                out.append(mem[0][0])
                mem[0] = mem[0][1:]
            if rd and nxt < len(withrd):
                out += self.items[withrd[nxt]][0]
                nxt += 1
            for g in mem:
                out += g
            for g in rest:
                if all(x.kind == 'valu' for x in g):
                    out += g
            out += post
        assert not self.fills, list(self.fills)
        return out


def spread(main, fill):
    out = []
    n, m = len(main), len(fill)
    j = 0
    for i, x in enumerate(main):
        out.append(x)
        while j < m and (j + 1) * n <= (i + 1) * (m + 1):
            out.extend(fill[j])
            j += 1
    while j < m:
        out.extend(fill[j])
        j += 1
    return out


def zip_groups(groups):
    out = []
    n = max(len(g) for g in groups)
    for k in range(n):
        for g in groups:
            if k < len(g):
                out.append(g[k])
    return out


def pk(op, d, a, b, c=None, mod=''):
    f = lambda r: r if isinstance(r, str) else V(r, 2)
    return I('v_pk_%s_f32 %s, %s, %s%s %s' % (op, f(d), f(a), f(b), '' if c is None else ', ' + f(c), mod))


def halves_sum(x, t):
    return L('''
    v_mov_b32 v{t}, v{x}
    v_permlane32_swap_b32 v{t}, v{x}
    v_add_f32 v{x}, v{t}, v{x}
    '''.format(t=t, x=x))


def ln_consts(s, q, mean, std, r):
    return L('''
    v_mul_f32 v{a}, 0x{i:x}, v{s}
    v_mul_f32 v{b}, 0x{i:x}, v{q}
    v_fma_f32 v{b}, -v{a}, v{a}, v{b}
    v_max_f32 v{b}, 0, v{b}
    v_cvt_pk_bf16_f32 v{a}, v{a}, v{b}
    v_and_b32 v{b}, 0xffff0000, v{a}
    v_lshlrev_b32 v{a}, 16, v{a}
    v_add_f32 v{b}, 0x{e:x}, v{b}
    v_cvt_pk_bf16_f32 v{b}, v{b}, v{b}
    v_lshlrev_b32 v{b}, 16, v{b}
    v_sqrt_f32 v{b}, v{b}
    v_cvt_pk_bf16_f32 v{b}, v{b}, v{b}
    v_lshlrev_b32 v{b}, 16, v{b}
    v_rcp_f32 v{r}, v{b}
    '''.format(a=mean, b=std, s=s, q=q, r=r, i=INV448, e=EPS5))


def mean_frag(mean, d):
    return L('''
    v_cvt_pk_bf16_f32 v{d}, -v{m}, -v{m}
    v_mov_b32 v{d1}, 0
    v_mov_b32 v{d2}, 0
    v_mov_b32 v{d3}, 0
    v_cndmask_b32 v{d}, v{d}, 0, s[{h}:{h1}]
    '''.format(d=d, d1=d + 1, d2=d + 2, d3=d + 3, m=mean, h=sMaskHi, h1=sMaskHi + 1))


def hilo(c, d, t):
    return L('''
    v_cvt_pk_bf16_f32 v{t}, v{c}, v{c}
    v_lshlrev_b32 v{t}, 16, v{t}
    v_sub_f32 v{t}, v{c}, v{t}
    v_cvt_pk_bf16_f32 v{d}, v{c}, v{t}
    '''.format(c=c, d=d, t=t))


e('s_cmp_ge_u32 s2, 256')
e('s_cbranch_scc1 L_end')
if OPT.get('fixt'):
    e('s_memrealtime s[98:99]')
stamp('start')
if DIAG:
    e('s_memtime s[100:101]')
e('s_load_dwordx4 s[4:7], s[0:1], 0')
e('s_load_dwordx2 s[%d:%d], s[0:1], 16' % (sWO, sWO + 1))
e('s_load_dwordx8 s[8:15], s[0:1], 32')
e('s_load_dwordx4 s[20:23], s[0:1], 64')
XP0 = 12
e("""
v_lshrrev_b32 v{t0}, 6, v0
v_and_b32 v0, 63, v0
v_readfirstlane_b32 s{w}, v{t0}
s_lshr_b32 s{idx}, s2, 3
""".format(t0=t0, w=sW, idx=sIdx))
if OPT.get('cpf', 1):
    sCODE = 72
    e('s_getpc_b64 s[%d:%d]' % (sCODE, sCODE + 1))
    e('L_pc:')
    e("""
    s_mov_b32 s{c2}, L_end-L_pc
    s_mov_b32 s{c3}, 0x20000
    s_lshl2_add_u32 s3, s{idx}, s{w}
    s_lshl_b32 s3, s3, 9
    v_and_b32 v{t3}, 3, v0
    v_lshlrev_b32 v{t3}, 7, v{t3}
    buffer_load_dword v{d}, v{t3}, {code}, s3 offen
    """.format(c2=sCODE + 2, c3=sCODE + 3, idx=sIdx, w=sW, t3=t3, d=t5, code=S4(sCODE)))
e("""
s_bfe_u32 s3, s2, 0x20001
s_and_b32 s{gl}, s{idx}, 3
s_lshr_b32 s{cs}, s{idx}, 2
s_lshl2_add_u32 s{g}, s3, s{gl}
s_lshl1_add_u32 s{c0}, s{gl}, s{cs}
s_add_u32 s{c0}, s{c0}, s3
s_mul_i32 s3, s{c0}, 37
s_lshr_b32 s3, s3, 8
s_mul_i32 s3, s3, 7
s_sub_u32 s{c0}, s{c0}, s3
v_lshrrev_b32 v{u0}, 3, v0
v_and_b32 v{u1}, 7, v0
v_lshrrev_b32 v{u2}, 4, v0
s_lshl2_add_u32 s3, s{g}, s{w}
s_mul_i32 s3, s3, 28672
v_mul_u32_u24 v{t0}, 896, v{u0}
v_xor_b32 v{t1}, v{u1}, v{u2}
v_add_u32 v{t0}, s3, v{t0}
v_lshl_add_u32 v{x0}, v{t1}, 4, v{t0}
v_xor_b32 v{t1}, 4, v{t1}
v_lshl_add_u32 v{x1}, v{t1}, 4, v{t0}
v_add_u32 v{x2}, 12288, v{x0}
v_add_u32 v{x3}, 18432, v{x1}
v_add_u32 v{x1}, 6144, v{x1}
s_mul_i32 s{o2}, s{w}, {xs}
s_add_u32 s{o2}, s{o2}, {xb}
s_mov_b32 s{X2}, 1835008
s_mov_b32 s{X3}, 0x20000
""".format(t0=t0, t1=t1, w=sW, idx=sIdx, gl=sGl, cs=sCs, g=sG, c0=sCh, u0=u[0], u1=u[1], u2=u[2],
           x0=vOffX, x1=vOffX + 1, x2=vOffX + 2, x3=vOffX + 3, o2=sOff2, xs=7 * PG, xb=XP0 * PG, X2=sX + 2, X3=sX + 3))


def nextch(i):
    e('s_add_u32 s%d, s%d, 1' % (sCh + i, sCh + i - 1))
    e('s_cmp_ge_u32 s%d, 7' % (sCh + i))
    e('s_cselect_b32 s%d, 0, s%d' % (sCh + i, sCh + i))


def xdma(i):
    r = L('s_add_u32 m0, s%d, %d\ns_lshl_b32 s%d, s%d, 7' % (sOff2, i * PG, sOff, sCh + i))
    for q in range(4):
        r.append(I('buffer_load_dwordx4 v%d, %s, s%d offen%s lds' % (vOffX + q, S4(sX), sOff, ' offset:%d' % (q * 1024) if q else ''), tag='x%d' % i))
    return r


nextch(1)
stamp('_prek')
e('@waitlg0')
stamp('_karg')
e('s_mov_b32 s%d, s4' % sX)
e('s_mov_b32 s%d, s5' % (sX + 1))
p.add(xdma(0))
p.add(xdma(1))
stamp('_x01')
for i in range(2, 7):
    nextch(i)
e("""
s_and_b32 s{half}, s2, 1
s_lshl3_add_u32 s{m}, s{half}, s{cs}
s_sub_u32 s{a}, s{m}, s{half}
s_lshl_b32 s{wk}, s{w}, 10
s_lshl_b32 s{cnt}, s{g}, 13
s_and_b32 s{th}, s{w}, 1
s_lshr_b32 s{kh}, s{w}, 1
s_mov_b32 s{q}, s6
s_mov_b32 s{q1}, s7
s_cmp_lt_u32 s{w}, 2
s_cselect_b32 s{gu}, s8, s10
s_cselect_b32 s{gu1}, s9, s11
s_mov_b32 s{wd}, s12
s_mov_b32 s{wd1}, s13
s_mov_b32 s{out}, s14
s_mov_b32 s{out1}, s15
s_mov_b32 s{dbg}, s20
s_mov_b32 s{dbg1}, s21
s_mov_b32 s{ws}, s22
s_mov_b32 s{ws1}, s23
s_cmp_lt_u32 s{cs}, 7
s_cselect_b32 s{wo2}, 401408, 0
s_cselect_b32 s{gu2}, 1605632, 0
s_lshl1_add_u32 s{tt}, s{half}, s{th}
""".format(half=sHalf, m=sM, cs=sCs, a=sA, wk=sWK, w=sW, cnt=sCnt, g=sG, th=sTh, kh=sKh, q=sQKV, q1=sQKV + 1,
           gu=sGU, gu1=sGU + 1, wd=sWD, wd1=sWD + 1, out=sOUT, out1=sOUT + 1, dbg=sDBG, dbg1=sDBG + 1,
           ws=sWS, ws1=sWS + 1, wo2=sWO + 2, gu2=sGU + 2, tt=sTT))
for srd, size in ((sQKV, 1204224), (sWO, None), (sWD, 1605632), (sGU, None), (sOUT, 1835008), (sDBG, 256), (sWS, WS_SIZE)):
    if size:
        e('s_mov_b32 s%d, 0x%x' % (srd + 2, size))
    e('s_mov_b32 s%d, 0x20000' % (srd + 3))
e("""
v_lshlrev_b32 v{l16}, 4, v0
v_lshlrev_b32 v{l8}, 3, v0
v_mov_b32 v{one}, 1
v_and_b32 v{u3}, 31, v0
v_lshrrev_b32 v{u4}, 5, v0
v_bfe_u32 v{u5}, v0, 2, 2
v_and_b32 v{u6}, 3, v0
v_bfe_u32 v{u7}, v0, 4, 1
""".format(l16=vL16, l8=vL8, one=vOne, u3=u[3], u4=u[4], u5=u[5], u6=u[6], u7=u[7]))
e("""
s_cmp_eq_u32 s{m}, 15
s_cselect_b32 s3, 1, 0
s_cmp_eq_u32 s{w}, 0
s_cselect_b32 s{z}, s3, 0
s_cmp_eq_u32 s{z}, 0
s_cbranch_scc1 L_nozero
v_lshlrev_b32 v{t3}, 7, v0
v_mov_b32 v{t4}, 0
""".format(m=sM, w=sW, t3=t3, t4=t4, z=sZero))
e('buffer_store_dword v%d, v%d, %s, s%d offen sc1' % (t4, t3, S4(sWS), sCnt), raw=True)
e('L_nozero:')
e('v_cmp_lt_u32 s[%d:%d], 31, v0' % (sMaskHi, sMaskHi + 1))
e('v_cmp_eq_u32 s[%d:%d], 28, v%d' % (sMask28, sMask28 + 1, u[3]))
e('''
v_lshlrev_b32 v{t0}, 7, v{u3}
v_add_u32 v{t0}, s{xb}, v{t0}
v_bfe_u32 v{t1}, v0, 1, 3
v_xor_b32 v{t1}, v{t1}, v{u4}
'''.format(t0=t0, t1=t1, u3=u[3], u4=u[4], xb=sOff2))
for ks in range(4):
    e('v_xor_b32 v%d, %d, v%d' % (t2, 2 * ks, t1))
    e('v_lshl_add_u32 v%d, v%d, 4, v%d' % (vAdX + ks, t2, t0))
e('''
v_lshlrev_b32 v{t0}, 2, v{u7}
v_xor_b32 v{t0}, v{t0}, v{u1}
v_lshlrev_b32 v{t4}, 4, v{t0}
v_lshrrev_b32 v{t1}, 2, v{t0}
v_and_b32 v{t0}, 3, v{t0}
v_lshlrev_b32 v{t2}, 1, v{t0}
v_min_u32 v{t2}, 5, v{t2}
v_lshlrev_b32 v{t2}, 3, v{t2}
s_movk_i32 s{k}, 896
v_mad_u32_u24 v{t2}, v{t1}, s{k}, v{t2}
v_mad_u32_u24 v{t4}, v{u0}, s{k}, v{t4}
s_lshl_b32 s3, s{w}, 3
v_add_u32 v{t3}, s3, v{u0}
s_movk_i32 s{k}, 2688
v_mad_u32_u24 v{t2}, v{t3}, s{k}, v{t2}
s_mul_i32 s3, s{m}, 56
s_add_u32 s4, s3, 896
v_add_u32 v{kv}, s4, v{t2}
'''.format(t0=t0, t1=t1, t2=t2, t3=t3, t4=t4, u0=u[0], u1=u[1], u7=u[7], k=sOff, w=sW, m=sM, kv=vOffKV))
e('''
s_lshl_b32 s6, s{cs}, 7
s_mul_i32 s4, s{w}, 7168
s_add_u32 s4, s4, s6
v_add_u32 v{wo}, s4, v{t4}
s_mul_i32 s4, s{kh}, 802816
s_mul_i32 s5, s{th}, 7168
s_add_u32 s4, s4, s5
s_add_u32 s4, s4, s6
v_add_u32 v{wd}, s4, v{t4}
'''.format(t4=t4, cs=sCs, w=sW, kh=sKh, th=sTh, wo=vOffWO, wd=vOffWD))
e('''
v_lshlrev_b32 v{t2}, 1, v{u6}
v_min_u32 v{t2}, 5, v{t2}
v_lshlrev_b32 v{t2}, 3, v{t2}
v_lshrrev_b32 v{t3}, 2, v0
v_mul_u32_u24 v{t4}, 896, v{t3}
s_lshl_b32 s4, s{w}, 4
v_add_u32 v{t3}, s4, v{t3}
v_mad_u32_u24 v{t2}, v{t3}, s{k}, v{t2}
v_add_u32 v{q}, s3, v{t2}
s_lshl2_add_u32 s4, s{g}, s{tt}
s_mul_i32 s4, s4, 28672
s_add_u32 s4, s4, s6
s_lshl_b32 s5, s{kh}, 6
s_add_u32 s4, s4, s5
v_lshl_add_u32 v{t4}, v{u6}, 4, v{t4}
v_add_u32 v{xr}, s4, v{t4}
'''.format(t2=t2, t3=t3, t4=t4, u6=u[6], k=sOff, w=sW, q=vOffQ, g=sG, tt=sTT, kh=sKh, xr=vOffXR))
WQP = 14
e('''
v_lshlrev_b32 v{t0}, 3, v{u6}
v_lshl_add_u32 v{t0}, v{u7}, 5, v{t0}
v_lshrrev_b32 v{t1}, 1, v{u6}
v_and_b32 v{t1}, v{t1}, v{u7}
v_lshlrev_b32 v{t1}, 3, v{t1}
v_xor_b32 v{t1}, v{t0}, v{t1}
v_lshrrev_b32 v{t2}, 1, v{u5}
v_lshlrev_b32 v{t2}, 6, v{t2}
v_lshl_add_u32 v{t3}, v{u4}, 3, v{u5}
v_xor_b32 v{t4}, v{t1}, v{t2}
v_lshl_add_u32 v{ak}, v{t3}, 7, v{t4}
v_xor_b32 v{av}, 64, v{ak}
v_lshl_add_u32 v{aq}, v{t3}, 6, v{t1}
v_add_u32 v{aq}, {qb}, v{aq}
'''.format(t0=t0, t1=t1, t2=t2, t3=t3, t4=t4, u4=u[4], u5=u[5], u6=u[6], u7=u[7], ak=vAdK, av=vAdV, aq=vAdQ, qb=WQP * PG))
e('''
v_xor_b32 v{t4}, v{t0}, v{t2}
s_lshl_b32 s3, s{kh}, 6
v_xor_b32 v{t4}, s3, v{t4}
v_lshl_add_u32 v{t4}, v{u5}, 7, v{t4}
s_mul_i32 s3, s{kh}, 28672
v_add_u32 v{p0}, s3, v{t4}
v_xor_b32 v{p1}, 64, v{p0}
v_lshl_add_u32 v{a0}, v{u4}, 9, v{p0}
v_xor_b32 v{a1}, 64, v{a0}
'''.format(t0=t0, t2=t2, t4=t4, u4=u[4], u5=u[5], kh=sKh, p0=vAdWOp, p1=vAdWOp + 1, a0=vAdWO, a1=vAdWO + 1))
e('''
s_lshl_b32 s4, s{kh}, 2
v_lshl_add_u32 v{t0}, v{u7}, 1, s4
v_xor_b32 v{t0}, v{t0}, v{u1}
v_lshlrev_b32 v{t0}, 4, v{t0}
s_movk_i32 s{k}, 3584
v_mad_u32_u24 v{t0}, v{u0}, s{k}, v{t0}
s_mul_i32 s4, s{th}, 28672
s_lshl_b32 s5, s{a}, 8
s_add_u32 s4, s4, s5
v_add_u32 v{gu}, s4, v{t0}
'''.format(t0=t0, u0=u[0], u1=u[1], u7=u[7], k=sOff, kh=sKh, th=sTh, a=sA, gu=vOffGU))
vSw = vY
sSW = 8
e('''
s_add_u32 s3, s{cs}, 1
s_lshr_b32 s3, s3, 1
s_mul_i32 s4, s{gl}, 5
s_add_u32 s3, s3, s4
s_lshl1_add_u32 s4, s3, s{th}
s_mul_i32 s4, s4, 3
s_bfe_u32 s5, s2, 0x20001
s_mul_i32 s5, s5, 112
s_add_u32 s4, s4, s5
s_mul_i32 s4, s4, 3584
s_mul_i32 s5, s{half}, 1792
s_add_u32 s4, s4, s5
v_min_u32 v{t0}, 2, v{u2}
v_mul_u32_u24 v{t0}, 3584, v{t0}
v_and_b32 v{t1}, 15, v0
v_min_u32 v{t1}, 13, v{t1}
v_lshl_add_u32 v{t0}, v{t1}, 7, v{t0}
v_add_u32 v{a}, s4, v{t0}
s_lshl2_add_u32 s3, s3, s{w}
s_min_u32 s3, s3, 55
s_and_b32 s4, s2, 7
s_mul_i32 s4, s4, 56
s_add_u32 s3, s3, s4
s_mul_i32 s3, s3, 896
v_min_u32 v{t1}, 6, v{u1}
v_lshlrev_b32 v{t1}, 7, v{t1}
v_add_u32 v{b}, s3, v{t1}
s_mul_i32 s3, s{half}, 42
s_add_u32 s3, s3, 0xab
s_lshr_b32 s3, s3, s{cs}
s_and_b32 s{good}, s3, 1
'''.format(cs=sCs, gl=sGl, th=sTh, half=sHalf, w=sW, t0=t0, t1=t1, u1=u[1], u2=u[2], a=vSw, b=vSw + 1, good=sGood))


def sweep():
    r = L('''
    s_mov_b32 s{sw}, s{gu}
    s_mov_b32 s{sw1}, s{gu1}
    s_mul_i32 s{sw2}, s{good}, 1605632
    s_mov_b32 s{sw3}, 0x20000
    buffer_load_dword a250, v{a}, {srd}, 0 offen
    s_mov_b32 s{sw}, s{wo}
    s_mov_b32 s{sw1}, s{wo1}
    s_mul_i32 s{sw2}, s{good}, 401408
    buffer_load_dword a251, v{b}, {srd}, 0 offen
    '''.format(sw=sSW, sw1=sSW + 1, sw2=sSW + 2, sw3=sSW + 3, gu=sGU, gu1=sGU + 1, wo=sWO, wo1=sWO + 1, a=vSw, b=vSw + 1,
               srd=S4(sSW), good=sGood))
    return r if OPT.get('sweep', 1) else []


def kvdma(pg):
    pre = ['s_mul_i32 s%d, s%d, 172032' % (sOff, sCh + (pg >> 1))]
    if pg & 1:
        pre.append('s_add_u32 s%d, s%d, 86016' % (sOff, sOff))
    return dma(vOffKV, sQKV, 's%d' % sOff, pg * PG, 'kv%d' % pg, pre)


def qdma(i):
    return dma(vOffQ, sQKV, 's%d' % sOff, (WQP + i) * PG, 'q%d' % i, ['s_mul_i32 s%d, s%d, 172032' % (sOff, sCh + i)])


vS, vQ2, vOnes = u[8], u[9], u[10]
vMean, vStd, vR, vRL = u[6], u[7], u[12], u[14]
e('v_mov_b32 v%d, 0' % vS)
e('v_mov_b32 v%d, 0' % vQ2)
e('v_mov_b32 v%d, 0x3f803f80' % vOnes)
e('v_mov_b32 v%d, 0x3f803f80' % (vOnes + 1))
SCR, KVS, XRP, WOP = 21, 25, 26, 0
e('''
s_lshl_b32 s3, s{w}, 8
s_add_u32 s3, s3, {b}
v_lshl_add_u32 v{a}, v{u3}, 2, s3
v_lshl_add_u32 v{c}, v{u4}, 4, s3
'''.format(w=sW, b=KVS * PG + 2048, a=t3, c=t4, u3=u[3], u4=u[4]))


def xdots(i):
    r = []
    for j in range(16):
        reg = vF + 16 * i + j
        r.append(I('v_dot2c_f32_bf16 v%d, v%d, v%d' % (vS, reg, vOnes)))
        r.append(I('v_dot2c_f32_bf16 v%d, v%d, v%d' % (vQ2, reg, reg)))
    return r


stamp('_addr')
p.add(xdma(2))
kv_next = 0
XW = OPT.get('xw', [[], [], [3], [3], [1, 3], [1, 3], [2]])
for i in range(7):
    e('@waitvm x%d' % i)
    stamp('_xl%d' % i)
    if i == 0:
        stamp('x0 landed')
    if i == 2:
        e('s_cmp_eq_u32 s%d, 0' % sZero)
        e('s_cbranch_scc1 L_nozero2')
        e('s_mov_b64 exec, 1')
        e('buffer_atomic_add v%d, off, %s, 0' % (vOne, S4(sDBG)), raw=True)
        e('s_mov_b64 exec, -1')
        e('L_nozero2:')
    for ks in range(4):
        e('ds_read_b128 %s, v%d offset:%d' % (V(vF + 16 * i + 4 * ks, 4), vAdX + ks, i * PG))
    dots = xdots(i - 1) if i else []
    d = [[], [], [], []]
    if i + 3 < 7:
        x_ = xdma(i + 3)
        d = [x_[:3], x_[3:4], x_[4:5], x_[5:6]]
    for q in XW[i]:
        d[q] = d[q] + kvdma(kv_next)
        kv_next += 1
    for q in range(4):
        p.add(d[q] + dots[8 * q:8 * q + 8])
p.add(xdots(6))
p.add(kvdma(kv_next))
kv_next += 1
stamp('x read')

aK, aV, vRr = vX, vX + 16, vX + 32
aCK, aCV = 40, 56
vAdKw, vAdVw, vAdQw, vO4, vMA, vCx = vY + 2, vY + 3, vY + 12, vY + 8, vY + 4, vY + 16
e('''
s_lshl_b32 s3, s{w}, 11
v_add_u32 v{kw}, s3, v{k}
v_add_u32 v{vw}, s3, v{v}
v_add_u32 v{qw}, s{wk}, v{q}
'''.format(w=sW, kw=vAdKw, vw=vAdVw, qw=vAdQw, k=vAdK, v=vAdV, q=vAdQ, wk=sWK))
for n in range(4):
    e('v_mov_b32 v%d, 0x3f803f80' % (vO4 + n))


def mfma_ones(acc, b, first):
    return I('v_mfma_f32_32x32x16_bf16 %s, %s, %s, %s' % (A(acc, 16), V(vO4, 4), b, '0' if first else A(acc, 16)))


ws = WStream(look=4, wper=2)
pgap = {}
for pg in range(14):
    pre = L('@waitvm kv%d\ns_barrier' % pg)
    if pg & 1:
        for (acc, ad) in ((aCK, vAdKw), (aCV, vAdVw)):
            off = (pg - 1) * PG
            glast = ws.step(ad, off, ad, off + 512, lambda a: mfma_ones(acc, a, pg == 1), pre)
            pre = None
    for ks2 in range(2):
        k = 2 * pg + ks2
        for (acc, ad) in ((aK, vAdK), (aV, vAdV)):
            off = pg * PG + ks2 * 2048
            g_ = ws.step(ad, off, ad, off + 512, lambda a: mfma(acc, V(vF + 4 * k, 4), a, '0' if k == 0 else None), pre)
            pre = None
    pgap[pg] = g_
for pg in range(kv_next, 14):
    ws.fill(max(pgap[max(pg - OPT.get('kvl', 4), 0)], 2 * (pg - kv_next) + 1), kvdma(pg))
st = halves_sum(vS, t0) + halves_sum(vQ2, t0) + ln_consts(vS, vQ2, vMean, vStd, vR)
st += L('''
v_mul_f32 v{c}, v{m}, v{r}
v_mul_f32 v{rl}, 0x{l:x}, v{r}
v_sub_f32 v{c}, 0, v{c}
'''.format(c=t0, m=vMean, r=vR, rl=vRL, l=LOG2E))
for n, x in enumerate(st):
    ws.fill(2 + n, x)
ws.fill(28, L('ds_write_b32 v{a}, v{r}\nds_write_b32 v{a}, v{c} offset:128'.format(a=t3, r=vR, c=t0)))
for n in range(8):
    ws.fill(30 + n, I('ds_read_b128 %s, v%d offset:%d' % (V(vRr + 4 * n, 4), t4, (n & 3) * 32 + (n >> 2) * 128)))
pre_e = mean_frag(vMean, vMA) + L('''
v_lshlrev_b32 v{t0}, 3, v{u3}
v_add_u32 v{t5}, {cx}, v{t0}
v_mov_b32 v{c}, 0x{l:x}
v_mov_b32 v{u5}, v{u3}
'''.format(t0=t0, u3=u[3], t5=t5, cx=KVS * PG + 3072, c=u[4], l=LOG2E, u5=u[5]))
for n, x in enumerate(pre_e):
    ws.fill(30 + n, x)
ws.fill(40, L('''
s_lshl_b32 s3, s{w}, 8
v_add_u32 v{t4}, s3, v{t5}
s_lshl4_add_u32 s3, s{m}, s{g}
s_lshl2_add_u32 s3, s3, s{w}
s_lshl_b32 s3, s3, 9
s_add_u32 s{o2}, s3, {base}
'''.format(w=sW, t4=t4, t5=t5, m=sM, g=sG, o2=sOff2, base=WS_KVP)))
ws.fill(44, L('''
s_lshl_b32 s3, s{m}, 6
s_add_u32 s3, s3, s{w}
s_lshl_b32 s3, s3, 7
s_add_u32 s{pl}, s3, {kv}
'''.format(m=sM, w=sW, pl=sPoll, kv=C_KV * 128)))
ws.fill(pgap[11] + 1, qdma(0))
ws.fill(pgap[12] + 1, qdma(1))
ws.fill(glast + 2, L('''
v_accvgpr_read_b32 v{a}, a{k}
v_accvgpr_read_b32 v{b}, a{v}
ds_write_b64 v{ad}, v[{a}:{b}]
'''.format(a=t0, b=t1, k=aCK, v=aCV, ad=t4)))
xch = L('@waitlg0\ns_barrier')
for n in range(4):
    xch.append(I('ds_read_b64 %s, v%d offset:%d' % (V(vCx + 2 * n, 2), t5, 256 * n)))
ws.fill(glast + 3, xch)
for nm, at in (('_a1', 0), ('_a8', 9), ('_a16', 19), ('_a24', 29), ('_a32', 39), ('_a40', 49), ('_a48', 59)):
    ws.fill(at, mkstamp(nm))
p.add(ws.build())
stamp('A1 mfma')


def phi(acc, dst, pre):
    r = []
    for j in range(0, 16, 4):
        g = []
        for jj in (j, j + 2):
            a = acc + jj
            tp = u[0] + (jj & 2)
            g.append(pre(jj, tp) + L('''
            v_min_f32 v{t}, 0, v{t}
            v_min_f32 v{t1}, 0, v{t1}
            v_exp_f32 v{t}, v{t}
            v_exp_f32 v{t1}, v{t1}
            v_max_f32 v{a}, 0x{e:x}, v{a}
            v_max_f32 v{a1}, 0x{e:x}, v{a1}
            '''.format(t=tp, t1=tp + 1, a=a, a1=a + 1, e=EPS6)) + [pk('add', a, a, tp), I('v_cvt_pk_bf16_f32 v%d, v%d, v%d' % (dst + jj // 2, a, a + 1))])
        r += zip_groups(g)
    return r


vPK, vVV, aKV = vCx, vY + 24, vX + 32
BC1 = 'op_sel_hi:[1,0]'
ea = [pk('add', vCx, vCx, vCx + 2), pk('add', vCx + 4, vCx + 4, vCx + 6), pk('add', t0, vCx, vCx + 4)]
ea += L('v_mov_b32 v%d, v%d' % (t2, t1))
gv = []
for j in range(0, 16, 2):
    tp = u[0] + (j & 2)
    gv.append([pk('mul', tp, vRr + 16 + j, t2, mod=BC1), pk('fma', aV + j, aV + j, vRr + j, tp),
               I('v_cvt_pk_bf16_f32 v%d, v%d, v%d' % (vVV + j // 2, aV + j, aV + j + 1)),
               I('v_cndmask_b32 v%d, v%d, v%d, s[%d:%d]' % (vVV + j // 2, vVV + j // 2, vOnes, sMask28, sMask28 + 1))])
for j in range(0, 8, 2):
    ea += zip_groups(gv[j:j + 2])
ea += phi(aK, vPK, lambda j, tp: [pk('mul', tp, vRr + 16 + j, t0, mod=BC1), pk('fma', aK + j, aK + j, vRr + j, tp),
                                  pk('mul', tp, aK + j, u[4], mod=BC1)])
p.add(spread(ea, [qdma(2), qdma(3), qdma(4)]))
p.add([mfma(aKV, V(vPK, 4), V(vVV, 4), '0'), mfma(aKV, V(vPK + 4, 4), V(vVV + 4, 4))])
e('''
s_lshl_b32 s3, s{w}, 12
s_add_u32 s3, s3, {scr}
v_add_u32 v{t0}, s3, v{l16}
s_add_u32 s3, s{wk}, {scr}
v_add_u32 v{t1}, s3, v{l16}
buffer_load_dword v{p}, off, {dbg}, 0 sc1
v_lshlrev_b32 v{t5}, 2, v{u3}
v_add_u32 v{t5}, {cx}, v{t5}
s_lshl_b32 s3, s{w}, 7
v_add_u32 v{t4}, s3, v{t5}
'''.format(w=sW, wk=sWK, scr=SCR * PG, t0=t0, t1=t1, l16=vL16, p=vP, dbg=S4(sDBG), t4=t4, t5=t5, u3=u[5], cx=KVS * PG + 2048))
for q in range(4):
    e('ds_write_b128 v%d, %s offset:%d' % (t0, V(aKV + 4 * q, 4), q * 1024))
e('@waitlg0')
e('s_barrier')
for j in range(4):
    e('ds_read_b128 %s, v%d offset:%d' % (V(vX + 4 * j, 4), t1, j * PG))
for (a, b) in ((0, 4), (2, 6), (8, 12), (10, 14), (0, 8), (2, 10)):
    p.add([pk('add', vX + a, vX + a, vX + b)])
e('v_cvt_pk_bf16_f32 v%d, v%d, v%d' % (vX, vX, vX + 1))
e('v_cvt_pk_bf16_f32 v%d, v%d, v%d' % (vX + 1, vX + 2, vX + 3))
e('buffer_store_dwordx2 %s, v%d, %s, s%d offen sc1' % (V(vX, 2), vL8, S4(sWS), sOff2), tag='kvp')
stamp('kv stored')
p.add(qdma(5) + qdma(6) + sweep())

aQ, vCQ = vX + 16, vY + 24
ws = WStream(look=5, wper=2)
for i in range(7):
    pre = None
    if i == 0:
        pre = L('@waitvm q0 q1 q2 q3 q4\ns_barrier')
    if i == 5:
        pre = L('@waitvm q5 q6\ns_barrier')
    glast = ws.step(vAdQw, i * PG, vAdQw, i * PG + 256, lambda a: mfma_ones(aCK, a, i == 0), pre)
    for ks in range(4):
        k = 4 * i + ks
        off = i * PG + ks * 1024
        ws.step(vAdQ, off, vAdQ, off + 256, lambda a: mfma(aQ, a, V(vF + 4 * k, 4), '0' if k == 0 else None))
ws.fill(OPT.get('kvs', 17), L('@waitvm kvp') + poll_check(16, '0', sDBG) + signal(sPoll))
for n in range(1, 4):
    ws.fill(2 + n, I('v_mov_b32 v%d, 0' % (vCQ + n)))
ws.fill(glast + 2, L('v_accvgpr_read_b32 v{a}, a{k}\nds_write_b32 v{ad}, v{a}'.format(a=t0, k=aCK, ad=t4)))
xch = L('@waitlg0\ns_barrier')
for n in range(4):
    xch.append(I('ds_read_b32 v%d, v%d offset:%d' % (vY + 28 + n, t5, 128 * n)))
ws.fill(glast + 3, xch)
p.add(ws.build())
stamp('A2 mfma')
e('''
v_add_f32 v{a}, v{y0}, v{y1}
v_add_f32 v{b}, v{y2}, v{y3}
v_add_f32 v{a}, v{a}, v{b}
'''.format(a=t0, b=t1, y0=vY + 28, y1=vY + 29, y2=vY + 30, y3=vY + 31))
p.add(hilo(t0, vCQ, t1))
p.add([mfma(aQ, V(vCQ, 4), V(vMA, 4))])
for n in range(8):
    e('v_add_u32 v%d, %d, v%d' % (vGUo + n, (n & 3) * 57344 + (n >> 2) * 128, vOffGU))
for i in range(7):
    e('s_mul_i32 s%d, s%d, 229376' % (sGUt[i], sCh + i))
p.add(poll_issue(sPoll))
vPQ = vY
p.add(phi(aQ, vPQ, lambda j, tp: [pk('mul', tp, aQ + j, vRL, mod=BC1), pk('mul', aQ + j, aQ + j, vR, mod=BC1)]))
e('v_cndmask_b32 v%d, v%d, 0, s[%d:%d]' % (vPQ + 6, vPQ + 6, sMaskHi, sMaskHi + 1))
e('v_cndmask_b32 v%d, v%d, 0, s[%d:%d]' % (vPQ + 7, vPQ + 7, sMaskHi, sMaskHi + 1))
e("""
s_lshl_b32 s3, s{m}, 15
s_lshl_b32 s4, s{w}, 9
s_add_u32 s3, s3, s4
s_add_u32 s{o2}, s3, {base}
s_lshl_b32 s5, s{gl}, 13
s_add_u32 s{o}, s{o2}, s5
v_mov_b32 v{e0}, 0x3f80
v_mov_b32 v{e1}, 0x3f800000
s_add_u32 s4, s4, {kvs}
v_add_u32 v{t0}, s4, v{l8}
v_add_u32 v{t1}, {kvs}, v{l8}
s_lshl2_add_u32 s3, s{g}, s{w}
s_lshl4_add_u32 s3, s3, s{m}
s_lshl_b32 s3, s3, 11
s_add_u32 s{st}, s3, {ob}
s_lshl1_add_u32 s3, s{w}, s{half}
s_lshl_b32 s3, s3, 7
s_add_u32 s{sig}, s3, s{cnt}
""".format(m=sM, w=sW, o=sOff, o2=sOff2, base=WS_KVP, gl=sGl, e0=u[0], e1=u[1], kvs=KVS * PG, t0=t0, t1=t1, l8=vL8,
           g=sG, st=sSt, ob=WS_O, half=sHalf, sig=sSig, cnt=sCnt))
for j in range(4):
    e('v_mov_b32 v%d, 0' % (vX + 32 + j))
stamp('q done')
p.add(poll_check(16, sPoll))
stamp('kv flag')

W1PG = {}
W2PG = {}


def wodma(n):
    c, uu = sCh + (n >> 1), n & 1
    r = L("""
    s_lshl_b32 s{t}, s{c}, 13
    s_add_u32 s{t}, s{t}, s{wk}
    s_add_u32 m0, s{t}, {lo}
    s_mul_i32 s{o}, s{c}, 57344
    """.format(t=sT[3], c=c, wk=sWK, lo=WOP * PG + uu * PG, o=sOff))
    if uu:
        r += L('s_add_u32 s%d, s%d, 28672' % (sOff, sOff))
    return r + dma(vOffWO, sWO, 's%d' % sOff, None, 'wo')


def xrdma(uu):
    return L('s_lshl1_add_u32 s{t}, s{wk}, 0\ns_add_u32 m0, s{t}, {lo}\ns_movk_i32 s{o}, {so}'.format(
        t=sT[3], wk=sWK, lo=XRP * PG + uu * 1024, o=sOff, so=uu * 14336)) + dma(vOffXR, sX, 's%d' % sOff, None, 'xr')


def gudma(half, k, page):
    (W2PG if half else W1PG)[k] = page
    return dma(vGUo + (k & 3) + 4 * half, sGU, 's%d' % sGUt[k >> 2], page * PG, 'gu%d_%d' % (half, k))


for gg in range(16):
    if gg and gg % 2 == 0:
        e('s_add_u32 s5, s5, 4096')
        e('s_and_b32 s5, s5, 0x7fff')
        e('s_add_u32 s%d, s%d, s5' % (sOff, sOff2))
    e('buffer_load_dwordx2 %s, v%d, %s, s%d offen%s sc1' % (V(vX + 2 * gg, 2), vL8, S4(sWS), sOff, ' offset:2048' if gg & 1 else ''))
NA = OPT.get('na', 6)
p.add(xrdma(0) + xrdma(1))
for n in range(NA):
    p.add(wodma(n))
for gg in range(16):
    for d in range(2):
        e('v_dot2c_f32_bf16 v%d, v%d, v%d' % (vX + 32 + 2 * d, vX + 2 * gg + d, u[0]))
        e('v_dot2c_f32_bf16 v%d, v%d, v%d' % (vX + 33 + 2 * d, vX + 2 * gg + d, u[1]))
stamp('kv loaded')
e('v_cvt_pk_bf16_f32 v%d, v%d, v%d' % (vX, vX + 32, vX + 33))
e('v_cvt_pk_bf16_f32 v%d, v%d, v%d' % (vX + 1, vX + 34, vX + 35))
e('ds_write_b64 v%d, %s' % (t0, V(vX, 2)))
e('@waitlg0')
e('s_barrier')
vKVF = vY + 8
for q in range(4):
    e('ds_read_b64 %s, v%d offset:%d' % (V(vKVF + 2 * q, 2), t1, q * 512))
aO = vX + 16
p.add([mfma(aO, V(vKVF, 4), V(vPQ, 4), '0'), mfma(aO, V(vKVF + 4, 4), V(vPQ + 4, 4))])
e('''
v_mov_b32 v{a}, v{d}
v_mov_b32 v{b}, v{d}
v_permlane32_swap_b32 v{a}, v{b}
v_add_f32 v{b}, 0x{eps:x}, v{b}
v_rcp_f32 v{r}, v{b}
v_cndmask_b32 v{r2}, v{r}, 0, s[{mh}:{mh1}]
'''.format(a=t2, b=t3, d=aO + 12, eps=EPS6, r=u[0], r2=u[2], mh=sMaskHi, mh1=sMaskHi + 1))
for hf_ in range(2):
    for j in range(8 * hf_, 8 * hf_ + 8, 2):
        p.add([pk('mul', aO + j, aO + j, u[2] if j >= 12 else u[0], mod=BC1)])
    for j in range(4 * hf_, 4 * hf_ + 4):
        e('v_cvt_pk_bf16_f32 v%d, v%d, v%d' % (vX + j, aO + 2 * j, aO + 2 * j + 1))
    e('buffer_store_dwordx4 %s, v%d, %s, s%d offen%s sc1' % (V(vX + 4 * hf_, 4), vL16, S4(sWS), sSt, ' offset:1024' if hf_ else ''))
e('s_cmp_ge_u32 s%d, 7' % sCs)
e('s_cbranch_scc1 L_idle')
e('''
s_lshl1_add_u32 s3, s{tt}, s{kh}
s_lshl_b32 s3, s3, 7
s_add_u32 s{pl}, s3, s{cnt}
s_lshl2_add_u32 s3, s{g}, s{tt}
s_lshl1_add_u32 s4, s3, s{kh}
s_lshl_b32 s4, s4, 14
s_add_u32 s{o2}, s4, {ob}
s_lshl1_add_u32 s4, s{cs}, s{kh}
s_lshl4_add_u32 s3, s3, s4
s_lshl_b32 s4, s3, 11
s_add_u32 s{st}, s4, {hb}
s_lshl_b32 s4, s3, 8
s_add_u32 s{st2}, s4, {sb}
s_lshl_b32 s3, s{w}, 11
s_add_u32 s3, s3, {xr}
v_and_b32 v{a}, 31, v0
v_lshrrev_b32 v{b}, 5, v0
v_lshlrev_b32 v{b}, 3, v{b}
v_lshl_add_u32 v{b}, v{a}, 6, v{b}
v_add_u32 v{b}, s3, v{b}
v_lshlrev_b32 v{l8}, 3, v{a}
s_lshl_b32 s3, s{w}, 12
s_add_u32 s3, s3, {scr}
v_add_u32 v{t0}, s3, v{l16}
s_xor_b32 s4, s{w}, 2
s_lshl_b32 s4, s4, 12
s_add_u32 s4, s4, {scr}
v_add_u32 v{t1}, s4, v{l16}
'''.format(tt=sTT, kh=sKh, pl=sPoll, cnt=sCnt, g=sG, o2=sOff2, ob=WS_O, cs=sCs, st=sT[8], hb=WS_H, st2=sT[9], sb=WS_ST,
           w=sW, xr=XRP * PG, a=t2, b=t3, l8=vL8, scr=SCR * PG, t0=t0, t1=t1, l16=vL16))
e('@waitvm0')
p.add(signal(sSig))
stamp('o stored')
if STOP <= 1:
    e('s_branch L_fin')

free = list(range(28, 40)) + list(range(14, 21))
NB = OPT.get('nb', 8)
for n in range(NA, 14):
    p.add(wodma(n))
for k in range(NB):
    p.add(gudma(0, k, free[k]))
p.add(poll_issue(sPoll))
for bq in range(4):
    e('ds_read_b64 %s, v%d offset:%d' % (V(vY + 2 * bq, 2), t3, 16 * bq))
for j in range(8):
    e('v_lshlrev_b32 v%d, 16, v%d' % (vX + 2 * j, vY + j))
    e('v_and_b32 v%d, 0xffff0000, v%d' % (vX + 1 + 2 * j, vY + j))
e('s_lshl_b32 s3, s%d, 7' % sTT)
e('s_add_u32 s3, s3, s%d' % sCnt)
e('s_add_u32 s%d, s3, %d' % (sSig, C_H * 128))
e('v_mov_b32 v%d, 0' % vS)
e('v_mov_b32 v%d, 0' % vQ2)
p.add(poll_check(8, sPoll))
stamp('o flag')


def oload(j):
    r = []
    if j and j % 4 == 0:
        r.append(I('s_add_u32 s%d, s%d, 4096' % (sOff2, sOff2)))
    r.append(I('buffer_load_dwordx4 %s, v%d, %s, s%d offen%s sc1' % (A(aF + 4 * j, 4), vL16, S4(sWS), sOff2, ' offset:%d' % (1024 * (j % 4)) if j % 4 else '')))
    return r


for j in range(8):
    p.add(oload(j))
e('s_barrier')
ws = WStream()
for j in range(16):
    hh, s = j >> 1, j & 1
    for ft in range(2):
        row0 = 28 * hh + 16 * s
        a1_ = (vAdWOp if s == 1 else vAdWO) + ft
        ws.step(vAdWO + ft, WOP * PG + row0 * 128, a1_, WOP * PG + (row0 + 8) * 128,
                lambda a: mfma(vX + 16 * ft, a, A(aF + 4 * j, 4), '0' if (j == 0 and ft == 1) else None))
for j in range(8, 16):
    ws.fill(j - 8, oload(j))
for n, k in enumerate(range(NB, 19)):
    ws.fill(9 + 2 * n, gudma(0, k, free[k]))
p.add(ws.build())
stamp('_bm')
for q in range(4):
    e('ds_write_b128 v%d, %s offset:%d' % (t0, V(vX + 16 + 4 * q, 4), q * 1024))
e('@waitlg0')
e('s_barrier')
for q in range(4):
    e('ds_read_b128 %s, v%d offset:%d' % (V(vX + 16 + 4 * q, 4), t1, q * 1024))
for hf_ in range(2):
    for j in range(8 * hf_, 8 * hf_ + 8, 2):
        p.add([pk('add', vX + j, vX + j, vX + 16 + j)])
    for j in range(4 * hf_, 4 * hf_ + 4):
        e('v_cvt_pk_bf16_f32 v%d, v%d, v%d' % (vY + j, vX + 2 * j, vX + 2 * j + 1))
    e('buffer_store_dwordx4 %s, v%d, %s, s%d offen%s sc1' % (V(vY + 4 * hf_, 4), vL16, S4(sWS), sT[8], ' offset:1024' if hf_ else ''))
for j in range(8):
    e('v_dot2c_f32_bf16 v%d, v%d, v%d' % (vS, vY + j, vOnes))
    e('v_dot2c_f32_bf16 v%d, v%d, v%d' % (vQ2, vY + j, vY + j))
p.add(zip_groups([halves_sum(vS, t2), halves_sum(vQ2, t3)]))
e('buffer_store_dwordx2 %s, v%d, %s, s%d offen sc1' % (V(vS, 2), vL8, S4(sWS), sT[9]))
for j in range(8):
    e('v_accvgpr_write_b32 a%d, v%d' % (aH + j, vY + j))
e('''
v_bfe_u32 v{r}, v0, 2, 2
v_bfe_u32 v{iu}, v0, 4, 1
v_lshrrev_b32 v{hf}, 5, v0
v_lshl_add_u32 v{a}, v{hf}, 2, v{r}
v_lshlrev_b32 v{a}, 7, v{a}
v_lshl_add_u32 v{a}, v{iu}, 11, v{a}
v_and_b32 v{b}, 1, v0
v_lshl_add_u32 v{a}, v{b}, 3, v{a}
v_lshrrev_b32 v{b}, 1, v{r}
v_lshl_add_u32 v{b}, v{iu}, 1, v{b}
v_lshlrev_b32 v{b}, 1, v{b}
v_bfe_u32 v{c}, v0, 1, 1
v_xor_b32 v{b}, v{b}, v{c}
'''.format(r=u[0], iu=u[1], hf=u[2], a=t2, b=t3, c=t4))
for t in range(4):
    e('v_xor_b32 v%d, %d, v%d' % (t4, 2 * t, t3))
    e('v_lshl_add_u32 v%d, v%d, 4, v%d' % (vAdC + t, t4, t2))
sHb, sHo, sStL, sHHst, sCSp = sT[5], sT[6], sT[7], sT[10], sT[4]
e('''
s_mul_i32 s3, s{kh}, 26624
v_subrev_u32 v{d0}, s3, v{w0}
v_subrev_u32 v{d1}, s3, v{w1}
s_movk_i32 s3, 1792
v_mad_u32_u24 v{a}, v{hf}, s3, v{l8}
v_lshlrev_b32 v{l8}, 1, v{l8}
s_lshl2_add_u32 s3, s{g}, s{w}
s_lshl_b32 s4, s3, 12
s_add_u32 s{stl}, s4, {sb}
s_lshl_b32 s4, s3, 15
s_add_u32 s{hb}, s4, {hbase}
s_mul_i32 s3, s3, 14
s_add_u32 s3, s3, s{am}
s_lshl_b32 s3, s3, 13
s_add_u32 s{hst}, s3, {hh}
s_lshl_b32 s3, s{w}, 7
s_add_u32 s3, s3, s{cnt}
s_add_u32 s{pl}, s3, {ch}
s_lshl_b32 s3, s{am}, 13
s_add_u32 s{csp}, s3, {cc}
'''.format(kh=sKh, d0=vAdD, d1=vAdD + 1, w0=vAdWO, w1=vAdWO + 1, a=t4, hf=u[2], l8=vL8, g=sG, w=sW, stl=sStL, sb=WS_ST,
           hb=sHb, hbase=WS_H, am=sA, hst=sHHst, hh=WS_HH, cnt=sCnt, pl=sPoll, ch=C_H * 128, csp=sCSp, cc=C_CS * 128))
e('@waitvm0')
p.add(signal(sSig))
stamp('h stored')
if STOP <= 2:
    e('s_branch L_fin')

nxt = [(0, k) for k in range(19, 28)] + [(1, k) for k in range(5)]
for n, (hf_, k) in enumerate(nxt):
    p.add(gudma(hf_, k, n))
NC = OPT.get('nc', 7)
e('s_barrier')
for n in range(NC):
    p.add(gudma(1, 5 + n, 21 + n))
p.add(poll_issue(sPoll))
for n in range(8):
    e('v_add_u32 v%d, %d, v%d' % (vWDo + n, n * 14336, vOffWD))
e('v_add_u32 v%d, 4096, v%d' % (vL16b, vL16))
e('''
s_lshl2_add_u32 s3, s{g}, s{tt}
s_lshl1_add_u32 s3, s3, s{kh}
s_mul_i32 s3, s3, 57344
s_add_u32 s4, s3, {base}
s_lshl1_add_u32 s3, s{w}, s{half}
s_lshl_b32 s3, s3, 9
s_add_u32 s3, s3, s{cnt}
s_add_u32 s{sig}, s3, {chh}
s_lshl1_add_u32 s3, s{tt}, s{kh}
s_lshl_b32 s3, s3, 9
s_add_u32 s3, s3, s{cnt}
s_add_u32 s{st}, s3, {chh}
'''.format(g=sG, tt=sTT, kh=sKh, base=WS_HH, w=sW, half=sHalf, cnt=sCnt, sig=sSig, chh=C_HH * 128, st=sSt))
for i in range(7):
    e('s_mul_i32 s%d, s%d, 114688' % (sWDt[i], sCh + i))
    e('s_lshl_b32 s3, s%d, 13' % (sCh + i))
    e('s_add_u32 s%d, s3, s4' % sHHt[i])
e('v_accvgpr_write_b32 a%d, 0' % (aCS + 16))
e('v_accvgpr_write_b32 a%d, 0' % (aCS + 17))


def hload(k):
    r = []
    if k % 4 == 0:
        r += L('s_lshl_b32 s%d, s%d, 12\ns_add_u32 s%d, s%d, s%d' % (sHo, sCh + k // 4, sHo, sHo, sHb))
    r.append(I('buffer_load_dwordx4 %s, v%d, %s, s%d offen%s sc1' % (A(aF + 4 * k, 4), vL16, S4(sWS), sHo, ' offset:%d' % (1024 * (k % 4)) if k % 4 else '')))
    return r


h0 = hload(0)
p.add(h0[:-1])
p.add(poll_check(14, sPoll))
stamp('h flag')
HL = OPT.get('hl', 8)
p.add(h0[-1:])
for k in range(1, HL):
    p.add(hload(k))


class Win:
    def __init__(self, regs):
        self.cur = {r: 0 for r in regs}

    def fix(self, reg, off):
        base = (off // 61440) * 61440
        pre = []
        if self.cur[reg] != base:
            d = base - self.cur[reg]
            pre.append(I('v_add_u32 v%d, %d, v%d' % (reg, d, reg)) if d > 0 else I('v_subrev_u32 v%d, %d, v%d' % (reg, -d, reg)))
            self.cur[reg] = base
        return pre, off - base


winC = Win([vAdC + t for t in range(4)])
winD = Win([vAdD, vAdD + 1])
cA, cS = vCc, vCc + 2
acc_of = {0: vX, 1: vX + 16, 2: vY, 3: vY + 16, 4: 200, 5: 216, 6: vX, 7: vX + 16}


def hhstore(tile):
    d = u[8] + (tile & 1) * 4
    return [I('buffer_store_dwordx4 %s, v%d, %s, s%d offen%s sc1' % (V(d, 4), vL16b if tile >= 4 else vL16, S4(sWS), sHHst,
                                                                     ' offset:%d' % (1024 * (tile & 3)) if tile & 3 else ''), tag='hh%d' % tile)]


def eslots(tiles):
    slots = {}

    def put(sl, x):
        slots.setdefault(sl, []).append(x)
    n = 0
    for tile in tiles:
        acc = acc_of[tile]
        for el in range(8):
            tp = u[n % 6]
            put(2 * n, I('v_mul_f32 v%d, v%d, v%d' % (tp, cA, acc + el)))
            put(2 * n + 1, I('v_exp_f32 v%d, v%d' % (tp, tp)))
            put(2 * n + 2, I('v_fma_f32 v%d, v%d, v%d, v%d' % (tp, tp, cS, cS)))
            put(2 * n + 4, I('v_rcp_f32 v%d, v%d' % (tp, tp)))
            put(2 * n + 5, I('v_mul_f32 v%d, v%d, v%d' % (tp, tp, acc + 8 + el)))
            if el & 1:
                put(2 * n + 7, I('v_cvt_pk_bf16_f32 v%d, v%d, v%d' % (u[8] + (tile & 1) * 4 + el // 2, u[(n - 1) % 6], tp)))
            if el == 7:
                put(2 * n + 8, hhstore(tile))
            n += 1
    out = []
    for k in range(max(slots) + 1):
        sl = slots.get(k, [])
        sl.sort(key=lambda x: 0 if (not isinstance(x, list) and x.op in ('v_exp_f32', 'v_rcp_f32')) else 1)
        out.append(sl)
    return out


def efast(tile):
    acc = acc_of[tile]
    g = []
    for j in range(0, 8, 2):
        tp = u[0] + j
        g.append([pk('mul', tp, acc + j, cA, mod=BC1)] + L('v_exp_f32 v{t}, v{t}\nv_exp_f32 v{t1}, v{t1}'.format(t=tp, t1=tp + 1)) +
                 [pk('fma', tp, tp, cS, cS, mod='op_sel_hi:[1,0,0]')] + L('v_rcp_f32 v{t}, v{t}\nv_rcp_f32 v{t1}, v{t1}'.format(t=tp, t1=tp + 1)) +
                 [pk('mul', tp, tp, acc + 8 + j), I('v_cvt_pk_bf16_f32 v%d, v%d, v%d' % (u[8] + (tile & 1) * 4 + j // 2, tp, tp + 1))])
    return zip_groups(g)


def hhsig(stage):
    return L('@waitvm hh%d hh%d' % (2 * stage, 2 * stage + 1)) + signal(sSig, stage * 128)


D_ORDER = [(j, t) for t in range(8) for j in range(7)]
WDPG = {}
wd_next = [0]


def wddma(page):
    n = wd_next[0]
    wd_next[0] += 1
    j, t = D_ORDER[n]
    WDPG[n] = page
    return dma(vWDo + t, sWD, 's%d' % sWDt[j], page * PG, 'wd%d' % n)


def hhreg(n):
    return A(aR + 4 * n, 4) if n < 21 else (V(vHH + 4 * (n - 21), 4) if n < 28 else A(aF + 4 * (n - 28), 4))


def hhpoll(stage):
    return L('s_add_u32 s%d, s%d, %d' % (sPoll, sSt, stage * 128)) + poll_issue(sPoll)


def hhload(n):
    j, t = D_ORDER[n]
    return [I('buffer_load_dwordx4 %s, v%d, %s, s%d offen%s sc1' % (hhreg(n), vL16b if t >= 4 else vL16, S4(sWS), sHHt[j],
                                                                     ' offset:%d' % (1024 * (t & 3)) if t & 3 else ''))]


ws = WStream()
BSTEP = 4
PEND = []
freed = [(0, pg) for pg in range(21 + NC, 28)]
carry = []
XG = OPT.get('xg', 2)
for ps in range(4):
    tl = (2 * ps, 2 * ps + 1)
    if ps == 2:
        todo = list(range(5 + NC, 28))
        dslot = 2 * (28 - HL) + 2
        for gfree, pg in freed:
            dslot = max(dslot + 2, gfree + 1)
            ws.fill(dslot, gudma(1, todo.pop(0), pg) if todo else wddma(pg))
        DSLOT1 = dslot
    for k in range(28):
        for t in tl:
            pre = []
            if ps == 0 and t == 0 and k == 0:
                pre += L('@waitvm ' + ' '.join('gu0_%d' % j for j in range(28)) + '\ns_barrier')
            if ps == 2 and t == tl[0] and k in (0, 12, 20):
                hi = {0: 12, 12: 20, 20: 28}[k]
                pre += L('@waitvm ' + ' '.join('gu1_%d' % j for j in range(k, hi)) + '\ns_barrier')
            pr, off = winC.fix(vAdC + (t & 3), (W1PG if ps < 2 else W2PG)[k] * PG)
            g_ = ws.step(vAdC + (t & 3), off, vAdC + (t & 3), off + 1024,
                         lambda a: mfma(acc_of[t], a, A(aF + 4 * k, 4), '0' if k == 0 else None), pre + pr)
        if ps == 0 and k + HL < 28:
            ws.fill(2 * k, hload(k + HL))
        if ps & 1 and k % BSTEP == BSTEP - 1:
            ws.fill(g_, L('s_barrier'))
            (freed if ps == 1 else carry).extend((g_, (W1PG if ps == 1 else W2PG)[kk]) for kk in range(k - BSTEP + 1, k + 1))
        if ps == 1 and k == XG - 1:
            for t in (0, 1):
                X0END = ws.extra(mfma(acc_of[t], A(aCS + 2 * t, 4), V(vMF, 4)))
    if ps:
        for t in tl:
            g_ = ws.extra(mfma(acc_of[t], A(aCS + 2 * t, 4), V(vMF, 4)))
    PEND.append(g_)
P1END, P2END, P3END, P4END = PEND
for i in range(7):
    ws.fill(1 + 2 * i, [I('buffer_load_dwordx2 %s, v%d, %s, s%d offen offset:%d sc1' % (V(vSt + 2 * i, 2), t4, S4(sWS), sStL, 256 * i))])
g1 = X0END - 18
ws.fill(g1 - 16, poll_issue(sCSp))
cs = poll_check(4, sCSp) + L('s_lshl_b32 s3, s%d, 11\ns_add_u32 s3, s3, %d' % (sA, WS_CS))
for n in range(4):
    cs.append(I('buffer_load_dwordx4 %s, v%d, %s, s3 offen offset:%d sc1' % (A(aCS + 4 * n, 4), vL8, S4(sWS), 512 * n)))
ws.fill(g1, cs)
st = []
for (a, b) in ((0, 2), (4, 6), (8, 10), (0, 4), (8, 12), (0, 8)):
    st += L('v_add_f32 v{a}, v{a}, v{b}\nv_add_f32 v{a1}, v{a1}, v{b1}'.format(a=vSt + a, b=vSt + b, a1=vSt + a + 1, b1=vSt + b + 1))
st += halves_sum(vSt, t2) + halves_sum(vSt + 1, t2) + ln_consts(vSt, vSt + 1, vMean, cS, vR)
st += L('v_mul_f32 v%d, 0x%x, v%d' % (cA, NEGL, vR)) + mean_frag(vMean, vMF)
for n, x in enumerate(st):
    ws.fill(30 + n // 2, x)
assert 30 + len(st) // 2 < X0END - 2
SIGD = OPT.get('sigd', 20)
sig_at = []
for stg, e0 in enumerate((X0END + 1, P2END + 1, P3END + 1)):
    es = eslots((2 * stg, 2 * stg + 1))
    for n, sl in enumerate(es):
        for x in sl:
            ws.fill(e0 + n, x)
    if stg == 0:
        assert e0 + 34 <= P2END + 1, 'temporaries of consecutive epilogues overlap'
    sig_at.append(e0 + len(es) - 1 + SIGD)
for stg in range(2):
    ws.fill(sig_at[stg], hhsig(stg))
ws.fill(min(sig_at[2], P4END), hhsig(2))
PD = OPT.get('pd', 22)
CD = OPT.get('cd', 14)
busy = set()
for stg in range(2):
    ws.fill(sig_at[stg] + PD, hhpoll(stg))
    hchk = sig_at[stg] + PD + CD
    ws.fill(hchk, poll_check(7, sPoll))
    g_ = hchk - 1
    for n in range(14 * stg, 14 * stg + 14):
        g_ += 2
        if g_ <= P4END:
            ws.fill(g_, hhload(n))
            busy.add(g_)
            HHN = n + 1
    if stg == 0:
        H0 = hchk
    else:
        H1 = hchk
g_ = 0
while carry:
    g_ = max(g_ + 2, carry[0][0] + 1)
    while g_ in busy or g_ - 1 in busy or g_ + 1 in busy:
        g_ += 1
    if g_ > P4END:
        break
    ws.fill(g_, wddma(carry.pop(0)[1]))
D0 = vX + 32
dinit = []
for j in range(8):
    dinit += L('v_accvgpr_read_b32 v{t}, a{h}\nv_lshlrev_b32 v{a}, 16, v{t}\nv_and_b32 v{b}, 0xffff0000, v{t}'.format(
        t=t2, h=aH + j, a=D0 + 2 * j, b=D0 + 1 + 2 * j))
for n, x in enumerate(dinit):
    ws.fill(2 + n, x)
for nm in OPT['st'] or ():
    if nm.startswith('_g'):
        ws.fill(int(nm[2:]), mkstamp(nm))
for nm, at in (('_m0', 0), ('P1', P1END), ('P2', P2END), ('P3', P3END), ('_h0', H0 - 1), ('_h1', H0 + 1), ('_h2', H1 - 1), ('_h3', H1 + 1)):
    ws.fill(at, mkstamp(nm))
p.add(ws.build())
stamp('P4')
NE = min(OPT.get('ne', 8), len(carry))
p.add(spread(efast(6), [wddma(carry.pop(0)[1]) for _ in range(NE // 2)]) + hhstore(6))
stamp('_e6')
p.add(spread(efast(7), [wddma(carry.pop(0)[1]) for _ in range(NE - NE // 2)]) + hhstore(7))
stamp('_e7')
if STOP <= 3:
    p.add(hhsig(3))
    e('s_branch L_fin')

ws = WStream()
res0 = wd_next[0]
late = [wddma(pg) for _, pg in carry]
assert wd_next[0] == 40
refill = []
for n in range(16):
    refill.append(wddma(WDPG[n]))
wpts = {0: 14, 14: min(res0, 28), min(res0, 28): 40, 40: 48, 48: 56}
for n in range(56):
    for ft in range(2):
        pre = []
        if ft == 0 and n in wpts:
            pre += L('@waitvm ' + ' '.join('wd%d' % q for q in range(n, wpts[n])) + '\ns_barrier')
        pr, off = winD.fix(vAdD + ft, WDPG[n] * PG)
        ws.step(vAdD + ft, off, vAdD + ft, off + 1024,
                lambda a: mfma(D0 + 16 * ft, a, hhreg(n), '0' if (n == 0 and ft == 1) else None), pre + pr)
ws.fill(15, L('s_barrier'))
ws.fill(31, L('s_barrier'))
D3 = OPT.get('d3', 12)
seq = [(hhload(n), 0) for n in range(HHN, 28)] + [(x, 0) for x in late]
pos = -1.0
DSTEP = OPT.get('dstep', 1.4)
while seq and pos + DSTEP < D3:
    pos += DSTEP
    ws.fill(int(pos), seq.pop(0)[0])
s3_ = hhsig(3)
ws.fill(D3, s3_[:1] + hhpoll(2) + s3_[1:] + mkstamp('hh stored'))
pos = D3
seq += [(x, 16) for x in refill[:8]]
seq += [(poll_check(7, sPoll) + hhload(28), OPT.get('d2', 28))] + [(hhload(n), 0) for n in range(29, 38)]
seq += [(hhpoll(3), OPT.get('d4', 40))] + [(hhload(n), 0) for n in range(38, 42)]
seq += [(x, 32) for x in refill[8:]]
seq += [(poll_check(7, sPoll) + hhload(42), OPT.get('d5', 56))] + [(hhload(n), 0) for n in range(43, 56)]
for grp, earliest in seq:
    pos = max(pos + DSTEP, earliest)
    ws.fill(int(pos), grp)
DPOS = pos
fin = L('''
s_lshl_b32 s3, s{w}, 12
v_add_u32 v{t0}, s3, v{l16}
s_xor_b32 s4, s3, 8192
v_add_u32 v{t1}, s4, v{l16}
s_lshl2_add_u32 s3, s{g}, s{tt}
s_mul_i32 s3, s3, 28672
s_lshl1_add_u32 s4, s{cs}, s{kh}
s_lshl_b32 s4, s4, 6
s_add_u32 s{o}, s3, s4
v_and_b32 v{a}, 31, v0
v_mul_u32_u24 v{a}, 896, v{a}
v_lshrrev_b32 v{b}, 5, v0
v_lshl_add_u32 v{a}, v{b}, 4, v{a}
'''.format(w=sW, t0=t0, t1=t1, l16=vL16, g=sG, tt=sTT, cs=sCs, kh=sKh, o=sOff2, a=t2, b=t3))
ws.fill(96, fin)
for nm in OPT['st'] or ():
    if nm.startswith('_d'):
        ws.fill(int(nm[2:]), mkstamp(nm))
for nm, at in (('D0', 27), ('D1', 55), ('D2', 83)):
    ws.fill(at, mkstamp(nm))
assert all(WDPG[n] > 3 for n in range(50, 56)), [WDPG[n] for n in range(48, 56)]
ws.fill(103, L('s_barrier'))
p.add(ws.build())
stamp('D mfma')
for q in range(4):
    e('ds_write_b128 v%d, %s offset:%d' % (t0, V(D0 + 16 + 4 * q, 4), q * 1024))
e('@waitlg0')
e('s_barrier')
for q in range(4):
    e('ds_read_b128 %s, v%d offset:%d' % (V(vX + 4 * q, 4), t1, q * 1024))
for hf_ in range(2):
    for j in range(8 * hf_, 8 * hf_ + 8, 2):
        p.add([pk('add', D0 + j, D0 + j, vX + j)])
    for j in range(4 * hf_, 4 * hf_ + 4):
        e('v_cvt_pk_bf16_f32 v%d, v%d, v%d' % (vY + j, D0 + 2 * j, D0 + 2 * j + 1))
    bb = 4 * hf_
    e('v_permlane32_swap_b32 v%d, v%d' % (vY + bb, vY + bb + 2))
    e('v_permlane32_swap_b32 v%d, v%d' % (vY + bb + 1, vY + bb + 3))
    e('buffer_store_dwordx4 %s, v%d, %s, s%d offen%s%s' % (V(vY + bb, 4), t2, S4(sOUT), sOff2, ' offset:32' if hf_ else '', OPT.get('outm', '')))
e('s_branch L_fin')

main_ins = p.ins
p.ins = []
e('L_idle:')
e('''
s_lshl1_add_u32 s6, s{g}, s{half}
s_cmp_lt_u32 s6, 28
s_cselect_b32 s{gu2}, 1605632, 0
s_mul_i32 s3, s{th}, 802816
s_lshl_b32 s4, s6, 7
s_add_u32 s{o}, s3, s4
v_lshrrev_b32 v{a}, 3, v0
v_mul_u32_u24 v{a}, 3584, v{a}
v_and_b32 v{b}, 7, v0
v_lshl_add_u32 v{a}, v{b}, 4, v{a}
v_mov_b32 v{e0}, 0x3f80
v_mov_b32 v{e1}, 0x3f800000
'''.format(g=sG, half=sHalf, gu2=sGU + 2, th=sTh, o=sOff, a=t0, b=t1, e0=u[0], e1=u[1]))
for n in range(28):
    e('buffer_load_dwordx4 %s, v%d, %s, s%d offen' % (V(vF + 4 * n, 4), t0, S4(sGU), sOff))
    e('s_add_u32 s%d, s%d, 28672' % (sOff, sOff))
    if n == 7:
        e('s_waitcnt vmcnt(8)')
        p.add(signal(sSig))
        stamp('_i0')
        e('s_barrier')
        e('s_cmp_ge_u32 s6, 28')
        e('s_cbranch_scc1 L_idle2')
stamp('_i1')
for j in range(8):
    e('v_mov_b32 v%d, 0' % (vY + j))
for n in range(28):
    for d in range(4):
        e('v_dot2c_f32_bf16 v%d, v%d, v%d' % (vY + 2 * d, vF + 4 * n + d, u[0]))
        e('v_dot2c_f32_bf16 v%d, v%d, v%d' % (vY + 2 * d + 1, vF + 4 * n + d, u[1]))
stamp('_i2')
for j in range(8):
    e('v_mov_b32 v%d, v%d' % (vY + 8 + j, vY + j))
for j in range(8):
    e('v_permlane32_swap_b32 v%d, v%d' % (vY + 8 + j, vY + j))
for j in range(8):
    e('v_add_f32 v%d, v%d, v%d' % (vY + j, vY + j, vY + 8 + j))
for j in range(8):
    e('v_mov_b32 v%d, v%d' % (vY + 8 + j, vY + j))
for j in range(8):
    e('v_permlane16_swap_b32 v%d, v%d' % (vY + 8 + j, vY + j))
for j in range(8):
    e('v_add_f32 v%d, v%d, v%d' % (vY + j, vY + j, vY + 8 + j))
for j in range(8):
    e('v_add_f32_dpp v%d, v%d, v%d row_ror:8 row_mask:0xf bank_mask:0xf' % (vY + 8 + j, vY + j, vY + j))
e('''
s_lshl_b32 s3, s{w}, 8
v_lshl_add_u32 v{a}, v{b}, 5, s3
ds_write_b128 v{a}, {r0}
ds_write_b128 v{a}, {r1} offset:16
s_waitcnt lgkmcnt(0)
s_barrier
v_bfe_u32 v{a}, v0, 4, 1
v_lshlrev_b32 v{a}, 9, v{a}
v_and_b32 v{b}, 15, v0
v_lshl_add_u32 v{a}, v{b}, 2, v{a}
v_lshrrev_b32 v{b}, 5, v0
v_lshl_add_u32 v{a}, v{b}, 7, v{a}
ds_read_b32 v{y0}, v{a}
ds_read_b32 v{y1}, v{a} offset:256
ds_read_b32 v{y2}, v{a} offset:64
ds_read_b32 v{y3}, v{a} offset:320
v_mov_b32 v{x1}, 0
v_mov_b32 v{x3}, 0
s_lshl_b32 s3, s6, 10
s_add_u32 s3, s3, {base}
s_lshr_b32 s4, s6, 1
s_lshl_b32 s4, s4, 13
s_add_u32 s4, s4, {cc}
v_add_f32 v{y0}, v{y0}, v{y1}
v_add_f32 v{y2}, v{y2}, v{y3}
'''.format(w=sW, a=t0, b=t1, r0=V(vY + 8, 4), r1=V(vY + 12, 4), y0=vY, y1=vY + 1, y2=vY + 2, y3=vY + 3, x1=vX + 1, x3=vX + 3,
           base=WS_CS, cc=C_CS * 128))
p.add(hilo(vY, vX, t2) + hilo(vY + 2, vX + 2, t2))
stamp('_i3')
e('s_cmp_ge_u32 s%d, 2' % sW)
e('s_cbranch_scc1 L_idle2')
e('buffer_store_dwordx4 %s, v%d, %s, s3 offen sc1' % (V(vX, 4), vL16, S4(sWS)))
e('s_waitcnt vmcnt(0)')
p.add(signal(4))
e('L_idle2:')
stamp('_i4')
if OPT.get('idlepf', 1):
    e('''
    v_lshlrev_b32 v{a}, 7, v0
    s_lshl2_add_u32 s3, s{gl}, s{w}
    s_and_b32 s4, s2, 7
    s_mul_i32 s4, s4, 32
    s_add_u32 s3, s3, s4
    '''.format(a=t0, gl=sGl, w=sW))
    for n in range(13):
        for x in ['s_cmp_ge_u32 s3, 208', 's_cselect_b32 s4, 208, 0', 's_sub_u32 s3, s3, s4', 's_lshl_b32 s5, s3, 13',
                  'buffer_load_dword v%d, v%d, %s, s5 offen' % (vX + 8 + n, t0, S4(sWD)), 's_add_u32 s3, s3, 16']:
            e(x)
e('L_fin:')
if OPT.get('fixt'):
    e('s_waitcnt vmcnt(0) lgkmcnt(0)')
    e('L_fix:')
    for x in ['s_memrealtime s[96:97]', 's_waitcnt lgkmcnt(0)', 's_sub_u32 s96, s96, s98', 's_cmp_lt_u32 s96, %d' % OPT['fixt'], 's_cbranch_scc1 L_fix']:
        e(x, raw=True)
if DIAG:
    e('s_waitcnt vmcnt(0)')
    e('s_memtime s[76:77]' if OPT['cyc'] else 's_memrealtime s[76:77]')
    e('s_memtime s[74:75]')
    e('s_waitcnt lgkmcnt(0)')
    e('s_sub_u32 s74, s74, s100')
    e('v_mov_b32 v%d, s74' % (vX + 14))
    e('s_lshl_b32 s3, s2, 2')
    e('s_add_u32 s3, s3, s%d' % sW)
    e('s_lshl_b32 s3, s3, 6')
    e('s_add_u32 s3, s3, %d' % WS_TS)
    for n in range(12):
        e('v_mov_b32 v%d, s%d' % (vX + n, sTS + 2 * n))
    e('v_mov_b32 v%d, s76' % (vX + 12))
    e('s_getreg_b32 s4, hwreg(HW_REG_XCC_ID)')
    e('v_mov_b32 v%d, s4' % (vX + 13))
    e('s_mov_b64 exec, 1')
    for q in range(4):
        e('buffer_store_dwordx4 %s, off, %s, s3 offset:%d' % (V(vX + 4 * q, 4), S4(sWS), 16 * q))
e('s_waitcnt vmcnt(0) lgkmcnt(0)')
e('L_end:')
e('s_endpgm')
tail_ins = p.ins

p.ins = main_ins
p.finalize()
body = p.text()
stats = dict(p.stats)
kinds = {}
for i in p.out:
    kinds[i.kind] = kinds.get(i.kind, 0) + 1
p.ins = tail_ins
p.finalize()
body += '\n' + p.text()

hdr = open('sequential_preLN__linear_attn_block__glu_gated_glu__prompt.s.ref').read().split('\n')
head = [l for l in hdr if l.startswith(';') and '@launch' not in l and 'Override' not in l and 'grid=ceil' not in l]
out = '\n'.join(head) + '''
; @launch grid=(256,1,1) block=(256,1,1) lds=163840
.amdgcn_target "amdgcn-amd-amdhsa--gfx950"
.text
.globl {n}
.p2align 8
.type {n},@function
{n}:
{body}
.section .rodata,"a"
.p2align 6
.amdhsa_kernel {n}
  .amdhsa_next_free_vgpr 512
  .amdhsa_next_free_sgpr 102
  .amdhsa_accum_offset 256
  .amdhsa_group_segment_fixed_size 0
  .amdhsa_kernarg_size 80
  .amdhsa_user_sgpr_count 2
  .amdhsa_user_sgpr_kernarg_segment_ptr 1
  .amdhsa_system_sgpr_workgroup_id_x 1
  .amdhsa_float_denorm_mode_32 3
.end_amdhsa_kernel
'''.format(n=NAME, body=body)
open(sys.argv[1], 'w').write(out)
print(kinds, stats, 'res0', res0, 'H0', H0, H1, 'HHN', HHN, 'X0END', X0END, PEND, 'sig', sig_at, 'dslot', DSLOT1, 'dpos', DPOS, file=sys.stderr)
```

```python
import sys
from asmlib import Prog, I

NAME = 'sequential_preLN__linear_attn_block__glu_gated_glu__prompt_kernel'

OPT = dict(diag=0, stop=99, spin=200000, abl='', cyc=0, st=None)
for a in sys.argv[2:]:
    k, v = a.split('=')
    OPT[k] = eval(v)
DIAG = OPT['diag']
STOP = OPT['stop']

WS_CNT = 0
WS_KVP = 0x20000
WS_CS = 0xA0000
WS_O = 0x120000
WS_H = 0x320000
WS_ST = 0x520000
WS_HH = 0x560000
WS_TS = 0xC60000
WS_SIZE = 0xD00000
C_O, C_H, C_KV, C_HH, C_CS = 0, 8, 12, 16, 48

sX, sQKV, sWO, sGU, sWD, sOUT, sWS, sDBG = 24, 28, 32, 36, 40, 44, 48, 52
sOff, sOff2, sIter, sPoll = 56, 57, 58, 59
sG, sM, sW, sCs, sWK, sHalf, sA, sTh, sKh, sCnt = 60, 61, 62, 63, 64, 65, 66, 67, 68, 69
sCh = 70
sIdx = 77
sT = [3, 4, 5, 6, 7, 8, 9, 10, 11, 12, 13]
sMaskHi = 14
sMask28 = 16
sGl, sGood, sSig, sSt, sTT, sZero = 18, 19, 20, 21, 22, 23
sGUt = [28, 29, 30, 31, 52, 53, 54]
sWDt = [24, 25, 26, 27, 32, 33, 34]
sHHt = [0, 1, 16, 17, 19, 23, 55]
sTS = 78


def S4(b):
    return 's[%d:%d]' % (b, b + 3)


def V(b, n=1):
    return 'v%d' % b if n == 1 else 'v[%d:%d]' % (b, b + n - 1)


def A(b, n=1):
    return 'a%d' % b if n == 1 else 'a[%d:%d]' % (b, b + n - 1)


vL16, vOne, vP, vL8 = 1, 2, 3, 4
vOffX = 5
vAdX = 9
vAdC = 9
vOffKV, vAdK, vAdV, vOffQ, vAdQ = 13, 14, 15, 16, 17
vAdD = 14
vOffWO, vOffXR, vOffGU, vOffWD = 18, 19, 20, 21
vAdWO, vAdWOp = 22, 24
vT = 26
vP2 = 239
vY = 32
vX = 64
vF = 128
vGUo, vWDo, vL16b, vMF, vCc, vSt, vHH = 128, 136, 144, 148, 152, 156, 172
vU = 240
aW = 0
aH = 32
aF = 40
aCS = 152
aR = 172
t0, t1, t2, t3, t4, t5 = range(vT, vT + 6)
u = [vU + i for i in range(16)]

PG = 4096
LOG2E = 0x3fb8aa3b
NEGL = 0xbfb8aa3b
EPS6 = 0x358637bd
EPS5 = 0x3727c5ac
INV448 = 0x3b124925

p = Prog()
e = p.e
nstamp = [0]
nlab = [0]


def L(x):
    return [I(t.strip()) for t in x.strip().split('\n') if t.strip()]


def mkstamp(name):
    if not DIAG:
        return []
    early = ('o flag', 'x0 landed', 'x read', 'A1 mfma', 'kv stored', 'A2 mfma', 'q done', 'kv flag', 'kv loaded', 'o stored')
    if OPT['st'] is not None:
        if name != 'start' and name not in OPT['st']:
            return []
    elif name != 'start' and ((DIAG == 1) != (name in early) or name.startswith('_')):
        return []
    n = nstamp[0]
    assert n < 11
    nstamp[0] += 1
    return [I('%s s[%d:%d] ; @%s' % ('s_memtime' if OPT['cyc'] else 's_memrealtime', sTS + 2 * n, sTS + 2 * n + 1, name))]


def stamp(name):
    p.add(mkstamp(name))


def dma(voff, srd, so, m0, tag, pre=(), imm=0):
    r = []
    if m0 is not None:
        r.append(I('s_add_u32 m0, s%d, 0x%x' % (sWK, m0)))
    r += [I(t) for t in pre]
    r.append(I('buffer_load_dwordx4 v%d, %s, %s offen%s lds' % (voff, S4(srd), so, ' offset:%d' % imm if imm else ''), tag=tag))
    return r


def poll_issue(soff, atomic=True):
    if OPT.get('apoll', 1) and atomic:
        return L('v_mov_b32 v%d, 0\ns_mov_b64 exec, 1\nbuffer_atomic_umax v%d, off, %s, s%d sc0\ns_mov_b64 exec, -1' % (vP, vP, S4(sWS), soff))
    return [I('buffer_load_dword v%d, off, %s, s%d sc1' % (vP, S4(sWS), soff))]


def poll_check(expect, soff, srd=sWS):
    n = nlab[0]
    nlab[0] += 1
    t = sT[0]
    so = soff if isinstance(soff, str) else 's%d' % soff
    r = L('''
    v_readfirstlane_b32 s%d, v%d
    s_cmp_ge_u32 s%d, %d
    s_cbranch_scc1 L_ok%d
    s_mov_b32 s%d, %d
    ''' % (t, vP, t, expect, n, sIter, OPT['spin']))
    ld = lambda v: 'buffer_load_dword v%d, off, %s, %s sc1' % (v, S4(srd), so)
    chk = lambda v: ['v_readfirstlane_b32 s%d, v%d' % (t, v), 's_nop 0', 's_cmp_ge_u32 s%d, %d' % (t, expect), 's_cbranch_scc1 L_ok%d' % n]
    loop = ['s_sub_u32 s%d, s%d, 1' % (sIter, sIter), 's_cmp_lg_u32 s%d, 0' % sIter, 's_cbranch_scc1 L_spin%d' % n]
    pm = OPT.get('pm', 0)
    if OPT.get('apoll', 1) and srd == sWS:
        body = ['L_spin%d:' % n, 's_mov_b64 exec, 1', 'buffer_atomic_umax v%d, off, %s, %s sc0' % (vP, S4(srd), so), 's_mov_b64 exec, -1',
                's_waitcnt vmcnt(0)'] + chk(vP) + loop
    elif pm == 0:
        body = ['L_spin%d:' % n, ld(vP), 's_waitcnt vmcnt(0)'] + chk(vP) + loop
    elif pm < 0:
        body = ['L_spin%d:' % n, 's_sleep %d' % -pm, ld(vP), 's_waitcnt vmcnt(0)'] + chk(vP) + loop
    else:
        body = [ld(vP), 'L_spin%d:' % n, 's_sleep %d' % pm, ld(vP2), 's_waitcnt vmcnt(1)'] + chk(vP) + \
               ['s_sleep %d' % pm, ld(vP), 's_waitcnt vmcnt(1)'] + chk(vP2) + loop
    for x in body:
        r.append(I(x, raw=True))
    r.append(I('L_ok%d:' % n))
    return r


def signal(soff, imm=0):
    return L('''
    s_mov_b64 exec, 1
    buffer_atomic_add v%d, off, %s, s%d%s
    s_mov_b64 exec, -1
    ''' % (vOne, S4(sWS), soff, ' offset:%d' % imm if imm else ''))


def mfma(d, a, b, c=None):
    return I('v_mfma_f32_32x32x16_bf16 %s, %s, %s, %s' % (V(d, 16), a, b, V(d, 16) if c is None else c))


def colsum4(acc, q, first):
    return [I('v_mfma_f32_4x4x4_16b_bf16 %s, %s, %s, %s' % (V(acc + 4 * h, 4), V(vOnes, 2), A(q + 2 * h, 2), '0' if first else V(acc + 4 * h, 4))) for h in range(2)]


class WStream:
    def __init__(self, look=7, nbuf=8, wper=4):
        self.items = []
        self.look = look
        self.nbuf = nbuf
        self.wper = wper
        self.n = 0
        self.fills = {}

    def step(self, addr0, off0, addr1, off1, mk, pre=None, post=None):
        q = aW + 4 * (self.n % self.nbuf)
        self.n += 1
        rd = list(pre or [])
        rd.append(I('ds_read_b64_tr_b16 %s, v%d offset:%d' % (A(q, 2), addr0, off0)))
        rd.append(I('ds_read_b64_tr_b16 %s, v%d offset:%d' % (A(q + 2, 2), addr1, off1)))
        self.items.append((rd, mk(A(q, 4)), post(q) if post else []))
        return len(self.items) - 1

    def extra(self, m):
        self.items.append(([], m, []))
        return len(self.items) - 1

    def fill(self, idx, grp):
        g = grp if isinstance(grp, list) else [grp]
        ab = OPT['abl']
        if ab and not any(x.kind in ('label', 'sctl') or 'exec' in x.text for x in g):
            if 'v' in ab:
                g = [x for x in g if x.kind != 'valu']
            if 'd' in ab and any(x.kind == 'dma' for x in g):
                g = []
            if 'b' in ab:
                g = [x for x in g if x.kind != 'barrier']
        if g:
            self.fills.setdefault(idx, []).append(g)

    def build(self):
        out = []
        n = len(self.items)
        withrd = [i for i in range(n) if self.items[i][0]]
        nxt = 0
        used = 0
        while nxt < min(self.look, len(withrd)):
            out += self.items[withrd[nxt]][0]
            nxt += 1
        for i in range(n):
            rd, m, post = self.items[i]
            if rd:
                if used % self.wper == 0:
                    m.ahead = 2 * min(self.wper - 1, nxt - used - 1)
                used += 1
            out.append(m)
            gs = self.fills.pop(i, [])
            first = [g for g in gs if g[0].kind == 'barrier']
            rest = [g for g in gs if g[0].kind != 'barrier']
            for g in first:
                out += g
            mem = [g for g in rest if not all(x.kind == 'valu' for x in g)]
            if mem and mem[0][0].kind == 'salu' and mem[0][-1].kind == 'dma':
                out.append(mem[0][0])
                mem[0] = mem[0][1:]
            if rd and nxt < len(withrd):
                out += self.items[withrd[nxt]][0]
                nxt += 1
            for g in mem:
                out += g
            for g in rest:
                if all(x.kind == 'valu' for x in g):
                    out += g
            out += post
        assert not self.fills, list(self.fills)
        return out


def spread(main, fill):
    out = []
    n, m = len(main), len(fill)
    j = 0
    for i, x in enumerate(main):
        out.append(x)
        while j < m and (j + 1) * n <= (i + 1) * (m + 1):
            out.extend(fill[j])
            j += 1
    while j < m:
        out.extend(fill[j])
        j += 1
    return out


def zip_groups(groups):
    out = []
    n = max(len(g) for g in groups)
    for k in range(n):
        for g in groups:
            if k < len(g):
                out.append(g[k])
    return out


def pk(op, d, a, b, c=None, mod=''):
    f = lambda r: r if isinstance(r, str) else V(r, 2)
    return I('v_pk_%s_f32 %s, %s, %s%s %s' % (op, f(d), f(a), f(b), '' if c is None else ', ' + f(c), mod))


def halves_sum(x, t):
    return L('''
    v_mov_b32 v{t}, v{x}
    v_permlane32_swap_b32 v{t}, v{x}
    v_add_f32 v{x}, v{t}, v{x}
    '''.format(t=t, x=x))


def ln_consts(s, q, mean, std, r):
    return L('''
    v_mul_f32 v{a}, 0x{i:x}, v{s}
    v_mul_f32 v{b}, 0x{i:x}, v{q}
    v_fma_f32 v{b}, -v{a}, v{a}, v{b}
    v_max_f32 v{b}, 0, v{b}
    v_cvt_pk_bf16_f32 v{a}, v{a}, v{b}
    v_and_b32 v{b}, 0xffff0000, v{a}
    v_lshlrev_b32 v{a}, 16, v{a}
    v_add_f32 v{b}, 0x{e:x}, v{b}
    v_cvt_pk_bf16_f32 v{b}, v{b}, v{b}
    v_lshlrev_b32 v{b}, 16, v{b}
    v_sqrt_f32 v{b}, v{b}
    v_cvt_pk_bf16_f32 v{b}, v{b}, v{b}
    v_lshlrev_b32 v{b}, 16, v{b}
    v_rcp_f32 v{r}, v{b}
    '''.format(a=mean, b=std, s=s, q=q, r=r, i=INV448, e=EPS5))


def mean_frag(mean, d):
    return L('''
    v_cvt_pk_bf16_f32 v{d}, -v{m}, -v{m}
    v_mov_b32 v{d1}, 0
    v_mov_b32 v{d2}, 0
    v_mov_b32 v{d3}, 0
    v_cndmask_b32 v{d}, v{d}, 0, s[{h}:{h1}]
    '''.format(d=d, d1=d + 1, d2=d + 2, d3=d + 3, m=mean, h=sMaskHi, h1=sMaskHi + 1))


def hilo(c, d, t):
    return L('''
    v_cvt_pk_bf16_f32 v{t}, v{c}, v{c}
    v_lshlrev_b32 v{t}, 16, v{t}
    v_sub_f32 v{t}, v{c}, v{t}
    v_cvt_pk_bf16_f32 v{d}, v{c}, v{t}
    '''.format(c=c, d=d, t=t))


e('s_cmp_ge_u32 s2, 256')
e('s_cbranch_scc1 L_end')
if OPT.get('fixt'):
    e('s_memrealtime s[98:99]')
stamp('start')
if DIAG:
    e('s_memtime s[100:101]')
e('s_load_dwordx4 s[4:7], s[0:1], 0')
e('s_load_dwordx2 s[%d:%d], s[0:1], 16' % (sWO, sWO + 1))
e('s_load_dwordx8 s[8:15], s[0:1], 32')
e('s_load_dwordx4 s[20:23], s[0:1], 64')
XP0 = 12
e("""
v_lshrrev_b32 v{t0}, 6, v0
v_and_b32 v0, 63, v0
v_readfirstlane_b32 s{w}, v{t0}
s_lshr_b32 s{idx}, s2, 3
""".format(t0=t0, w=sW, idx=sIdx))
if OPT.get('cpf', 1):
    sCODE = 72
    e('s_getpc_b64 s[%d:%d]' % (sCODE, sCODE + 1))
    e('L_pc:')
    e("""
    s_mov_b32 s{c2}, L_end-L_pc
    s_mov_b32 s{c3}, 0x20000
    s_lshl2_add_u32 s3, s{idx}, s{w}
    s_lshl_b32 s3, s3, 9
    v_and_b32 v{t3}, 3, v0
    v_lshlrev_b32 v{t3}, 7, v{t3}
    buffer_load_dword v{d}, v{t3}, {code}, s3 offen
    """.format(c2=sCODE + 2, c3=sCODE + 3, idx=sIdx, w=sW, t3=t3, d=t5, code=S4(sCODE)))
e("""
s_bfe_u32 s3, s2, 0x20001
s_and_b32 s{gl}, s{idx}, 3
s_lshr_b32 s{cs}, s{idx}, 2
s_lshl2_add_u32 s{g}, s3, s{gl}
s_lshl1_add_u32 s{c0}, s{gl}, s{cs}
s_add_u32 s{c0}, s{c0}, s3
s_mul_i32 s3, s{c0}, 37
s_lshr_b32 s3, s3, 8
s_mul_i32 s3, s3, 7
s_sub_u32 s{c0}, s{c0}, s3
v_lshrrev_b32 v{u0}, 3, v0
v_and_b32 v{u1}, 7, v0
v_lshrrev_b32 v{u2}, 4, v0
s_lshl2_add_u32 s3, s{g}, s{w}
s_mul_i32 s3, s3, 28672
v_mul_u32_u24 v{t0}, 896, v{u0}
v_xor_b32 v{t1}, v{u1}, v{u2}
v_add_u32 v{t0}, s3, v{t0}
v_lshl_add_u32 v{x0}, v{t1}, 4, v{t0}
v_xor_b32 v{t1}, 4, v{t1}
v_lshl_add_u32 v{x1}, v{t1}, 4, v{t0}
v_add_u32 v{x2}, 12288, v{x0}
v_add_u32 v{x3}, 18432, v{x1}
v_add_u32 v{x1}, 6144, v{x1}
s_mul_i32 s{o2}, s{w}, {xs}
s_add_u32 s{o2}, s{o2}, {xb}
s_mov_b32 s{X2}, 1835008
s_mov_b32 s{X3}, 0x20000
""".format(t0=t0, t1=t1, w=sW, idx=sIdx, gl=sGl, cs=sCs, g=sG, c0=sCh, u0=u[0], u1=u[1], u2=u[2],
           x0=vOffX, x1=vOffX + 1, x2=vOffX + 2, x3=vOffX + 3, o2=sOff2, xs=7 * PG, xb=XP0 * PG, X2=sX + 2, X3=sX + 3))


def nextch(i):
    e('s_add_u32 s%d, s%d, 1' % (sCh + i, sCh + i - 1))
    e('s_cmp_ge_u32 s%d, 7' % (sCh + i))
    e('s_cselect_b32 s%d, 0, s%d' % (sCh + i, sCh + i))


def xdma(i):
    r = L('s_add_u32 m0, s%d, %d\ns_lshl_b32 s%d, s%d, 7' % (sOff2, i * PG, sOff, sCh + i))
    for q in range(4):
        r.append(I('buffer_load_dwordx4 v%d, %s, s%d offen%s lds' % (vOffX + q, S4(sX), sOff, ' offset:%d' % (q * 1024) if q else ''), tag='x%d' % i))
    return r


nextch(1)
stamp('_prek')
e('@waitlg0')
stamp('_karg')
e('s_mov_b32 s%d, s4' % sX)
e('s_mov_b32 s%d, s5' % (sX + 1))
p.add(xdma(0))
p.add(xdma(1))
stamp('_x01')
for i in range(2, 7):
    nextch(i)
e("""
s_and_b32 s{half}, s2, 1
s_lshl3_add_u32 s{m}, s{half}, s{cs}
s_sub_u32 s{a}, s{m}, s{half}
s_lshl_b32 s{wk}, s{w}, 10
s_lshl_b32 s{cnt}, s{g}, 13
s_and_b32 s{th}, s{w}, 1
s_lshr_b32 s{kh}, s{w}, 1
s_mov_b32 s{q}, s6
s_mov_b32 s{q1}, s7
s_cmp_lt_u32 s{w}, 2
s_cselect_b32 s{gu}, s8, s10
s_cselect_b32 s{gu1}, s9, s11
s_mov_b32 s{wd}, s12
s_mov_b32 s{wd1}, s13
s_mov_b32 s{out}, s14
s_mov_b32 s{out1}, s15
s_mov_b32 s{dbg}, s20
s_mov_b32 s{dbg1}, s21
s_mov_b32 s{ws}, s22
s_mov_b32 s{ws1}, s23
s_cmp_lt_u32 s{cs}, 7
s_cselect_b32 s{wo2}, 401408, 0
s_cselect_b32 s{gu2}, 1605632, 0
s_lshl1_add_u32 s{tt}, s{half}, s{th}
""".format(half=sHalf, m=sM, cs=sCs, a=sA, wk=sWK, w=sW, cnt=sCnt, g=sG, th=sTh, kh=sKh, q=sQKV, q1=sQKV + 1,
           gu=sGU, gu1=sGU + 1, wd=sWD, wd1=sWD + 1, out=sOUT, out1=sOUT + 1, dbg=sDBG, dbg1=sDBG + 1,
           ws=sWS, ws1=sWS + 1, wo2=sWO + 2, gu2=sGU + 2, tt=sTT))
for srd, size in ((sQKV, 1204224), (sWO, None), (sWD, 1605632), (sGU, None), (sOUT, 1835008), (sDBG, 256), (sWS, WS_SIZE)):
    if size:
        e('s_mov_b32 s%d, 0x%x' % (srd + 2, size))
    e('s_mov_b32 s%d, 0x20000' % (srd + 3))
e("""
v_lshlrev_b32 v{l16}, 4, v0
v_lshlrev_b32 v{l8}, 3, v0
v_mov_b32 v{one}, 1
v_and_b32 v{u3}, 31, v0
v_lshrrev_b32 v{u4}, 5, v0
v_bfe_u32 v{u5}, v0, 2, 2
v_and_b32 v{u6}, 3, v0
v_bfe_u32 v{u7}, v0, 4, 1
""".format(l16=vL16, l8=vL8, one=vOne, u3=u[3], u4=u[4], u5=u[5], u6=u[6], u7=u[7]))
e("""
s_cmp_eq_u32 s{m}, 15
s_cselect_b32 s3, 1, 0
s_cmp_eq_u32 s{w}, 0
s_cselect_b32 s{z}, s3, 0
s_cmp_eq_u32 s{z}, 0
s_cbranch_scc1 L_nozero
v_lshlrev_b32 v{t3}, 7, v0
v_mov_b32 v{t4}, 0
""".format(m=sM, w=sW, t3=t3, t4=t4, z=sZero))
e('buffer_store_dword v%d, v%d, %s, s%d offen sc1' % (t4, t3, S4(sWS), sCnt), raw=True)
e('L_nozero:')
e('v_cmp_lt_u32 s[%d:%d], 31, v0' % (sMaskHi, sMaskHi + 1))
e('v_cmp_eq_u32 s[%d:%d], 28, v%d' % (sMask28, sMask28 + 1, u[3]))
e('''
v_lshlrev_b32 v{t0}, 7, v{u3}
v_add_u32 v{t0}, s{xb}, v{t0}
v_bfe_u32 v{t1}, v0, 1, 3
v_xor_b32 v{t1}, v{t1}, v{u4}
'''.format(t0=t0, t1=t1, u3=u[3], u4=u[4], xb=sOff2))
for ks in range(4):
    e('v_xor_b32 v%d, %d, v%d' % (t2, 2 * ks, t1))
    e('v_lshl_add_u32 v%d, v%d, 4, v%d' % (vAdX + ks, t2, t0))
e('''
v_lshlrev_b32 v{t0}, 2, v{u7}
v_xor_b32 v{t0}, v{t0}, v{u1}
v_lshlrev_b32 v{t4}, 4, v{t0}
v_lshrrev_b32 v{t1}, 2, v{t0}
v_and_b32 v{t0}, 3, v{t0}
v_lshlrev_b32 v{t2}, 1, v{t0}
v_min_u32 v{t2}, 5, v{t2}
v_lshlrev_b32 v{t2}, 3, v{t2}
s_movk_i32 s{k}, 896
v_mad_u32_u24 v{t2}, v{t1}, s{k}, v{t2}
v_mad_u32_u24 v{t4}, v{u0}, s{k}, v{t4}
s_lshl_b32 s3, s{w}, 3
v_add_u32 v{t3}, s3, v{u0}
s_movk_i32 s{k}, 2688
v_mad_u32_u24 v{t2}, v{t3}, s{k}, v{t2}
s_mul_i32 s3, s{m}, 56
s_add_u32 s4, s3, 896
v_add_u32 v{kv}, s4, v{t2}
'''.format(t0=t0, t1=t1, t2=t2, t3=t3, t4=t4, u0=u[0], u1=u[1], u7=u[7], k=sOff, w=sW, m=sM, kv=vOffKV))
e('''
s_lshl_b32 s6, s{cs}, 7
s_mul_i32 s4, s{w}, 7168
s_add_u32 s4, s4, s6
v_add_u32 v{wo}, s4, v{t4}
s_mul_i32 s4, s{kh}, 802816
s_mul_i32 s5, s{th}, 7168
s_add_u32 s4, s4, s5
s_add_u32 s4, s4, s6
v_add_u32 v{wd}, s4, v{t4}
'''.format(t4=t4, cs=sCs, w=sW, kh=sKh, th=sTh, wo=vOffWO, wd=vOffWD))
e('''
v_lshlrev_b32 v{t2}, 1, v{u6}
v_min_u32 v{t2}, 5, v{t2}
v_lshlrev_b32 v{t2}, 3, v{t2}
v_lshrrev_b32 v{t3}, 2, v0
v_mul_u32_u24 v{t4}, 896, v{t3}
s_lshl_b32 s4, s{w}, 4
v_add_u32 v{t3}, s4, v{t3}
v_mad_u32_u24 v{t2}, v{t3}, s{k}, v{t2}
v_add_u32 v{q}, s3, v{t2}
s_lshl2_add_u32 s4, s{g}, s{tt}
s_mul_i32 s4, s4, 28672
s_add_u32 s4, s4, s6
s_lshl_b32 s5, s{kh}, 6
s_add_u32 s4, s4, s5
v_lshl_add_u32 v{t4}, v{u6}, 4, v{t4}
v_add_u32 v{xr}, s4, v{t4}
'''.format(t2=t2, t3=t3, t4=t4, u6=u[6], k=sOff, w=sW, q=vOffQ, g=sG, tt=sTT, kh=sKh, xr=vOffXR))
WQP = 14
e('''
v_lshlrev_b32 v{t0}, 3, v{u6}
v_lshl_add_u32 v{t0}, v{u7}, 5, v{t0}
v_lshrrev_b32 v{t1}, 1, v{u6}
v_and_b32 v{t1}, v{t1}, v{u7}
v_lshlrev_b32 v{t1}, 3, v{t1}
v_xor_b32 v{t1}, v{t0}, v{t1}
v_lshrrev_b32 v{t2}, 1, v{u5}
v_lshlrev_b32 v{t2}, 6, v{t2}
v_lshl_add_u32 v{t3}, v{u4}, 3, v{u5}
v_xor_b32 v{t4}, v{t1}, v{t2}
v_lshl_add_u32 v{ak}, v{t3}, 7, v{t4}
v_xor_b32 v{av}, 64, v{ak}
v_lshl_add_u32 v{aq}, v{t3}, 6, v{t1}
v_add_u32 v{aq}, {qb}, v{aq}
'''.format(t0=t0, t1=t1, t2=t2, t3=t3, t4=t4, u4=u[4], u5=u[5], u6=u[6], u7=u[7], ak=vAdK, av=vAdV, aq=vAdQ, qb=WQP * PG))
e('''
v_xor_b32 v{t4}, v{t0}, v{t2}
s_lshl_b32 s3, s{kh}, 6
v_xor_b32 v{t4}, s3, v{t4}
v_lshl_add_u32 v{t4}, v{u5}, 7, v{t4}
s_mul_i32 s3, s{kh}, 28672
v_add_u32 v{p0}, s3, v{t4}
v_xor_b32 v{p1}, 64, v{p0}
v_lshl_add_u32 v{a0}, v{u4}, 9, v{p0}
v_xor_b32 v{a1}, 64, v{a0}
'''.format(t0=t0, t2=t2, t4=t4, u4=u[4], u5=u[5], kh=sKh, p0=vAdWOp, p1=vAdWOp + 1, a0=vAdWO, a1=vAdWO + 1))
e('''
s_lshl_b32 s4, s{kh}, 2
v_lshl_add_u32 v{t0}, v{u7}, 1, s4
v_xor_b32 v{t0}, v{t0}, v{u1}
v_lshlrev_b32 v{t0}, 4, v{t0}
s_movk_i32 s{k}, 3584
v_mad_u32_u24 v{t0}, v{u0}, s{k}, v{t0}
s_mul_i32 s4, s{th}, 28672
s_lshl_b32 s5, s{a}, 8
s_add_u32 s4, s4, s5
v_add_u32 v{gu}, s4, v{t0}
'''.format(t0=t0, u0=u[0], u1=u[1], u7=u[7], k=sOff, kh=sKh, th=sTh, a=sA, gu=vOffGU))
vSw = vY
sSW = 8
e('''
s_mul_i32 s3, s{idx}, 14
s_lshl2_add_u32 s3, s{w}, s3
s_mul_i32 s3, s3, 2688
s_mul_i32 s4, s{half}, 384
s_add_u32 s3, s3, s4
v_mul_u32_u24 v{t0}, 2688, v{u2}
v_bfe_u32 v{t1}, v0, 2, 2
v_min_u32 v{t1}, 2, v{t1}
v_mul_u32_u24 v{t1}, 896, v{t1}
v_and_b32 v{t2}, 3, v0
v_lshl_add_u32 v{t1}, v{t2}, 7, v{t1}
v_add3_u32 v{c}, v{t0}, v{t1}, s3
s_add_u32 s3, s{cs}, 1
s_lshr_b32 s3, s3, 1
s_mul_i32 s4, s{gl}, 5
s_add_u32 s3, s3, s4
s_lshl1_add_u32 s4, s3, s{th}
s_mul_i32 s4, s4, 3
s_bfe_u32 s5, s2, 0x20001
s_mul_i32 s5, s5, 112
s_add_u32 s4, s4, s5
s_mul_i32 s4, s4, 3584
s_mul_i32 s5, s{half}, 1792
s_add_u32 s4, s4, s5
v_min_u32 v{t0}, 2, v{u2}
v_mul_u32_u24 v{t0}, 3584, v{t0}
v_and_b32 v{t1}, {swm}, v0
v_min_u32 v{t1}, {swx}, v{t1}
v_lshl_add_u32 v{t0}, v{t1}, 7, v{t0}
v_add_u32 v{a}, s4, v{t0}
v_min_u32 v{t1}, 6, v{u1}
s_lshl2_add_u32 s3, s3, s{w}
s_min_u32 s3, s3, 55
s_and_b32 s4, s2, 7
s_mul_i32 s4, s4, 56
s_add_u32 s3, s3, s4
s_mul_i32 s3, s3, 896
v_lshlrev_b32 v{t1}, 7, v{t1}
v_add_u32 v{b}, s3, v{t1}
s_mul_i32 s3, s{half}, 42
s_add_u32 s3, s3, 0xab
s_lshr_b32 s3, s3, s{cs}
s_and_b32 s{good}, s3, 1
'''.format(cs=sCs, gl=sGl, th=sTh, half=sHalf, w=sW, t0=t0, t1=t1, t2=t2, u0=u[0], u1=u[1], u2=u[2], a=vSw, b=vSw + 1, c=vY + 13,
           good=sGood, idx=sIdx, swm=14 if OPT.get('swh') else 15, swx=12 if OPT.get('swh') else 13))


def sweep1():
    return L('buffer_load_dword a249, v%d, %s, 0 offen' % (vY + 13, S4(sQKV))) if OPT.get('sw1', 0) else []


def sweep():
    r = L('''
    s_mov_b32 s{sw}, s{gu}
    s_mov_b32 s{sw1}, s{gu1}
    s_mul_i32 s{sw2}, s{good}, 1605632
    s_mov_b32 s{sw3}, 0x20000
    buffer_load_dword a250, v{a}, {srd}, 0 offen
    s_mov_b32 s{sw}, s{wo}
    s_mov_b32 s{sw1}, s{wo1}
    s_mul_i32 s{sw2}, s{good}, 401408
    buffer_load_dword a251, v{b}, {srd}, 0 offen
    '''.format(sw=sSW, sw1=sSW + 1, sw2=sSW + 2, sw3=sSW + 3, gu=sGU, gu1=sGU + 1, wo=sWO, wo1=sWO + 1, a=vSw, b=vSw + 1,
               srd=S4(sSW), good=sGood))
    return r


def sweep3():
    r = L('''
    s_mul_i32 s3, s{g}, 14
    s_add_u32 s3, s3, s{a}
    s_lshl2_add_u32 s3, s3, s{w}
    s_mul_i32 s3, s3, 1792
    v_min_u32 v{t}, 13, v0
    v_lshlrev_b32 v{t}, 7, v{t}
    buffer_load_dword a252, v{t}, {srd}, s3 offen
    '''.format(g=sG, a=sA, w=sW, t=t5, srd=S4(sWD)))
    return r if OPT.get('sw3', 0) else []


def kvdma(pg):
    pre = ['s_mul_i32 s%d, s%d, 172032' % (sOff, sCh + (pg >> 1))]
    if pg & 1:
        pre.append('s_add_u32 s%d, s%d, 86016' % (sOff, sOff))
    return dma(vOffKV, sQKV, 's%d' % sOff, pg * PG, 'kv%d' % pg, pre)


def qdma(i):
    return dma(vOffQ, sQKV, 's%d' % sOff, (WQP + i) * PG, 'q%d' % i, ['s_mul_i32 s%d, s%d, 172032' % (sOff, sCh + i)])


vS, vQ2, vOnes = u[8], u[9], u[10]
vMean, vStd, vR, vRL = u[6], u[7], u[12], u[14]
e('v_mov_b32 v%d, 0' % vS)
e('v_mov_b32 v%d, 0' % vQ2)
e('v_mov_b32 v%d, 0x3f803f80' % vOnes)
e('v_mov_b32 v%d, 0x3f803f80' % (vOnes + 1))
SCR, KVS, XRP, WOP = 21, 25, 26, 0
e('''
s_lshl_b32 s3, s{w}, 8
s_add_u32 s3, s3, {b}
v_lshl_add_u32 v{a}, v{u3}, 2, s3
v_lshl_add_u32 v{c}, v{u4}, 4, s3
'''.format(w=sW, b=KVS * PG + 2048, a=t3, c=t4, u3=u[3], u4=u[4]))


def xdots(i):
    r = []
    for j in range(16):
        reg = vF + 16 * i + j
        r.append(I('v_dot2c_f32_bf16 v%d, v%d, v%d' % (vS, reg, vOnes)))
        r.append(I('v_dot2c_f32_bf16 v%d, v%d, v%d' % (vQ2, reg, reg)))
    return r


stamp('_addr')
SW1 = OPT.get('sw1', 0)
if SW1 == 2:
    p.add(sweep1())
p.add(xdma(2))
if SW1 == 1:
    p.add(sweep1())
kv_next = 0
XW = OPT.get('xw', [[], [], [], [3], [2], [1, 3], [2]])
for i in range(7):
    e('@waitvm x%d' % i)
    stamp('_xl%d' % i)
    if i == 0:
        stamp('x0 landed')
    if i == 2:
        e('s_cmp_eq_u32 s%d, 0' % sZero)
        e('s_cbranch_scc1 L_nozero2')
        e('s_mov_b64 exec, 1')
        e('buffer_atomic_add v%d, off, %s, 0' % (vOne, S4(sDBG)), raw=True)
        e('s_mov_b64 exec, -1')
        e('L_nozero2:')
    for ks in range(4):
        e('ds_read_b128 %s, v%d offset:%d' % (V(vF + 16 * i + 4 * ks, 4), vAdX + ks, i * PG))
    dots = xdots(i - 1) if i else []
    d = [[], [], [], []]
    if i + 3 < 7:
        x_ = xdma(i + 3)
        d = [x_[:3], x_[3:4], x_[4:5], x_[5:6]]
    for q in XW[i]:
        if kv_next == 0 and SW1 == 3:
            d[q] = d[q] + sweep1()
        d[q] = d[q] + kvdma(kv_next)
        kv_next += 1
    for q in range(4):
        p.add(d[q] + dots[8 * q:8 * q + 8])
p.add(xdots(6))
p.add(kvdma(kv_next))
kv_next += 1
stamp('x read')

aK, aV, vRr = vX, vX + 16, vX + 32
aCK, aCV = 40, 56
vAdKw, vAdVw, vAdQw, vO4, vMA, vCx = vY + 2, vY + 3, vY + 12, vY + 8, vY + 4, vY + 16
e('''
s_lshl_b32 s3, s{w}, 11
v_add_u32 v{kw}, s3, v{k}
v_add_u32 v{vw}, s3, v{v}
v_add_u32 v{qw}, s{wk}, v{q}
'''.format(w=sW, kw=vAdKw, vw=vAdVw, qw=vAdQw, k=vAdK, v=vAdV, q=vAdQ, wk=sWK))
for n in range(4):
    e('v_mov_b32 v%d, 0x3f803f80' % (vO4 + n))


def mfma_ones(acc, b, first):
    return I('v_mfma_f32_32x32x16_bf16 %s, %s, %s, %s' % (A(acc, 16), V(vO4, 4), b, '0' if first else A(acc, 16)))


ws = WStream(look=4, wper=2)
pgap = {}
kb = OPT.get('kvb', (0, 2, 4, 7, 10, 12, 13))
KVB = dict(zip(kb, kb[1:] + (14,)))
for pg in range(14):
    pre = None
    if pg in KVB:
        pre = L('@waitvm ' + ' '.join('kv%d' % q for q in range(pg, KVB[pg])) + '\ns_barrier')
    if pg & 1:
        for (acc, ad) in ((aCK, vAdKw), (aCV, vAdVw)):
            off = (pg - 1) * PG
            glast = ws.step(ad, off, ad, off + 512, lambda a: mfma_ones(acc, a, pg == 1), pre)
            pre = None
    for ks2 in range(2):
        k = 2 * pg + ks2
        for (acc, ad) in ((aK, vAdK), (aV, vAdV)):
            off = pg * PG + ks2 * 2048
            g_ = ws.step(ad, off, ad, off + 512, lambda a: mfma(acc, V(vF + 4 * k, 4), a, '0' if k == 0 else None), pre)
            pre = None
    pgap[pg] = g_
for pg in range(kv_next, 14):
    glw = max(pgap[max(pg - OPT.get('kvl', 8), 0)], 2 * (pg - kv_next) + 1)
    ws.fill(glw, kvdma(pg))
st = halves_sum(vS, t0) + halves_sum(vQ2, t0) + ln_consts(vS, vQ2, vMean, vStd, vR)
st += L('''
v_mul_f32 v{c}, v{m}, v{r}
v_mul_f32 v{rl}, 0x{l:x}, v{r}
v_sub_f32 v{c}, 0, v{c}
'''.format(c=t0, m=vMean, r=vR, rl=vRL, l=LOG2E))
for n, x in enumerate(st):
    ws.fill(2 + n, x)
ws.fill(28, L('ds_write_b32 v{a}, v{r}\nds_write_b32 v{a}, v{c} offset:128'.format(a=t3, r=vR, c=t0)))
for n in range(8):
    ws.fill(30 + n, I('ds_read_b128 %s, v%d offset:%d' % (V(vRr + 4 * n, 4), t4, (n & 3) * 32 + (n >> 2) * 128)))
pre_e = mean_frag(vMean, vMA) + L('''
v_lshlrev_b32 v{t0}, 3, v{u3}
v_add_u32 v{t5}, {cx}, v{t0}
v_mov_b32 v{c}, 0x{l:x}
v_mov_b32 v{u5}, v{u3}
'''.format(t0=t0, u3=u[3], t5=t5, cx=KVS * PG + 3072, c=u[4], l=LOG2E, u5=u[5]))
for n, x in enumerate(pre_e):
    ws.fill(30 + n, x)
ws.fill(40, L('''
s_lshl_b32 s3, s{w}, 8
v_add_u32 v{t4}, s3, v{t5}
s_lshl4_add_u32 s3, s{m}, s{g}
s_lshl2_add_u32 s3, s3, s{w}
s_lshl_b32 s3, s3, 9
s_add_u32 s{o2}, s3, {base}
'''.format(w=sW, t4=t4, t5=t5, m=sM, g=sG, o2=sOff2, base=WS_KVP)))
ws.fill(44, L('''
s_lshl_b32 s3, s{m}, 6
s_add_u32 s3, s3, s{w}
s_lshl_b32 s3, s3, 7
s_add_u32 s{pl}, s3, {kv}
'''.format(m=sM, w=sW, pl=sPoll, kv=C_KV * 128)))
SW2 = OPT.get('sw2', 1)
if SW2 == 1:
    ws.fill(glw + 2, sweep())
ws.fill(pgap[11] + 1, qdma(0))
ws.fill(pgap[12] + 1, qdma(1))
ws.fill(glast + 2, L('''
v_accvgpr_read_b32 v{a}, a{k}
v_accvgpr_read_b32 v{b}, a{v}
ds_write_b64 v{ad}, v[{a}:{b}]
'''.format(a=t0, b=t1, k=aCK, v=aCV, ad=t4)))
xch = L('@waitlg0\ns_barrier')
for n in range(4):
    xch.append(I('ds_read_b64 %s, v%d offset:%d' % (V(vCx + 2 * n, 2), t5, 256 * n)))
ws.fill(glast + 3, xch)
for nm, at in (('_a1', 0), ('_a8', 9), ('_a16', 19), ('_a24', 29), ('_a32', 39), ('_a40', 49), ('_a48', 59)):
    ws.fill(at, mkstamp(nm))
p.add(ws.build())
stamp('A1 mfma')


def phi(acc, dst, pre):
    r = []
    for j in range(0, 16, 4):
        g = []
        for jj in (j, j + 2):
            a = acc + jj
            tp = u[0] + (jj & 2)
            g.append(pre(jj, tp) + L('''
            v_min_f32 v{t}, 0, v{t}
            v_min_f32 v{t1}, 0, v{t1}
            v_exp_f32 v{t}, v{t}
            v_exp_f32 v{t1}, v{t1}
            v_max_f32 v{a}, 0x{e:x}, v{a}
            v_max_f32 v{a1}, 0x{e:x}, v{a1}
            '''.format(t=tp, t1=tp + 1, a=a, a1=a + 1, e=EPS6)) + [pk('add', a, a, tp), I('v_cvt_pk_bf16_f32 v%d, v%d, v%d' % (dst + jj // 2, a, a + 1))])
        r += zip_groups(g)
    return r


vPK, vVV, aKV = vCx, vY + 24, vX + 32
BC1 = 'op_sel_hi:[1,0]'
ea = [pk('add', vCx, vCx, vCx + 2), pk('add', vCx + 4, vCx + 4, vCx + 6), pk('add', t0, vCx, vCx + 4)]
ea += L('v_mov_b32 v%d, v%d' % (t2, t1))
gv = []
for j in range(0, 16, 2):
    tp = u[0] + (j & 2)
    gv.append([pk('mul', tp, vRr + 16 + j, t2, mod=BC1), pk('fma', aV + j, aV + j, vRr + j, tp),
               I('v_cvt_pk_bf16_f32 v%d, v%d, v%d' % (vVV + j // 2, aV + j, aV + j + 1)),
               I('v_cndmask_b32 v%d, v%d, v%d, s[%d:%d]' % (vVV + j // 2, vVV + j // 2, vOnes, sMask28, sMask28 + 1))])
for j in range(0, 8, 2):
    ea += zip_groups(gv[j:j + 2])
ea += phi(aK, vPK, lambda j, tp: [pk('mul', tp, vRr + 16 + j, t0, mod=BC1), pk('fma', aK + j, aK + j, vRr + j, tp),
                                  pk('mul', tp, aK + j, u[4], mod=BC1)])
p.add(spread(ea, [qdma(2), qdma(3), qdma(4)]))
p.add([mfma(aKV, V(vPK, 4), V(vVV, 4), '0'), mfma(aKV, V(vPK + 4, 4), V(vVV + 4, 4))])
e('''
s_lshl_b32 s3, s{w}, 12
s_add_u32 s3, s3, {scr}
v_add_u32 v{t0}, s3, v{l16}
s_add_u32 s3, s{wk}, {scr}
v_add_u32 v{t1}, s3, v{l16}
buffer_load_dword v{p}, off, {dbg}, 0 sc1
v_lshlrev_b32 v{t5}, 2, v{u3}
v_add_u32 v{t5}, {cx}, v{t5}
s_lshl_b32 s3, s{w}, 7
v_add_u32 v{t4}, s3, v{t5}
'''.format(w=sW, wk=sWK, scr=SCR * PG, t0=t0, t1=t1, l16=vL16, p=vP, dbg=S4(sDBG), t4=t4, t5=t5, u3=u[5], cx=KVS * PG + 2048))
for q in range(4):
    e('ds_write_b128 v%d, %s offset:%d' % (t0, V(aKV + 4 * q, 4), q * 1024))
e('@waitlg0')
e('s_barrier')
for j in range(4):
    e('ds_read_b128 %s, v%d offset:%d' % (V(vX + 4 * j, 4), t1, j * PG))
for (a, b) in ((0, 4), (2, 6), (8, 12), (10, 14), (0, 8), (2, 10)):
    p.add([pk('add', vX + a, vX + a, vX + b)])
e('v_cvt_pk_bf16_f32 v%d, v%d, v%d' % (vX, vX, vX + 1))
e('v_cvt_pk_bf16_f32 v%d, v%d, v%d' % (vX + 1, vX + 2, vX + 3))
e('buffer_store_dwordx2 %s, v%d, %s, s%d offen sc1' % (V(vX, 2), vL8, S4(sWS), sOff2), tag='kvp')
stamp('kv stored')
p.add(qdma(5) + qdma(6) + (sweep() if SW2 == 2 else []))

W1PG = {}
W2PG = {}


def wodma(n):
    c, uu = sCh + (n >> 1), n & 1
    r = L("""
    s_lshl_b32 s{t}, s{c}, 13
    s_add_u32 s{t}, s{t}, s{wk}
    s_add_u32 m0, s{t}, {lo}
    s_mul_i32 s{o}, s{c}, 57344
    """.format(t=sT[3], c=c, wk=sWK, lo=WOP * PG + uu * PG, o=sOff))
    if uu:
        r += L('s_add_u32 s%d, s%d, 28672' % (sOff, sOff))
    return r + dma(vOffWO, sWO, 's%d' % sOff, None, 'wo')


def xrdma(uu):
    return L('s_lshl1_add_u32 s{t}, s{wk}, 0\ns_add_u32 m0, s{t}, {lo}\ns_movk_i32 s{o}, {so}'.format(
        t=sT[3], wk=sWK, lo=XRP * PG + uu * 1024, o=sOff, so=uu * 14336)) + dma(vOffXR, sX, 's%d' % sOff, None, 'xr')


def gudma(half, k, page):
    (W2PG if half else W1PG)[k] = page
    return dma(vGUo + (k & 3) + 4 * half, sGU, 's%d' % sGUt[k >> 2], page * PG, 'gu%d_%d' % (half, k))


aQ, vCQ = vX + 16, vY + 24
ws = WStream(look=5, wper=2)
for i in range(7):
    pre = None
    if i == 0:
        pre = L('@waitvm q0 q1 q2 q3 q4\ns_barrier')
    if i == 5:
        pre = L('@waitvm q5 q6\ns_barrier')
    glast = ws.step(vAdQw, i * PG, vAdQw, i * PG + 256, lambda a: mfma_ones(aCK, a, i == 0), pre)
    for ks in range(4):
        k = 4 * i + ks
        off = i * PG + ks * 1024
        ws.step(vAdQ, off, vAdQ, off + 256, lambda a: mfma(aQ, a, V(vF + 4 * k, 4), '0' if k == 0 else None))
ws.fill(OPT.get('kvs', 17), L('@waitvm kvp') + poll_check(16, '0', sDBG) + signal(sPoll))
for n in range(1, 4):
    ws.fill(2 + n, I('v_mov_b32 v%d, 0' % (vCQ + n)))
NW = OPT.get('nw', 8)
for n in range(NW):
    ws.fill(OPT.get('kvs', 17) + 1 + 2 * n, wodma(n))
for nm in OPT['st'] or ():
    if nm.startswith('_q'):
        ws.fill(int(nm[2:]), mkstamp(nm))
ws.fill(glast + 2, L('v_accvgpr_read_b32 v{a}, a{k}\nds_write_b32 v{ad}, v{a}'.format(a=t0, k=aCK, ad=t4)))
xch = L('@waitlg0\ns_barrier')
for n in range(4):
    xch.append(I('ds_read_b32 v%d, v%d offset:%d' % (vY + 28 + n, t5, 128 * n)))
ws.fill(glast + 3, xch)
p.add(ws.build())
stamp('A2 mfma')
e('''
v_add_f32 v{a}, v{y0}, v{y1}
v_add_f32 v{b}, v{y2}, v{y3}
v_add_f32 v{a}, v{a}, v{b}
'''.format(a=t0, b=t1, y0=vY + 28, y1=vY + 29, y2=vY + 30, y3=vY + 31))
p.add(hilo(t0, vCQ, t1))
p.add([mfma(aQ, V(vCQ, 4), V(vMA, 4))])
for n in range(8):
    e('v_add_u32 v%d, %d, v%d' % (vGUo + n, (n & 3) * 57344 + (n >> 2) * 128, vOffGU))
for i in range(7):
    e('s_mul_i32 s%d, s%d, 229376' % (sGUt[i], sCh + i))
vPQ = vY
ph = phi(aQ, vPQ, lambda j, tp: [pk('mul', tp, aQ + j, vRL, mod=BC1), pk('mul', aQ + j, aQ + j, vR, mod=BC1)])
free = list(range(28, 40)) + list(range(14, 21))
N0 = OPT.get('n0', 0)
p.add(spread(ph[:56], [wodma(n) for n in range(NW, 14)] + [xrdma(0), xrdma(1)] + [gudma(0, k, free[k]) for k in range(N0)]))
stamp('_ph')
p.add(poll_issue(sPoll, OPT.get('kva', 0)))
p.add(ph[56:])
e('v_cndmask_b32 v%d, v%d, 0, s[%d:%d]' % (vPQ + 6, vPQ + 6, sMaskHi, sMaskHi + 1))
e('v_cndmask_b32 v%d, v%d, 0, s[%d:%d]' % (vPQ + 7, vPQ + 7, sMaskHi, sMaskHi + 1))
e("""
s_lshl_b32 s3, s{m}, 15
s_lshl_b32 s4, s{w}, 9
s_add_u32 s3, s3, s4
s_add_u32 s{o2}, s3, {base}
s_lshl_b32 s5, s{gl}, 13
s_add_u32 s{o}, s{o2}, s5
v_mov_b32 v{e0}, 0x3f80
v_mov_b32 v{e1}, 0x3f800000
s_add_u32 s4, s4, {kvs}
v_add_u32 v{t0}, s4, v{l8}
v_add_u32 v{t1}, {kvs}, v{l8}
s_lshl2_add_u32 s3, s{g}, s{w}
s_lshl4_add_u32 s3, s3, s{m}
s_lshl_b32 s3, s3, 11
s_add_u32 s{st}, s3, {ob}
s_lshl1_add_u32 s3, s{w}, s{half}
s_lshl_b32 s3, s3, 7
s_add_u32 s{sig}, s3, s{cnt}
""".format(m=sM, w=sW, o=sOff, o2=sOff2, base=WS_KVP, gl=sGl, e0=u[0], e1=u[1], kvs=KVS * PG, t0=t0, t1=t1, l8=vL8,
           g=sG, st=sSt, ob=WS_O, half=sHalf, sig=sSig, cnt=sCnt))
for j in range(4):
    e('v_mov_b32 v%d, 0' % (vX + 32 + j))
stamp('q done')
p.add(poll_check(16, sPoll))
stamp('kv flag')

for gg in range(16):
    if gg and gg % 2 == 0:
        e('s_add_u32 s5, s5, 4096')
        e('s_and_b32 s5, s5, 0x7fff')
        e('s_add_u32 s%d, s%d, s5' % (sOff, sOff2))
    e('buffer_load_dwordx2 %s, v%d, %s, s%d offen%s sc1' % (V(vX + 2 * gg, 2), vL8, S4(sWS), sOff, ' offset:2048' if gg & 1 else ''))
NA = OPT.get('na', 6)
for k in range(N0, NA):
    p.add(gudma(0, k, free[k]))
for gg in range(16):
    for d in range(2):
        e('v_dot2c_f32_bf16 v%d, v%d, v%d' % (vX + 32 + 2 * d, vX + 2 * gg + d, u[0]))
        e('v_dot2c_f32_bf16 v%d, v%d, v%d' % (vX + 33 + 2 * d, vX + 2 * gg + d, u[1]))
stamp('kv loaded')
e('v_cvt_pk_bf16_f32 v%d, v%d, v%d' % (vX, vX + 32, vX + 33))
e('v_cvt_pk_bf16_f32 v%d, v%d, v%d' % (vX + 1, vX + 34, vX + 35))
e('ds_write_b64 v%d, %s' % (t0, V(vX, 2)))
e('@waitlg0')
e('s_barrier')
vKVF = vY + 8
for q in range(4):
    e('ds_read_b64 %s, v%d offset:%d' % (V(vKVF + 2 * q, 2), t1, q * 512))
aO = vX + 16
p.add([mfma(aO, V(vKVF, 4), V(vPQ, 4), '0'), mfma(aO, V(vKVF + 4, 4), V(vPQ + 4, 4))])
e('''
v_mov_b32 v{a}, v{d}
v_mov_b32 v{b}, v{d}
v_permlane32_swap_b32 v{a}, v{b}
v_add_f32 v{b}, 0x{eps:x}, v{b}
v_rcp_f32 v{r}, v{b}
v_cndmask_b32 v{r2}, v{r}, 0, s[{mh}:{mh1}]
'''.format(a=t2, b=t3, d=aO + 12, eps=EPS6, r=u[0], r2=u[2], mh=sMaskHi, mh1=sMaskHi + 1))
for hf_ in range(2):
    for j in range(8 * hf_, 8 * hf_ + 8, 2):
        p.add([pk('mul', aO + j, aO + j, u[2] if j >= 12 else u[0], mod=BC1)])
    for j in range(4 * hf_, 4 * hf_ + 4):
        e('v_cvt_pk_bf16_f32 v%d, v%d, v%d' % (vX + j, aO + 2 * j, aO + 2 * j + 1))
    e('buffer_store_dwordx4 %s, v%d, %s, s%d offen%s sc1' % (V(vX + 4 * hf_, 4), vL16, S4(sWS), sSt, ' offset:1024' if hf_ else ''))
e('s_cmp_ge_u32 s%d, 7' % sCs)
e('s_cbranch_scc1 L_idle')
stamp('_os')
e('''
s_lshl1_add_u32 s3, s{tt}, s{kh}
s_lshl_b32 s3, s3, 7
s_add_u32 s{pl}, s3, s{cnt}
s_lshl2_add_u32 s3, s{g}, s{tt}
s_lshl1_add_u32 s4, s3, s{kh}
s_lshl_b32 s4, s4, 14
s_add_u32 s{o2}, s4, {ob}
s_lshl1_add_u32 s4, s{cs}, s{kh}
s_lshl4_add_u32 s3, s3, s4
s_lshl_b32 s4, s3, 11
s_add_u32 s{st}, s4, {hb}
s_lshl_b32 s4, s3, 8
s_add_u32 s{st2}, s4, {sb}
s_lshl_b32 s3, s{w}, 11
s_add_u32 s3, s3, {xr}
v_and_b32 v{a}, 31, v0
v_lshrrev_b32 v{b}, 5, v0
v_lshlrev_b32 v{b}, 3, v{b}
v_lshl_add_u32 v{b}, v{a}, 6, v{b}
v_add_u32 v{b}, s3, v{b}
v_lshlrev_b32 v{l8}, 3, v{a}
s_lshl_b32 s3, s{w}, 12
s_add_u32 s3, s3, {scr}
v_add_u32 v{t0}, s3, v{l16}
s_xor_b32 s4, s{w}, 2
s_lshl_b32 s4, s4, 12
s_add_u32 s4, s4, {scr}
v_add_u32 v{t1}, s4, v{l16}
'''.format(tt=sTT, kh=sKh, pl=sPoll, cnt=sCnt, g=sG, o2=sOff2, ob=WS_O, cs=sCs, st=sT[8], hb=WS_H, st2=sT[9], sb=WS_ST,
           w=sW, xr=XRP * PG, a=t2, b=t3, l8=vL8, scr=SCR * PG, t0=t0, t1=t1, l16=vL16))
e('@waitvm0')
p.add(signal(sSig))
stamp('o stored')
if OPT.get('ack'):
    e('@waitvm0')
    stamp('_ack')
if DIAG:
    e('s_mov_b32 s%d, %d' % (sIter, OPT['spin'] + 1))
if STOP <= 1:
    e('s_branch L_fin')

NB = OPT.get('nb', 10)
for k in range(NA, NB):
    p.add(gudma(0, k, free[k]))
p.add(poll_issue(sPoll))
stamp('_op')
for bq in range(4):
    e('ds_read_b64 %s, v%d offset:%d' % (V(vY + 2 * bq, 2), t3, 16 * bq))
for j in range(8):
    e('v_lshlrev_b32 v%d, 16, v%d' % (vX + 2 * j, vY + j))
    e('v_and_b32 v%d, 0xffff0000, v%d' % (vX + 1 + 2 * j, vY + j))
e('s_lshl_b32 s3, s%d, 7' % sTT)
e('s_add_u32 s3, s3, s%d' % sCnt)
e('s_add_u32 s%d, s3, %d' % (sSig, C_H * 128))
e('v_mov_b32 v%d, 0' % vS)
e('v_mov_b32 v%d, 0' % vQ2)
sOr = sT[4]
e('''
s_mul_i32 s3, s{kh}, 26624
v_subrev_u32 v{d0}, s3, v{w0}
v_subrev_u32 v{d1}, s3, v{w1}
s_mul_i32 s3, s{cs}, 3584
v_add_u32 v{w0}, s3, v{w0}
v_add_u32 v{w1}, s3, v{w1}
v_add_u32 v{p0}, s3, v{p0}
v_add_u32 v{p1}, s3, v{p1}
s_lshl_b32 s{r}, s{cs}, 11
s_sub_u32 s{r}, s{r}, 2048
s_mov_b32 s6, -25088
'''.format(kh=sKh, d0=vAdD, d1=vAdD + 1, w0=vAdWO, w1=vAdWO + 1, p0=vAdWOp, p1=vAdWOp + 1, cs=sCs, r=sOr))
p.add(poll_check(8, sPoll))
stamp('o flag')
if DIAG:
    e('s_sub_u32 s101, %d, s%d' % (OPT['spin'] + 1, sIter))


def oload(j):
    r = []
    if j % 2 == 0:
        r += L('s_add_u32 s{t}, s{t}, 2048\ns_and_b32 s{t}, s{t}, 0x3fff\ns_add_u32 s{o}, s{t}, s{b}'.format(t=sOr, o=sOff, b=sOff2))
    r.append(I('buffer_load_dwordx4 %s, v%d, %s, s%d offen%s sc1' % (A(aF + 4 * j, 4), vL16, S4(sWS), sOff, ' offset:1024' if j % 2 else '')))
    return r


for j in range(8):
    p.add(oload(j))
stamp('_ol')
ws = WStream()
for j in range(16):
    hh, s = j >> 1, j & 1
    for ft in range(2):
        pre = []
        if s == 0 and hh and ft == 0:
            pre += L('s_cmp_eq_u32 s{c}, {n}\ns_cselect_b32 s{d}, s{wrap}, 3584'.format(c=sCs, n=8 - hh, d=sT[2], wrap=sT[3]))
        if hh:
            r_ = (vAdWO if s == 0 else vAdWOp) + ft
            pre += L('v_add_u32 v%d, s%d, v%d' % (r_, sT[2], r_))
        a1_ = (vAdWOp if s == 1 else vAdWO) + ft
        ws.step(vAdWO + ft, WOP * PG + 16 * s * 128, a1_, WOP * PG + (16 * s + 8) * 128,
                lambda a: mfma(vX + 16 * ft, a, A(aF + 4 * j, 4), '0' if (j == 0 and ft == 1) else None), pre)
for j in range(8, 16):
    ws.fill(j - 8, oload(j))
ws.fill(0, mkstamp('_b0'))
ws.fill(15, mkstamp('_b16'))
ws.fill(8, sweep3())
for n, k in enumerate(range(NB, 19)):
    ws.fill(min(31, 9 + (22 * n) // (19 - NB)), gudma(0, k, free[k]))
p.add(ws.build())
stamp('_bm')
for q in range(4):
    e('ds_write_b128 v%d, %s offset:%d' % (t0, V(vX + 16 + 4 * q, 4), q * 1024))
e('@waitlg0')
e('s_barrier')
for q in range(4):
    e('ds_read_b128 %s, v%d offset:%d' % (V(vX + 16 + 4 * q, 4), t1, q * 1024))
for hf_ in range(2):
    for j in range(8 * hf_, 8 * hf_ + 8, 2):
        p.add([pk('add', vX + j, vX + j, vX + 16 + j)])
    for j in range(4 * hf_, 4 * hf_ + 4):
        e('v_cvt_pk_bf16_f32 v%d, v%d, v%d' % (vY + j, vX + 2 * j, vX + 2 * j + 1))
    e('buffer_store_dwordx4 %s, v%d, %s, s%d offen%s sc1' % (V(vY + 4 * hf_, 4), vL16, S4(sWS), sT[8], ' offset:1024' if hf_ else ''))
for j in range(8):
    e('v_dot2c_f32_bf16 v%d, v%d, v%d' % (vS, vY + j, vOnes))
    e('v_dot2c_f32_bf16 v%d, v%d, v%d' % (vQ2, vY + j, vY + j))
p.add(zip_groups([halves_sum(vS, t2), halves_sum(vQ2, t3)]))
e('buffer_store_dwordx2 %s, v%d, %s, s%d offen sc1' % (V(vS, 2), vL8, S4(sWS), sT[9]))
stamp('_hs')
for j in range(8):
    e('v_accvgpr_write_b32 a%d, v%d' % (aH + j, vY + j))
e('''
v_bfe_u32 v{r}, v0, 2, 2
v_bfe_u32 v{iu}, v0, 4, 1
v_lshrrev_b32 v{hf}, 5, v0
v_lshl_add_u32 v{a}, v{hf}, 2, v{r}
v_lshlrev_b32 v{a}, 7, v{a}
v_lshl_add_u32 v{a}, v{iu}, 11, v{a}
v_and_b32 v{b}, 1, v0
v_lshl_add_u32 v{a}, v{b}, 3, v{a}
v_lshrrev_b32 v{b}, 1, v{r}
v_lshl_add_u32 v{b}, v{iu}, 1, v{b}
v_lshlrev_b32 v{b}, 1, v{b}
v_bfe_u32 v{c}, v0, 1, 1
v_xor_b32 v{b}, v{b}, v{c}
'''.format(r=u[0], iu=u[1], hf=u[2], a=t2, b=t3, c=t4))
for t in range(4):
    e('v_xor_b32 v%d, %d, v%d' % (t4, 2 * t, t3))
    e('v_lshl_add_u32 v%d, v%d, 4, v%d' % (vAdC + t, t4, t2))
sHb, sHo, sStL, sHHst, sCSp = sT[5], sT[6], sT[7], sT[10], sT[4]
e('''
s_movk_i32 s3, 1792
v_mad_u32_u24 v{a}, v{hf}, s3, v{l8}
v_lshlrev_b32 v{l8}, 1, v{l8}
s_lshl2_add_u32 s3, s{g}, s{w}
s_lshl_b32 s4, s3, 12
s_add_u32 s{stl}, s4, {sb}
s_lshl_b32 s4, s3, 15
s_add_u32 s{hb}, s4, {hbase}
s_mul_i32 s3, s3, 14
s_add_u32 s3, s3, s{am}
s_lshl_b32 s3, s3, 13
s_add_u32 s{hst}, s3, {hh}
s_lshl_b32 s3, s{w}, 7
s_add_u32 s3, s3, s{cnt}
s_add_u32 s{pl}, s3, {ch}
s_lshl_b32 s3, s{am}, 13
s_add_u32 s{csp}, s3, {cc}
'''.format(kh=sKh, d0=vAdD, d1=vAdD + 1, w0=vAdWO, w1=vAdWO + 1, a=t4, hf=u[2], l8=vL8, g=sG, w=sW, stl=sStL, sb=WS_ST,
           hb=sHb, hbase=WS_H, am=sA, hst=sHHst, hh=WS_HH, cnt=sCnt, pl=sPoll, ch=C_H * 128, csp=sCSp, cc=C_CS * 128))
e('@waitvm0')
p.add(signal(sSig))
stamp('h stored')
if STOP <= 2:
    e('s_branch L_fin')

NC = OPT.get('nc', 5)
N1 = OPT.get('n1', 9)
w1late = [gudma(0, k, n) for n, k in enumerate(range(19, 28))]
for x in w1late[:N1]:
    p.add(x)
for k in range(NC):
    p.add(gudma(1, k, 9 + k))
p.add(poll_issue(sPoll))
stamp('_hp')
for n in range(8):
    e('v_add_u32 v%d, %d, v%d' % (vWDo + n, n * 14336, vOffWD))
e('v_add_u32 v%d, 4096, v%d' % (vL16b, vL16))
e('''
s_lshl2_add_u32 s3, s{g}, s{tt}
s_lshl1_add_u32 s3, s3, s{kh}
s_mul_i32 s3, s3, 57344
s_add_u32 s4, s3, {base}
s_lshl1_add_u32 s3, s{w}, s{half}
s_lshl_b32 s3, s3, 9
s_add_u32 s3, s3, s{cnt}
s_add_u32 s{sig}, s3, {chh}
s_lshl1_add_u32 s3, s{tt}, s{kh}
s_lshl_b32 s3, s3, 9
s_add_u32 s3, s3, s{cnt}
s_add_u32 s{st}, s3, {chh}
'''.format(g=sG, tt=sTT, kh=sKh, base=WS_HH, w=sW, half=sHalf, cnt=sCnt, sig=sSig, chh=C_HH * 128, st=sSt))
for i in range(7):
    e('s_mul_i32 s%d, s%d, 114688' % (sWDt[i], sCh + i))
    e('s_lshl_b32 s3, s%d, 13' % (sCh + i))
    e('s_add_u32 s%d, s3, s4' % sHHt[i])
e('v_accvgpr_write_b32 a%d, 0' % (aCS + 16))
e('v_accvgpr_write_b32 a%d, 0' % (aCS + 17))


def hload(k):
    r = []
    if k % 4 == 0:
        r += L('s_lshl_b32 s%d, s%d, 12\ns_add_u32 s%d, s%d, s%d' % (sHo, sCh + k // 4, sHo, sHo, sHb))
    r.append(I('buffer_load_dwordx4 %s, v%d, %s, s%d offen%s sc1' % (A(aF + 4 * k, 4), vL16, S4(sWS), sHo, ' offset:%d' % (1024 * (k % 4)) if k % 4 else '')))
    return r


h0 = hload(0)
p.add(h0[:-1])
p.add(poll_check(14, sPoll))
stamp('h flag')
HL = OPT.get('hl', 8)
p.add(h0[-1:])
for k in range(1, HL):
    p.add(hload(k))


class Win:
    def __init__(self, regs):
        self.cur = {r: 0 for r in regs}

    def fix(self, reg, off):
        base = (off // 61440) * 61440
        pre = []
        if self.cur[reg] != base:
            d = base - self.cur[reg]
            pre.append(I('v_add_u32 v%d, %d, v%d' % (reg, d, reg)) if d > 0 else I('v_subrev_u32 v%d, %d, v%d' % (reg, -d, reg)))
            self.cur[reg] = base
        return pre, off - base


winC = Win([vAdC + t for t in range(4)])
winD = Win([vAdD, vAdD + 1])
cA, cS = vCc, vCc + 2
acc_of = {0: vX, 1: vX + 16, 2: vY, 3: vY + 16, 4: 200, 5: 216, 6: vX, 7: vX + 16}


def hhstore(tile):
    d = u[8] + (tile & 1) * 4
    return [I('buffer_store_dwordx4 %s, v%d, %s, s%d offen%s sc1' % (V(d, 4), vL16b if tile >= 4 else vL16, S4(sWS), sHHst,
                                                                     ' offset:%d' % (1024 * (tile & 3)) if tile & 3 else ''), tag='hh%d' % tile)]


def eslots(tiles):
    slots = {}

    def put(sl, x):
        slots.setdefault(sl, []).append(x)
    n = 0
    for tile in tiles:
        acc = acc_of[tile]
        for el in range(8):
            tp = u[n % 6]
            put(2 * n, I('v_mul_f32 v%d, v%d, v%d' % (tp, cA, acc + el)))
            put(2 * n + 1, I('v_exp_f32 v%d, v%d' % (tp, tp)))
            put(2 * n + 2, I('v_fma_f32 v%d, v%d, v%d, v%d' % (tp, tp, cS, cS)))
            put(2 * n + 4, I('v_rcp_f32 v%d, v%d' % (tp, tp)))
            put(2 * n + 5, I('v_mul_f32 v%d, v%d, v%d' % (tp, tp, acc + 8 + el)))
            if el & 1:
                put(2 * n + 7, I('v_cvt_pk_bf16_f32 v%d, v%d, v%d' % (u[8] + (tile & 1) * 4 + el // 2, u[(n - 1) % 6], tp)))
            if el == 7:
                put(2 * n + 8, hhstore(tile))
            n += 1
    out = []
    for k in range(max(slots) + 1):
        sl = slots.get(k, [])
        sl.sort(key=lambda x: 0 if (not isinstance(x, list) and x.op in ('v_exp_f32', 'v_rcp_f32')) else 1)
        out.append(sl)
    return out


def efast(tile):
    acc = acc_of[tile]
    g = []
    for j in range(0, 8, 2):
        tp = u[0] + j
        g.append([pk('mul', tp, acc + j, cA, mod=BC1)] + L('v_exp_f32 v{t}, v{t}\nv_exp_f32 v{t1}, v{t1}'.format(t=tp, t1=tp + 1)) +
                 [pk('fma', tp, tp, cS, cS, mod='op_sel_hi:[1,0,0]')] + L('v_rcp_f32 v{t}, v{t}\nv_rcp_f32 v{t1}, v{t1}'.format(t=tp, t1=tp + 1)) +
                 [pk('mul', tp, tp, acc + 8 + j), I('v_cvt_pk_bf16_f32 v%d, v%d, v%d' % (u[8] + (tile & 1) * 4 + j // 2, tp, tp + 1))])
    return zip_groups(g)


def hhsig(stage):
    return L('@waitvm hh%d hh%d' % (2 * stage, 2 * stage + 1)) + signal(sSig, stage * 128)


D_ORDER = [(j, 2 * st_ + t) for st_ in range(4) for j in range(7) for t in range(2)] if OPT.get('jm', 1) else [(j, t) for t in range(8) for j in range(7)]
WDPG = {}
wd_next = [0]


def wddma(page):
    n = wd_next[0]
    wd_next[0] += 1
    j, t = D_ORDER[n]
    WDPG[n] = page
    return dma(vWDo + t, sWD, 's%d' % sWDt[j], page * PG, 'wd%d' % n)


def hhreg(n):
    return A(aR + 4 * n, 4) if n < 21 else (V(vHH + 4 * (n - 21), 4) if n < 28 else A(aF + 4 * (n - 28), 4))


def hhpoll(stage):
    return L('s_add_u32 s%d, s%d, %d' % (sPoll, sSt, stage * 128)) + poll_issue(sPoll)


def hhload(n):
    j, t = D_ORDER[n]
    return [I('buffer_load_dwordx4 %s, v%d, %s, s%d offen%s sc1' % (hhreg(n), vL16b if t >= 4 else vL16, S4(sWS), sHHt[j],
                                                                     ' offset:%d' % (1024 * (t & 3)) if t & 3 else ''))]


ws = WStream()
BSTEP = 4
PEND = []
freed = [(0, pg) for pg in list(range(9 + NC, 14)) + list(range(21, 28))]
carry = []
XG = OPT.get('xg', 8)
for ps in range(4):
    tl = (2 * ps, 2 * ps + 1)
    if ps == 2:
        todo = list(range(NC, 28))
        dslot = 2 * (28 - HL) - 1
        for gfree, pg in freed:
            dslot = max(dslot + 2, gfree + 1)
            ws.fill(dslot, gudma(1, todo.pop(0), pg) if todo else wddma(pg))
        DSLOT1 = dslot
    for k in range(28):
        for t in tl:
            pre = []
            if ps == 0 and t == 0 and k == 0:
                pre += L('@waitvm ' + ' '.join('gu0_%d' % j for j in range(19 + N1)) + '\ns_barrier')
            if ps == 0 and t == 0 and k == 19 + N1:
                pre += L('@waitvm ' + ' '.join('gu0_%d' % j for j in range(19 + N1, 28)) + '\ns_barrier')
            if ps == 2 and t == tl[0] and k in (0, 10, 19):
                hi = {0: 10, 10: 19, 19: 28}[k]
                pre += L('@waitvm ' + ' '.join('gu1_%d' % j for j in range(k, hi)) + '\ns_barrier')
            pr, off = winC.fix(vAdC + (t & 3), (W1PG if ps < 2 else W2PG)[k] * PG)
            g_ = ws.step(vAdC + (t & 3), off, vAdC + (t & 3), off + 1024,
                         lambda a: mfma(acc_of[t], a, A(aF + 4 * k, 4), '0' if k == 0 else None), pre + pr)
        if ps == 0 and k + HL < 28:
            ws.fill(2 * k, hload(k + HL))
        if ps & 1 and k % BSTEP == BSTEP - 1:
            ws.fill(g_, L('s_barrier'))
            (freed if ps == 1 else carry).extend((g_, (W1PG if ps == 1 else W2PG)[kk]) for kk in range(k - BSTEP + 1, k + 1))
        if ps == 1 and k == XG - 1:
            for t in (0, 1):
                X0END = ws.extra(mfma(acc_of[t], A(aCS + 2 * t, 4), V(vMF, 4)))
    if ps:
        for t in tl:
            g_ = ws.extra(mfma(acc_of[t], A(aCS + 2 * t, 4), V(vMF, 4)))
    PEND.append(g_)
P1END, P2END, P3END, P4END = PEND
for n, x in enumerate(w1late[N1:]):
    ws.fill(1 + 2 * n, x)
for i in range(7):
    ws.fill(1 + 2 * (i + 9 - N1), [I('buffer_load_dwordx2 %s, v%d, %s, s%d offen offset:%d sc1' % (V(vSt + 2 * i, 2), t4, S4(sWS), sStL, 256 * i))])
g1 = X0END - 16
ws.fill(g1 - 14, poll_issue(sCSp))
cs = poll_check(4, sCSp) + L('s_lshl_b32 s3, s%d, 11\ns_add_u32 s3, s3, %d' % (sA, WS_CS))
for n in range(4):
    cs.append(I('buffer_load_dwordx4 %s, v%d, %s, s3 offen offset:%d sc1' % (A(aCS + 4 * n, 4), vL8, S4(sWS), 512 * n)))
ws.fill(g1, cs)
st = []
for (a, b) in ((0, 2), (4, 6), (8, 10), (0, 4), (8, 12), (0, 8)):
    st += L('v_add_f32 v{a}, v{a}, v{b}\nv_add_f32 v{a1}, v{a1}, v{b1}'.format(a=vSt + a, b=vSt + b, a1=vSt + a + 1, b1=vSt + b + 1))
st += halves_sum(vSt, t2) + halves_sum(vSt + 1, t2) + ln_consts(vSt, vSt + 1, vMean, cS, vR)
st += L('v_mul_f32 v%d, 0x%x, v%d' % (cA, NEGL, vR)) + mean_frag(vMean, vMF)
for n, x in enumerate(st):
    ws.fill(X0END - 24 + n // 2, x)
assert len(st) // 2 < 22
SIGD = OPT.get('sigd', 20)
sig_at = []
for stg, e0 in enumerate((X0END + 1, P2END + 1, P3END + 1)):
    es = eslots((2 * stg, 2 * stg + 1))
    for n, sl in enumerate(es):
        for x in sl:
            ws.fill(e0 + n, x)
    if stg == 0:
        assert e0 + 34 <= P2END + 1, 'temporaries of consecutive epilogues overlap'
    sig_at.append(e0 + len(es) - 1 + SIGD)
for stg in range(2):
    ws.fill(sig_at[stg], hhsig(stg))
ws.fill(min(sig_at[2], P4END), hhsig(2))
PD = OPT.get('pd', 30)
CD = OPT.get('cd', 14)
busy = set()
for stg in range(2):
    ws.fill(sig_at[stg] + PD, hhpoll(stg))
    hchk = sig_at[stg] + PD + CD
    ws.fill(hchk, poll_check(7, sPoll))
    g_ = hchk - 1
    for n in range(14 * stg, 14 * stg + 14):
        g_ += 2
        if g_ <= P4END:
            ws.fill(g_, hhload(n))
            busy.add(g_)
            HHN = n + 1
    if stg == 0:
        H0 = hchk
    else:
        H1 = hchk
g_ = 0
while carry:
    g_ = max(g_ + 2, carry[0][0] + 1)
    while g_ in busy or g_ - 1 in busy or g_ + 1 in busy:
        g_ += 1
    if g_ > P4END:
        break
    ws.fill(g_, wddma(carry.pop(0)[1]))
D0 = vX + 32
dinit = []
for j in range(8):
    dinit += L('v_accvgpr_read_b32 v{t}, a{h}\nv_lshlrev_b32 v{a}, 16, v{t}\nv_and_b32 v{b}, 0xffff0000, v{t}'.format(
        t=t2, h=aH + j, a=D0 + 2 * j, b=D0 + 1 + 2 * j))
for n, x in enumerate(dinit):
    ws.fill(2 + n, x)
for nm in OPT['st'] or ():
    if nm.startswith('_g'):
        ws.fill(int(nm[2:]), mkstamp(nm))
for nm, at in (('_m0', 0), ('P1', P1END), ('P2', P2END), ('P3', P3END), ('_h0', H0 - 1), ('_h1', H0 + 1), ('_h2', H1 - 1), ('_h3', H1 + 1)):
    ws.fill(at, mkstamp(nm))
p.add(ws.build())
stamp('P4')
NE = min(OPT.get('ne', 8), len(carry))
p.add(spread(efast(6), [wddma(carry.pop(0)[1]) for _ in range(NE // 2)]) + hhstore(6))
stamp('_e6')
p.add(spread(efast(7), [wddma(carry.pop(0)[1]) for _ in range(NE - NE // 2)]) + hhstore(7))
stamp('_e7')
if STOP <= 3:
    p.add(hhsig(3))
    e('s_branch L_fin')

ws = WStream()
res0 = wd_next[0]
late = [wddma(pg) for _, pg in carry]
assert wd_next[0] == 40
refill = []
for n in range(16):
    refill.append(wddma(WDPG[n]))
wpts = {0: 14, 14: min(res0, 28), min(res0, 28): 40, 40: 48, 48: 56}
for n in range(56):
    for ft in range(2):
        pre = []
        if ft == 0 and n in wpts:
            pre += L('@waitvm ' + ' '.join('wd%d' % q for q in range(n, wpts[n])) + '\ns_barrier')
        pr, off = winD.fix(vAdD + ft, WDPG[n] * PG)
        ws.step(vAdD + ft, off, vAdD + ft, off + 1024,
                lambda a: mfma(D0 + 16 * ft, a, hhreg(n), '0' if (n == 0 and ft == 1) else None), pre + pr)
ws.fill(15, L('s_barrier'))
ws.fill(31, L('s_barrier'))
D3 = OPT.get('d3', 12)
seq = [(hhload(n), 0) for n in range(HHN, 28)] + [(x, 0) for x in late]
pos = -1.0
DSTEP = OPT.get('dstep', 1.4)
while seq and pos + DSTEP < D3:
    pos += DSTEP
    ws.fill(int(pos), seq.pop(0)[0])
s3_ = hhsig(3)
ws.fill(D3, s3_[:1] + hhpoll(2) + s3_[1:] + mkstamp('hh stored'))
pos = D3
seq += [(x, 16) for x in refill[:8]]
seq += [(poll_check(7, sPoll) + hhload(28), OPT.get('d2', 28))] + [(hhload(n), 0) for n in range(29, 38)]
seq += [(hhpoll(3), OPT.get('d4', 40))] + [(hhload(n), 0) for n in range(38, 42)]
seq += [(x, 32) for x in refill[8:]]
seq += [(poll_check(7, sPoll) + hhload(42), OPT.get('d5', 56))] + [(hhload(n), 0) for n in range(43, 56)]
for grp, earliest in seq:
    pos = max(pos + DSTEP, earliest)
    ws.fill(int(pos), grp)
DPOS = pos
fin = L('''
s_lshl_b32 s3, s{w}, 12
v_add_u32 v{t0}, s3, v{l16}
s_xor_b32 s4, s3, 8192
v_add_u32 v{t1}, s4, v{l16}
s_lshl2_add_u32 s3, s{g}, s{tt}
s_mul_i32 s3, s3, 28672
s_lshl1_add_u32 s4, s{cs}, s{kh}
s_lshl_b32 s4, s4, 6
s_add_u32 s{o}, s3, s4
v_and_b32 v{a}, 31, v0
v_mul_u32_u24 v{a}, 896, v{a}
v_lshrrev_b32 v{b}, 5, v0
v_lshl_add_u32 v{a}, v{b}, 4, v{a}
'''.format(w=sW, t0=t0, t1=t1, l16=vL16, g=sG, tt=sTT, cs=sCs, kh=sKh, o=sOff2, a=t2, b=t3))
ws.fill(96, fin)
for nm in OPT['st'] or ():
    if nm.startswith('_d'):
        ws.fill(int(nm[2:]), mkstamp(nm))
for nm, at in (('D0', 27), ('D1', 55), ('D2', 83)):
    ws.fill(at, mkstamp(nm))
assert all(WDPG[n] > 3 for n in range(50, 56)), [WDPG[n] for n in range(48, 56)]
ws.fill(103, L('s_barrier'))
p.add(ws.build())
stamp('D mfma')
for q in range(4):
    e('ds_write_b128 v%d, %s offset:%d' % (t0, V(D0 + 16 + 4 * q, 4), q * 1024))
e('@waitlg0')
e('s_barrier')
for q in range(4):
    e('ds_read_b128 %s, v%d offset:%d' % (V(vX + 4 * q, 4), t1, q * 1024))
for hf_ in range(2):
    for j in range(8 * hf_, 8 * hf_ + 8, 2):
        p.add([pk('add', D0 + j, D0 + j, vX + j)])
    for j in range(4 * hf_, 4 * hf_ + 4):
        e('v_cvt_pk_bf16_f32 v%d, v%d, v%d' % (vY + j, D0 + 2 * j, D0 + 2 * j + 1))
    bb = 4 * hf_
    e('v_permlane32_swap_b32 v%d, v%d' % (vY + bb, vY + bb + 2))
    e('v_permlane32_swap_b32 v%d, v%d' % (vY + bb + 1, vY + bb + 3))
    e('buffer_store_dwordx4 %s, v%d, %s, s%d offen%s%s' % (V(vY + bb, 4), t2, S4(sOUT), sOff2, ' offset:32' if hf_ else '', OPT.get('outm', '')))
e('s_branch L_fin')

main_ins = p.ins
p.ins = []
e('L_idle:')
e('''
s_lshl1_add_u32 s6, s{g}, s{half}
s_cmp_lt_u32 s6, 28
s_cselect_b32 s{gu2}, 1605632, 0
s_mul_i32 s3, s{th}, 802816
s_lshl_b32 s4, s6, 7
s_add_u32 s{o}, s3, s4
v_lshrrev_b32 v{a}, 3, v0
v_mul_u32_u24 v{a}, 3584, v{a}
v_and_b32 v{b}, 7, v0
v_lshl_add_u32 v{a}, v{b}, 4, v{a}
v_mov_b32 v{e0}, 0x3f80
v_mov_b32 v{e1}, 0x3f800000
'''.format(g=sG, half=sHalf, gu2=sGU + 2, th=sTh, o=sOff, a=t0, b=t1, e0=u[0], e1=u[1]))
for n in range(28):
    e('buffer_load_dwordx4 %s, v%d, %s, s%d offen' % (V(vF + 4 * n, 4), t0, S4(sGU), sOff))
    e('s_add_u32 s%d, s%d, 28672' % (sOff, sOff))
    if n == OPT.get('ipre', 0):
        e('s_waitcnt vmcnt(%d)' % (n + 1))
        p.add(signal(sSig))
        stamp('_i0')
        e('s_barrier')
        e('s_cmp_ge_u32 s6, 28')
        e('s_cbranch_scc1 L_idle2')
stamp('_i1')
for j in range(8):
    e('v_mov_b32 v%d, 0' % (vY + j))
for n in range(28):
    for d in range(4):
        e('v_dot2c_f32_bf16 v%d, v%d, v%d' % (vY + 2 * d, vF + 4 * n + d, u[0]))
        e('v_dot2c_f32_bf16 v%d, v%d, v%d' % (vY + 2 * d + 1, vF + 4 * n + d, u[1]))
stamp('_i2')
for j in range(8):
    e('v_mov_b32 v%d, v%d' % (vY + 8 + j, vY + j))
for j in range(8):
    e('v_permlane32_swap_b32 v%d, v%d' % (vY + 8 + j, vY + j))
for j in range(8):
    e('v_add_f32 v%d, v%d, v%d' % (vY + j, vY + j, vY + 8 + j))
for j in range(8):
    e('v_mov_b32 v%d, v%d' % (vY + 8 + j, vY + j))
for j in range(8):
    e('v_permlane16_swap_b32 v%d, v%d' % (vY + 8 + j, vY + j))
for j in range(8):
    e('v_add_f32 v%d, v%d, v%d' % (vY + j, vY + j, vY + 8 + j))
for j in range(8):
    e('v_add_f32_dpp v%d, v%d, v%d row_ror:8 row_mask:0xf bank_mask:0xf' % (vY + 8 + j, vY + j, vY + j))
e('''
s_lshl_b32 s3, s{w}, 8
v_lshl_add_u32 v{a}, v{b}, 5, s3
ds_write_b128 v{a}, {r0}
ds_write_b128 v{a}, {r1} offset:16
s_waitcnt lgkmcnt(0)
s_barrier
v_bfe_u32 v{a}, v0, 4, 1
v_lshlrev_b32 v{a}, 9, v{a}
v_and_b32 v{b}, 15, v0
v_lshl_add_u32 v{a}, v{b}, 2, v{a}
v_lshrrev_b32 v{b}, 5, v0
v_lshl_add_u32 v{a}, v{b}, 7, v{a}
ds_read_b32 v{y0}, v{a}
ds_read_b32 v{y1}, v{a} offset:256
ds_read_b32 v{y2}, v{a} offset:64
ds_read_b32 v{y3}, v{a} offset:320
v_mov_b32 v{x1}, 0
v_mov_b32 v{x3}, 0
s_lshl_b32 s3, s6, 10
s_add_u32 s3, s3, {base}
s_lshr_b32 s4, s6, 1
s_lshl_b32 s4, s4, 13
s_add_u32 s4, s4, {cc}
v_add_f32 v{y0}, v{y0}, v{y1}
v_add_f32 v{y2}, v{y2}, v{y3}
'''.format(w=sW, a=t0, b=t1, r0=V(vY + 8, 4), r1=V(vY + 12, 4), y0=vY, y1=vY + 1, y2=vY + 2, y3=vY + 3, x1=vX + 1, x3=vX + 3,
           base=WS_CS, cc=C_CS * 128))
p.add(hilo(vY, vX, t2) + hilo(vY + 2, vX + 2, t2))
stamp('_i3')
e('s_cmp_ge_u32 s%d, 2' % sW)
e('s_cbranch_scc1 L_idle1')
e('buffer_store_dwordx4 %s, v%d, %s, s3 offen sc1' % (V(vX, 4), vL16, S4(sWS)))
e('s_waitcnt vmcnt(0)')
p.add(signal(4))
e('s_waitcnt vmcnt(0)')
e('L_idle1:')
e('s_barrier')
e('L_idle2:')
stamp('_i4')
if OPT.get('idlepf', 1):
    e('''
    v_lshlrev_b32 v{a}, 7, v0
    s_lshl2_add_u32 s3, s{gl}, s{w}
    s_and_b32 s4, s2, 7
    s_mul_i32 s4, s4, 32
    s_add_u32 s3, s3, s4
    '''.format(a=t0, gl=sGl, w=sW))
    for n in range(13):
        for x in ['s_cmp_ge_u32 s3, 208', 's_cselect_b32 s4, 208, 0', 's_sub_u32 s3, s3, s4', 's_lshl_b32 s5, s3, 13',
                  'buffer_load_dword v%d, v%d, %s, s5 offen' % (vX + 8 + n, t0, S4(sWD)), 's_add_u32 s3, s3, 16']:
            e(x)
e('L_fin:')
if OPT.get('fixt'):
    e('s_waitcnt vmcnt(0) lgkmcnt(0)')
    e('L_fix:')
    for x in ['s_memrealtime s[96:97]', 's_waitcnt lgkmcnt(0)', 's_sub_u32 s96, s96, s98', 's_cmp_lt_u32 s96, %d' % OPT['fixt'], 's_cbranch_scc1 L_fix']:
        e(x, raw=True)
if DIAG:
    e('s_waitcnt vmcnt(0)')
    e('s_memtime s[76:77]' if OPT['cyc'] else 's_memrealtime s[76:77]')
    e('s_memtime s[74:75]')
    e('s_waitcnt lgkmcnt(0)')
    e('s_sub_u32 s74, s74, s100')
    e('v_mov_b32 v%d, s74' % (vX + 14))
    e('v_mov_b32 v%d, s101' % (vX + 15))
    e('s_lshl_b32 s3, s2, 2')
    e('s_add_u32 s3, s3, s%d' % sW)
    e('s_lshl_b32 s3, s3, 6')
    e('s_add_u32 s3, s3, %d' % WS_TS)
    for n in range(12):
        e('v_mov_b32 v%d, s%d' % (vX + n, sTS + 2 * n))
    e('v_mov_b32 v%d, s76' % (vX + 12))
    e('s_getreg_b32 s4, hwreg(HW_REG_XCC_ID)')
    e('v_mov_b32 v%d, s4' % (vX + 13))
    e('s_mov_b64 exec, 1')
    for q in range(4):
        e('buffer_store_dwordx4 %s, off, %s, s3 offset:%d' % (V(vX + 4 * q, 4), S4(sWS), 16 * q))
e('s_waitcnt vmcnt(0) lgkmcnt(0)')
e('L_end:')
e('s_endpgm')
tail_ins = p.ins

p.ins = main_ins
p.finalize()
body = p.text()
stats = dict(p.stats)
kinds = {}
for i in p.out:
    kinds[i.kind] = kinds.get(i.kind, 0) + 1
p.ins = tail_ins
p.finalize()
body += '\n' + p.text()

hdr = open('sequential_preLN__linear_attn_block__glu_gated_glu__prompt.s.ref').read().split('\n')
head = [l for l in hdr if l.startswith(';') and '@launch' not in l and 'Override' not in l and 'grid=ceil' not in l]
out = '\n'.join(head) + '''
; @launch grid=(256,1,1) block=(256,1,1) lds=163840
.amdgcn_target "amdgcn-amd-amdhsa--gfx950"
.text
.globl {n}
.p2align 8
.type {n},@function
{n}:
{body}
.section .rodata,"a"
.p2align 6
.amdhsa_kernel {n}
  .amdhsa_next_free_vgpr 512
  .amdhsa_next_free_sgpr 102
  .amdhsa_accum_offset 256
  .amdhsa_group_segment_fixed_size 0
  .amdhsa_kernarg_size 80
  .amdhsa_user_sgpr_count 2
  .amdhsa_user_sgpr_kernarg_segment_ptr 1
  .amdhsa_system_sgpr_workgroup_id_x 1
  .amdhsa_float_denorm_mode_32 3
.end_amdhsa_kernel
'''.format(n=NAME, body=body)
open(sys.argv[1], 'w').write(out)
print(kinds, stats, 'res0', res0, 'H0', H0, H1, 'HHN', HHN, 'X0END', X0END, PEND, 'sig', sig_at, 'dslot', DSLOT1, 'dpos', DPOS, file=sys.stderr)
```

```python
import sys
from asmlib import Prog, I

NAME = 'sequential_preLN__linear_attn_block__glu_gated_glu__prompt_kernel'

OPT = dict(diag=0, stop=99, spin=200000, abl='', cyc=0, st=None)
for a in sys.argv[2:]:
    k, v = a.split('=')
    OPT[k] = eval(v)
DIAG = OPT['diag']
STOP = OPT['stop']

WS_CNT = 0
WS_KVP = 0x20000
WS_CS = 0xA0000
WS_O = 0x120000
WS_H = 0x320000
WS_ST = 0x520000
WS_HH = 0x560000
WS_TS = 0xC60000
WS_SIZE = 0xD00000
C_O, C_H, C_KV, C_HH, C_CS = 0, 8, 12, 16, 48

sX, sQKV, sWO, sGU, sWD, sOUT, sWS, sDBG = 24, 28, 32, 36, 40, 44, 48, 52
sOff, sOff2, sIter, sPoll = 56, 57, 58, 59
sG, sM, sW, sCs, sWK, sHalf, sA, sTh, sKh, sCnt = 60, 61, 62, 63, 64, 65, 66, 67, 68, 69
sCh = 70
sIdx = 77
sT = [3, 4, 5, 6, 7, 8, 9, 10, 11, 12, 13]
sMaskHi = 14
sMask28 = 16
sGl, sGood, sSig, sSt, sTT, sZero = 18, 19, 20, 21, 22, 23
sGUt = [28, 29, 30, 31, 52, 53, 54]
sWDt = [24, 25, 26, 27, 32, 33, 34]
sHHt = [0, 1, 16, 17, 19, 23, 55]
sTS = 78


def S4(b):
    return 's[%d:%d]' % (b, b + 3)


def V(b, n=1):
    return 'v%d' % b if n == 1 else 'v[%d:%d]' % (b, b + n - 1)


def A(b, n=1):
    return 'a%d' % b if n == 1 else 'a[%d:%d]' % (b, b + n - 1)


vL16, vOne, vP, vL8 = 1, 2, 3, 4
vOffX = 5
vAdX = 9
vAdC = 9
vOffKV, vAdK, vAdV, vOffQ, vAdQ = 13, 14, 15, 16, 17
vAdD = 14
vOffWO, vOffXR, vOffGU, vOffWD = 18, 19, 20, 21
vAdWO, vAdWOp = 22, 24
vT = 26
vP2, vP3 = 238, 239
vY = 32
vX = 64
vF = 128
vGUo, vWDo, vL16b, vMF, vCc, vSt, vHH = 128, 136, 144, 148, 152, 156, 172
vU = 240
aW = 0
aH = 32
aF = 40
aCS = 152
aR = 172
t0, t1, t2, t3, t4, t5 = range(vT, vT + 6)
u = [vU + i for i in range(16)]

PG = 4096
LOG2E = 0x3fb8aa3b
NEGL = 0xbfb8aa3b
EPS6 = 0x358637bd
EPS5 = 0x3727c5ac
INV448 = 0x3b124925

p = Prog()
e = p.e
nstamp = [0]
nlab = [0]


def L(x):
    return [I(t.strip()) for t in x.strip().split('\n') if t.strip()]


def mkstamp(name):
    if not DIAG:
        return []
    early = ('o flag', 'x0 landed', 'x read', 'A1 mfma', 'kv stored', 'A2 mfma', 'q done', 'kv flag', 'kv loaded', 'o stored')
    if OPT['st'] is not None:
        if name != 'start' and name not in OPT['st']:
            return []
    elif name != 'start' and ((DIAG == 1) != (name in early) or name.startswith('_')):
        return []
    n = nstamp[0]
    assert n < 11
    nstamp[0] += 1
    return [I('%s s[%d:%d] ; @%s' % ('s_memtime' if OPT['cyc'] else 's_memrealtime', sTS + 2 * n, sTS + 2 * n + 1, name))]


def stamp(name):
    p.add(mkstamp(name))


def dma(voff, srd, so, m0, tag, pre=(), imm=0):
    r = []
    if m0 is not None:
        r.append(I('s_add_u32 m0, s%d, 0x%x' % (sWK, m0)))
    r += [I(t) for t in pre]
    r.append(I('buffer_load_dwordx4 v%d, %s, %s offen%s lds' % (voff, S4(srd), so, ' offset:%d' % imm if imm else ''), tag=tag))
    return r


def poll_issue(soff, atomic=True):
    if OPT.get('apoll', 1) and atomic:
        return L('v_mov_b32 v%d, 0\ns_mov_b64 exec, 1\nbuffer_atomic_umax v%d, off, %s, s%d sc0\ns_mov_b64 exec, -1' % (vP, vP, S4(sWS), soff))
    return [I('buffer_load_dword v%d, off, %s, s%d sc1' % (vP, S4(sWS), soff))]


def poll_check(expect, soff, srd=sWS):
    n = nlab[0]
    nlab[0] += 1
    t = sT[0]
    so = soff if isinstance(soff, str) else 's%d' % soff
    r = L('''
    v_readfirstlane_b32 s%d, v%d
    s_cmp_ge_u32 s%d, %d
    s_cbranch_scc1 L_ok%d
    s_mov_b32 s%d, %d
    ''' % (t, vP, t, expect, n, sIter, OPT['spin']))
    ld = lambda v: 'buffer_load_dword v%d, off, %s, %s sc1' % (v, S4(srd), so)
    chk = lambda v: ['v_readfirstlane_b32 s%d, v%d' % (t, v), 's_nop 0', 's_cmp_ge_u32 s%d, %d' % (t, expect), 's_cbranch_scc1 L_ok%d' % n]
    loop = ['s_sub_u32 s%d, s%d, 1' % (sIter, sIter), 's_cmp_lg_u32 s%d, 0' % sIter, 's_cbranch_scc1 L_spin%d' % n]
    pm = OPT.get('pm', 0)
    if OPT.get('apoll', 1) and srd == sWS:
        body = ['L_spin%d:' % n] + (['s_sleep %d' % OPT['asl']] if OPT.get('asl') else []) + ['s_mov_b64 exec, 1', 'buffer_atomic_umax v%d, off, %s, %s sc0' % (vP, S4(srd), so), 's_mov_b64 exec, -1',
                's_waitcnt vmcnt(0)'] + chk(vP) + loop
    elif pm == 0:
        body = ['L_spin%d:' % n, ld(vP), 's_waitcnt vmcnt(0)'] + chk(vP) + loop
    elif pm < 0:
        body = ['L_spin%d:' % n, 's_sleep %d' % -pm, ld(vP), 's_waitcnt vmcnt(0)'] + chk(vP) + loop
    else:
        body = [ld(vP), 'L_spin%d:' % n, 's_sleep %d' % pm, ld(vP2), 's_waitcnt vmcnt(1)'] + chk(vP) + \
               ['s_sleep %d' % pm, ld(vP), 's_waitcnt vmcnt(1)'] + chk(vP2) + loop
    for x in body:
        r.append(I(x, raw=True))
    r.append(I('L_ok%d:' % n))
    return r


def poll_pipe_issue(soff):
    return L('v_mov_b32 v%d, 0\nv_mov_b32 v%d, 0' % (vP2, vP3)) + poll_issue(soff)


def poll_pipe_check(expect, soff):
    n = nlab[0]
    nlab[0] += 1
    t = sT[0]
    at = lambda v: 'buffer_atomic_umax v%d, off, %s, s%d sc0' % (v, S4(sWS), soff)
    chk = lambda v: ['s_waitcnt vmcnt(2)', 'v_readfirstlane_b32 s%d, v%d' % (t, v), 's_nop 0', 's_cmp_ge_u32 s%d, %d' % (t, expect),
                     's_cbranch_scc1 L_ok%d' % n]
    sl = 's_sleep %d' % OPT.get('psl', 3)
    body = ['s_mov_b32 s%d, %d' % (sIter, OPT['spin']), 's_mov_b64 exec, 1', at(vP2), sl, 'L_spin%d:' % n, at(vP3)] + chk(vP) + \
           [at(vP)] + chk(vP2) + [at(vP2)] + chk(vP3) + \
           ['s_sub_u32 s%d, s%d, 1' % (sIter, sIter), 's_cmp_lg_u32 s%d, 0' % sIter, 's_cbranch_scc1 L_spin%d' % n]
    r = [I(x, raw=True) for x in body]
    return r + [I('L_ok%d:' % n), I('s_mov_b64 exec, -1'), I('@assumevm0')]


def signal(soff, imm=0):
    return L('''
    s_mov_b64 exec, 1
    buffer_atomic_add v%d, off, %s, s%d%s
    s_mov_b64 exec, -1
    ''' % (vOne, S4(sWS), soff, ' offset:%d' % imm if imm else ''))


def mfma(d, a, b, c=None):
    return I('v_mfma_f32_32x32x16_bf16 %s, %s, %s, %s' % (V(d, 16), a, b, V(d, 16) if c is None else c))


def colsum4(acc, q, first):
    return [I('v_mfma_f32_4x4x4_16b_bf16 %s, %s, %s, %s' % (V(acc + 4 * h, 4), V(vOnes, 2), A(q + 2 * h, 2), '0' if first else V(acc + 4 * h, 4))) for h in range(2)]


class WStream:
    def __init__(self, look=7, nbuf=8, wper=4):
        self.items = []
        self.look = look
        self.nbuf = nbuf
        self.wper = wper
        self.n = 0
        self.fills = {}

    def step(self, addr0, off0, addr1, off1, mk, pre=None, post=None):
        q = aW + 4 * (self.n % self.nbuf)
        self.n += 1
        rd = list(pre or [])
        rd.append(I('ds_read_b64_tr_b16 %s, v%d offset:%d' % (A(q, 2), addr0, off0)))
        rd.append(I('ds_read_b64_tr_b16 %s, v%d offset:%d' % (A(q + 2, 2), addr1, off1)))
        self.items.append((rd, mk(A(q, 4)), post(q) if post else []))
        return len(self.items) - 1

    def extra(self, m):
        self.items.append(([], m, []))
        return len(self.items) - 1

    def fill(self, idx, grp):
        g = grp if isinstance(grp, list) else [grp]
        ab = OPT['abl']
        if ab and not any(x.kind in ('label', 'sctl') or 'exec' in x.text for x in g):
            if 'v' in ab:
                g = [x for x in g if x.kind != 'valu']
            if 'd' in ab and any(x.kind == 'dma' for x in g):
                g = []
            if 'b' in ab:
                g = [x for x in g if x.kind != 'barrier']
        if g:
            self.fills.setdefault(idx, []).append(g)

    def build(self):
        out = []
        n = len(self.items)
        withrd = [i for i in range(n) if self.items[i][0]]
        nxt = 0
        used = 0
        while nxt < min(self.look, len(withrd)):
            out += self.items[withrd[nxt]][0]
            nxt += 1
        for i in range(n):
            rd, m, post = self.items[i]
            if rd:
                if used % self.wper == 0:
                    m.ahead = 2 * min(self.wper - 1, nxt - used - 1)
                used += 1
            out.append(m)
            gs = self.fills.pop(i, [])
            first = [g for g in gs if g[0].kind == 'barrier']
            rest = [g for g in gs if g[0].kind != 'barrier']
            for g in first:
                out += g
            mem = [g for g in rest if not all(x.kind == 'valu' for x in g)]
            if mem and mem[0][0].kind == 'salu' and mem[0][-1].kind == 'dma':
                out.append(mem[0][0])
                mem[0] = mem[0][1:]
            if rd and nxt < len(withrd):
                out += self.items[withrd[nxt]][0]
                nxt += 1
            for g in mem:
                out += g
            for g in rest:
                if all(x.kind == 'valu' for x in g):
                    out += g
            out += post
        assert not self.fills, list(self.fills)
        return out


def spread(main, fill):
    out = []
    n, m = len(main), len(fill)
    j = 0
    for i, x in enumerate(main):
        out.append(x)
        while j < m and (j + 1) * n <= (i + 1) * (m + 1):
            out.extend(fill[j])
            j += 1
    while j < m:
        out.extend(fill[j])
        j += 1
    return out


def zip_groups(groups):
    out = []
    n = max(len(g) for g in groups)
    for k in range(n):
        for g in groups:
            if k < len(g):
                out.append(g[k])
    return out


def pk(op, d, a, b, c=None, mod=''):
    f = lambda r: r if isinstance(r, str) else V(r, 2)
    return I('v_pk_%s_f32 %s, %s, %s%s %s' % (op, f(d), f(a), f(b), '' if c is None else ', ' + f(c), mod))


def halves_sum(x, t):
    return L('''
    v_mov_b32 v{t}, v{x}
    v_permlane32_swap_b32 v{t}, v{x}
    v_add_f32 v{x}, v{t}, v{x}
    '''.format(t=t, x=x))


def ln_consts(s, q, mean, std, r):
    return L('''
    v_mul_f32 v{a}, 0x{i:x}, v{s}
    v_mul_f32 v{b}, 0x{i:x}, v{q}
    v_fma_f32 v{b}, -v{a}, v{a}, v{b}
    v_max_f32 v{b}, 0, v{b}
    v_cvt_pk_bf16_f32 v{a}, v{a}, v{b}
    v_and_b32 v{b}, 0xffff0000, v{a}
    v_lshlrev_b32 v{a}, 16, v{a}
    v_add_f32 v{b}, 0x{e:x}, v{b}
    v_cvt_pk_bf16_f32 v{b}, v{b}, v{b}
    v_lshlrev_b32 v{b}, 16, v{b}
    v_sqrt_f32 v{b}, v{b}
    v_cvt_pk_bf16_f32 v{b}, v{b}, v{b}
    v_lshlrev_b32 v{b}, 16, v{b}
    v_rcp_f32 v{r}, v{b}
    '''.format(a=mean, b=std, s=s, q=q, r=r, i=INV448, e=EPS5))


def mean_frag(mean, d):
    return L('''
    v_cvt_pk_bf16_f32 v{d}, -v{m}, -v{m}
    v_mov_b32 v{d1}, 0
    v_mov_b32 v{d2}, 0
    v_mov_b32 v{d3}, 0
    v_cndmask_b32 v{d}, v{d}, 0, s[{h}:{h1}]
    '''.format(d=d, d1=d + 1, d2=d + 2, d3=d + 3, m=mean, h=sMaskHi, h1=sMaskHi + 1))


def hilo(c, d, t):
    return L('''
    v_cvt_pk_bf16_f32 v{t}, v{c}, v{c}
    v_lshlrev_b32 v{t}, 16, v{t}
    v_sub_f32 v{t}, v{c}, v{t}
    v_cvt_pk_bf16_f32 v{d}, v{c}, v{t}
    '''.format(c=c, d=d, t=t))


e('s_cmp_ge_u32 s2, 256')
e('s_cbranch_scc1 L_end')
if OPT.get('fixt'):
    e('s_memrealtime s[98:99]')
stamp('start')
if DIAG:
    e('s_memtime s[100:101]')
e('s_load_dwordx4 s[4:7], s[0:1], 0')
e('s_load_dwordx2 s[%d:%d], s[0:1], 16' % (sWO, sWO + 1))
e('s_load_dwordx8 s[8:15], s[0:1], 32')
e('s_load_dwordx4 s[20:23], s[0:1], 64')
XP0 = 12
e("""
v_lshrrev_b32 v{t0}, 6, v0
v_and_b32 v0, 63, v0
v_readfirstlane_b32 s{w}, v{t0}
s_lshr_b32 s{idx}, s2, 3
""".format(t0=t0, w=sW, idx=sIdx))
if OPT.get('cpf', 1):
    sCODE = 72
    e('s_getpc_b64 s[%d:%d]' % (sCODE, sCODE + 1))
    e('L_pc:')
    e("""
    s_mov_b32 s{c2}, L_end-L_pc
    s_mov_b32 s{c3}, 0x20000
    s_lshl2_add_u32 s3, s{idx}, s{w}
    s_lshl_b32 s3, s3, 9
    v_and_b32 v{t3}, 3, v0
    v_lshlrev_b32 v{t3}, 7, v{t3}
    buffer_load_dword v{d}, v{t3}, {code}, s3 offen
    """.format(c2=sCODE + 2, c3=sCODE + 3, idx=sIdx, w=sW, t3=t3, d=t5, code=S4(sCODE)))
e("""
s_bfe_u32 s3, s2, 0x20001
s_and_b32 s{gl}, s{idx}, 3
s_lshr_b32 s{cs}, s{idx}, 2
s_lshl2_add_u32 s{g}, s3, s{gl}
s_lshl1_add_u32 s{c0}, s{gl}, s{cs}
s_add_u32 s{c0}, s{c0}, s3
s_mul_i32 s3, s{c0}, 37
s_lshr_b32 s3, s3, 8
s_mul_i32 s3, s3, 7
s_sub_u32 s{c0}, s{c0}, s3
v_lshrrev_b32 v{u0}, 3, v0
v_and_b32 v{u1}, 7, v0
v_lshrrev_b32 v{u2}, 4, v0
s_lshl2_add_u32 s3, s{g}, s{w}
s_mul_i32 s3, s3, 28672
v_mul_u32_u24 v{t0}, 896, v{u0}
v_xor_b32 v{t1}, v{u1}, v{u2}
v_add_u32 v{t0}, s3, v{t0}
v_lshl_add_u32 v{x0}, v{t1}, 4, v{t0}
v_xor_b32 v{t1}, 4, v{t1}
v_lshl_add_u32 v{x1}, v{t1}, 4, v{t0}
v_add_u32 v{x2}, 12288, v{x0}
v_add_u32 v{x3}, 18432, v{x1}
v_add_u32 v{x1}, 6144, v{x1}
s_mul_i32 s{o2}, s{w}, {xs}
s_add_u32 s{o2}, s{o2}, {xb}
s_mov_b32 s{X2}, 1835008
s_mov_b32 s{X3}, 0x20000
""".format(t0=t0, t1=t1, w=sW, idx=sIdx, gl=sGl, cs=sCs, g=sG, c0=sCh, u0=u[0], u1=u[1], u2=u[2],
           x0=vOffX, x1=vOffX + 1, x2=vOffX + 2, x3=vOffX + 3, o2=sOff2, xs=7 * PG, xb=XP0 * PG, X2=sX + 2, X3=sX + 3))


def nextch(i):
    e('s_add_u32 s%d, s%d, 1' % (sCh + i, sCh + i - 1))
    e('s_cmp_ge_u32 s%d, 7' % (sCh + i))
    e('s_cselect_b32 s%d, 0, s%d' % (sCh + i, sCh + i))


def xdma(i):
    r = L('s_add_u32 m0, s%d, %d\ns_lshl_b32 s%d, s%d, 7' % (sOff2, i * PG, sOff, sCh + i))
    for q in range(4):
        r.append(I('buffer_load_dwordx4 v%d, %s, s%d offen%s lds' % (vOffX + q, S4(sX), sOff, ' offset:%d' % (q * 1024) if q else ''), tag='x%d' % i))
    return r


nextch(1)
stamp('_prek')
e('@waitlg0')
stamp('_karg')
e('s_mov_b32 s%d, s4' % sX)
e('s_mov_b32 s%d, s5' % (sX + 1))
p.add(xdma(0))
p.add(xdma(1))
stamp('_x01')
for i in range(2, 7):
    nextch(i)
e("""
s_and_b32 s{half}, s2, 1
s_lshl3_add_u32 s{m}, s{half}, s{cs}
s_sub_u32 s{a}, s{m}, s{half}
s_lshl_b32 s{wk}, s{w}, 10
s_lshl_b32 s{cnt}, s{g}, 13
s_and_b32 s{th}, s{w}, 1
s_lshr_b32 s{kh}, s{w}, 1
s_mov_b32 s{q}, s6
s_mov_b32 s{q1}, s7
s_cmp_lt_u32 s{w}, 2
s_cselect_b32 s{gu}, s8, s10
s_cselect_b32 s{gu1}, s9, s11
s_mov_b32 s{wd}, s12
s_mov_b32 s{wd1}, s13
s_mov_b32 s{out}, s14
s_mov_b32 s{out1}, s15
s_mov_b32 s{dbg}, s20
s_mov_b32 s{dbg1}, s21
s_mov_b32 s{ws}, s22
s_mov_b32 s{ws1}, s23
s_cmp_lt_u32 s{cs}, 7
s_cselect_b32 s{wo2}, 401408, 0
s_cselect_b32 s{gu2}, 1605632, 0
s_lshl1_add_u32 s{tt}, s{half}, s{th}
""".format(half=sHalf, m=sM, cs=sCs, a=sA, wk=sWK, w=sW, cnt=sCnt, g=sG, th=sTh, kh=sKh, q=sQKV, q1=sQKV + 1,
           gu=sGU, gu1=sGU + 1, wd=sWD, wd1=sWD + 1, out=sOUT, out1=sOUT + 1, dbg=sDBG, dbg1=sDBG + 1,
           ws=sWS, ws1=sWS + 1, wo2=sWO + 2, gu2=sGU + 2, tt=sTT))
for srd, size in ((sQKV, 1204224), (sWO, None), (sWD, 1605632), (sGU, None), (sOUT, 1835008), (sDBG, 256), (sWS, WS_SIZE)):
    if size:
        e('s_mov_b32 s%d, 0x%x' % (srd + 2, size))
    e('s_mov_b32 s%d, 0x20000' % (srd + 3))
e("""
v_lshlrev_b32 v{l16}, 4, v0
v_lshlrev_b32 v{l8}, 3, v0
v_mov_b32 v{one}, 1
v_and_b32 v{u3}, 31, v0
v_lshrrev_b32 v{u4}, 5, v0
v_bfe_u32 v{u5}, v0, 2, 2
v_and_b32 v{u6}, 3, v0
v_bfe_u32 v{u7}, v0, 4, 1
""".format(l16=vL16, l8=vL8, one=vOne, u3=u[3], u4=u[4], u5=u[5], u6=u[6], u7=u[7]))
e("""
s_cmp_eq_u32 s{m}, 15
s_cselect_b32 s3, 1, 0
s_cmp_eq_u32 s{w}, 0
s_cselect_b32 s{z}, s3, 0
s_cmp_eq_u32 s{z}, 0
s_cbranch_scc1 L_nozero
v_lshlrev_b32 v{t3}, 7, v0
v_mov_b32 v{t4}, 0
""".format(m=sM, w=sW, t3=t3, t4=t4, z=sZero))
e('buffer_store_dword v%d, v%d, %s, s%d offen sc1' % (t4, t3, S4(sWS), sCnt), raw=True)
e('L_nozero:')
e('v_cmp_lt_u32 s[%d:%d], 31, v0' % (sMaskHi, sMaskHi + 1))
e('v_cmp_eq_u32 s[%d:%d], 28, v%d' % (sMask28, sMask28 + 1, u[3]))
e('''
v_lshlrev_b32 v{t0}, 7, v{u3}
v_add_u32 v{t0}, s{xb}, v{t0}
v_bfe_u32 v{t1}, v0, 1, 3
v_xor_b32 v{t1}, v{t1}, v{u4}
'''.format(t0=t0, t1=t1, u3=u[3], u4=u[4], xb=sOff2))
for ks in range(4):
    e('v_xor_b32 v%d, %d, v%d' % (t2, 2 * ks, t1))
    e('v_lshl_add_u32 v%d, v%d, 4, v%d' % (vAdX + ks, t2, t0))
e('''
v_lshlrev_b32 v{t0}, 2, v{u7}
v_xor_b32 v{t0}, v{t0}, v{u1}
v_lshlrev_b32 v{t4}, 4, v{t0}
v_lshrrev_b32 v{t1}, 2, v{t0}
v_and_b32 v{t0}, 3, v{t0}
v_lshlrev_b32 v{t2}, 1, v{t0}
v_min_u32 v{t2}, 5, v{t2}
v_lshlrev_b32 v{t2}, 3, v{t2}
s_movk_i32 s{k}, 896
v_mad_u32_u24 v{t2}, v{t1}, s{k}, v{t2}
v_mad_u32_u24 v{t4}, v{u0}, s{k}, v{t4}
s_lshl_b32 s3, s{w}, 3
v_add_u32 v{t3}, s3, v{u0}
s_movk_i32 s{k}, 2688
v_mad_u32_u24 v{t2}, v{t3}, s{k}, v{t2}
s_mul_i32 s3, s{m}, 56
s_add_u32 s4, s3, 896
v_add_u32 v{kv}, s4, v{t2}
'''.format(t0=t0, t1=t1, t2=t2, t3=t3, t4=t4, u0=u[0], u1=u[1], u7=u[7], k=sOff, w=sW, m=sM, kv=vOffKV))
e('''
s_lshl_b32 s6, s{cs}, 7
s_mul_i32 s4, s{w}, 7168
s_add_u32 s4, s4, s6
v_add_u32 v{wo}, s4, v{t4}
s_mul_i32 s4, s{kh}, 802816
s_mul_i32 s5, s{th}, 7168
s_add_u32 s4, s4, s5
s_add_u32 s4, s4, s6
v_add_u32 v{wd}, s4, v{t4}
'''.format(t4=t4, cs=sCs, w=sW, kh=sKh, th=sTh, wo=vOffWO, wd=vOffWD))
e('''
v_lshlrev_b32 v{t2}, 1, v{u6}
v_min_u32 v{t2}, 5, v{t2}
v_lshlrev_b32 v{t2}, 3, v{t2}
v_lshrrev_b32 v{t3}, 2, v0
v_mul_u32_u24 v{t4}, 896, v{t3}
s_lshl_b32 s4, s{w}, 4
v_add_u32 v{t3}, s4, v{t3}
v_mad_u32_u24 v{t2}, v{t3}, s{k}, v{t2}
v_add_u32 v{q}, s3, v{t2}
s_lshl2_add_u32 s4, s{g}, s{tt}
s_mul_i32 s4, s4, 28672
s_add_u32 s4, s4, s6
s_lshl_b32 s5, s{kh}, 6
s_add_u32 s4, s4, s5
v_lshl_add_u32 v{t4}, v{u6}, 4, v{t4}
v_add_u32 v{xr}, s4, v{t4}
'''.format(t2=t2, t3=t3, t4=t4, u6=u[6], k=sOff, w=sW, q=vOffQ, g=sG, tt=sTT, kh=sKh, xr=vOffXR))
WQP = 14
e('''
v_lshlrev_b32 v{t0}, 3, v{u6}
v_lshl_add_u32 v{t0}, v{u7}, 5, v{t0}
v_lshrrev_b32 v{t1}, 1, v{u6}
v_and_b32 v{t1}, v{t1}, v{u7}
v_lshlrev_b32 v{t1}, 3, v{t1}
v_xor_b32 v{t1}, v{t0}, v{t1}
v_lshrrev_b32 v{t2}, 1, v{u5}
v_lshlrev_b32 v{t2}, 6, v{t2}
v_lshl_add_u32 v{t3}, v{u4}, 3, v{u5}
v_xor_b32 v{t4}, v{t1}, v{t2}
v_lshl_add_u32 v{ak}, v{t3}, 7, v{t4}
v_xor_b32 v{av}, 64, v{ak}
v_lshl_add_u32 v{aq}, v{t3}, 6, v{t1}
v_add_u32 v{aq}, {qb}, v{aq}
'''.format(t0=t0, t1=t1, t2=t2, t3=t3, t4=t4, u4=u[4], u5=u[5], u6=u[6], u7=u[7], ak=vAdK, av=vAdV, aq=vAdQ, qb=WQP * PG))
e('''
v_xor_b32 v{t4}, v{t0}, v{t2}
s_lshl_b32 s3, s{kh}, 6
v_xor_b32 v{t4}, s3, v{t4}
v_lshl_add_u32 v{t4}, v{u5}, 7, v{t4}
s_mul_i32 s3, s{kh}, 28672
v_add_u32 v{p0}, s3, v{t4}
v_xor_b32 v{p1}, 64, v{p0}
v_lshl_add_u32 v{a0}, v{u4}, 9, v{p0}
v_xor_b32 v{a1}, 64, v{a0}
'''.format(t0=t0, t2=t2, t4=t4, u4=u[4], u5=u[5], kh=sKh, p0=vAdWOp, p1=vAdWOp + 1, a0=vAdWO, a1=vAdWO + 1))
e('''
s_lshl_b32 s4, s{kh}, 2
v_lshl_add_u32 v{t0}, v{u7}, 1, s4
v_xor_b32 v{t0}, v{t0}, v{u1}
v_lshlrev_b32 v{t0}, 4, v{t0}
s_movk_i32 s{k}, 3584
v_mad_u32_u24 v{t0}, v{u0}, s{k}, v{t0}
s_mul_i32 s4, s{th}, 28672
s_lshl_b32 s5, s{a}, 8
s_add_u32 s4, s4, s5
v_add_u32 v{gu}, s4, v{t0}
'''.format(t0=t0, u0=u[0], u1=u[1], u7=u[7], k=sOff, kh=sKh, th=sTh, a=sA, gu=vOffGU))
vSw = vY
sSW = 8
e('''
s_mul_i32 s3, s{idx}, 14
s_lshl2_add_u32 s3, s{w}, s3
s_mul_i32 s3, s3, 2688
s_mul_i32 s4, s{half}, 384
s_add_u32 s3, s3, s4
v_mul_u32_u24 v{t0}, 2688, v{u2}
v_bfe_u32 v{t1}, v0, 2, 2
v_min_u32 v{t1}, 2, v{t1}
v_mul_u32_u24 v{t1}, 896, v{t1}
v_and_b32 v{t2}, 3, v0
v_lshl_add_u32 v{t1}, v{t2}, 7, v{t1}
v_add3_u32 v{c}, v{t0}, v{t1}, s3
s_add_u32 s3, s{cs}, 1
s_lshr_b32 s3, s3, 1
s_mul_i32 s4, s{gl}, 5
s_add_u32 s3, s3, s4
s_lshl1_add_u32 s4, s3, s{th}
s_mul_i32 s4, s4, 3
s_bfe_u32 s5, s2, 0x20001
s_mul_i32 s5, s5, 112
s_add_u32 s4, s4, s5
s_mul_i32 s4, s4, 3584
s_mul_i32 s5, s{half}, 1792
s_add_u32 s4, s4, s5
v_min_u32 v{t0}, 2, v{u2}
v_mul_u32_u24 v{t0}, 3584, v{t0}
v_and_b32 v{t1}, {swm}, v0
v_min_u32 v{t1}, {swx}, v{t1}
v_lshl_add_u32 v{t0}, v{t1}, 7, v{t0}
v_add_u32 v{a}, s4, v{t0}
v_min_u32 v{t1}, 6, v{u1}
s_lshl2_add_u32 s3, s3, s{w}
s_min_u32 s3, s3, 55
s_and_b32 s4, s2, 7
s_mul_i32 s4, s4, 56
s_add_u32 s3, s3, s4
s_mul_i32 s3, s3, 896
v_lshlrev_b32 v{t1}, 7, v{t1}
v_add_u32 v{b}, s3, v{t1}
s_mul_i32 s3, s{half}, 42
s_add_u32 s3, s3, 0xab
s_lshr_b32 s3, s3, s{cs}
s_and_b32 s{good}, s3, 1
'''.format(cs=sCs, gl=sGl, th=sTh, half=sHalf, w=sW, t0=t0, t1=t1, t2=t2, u0=u[0], u1=u[1], u2=u[2], a=vSw, b=vSw + 1, c=vY + 13,
           good=sGood, idx=sIdx, swm=14 if OPT.get('swh') else 15, swx=12 if OPT.get('swh') else 13))


if OPT.get('swf', 0):
    e('''
    s_add_u32 s3, s{cs}, 1
    s_lshr_b32 s3, s3, 1
    s_mul_i32 s4, s{gl}, 5
    s_add_u32 s3, s3, s4
    s_lshl1_add_u32 s4, s3, s{th}
    s_mul_i32 s4, s4, 43008
    s_mul_i32 s5, s{half}, 1792
    s_add_u32 s4, s4, s5
    v_min_u32 v{t1}, 6, v{u1}
    v_mul_u32_u24 v{t0}, 3584, v{u0}
    v_lshl_add_u32 v{t0}, v{t1}, 8, v{t0}
    v_add_u32 v{a2}, s4, v{t0}
    v_min_u32 v{t0}, 3, v{u0}
    v_mul_u32_u24 v{t0}, 3584, v{t0}
    v_lshl_add_u32 v{t0}, v{t1}, 8, v{t0}
    s_add_u32 s4, s4, 28672
    v_add_u32 v{a3}, s4, v{t0}
    s_lshl2_add_u32 s3, s3, s{w}
    s_mul_i32 s3, s3, 5376
    v_min_u32 v{t0}, 5, v{u0}
    v_mul_u32_u24 v{t0}, 896, v{t0}
    v_lshl_add_u32 v{t0}, v{t1}, 7, v{t0}
    v_add_u32 v{b}, s3, v{t0}
    '''.format(cs=sCs, gl=sGl, th=sTh, half=sHalf, w=sW, t0=t0, t1=t1, u0=u[0], u1=u[1], a2=vY + 14, a3=vY + 15, b=vSw + 1))


def sweep1():
    return L('buffer_load_dword a249, v%d, %s, 0 offen' % (vY + 13, S4(sQKV))) if OPT.get('sw1', 0) else []


def sweep():
    r = L('''
    s_mov_b32 s{sw}, s{gu}
    s_mov_b32 s{sw1}, s{gu1}
    s_mul_i32 s{sw2}, s{good}, 1605632
    s_mov_b32 s{sw3}, 0x20000
    buffer_load_dword a250, v{a}, {srd}, 0 offen
    s_mov_b32 s{sw}, s{wo}
    s_mov_b32 s{sw1}, s{wo1}
    s_mul_i32 s{sw2}, s{good}, 401408
    buffer_load_dword a251, v{b}, {srd}, 0 offen
    '''.format(sw=sSW, sw1=sSW + 1, sw2=sSW + 2, sw3=sSW + 3, gu=sGU, gu1=sGU + 1, wo=sWO, wo1=sWO + 1, a=vSw, b=vSw + 1,
               srd=S4(sSW), good=sGood))
    if OPT.get('swf', 0):
        x = L('buffer_load_dword a248, v%d, %s, 0 offen\nbuffer_load_dword a247, v%d, %s, 0 offen' % (vY + 14, S4(sSW), vY + 15, S4(sSW)))
        r = r[:4] + x + (r[4:5] if OPT['swf'] == 2 else []) + r[5:]
    return r


def sweep3():
    r = L('''
    s_mul_i32 s3, s{g}, 14
    s_add_u32 s3, s3, s{a}
    s_lshl2_add_u32 s3, s3, s{w}
    s_mul_i32 s3, s3, 1792
    v_min_u32 v{t}, 13, v0
    v_lshlrev_b32 v{t}, 7, v{t}
    buffer_load_dword a252, v{t}, {srd}, s3 offen
    '''.format(g=sG, a=sA, w=sW, t=t5, srd=S4(sWD)))
    return r if OPT.get('sw3', 0) else []


def kvdma(pg):
    pre = ['s_mul_i32 s%d, s%d, 172032' % (sOff, sCh + (pg >> 1))]
    if pg & 1:
        pre.append('s_add_u32 s%d, s%d, 86016' % (sOff, sOff))
    return dma(vOffKV, sQKV, 's%d' % sOff, pg * PG, 'kv%d' % pg, pre)


def qdma(i):
    return dma(vOffQ, sQKV, 's%d' % sOff, (WQP + i) * PG, 'q%d' % i, ['s_mul_i32 s%d, s%d, 172032' % (sOff, sCh + i)])


vS, vQ2, vOnes = u[8], u[9], u[10]
vMean, vStd, vR, vRL = u[6], u[7], u[12], u[14]
e('v_mov_b32 v%d, 0' % vS)
e('v_mov_b32 v%d, 0' % vQ2)
e('v_mov_b32 v%d, 0x3f803f80' % vOnes)
e('v_mov_b32 v%d, 0x3f803f80' % (vOnes + 1))
SCR, KVS, XRP, WOP = 21, 25, 26, 0
e('''
s_lshl_b32 s3, s{w}, 8
s_add_u32 s3, s3, {b}
v_lshl_add_u32 v{a}, v{u3}, 2, s3
v_lshl_add_u32 v{c}, v{u4}, 4, s3
'''.format(w=sW, b=KVS * PG + 2048, a=t3, c=t4, u3=u[3], u4=u[4]))


def xdots(i):
    r = []
    for j in range(16):
        reg = vF + 16 * i + j
        r.append(I('v_dot2c_f32_bf16 v%d, v%d, v%d' % (vS, reg, vOnes)))
        r.append(I('v_dot2c_f32_bf16 v%d, v%d, v%d' % (vQ2, reg, reg)))
    return r


stamp('_addr')
SW1 = OPT.get('sw1', 0)
if SW1 == 2:
    p.add(sweep1())
p.add(xdma(2))
if SW1 == 1:
    p.add(sweep1())
kv_next = 0
XW = OPT.get('xw', [[], [], [], [3], [2], [1, 3], [2]])
for i in range(7):
    e('@waitvm x%d' % i)
    stamp('_xl%d' % i)
    if i == 0:
        stamp('x0 landed')
    if i == 2:
        e('s_cmp_eq_u32 s%d, 0' % sZero)
        e('s_cbranch_scc1 L_nozero2')
        e('s_mov_b64 exec, 1')
        e('buffer_atomic_add v%d, off, %s, 0' % (vOne, S4(sDBG)), raw=True)
        e('s_mov_b64 exec, -1')
        e('L_nozero2:')
    for ks in range(4):
        e('ds_read_b128 %s, v%d offset:%d' % (V(vF + 16 * i + 4 * ks, 4), vAdX + ks, i * PG))
    dots = xdots(i - 1) if i else []
    d = [[], [], [], []]
    if i + 3 < 7:
        x_ = xdma(i + 3)
        d = [x_[:3], x_[3:4], x_[4:5], x_[5:6]]
    for q in XW[i]:
        if kv_next == 0 and SW1 == 3:
            d[q] = d[q] + sweep1()
        d[q] = d[q] + kvdma(kv_next)
        kv_next += 1
    for q in range(4):
        p.add(d[q] + dots[8 * q:8 * q + 8])
p.add(xdots(6))
p.add(kvdma(kv_next))
kv_next += 1
stamp('x read')

aK, aV, vRr = vX, vX + 16, vX + 32
aCK, aCV = 40, 56
vAdKw, vAdVw, vAdQw, vO4, vMA, vCx = vY + 2, vY + 3, vY + 12, vY + 8, vY + 4, vY + 16
e('''
s_lshl_b32 s3, s{w}, 11
v_add_u32 v{kw}, s3, v{k}
v_add_u32 v{vw}, s3, v{v}
v_add_u32 v{qw}, s{wk}, v{q}
'''.format(w=sW, kw=vAdKw, vw=vAdVw, qw=vAdQw, k=vAdK, v=vAdV, q=vAdQ, wk=sWK))
for n in range(4):
    e('v_mov_b32 v%d, 0x3f803f80' % (vO4 + n))


def mfma_ones(acc, b, first):
    return I('v_mfma_f32_32x32x16_bf16 %s, %s, %s, %s' % (A(acc, 16), V(vO4, 4), b, '0' if first else A(acc, 16)))


ws = WStream(look=4, wper=2)
pgap = {}
kb = OPT.get('kvb', (0, 2, 4, 7, 10, 12, 13))
KVB = dict(zip(kb, kb[1:] + (14,)))
for pg in range(14):
    pre = None
    if pg in KVB:
        pre = L('@waitvm ' + ' '.join('kv%d' % q for q in range(pg, KVB[pg])) + '\ns_barrier')
    if pg & 1:
        for (acc, ad) in ((aCK, vAdKw), (aCV, vAdVw)):
            off = (pg - 1) * PG
            glast = ws.step(ad, off, ad, off + 512, lambda a: mfma_ones(acc, a, pg == 1), pre)
            pre = None
    for ks2 in range(2):
        k = 2 * pg + ks2
        for (acc, ad) in ((aK, vAdK), (aV, vAdV)):
            off = pg * PG + ks2 * 2048
            g_ = ws.step(ad, off, ad, off + 512, lambda a: mfma(acc, V(vF + 4 * k, 4), a, '0' if k == 0 else None), pre)
            pre = None
    pgap[pg] = g_
for pg in range(kv_next, 14):
    glw = max(pgap[max(pg - OPT.get('kvl', 14), 0)], 2 * (pg - kv_next) + 1)
    ws.fill(glw, kvdma(pg))
st = halves_sum(vS, t0) + halves_sum(vQ2, t0) + ln_consts(vS, vQ2, vMean, vStd, vR)
st += L('''
v_mul_f32 v{c}, v{m}, v{r}
v_mul_f32 v{rl}, 0x{l:x}, v{r}
v_sub_f32 v{c}, 0, v{c}
'''.format(c=t0, m=vMean, r=vR, rl=vRL, l=LOG2E))
for n, x in enumerate(st):
    ws.fill(2 + n, x)
ws.fill(28, L('ds_write_b32 v{a}, v{r}\nds_write_b32 v{a}, v{c} offset:128'.format(a=t3, r=vR, c=t0)))
for n in range(8):
    ws.fill(30 + n, I('ds_read_b128 %s, v%d offset:%d' % (V(vRr + 4 * n, 4), t4, (n & 3) * 32 + (n >> 2) * 128)))
pre_e = mean_frag(vMean, vMA) + L('''
v_lshlrev_b32 v{t0}, 3, v{u3}
v_add_u32 v{t5}, {cx}, v{t0}
v_mov_b32 v{c}, 0x{l:x}
v_mov_b32 v{u5}, v{u3}
'''.format(t0=t0, u3=u[3], t5=t5, cx=KVS * PG + 3072, c=u[4], l=LOG2E, u5=u[5]))
for n, x in enumerate(pre_e):
    ws.fill(30 + n, x)
ws.fill(40, L('''
s_lshl_b32 s3, s{w}, 8
v_add_u32 v{t4}, s3, v{t5}
s_lshl4_add_u32 s3, s{m}, s{g}
s_lshl2_add_u32 s3, s3, s{w}
s_lshl_b32 s3, s3, 9
s_add_u32 s{o2}, s3, {base}
'''.format(w=sW, t4=t4, t5=t5, m=sM, g=sG, o2=sOff2, base=WS_KVP)))
ws.fill(44, L('''
s_lshl_b32 s3, s{m}, 6
s_add_u32 s3, s3, s{w}
s_lshl_b32 s3, s3, 7
s_add_u32 s{pl}, s3, {kv}
'''.format(m=sM, w=sW, pl=sPoll, kv=C_KV * 128)))
SW2 = OPT.get('sw2', 1)
if SW2 == 1:
    ws.fill(glw + 2, sweep())
ws.fill(pgap[11] + 1, qdma(0))
ws.fill(pgap[12] + 1, qdma(1))
ws.fill(glast + 2, L('''
v_accvgpr_read_b32 v{a}, a{k}
v_accvgpr_read_b32 v{b}, a{v}
ds_write_b64 v{ad}, v[{a}:{b}]
'''.format(a=t0, b=t1, k=aCK, v=aCV, ad=t4)))
xch = L('@waitlg0\ns_barrier')
for n in range(4):
    xch.append(I('ds_read_b64 %s, v%d offset:%d' % (V(vCx + 2 * n, 2), t5, 256 * n)))
ws.fill(glast + 3, xch)
for nm, at in (('_a1', 0), ('_a8', 9), ('_a16', 19), ('_a24', 29), ('_a32', 39), ('_a40', 49), ('_a48', 59)):
    ws.fill(at, mkstamp(nm))
p.add(ws.build())
stamp('A1 mfma')


def phi(acc, dst, pre):
    r = []
    for j in range(0, 16, 4):
        g = []
        for jj in (j, j + 2):
            a = acc + jj
            tp = u[0] + (jj & 2)
            g.append(pre(jj, tp) + L('''
            v_min_f32 v{t}, 0, v{t}
            v_min_f32 v{t1}, 0, v{t1}
            v_exp_f32 v{t}, v{t}
            v_exp_f32 v{t1}, v{t1}
            v_max_f32 v{a}, 0x{e:x}, v{a}
            v_max_f32 v{a1}, 0x{e:x}, v{a1}
            '''.format(t=tp, t1=tp + 1, a=a, a1=a + 1, e=EPS6)) + [pk('add', a, a, tp), I('v_cvt_pk_bf16_f32 v%d, v%d, v%d' % (dst + jj // 2, a, a + 1))])
        r += zip_groups(g)
    return r


vPK, vVV, aKV = vCx, vY + 24, vX + 32
BC1 = 'op_sel_hi:[1,0]'
ea = [pk('add', vCx, vCx, vCx + 2), pk('add', vCx + 4, vCx + 4, vCx + 6), pk('add', t0, vCx, vCx + 4)]
ea += L('v_mov_b32 v%d, v%d' % (t2, t1))
gv = []
for j in range(0, 16, 2):
    tp = u[0] + (j & 2)
    gv.append([pk('mul', tp, vRr + 16 + j, t2, mod=BC1), pk('fma', aV + j, aV + j, vRr + j, tp),
               I('v_cvt_pk_bf16_f32 v%d, v%d, v%d' % (vVV + j // 2, aV + j, aV + j + 1)),
               I('v_cndmask_b32 v%d, v%d, v%d, s[%d:%d]' % (vVV + j // 2, vVV + j // 2, vOnes, sMask28, sMask28 + 1))])
for j in range(0, 8, 2):
    ea += zip_groups(gv[j:j + 2])
ea += phi(aK, vPK, lambda j, tp: [pk('mul', tp, vRr + 16 + j, t0, mod=BC1), pk('fma', aK + j, aK + j, vRr + j, tp),
                                  pk('mul', tp, aK + j, u[4], mod=BC1)])
p.add(spread(ea, [qdma(2), qdma(3), qdma(4)]))
p.add([mfma(aKV, V(vPK, 4), V(vVV, 4), '0'), mfma(aKV, V(vPK + 4, 4), V(vVV + 4, 4))])
e('''
s_lshl_b32 s3, s{w}, 12
s_add_u32 s3, s3, {scr}
v_add_u32 v{t0}, s3, v{l16}
s_add_u32 s3, s{wk}, {scr}
v_add_u32 v{t1}, s3, v{l16}
buffer_load_dword v{p}, off, {dbg}, 0 sc1
v_lshlrev_b32 v{t5}, 2, v{u3}
v_add_u32 v{t5}, {cx}, v{t5}
s_lshl_b32 s3, s{w}, 7
v_add_u32 v{t4}, s3, v{t5}
'''.format(w=sW, wk=sWK, scr=SCR * PG, t0=t0, t1=t1, l16=vL16, p=vP, dbg=S4(sDBG), t4=t4, t5=t5, u3=u[5], cx=KVS * PG + 2048))
for q in range(4):
    e('ds_write_b128 v%d, %s offset:%d' % (t0, V(aKV + 4 * q, 4), q * 1024))
e('@waitlg0')
e('s_barrier')
for j in range(4):
    e('ds_read_b128 %s, v%d offset:%d' % (V(vX + 4 * j, 4), t1, j * PG))
for (a, b) in ((0, 4), (2, 6), (8, 12), (10, 14), (0, 8), (2, 10)):
    p.add([pk('add', vX + a, vX + a, vX + b)])
e('v_cvt_pk_bf16_f32 v%d, v%d, v%d' % (vX, vX, vX + 1))
e('v_cvt_pk_bf16_f32 v%d, v%d, v%d' % (vX + 1, vX + 2, vX + 3))
e('buffer_store_dwordx2 %s, v%d, %s, s%d offen sc1' % (V(vX, 2), vL8, S4(sWS), sOff2), tag='kvp')
stamp('kv stored')
p.add(qdma(5) + qdma(6) + (sweep() if SW2 == 2 else []))

W1PG = {}
W2PG = {}


def wodma(n):
    c, uu = sCh + (n >> 1), n & 1
    r = L("""
    s_lshl_b32 s{t}, s{c}, 13
    s_add_u32 s{t}, s{t}, s{wk}
    s_add_u32 m0, s{t}, {lo}
    s_mul_i32 s{o}, s{c}, 57344
    """.format(t=sT[3], c=c, wk=sWK, lo=WOP * PG + uu * PG, o=sOff))
    if uu:
        r += L('s_add_u32 s%d, s%d, 28672' % (sOff, sOff))
    return r + dma(vOffWO, sWO, 's%d' % sOff, None, 'wo')


def xrdma(uu):
    return L('s_lshl1_add_u32 s{t}, s{wk}, 0\ns_add_u32 m0, s{t}, {lo}\ns_movk_i32 s{o}, {so}'.format(
        t=sT[3], wk=sWK, lo=XRP * PG + uu * 1024, o=sOff, so=uu * 14336)) + dma(vOffXR, sX, 's%d' % sOff, None, 'xr')


def gudma(half, k, page):
    (W2PG if half else W1PG)[k] = page
    return dma(vGUo + (k & 3) + 4 * half, sGU, 's%d' % sGUt[k >> 2], page * PG, 'gu%d_%d' % (half, k))


aQ, vCQ = vX + 16, vY + 24
ws = WStream(look=5, wper=2)
for i in range(7):
    pre = None
    if i == 0:
        pre = L('@waitvm q0 q1 q2 q3 q4\ns_barrier')
    if i == 5:
        pre = L('@waitvm q5 q6\ns_barrier')
    glast = ws.step(vAdQw, i * PG, vAdQw, i * PG + 256, lambda a: mfma_ones(aCK, a, i == 0), pre)
    for ks in range(4):
        k = 4 * i + ks
        off = i * PG + ks * 1024
        ws.step(vAdQ, off, vAdQ, off + 256, lambda a: mfma(aQ, a, V(vF + 4 * k, 4), '0' if k == 0 else None))
ws.fill(OPT.get('kvs', 17), L('@waitvm kvp') + poll_check(16, '0', sDBG) + signal(sPoll))
for n in range(1, 4):
    ws.fill(2 + n, I('v_mov_b32 v%d, 0' % (vCQ + n)))
NW = OPT.get('nw', 8)
for n in range(NW):
    ws.fill(OPT.get('kvs', 17) + 1 + 2 * n, wodma(n))
for nm in OPT['st'] or ():
    if nm.startswith('_q'):
        ws.fill(int(nm[2:]), mkstamp(nm))
ws.fill(glast + 2, L('v_accvgpr_read_b32 v{a}, a{k}\nds_write_b32 v{ad}, v{a}'.format(a=t0, k=aCK, ad=t4)))
xch = L('@waitlg0\ns_barrier')
for n in range(4):
    xch.append(I('ds_read_b32 v%d, v%d offset:%d' % (vY + 28 + n, t5, 128 * n)))
ws.fill(glast + 3, xch)
p.add(ws.build())
stamp('A2 mfma')
e('''
v_add_f32 v{a}, v{y0}, v{y1}
v_add_f32 v{b}, v{y2}, v{y3}
v_add_f32 v{a}, v{a}, v{b}
'''.format(a=t0, b=t1, y0=vY + 28, y1=vY + 29, y2=vY + 30, y3=vY + 31))
p.add(hilo(t0, vCQ, t1))
p.add([mfma(aQ, V(vCQ, 4), V(vMA, 4))])
for n in range(8):
    e('v_add_u32 v%d, %d, v%d' % (vGUo + n, (n & 3) * 57344 + (n >> 2) * 128, vOffGU))
for i in range(7):
    e('s_mul_i32 s%d, s%d, 229376' % (sGUt[i], sCh + i))
vPQ = vY
ph = phi(aQ, vPQ, lambda j, tp: [pk('mul', tp, aQ + j, vRL, mod=BC1), pk('mul', aQ + j, aQ + j, vR, mod=BC1)])
free = list(range(28, 40)) + list(range(14, 21))
N0 = OPT.get('n0', 0)
WL = OPT.get('wl', 0)
wrest = [wodma(n) for n in range(NW, 14)] + [xrdma(0), xrdma(1)]
p.add(spread(ph[:56], ([] if WL else wrest) + [gudma(0, k, free[k]) for k in range(N0)]) if (N0 or not WL) else ph[:OPT.get('php', 8)])
stamp('_ph')
p.add(poll_issue(sPoll, OPT.get('kva', 0)))
p.add(ph[56:] if (N0 or not WL) else ph[OPT.get('php', 8):])
e('v_cndmask_b32 v%d, v%d, 0, s[%d:%d]' % (vPQ + 6, vPQ + 6, sMaskHi, sMaskHi + 1))
e('v_cndmask_b32 v%d, v%d, 0, s[%d:%d]' % (vPQ + 7, vPQ + 7, sMaskHi, sMaskHi + 1))
e("""
s_lshl_b32 s3, s{m}, 15
s_lshl_b32 s4, s{w}, 9
s_add_u32 s3, s3, s4
s_add_u32 s{o2}, s3, {base}
s_lshl_b32 s5, s{gl}, 13
s_add_u32 s{o}, s{o2}, s5
v_mov_b32 v{e0}, 0x3f80
v_mov_b32 v{e1}, 0x3f800000
s_add_u32 s4, s4, {kvs}
v_add_u32 v{t0}, s4, v{l8}
v_add_u32 v{t1}, {kvs}, v{l8}
s_lshl2_add_u32 s3, s{g}, s{w}
s_lshl4_add_u32 s3, s3, s{m}
s_lshl_b32 s3, s3, 11
s_add_u32 s{st}, s3, {ob}
s_lshl1_add_u32 s3, s{w}, s{half}
s_lshl_b32 s3, s3, 7
s_add_u32 s{sig}, s3, s{cnt}
""".format(m=sM, w=sW, o=sOff, o2=sOff2, base=WS_KVP, gl=sGl, e0=u[0], e1=u[1], kvs=KVS * PG, t0=t0, t1=t1, l8=vL8,
           g=sG, st=sSt, ob=WS_O, half=sHalf, sig=sSig, cnt=sCnt))
for j in range(4):
    e('v_mov_b32 v%d, 0' % (vX + 32 + j))
stamp('q done')
p.add(poll_check(16, sPoll))
stamp('kv flag')

for gg in range(16):
    if gg and gg % 2 == 0:
        e('s_add_u32 s5, s5, 4096')
        e('s_and_b32 s5, s5, 0x7fff')
        e('s_add_u32 s%d, s%d, s5' % (sOff, sOff2))
    e('buffer_load_dwordx2 %s, v%d, %s, s%d offen%s sc1' % (V(vX + 2 * gg, 2), vL8, S4(sWS), sOff, ' offset:2048' if gg & 1 else ''))
NA = OPT.get('na', 6)
if WL:
    for x in wrest[::-1]:
        p.add(x)
for k in range(N0, NA):
    p.add(gudma(0, k, free[k]))
for gg in range(16):
    for d in range(2):
        e('v_dot2c_f32_bf16 v%d, v%d, v%d' % (vX + 32 + 2 * d, vX + 2 * gg + d, u[0]))
        e('v_dot2c_f32_bf16 v%d, v%d, v%d' % (vX + 33 + 2 * d, vX + 2 * gg + d, u[1]))
stamp('kv loaded')
e('v_cvt_pk_bf16_f32 v%d, v%d, v%d' % (vX, vX + 32, vX + 33))
e('v_cvt_pk_bf16_f32 v%d, v%d, v%d' % (vX + 1, vX + 34, vX + 35))
e('ds_write_b64 v%d, %s' % (t0, V(vX, 2)))
e('@waitlg0')
e('s_barrier')
vKVF = vY + 8
for q in range(4):
    e('ds_read_b64 %s, v%d offset:%d' % (V(vKVF + 2 * q, 2), t1, q * 512))
aO = vX + 16
p.add([mfma(aO, V(vKVF, 4), V(vPQ, 4), '0'), mfma(aO, V(vKVF + 4, 4), V(vPQ + 4, 4))])
e('''
v_mov_b32 v{a}, v{d}
v_mov_b32 v{b}, v{d}
v_permlane32_swap_b32 v{a}, v{b}
v_add_f32 v{b}, 0x{eps:x}, v{b}
v_rcp_f32 v{r}, v{b}
v_cndmask_b32 v{r2}, v{r}, 0, s[{mh}:{mh1}]
'''.format(a=t2, b=t3, d=aO + 12, eps=EPS6, r=u[0], r2=u[2], mh=sMaskHi, mh1=sMaskHi + 1))
for hf_ in range(2):
    for j in range(8 * hf_, 8 * hf_ + 8, 2):
        p.add([pk('mul', aO + j, aO + j, u[2] if j >= 12 else u[0], mod=BC1)])
    for j in range(4 * hf_, 4 * hf_ + 4):
        e('v_cvt_pk_bf16_f32 v%d, v%d, v%d' % (vX + j, aO + 2 * j, aO + 2 * j + 1))
    e('buffer_store_dwordx4 %s, v%d, %s, s%d offen%s sc1' % (V(vX + 4 * hf_, 4), vL16, S4(sWS), sSt, ' offset:1024' if hf_ else ''))
e('s_cmp_ge_u32 s%d, 7' % sCs)
e('s_cbranch_scc1 L_idle')
stamp('_os')
e('''
s_lshl1_add_u32 s3, s{tt}, s{kh}
s_lshl_b32 s3, s3, 7
s_add_u32 s{pl}, s3, s{cnt}
s_lshl2_add_u32 s3, s{g}, s{tt}
s_lshl1_add_u32 s4, s3, s{kh}
s_lshl_b32 s4, s4, 14
s_add_u32 s{o2}, s4, {ob}
s_lshl1_add_u32 s4, s{cs}, s{kh}
s_lshl4_add_u32 s3, s3, s4
s_lshl_b32 s4, s3, 11
s_add_u32 s{st}, s4, {hb}
s_lshl_b32 s4, s3, 8
s_add_u32 s{st2}, s4, {sb}
s_lshl_b32 s3, s{w}, 11
s_add_u32 s3, s3, {xr}
v_and_b32 v{a}, 31, v0
v_lshrrev_b32 v{b}, 5, v0
v_lshlrev_b32 v{b}, 3, v{b}
v_lshl_add_u32 v{b}, v{a}, 6, v{b}
v_add_u32 v{b}, s3, v{b}
v_lshlrev_b32 v{l8}, 3, v{a}
s_lshl_b32 s3, s{w}, 12
s_add_u32 s3, s3, {scr}
v_add_u32 v{t0}, s3, v{l16}
s_xor_b32 s4, s{w}, 2
s_lshl_b32 s4, s4, 12
s_add_u32 s4, s4, {scr}
v_add_u32 v{t1}, s4, v{l16}
'''.format(tt=sTT, kh=sKh, pl=sPoll, cnt=sCnt, g=sG, o2=sOff2, ob=WS_O, cs=sCs, st=sT[8], hb=WS_H, st2=sT[9], sb=WS_ST,
           w=sW, xr=XRP * PG, a=t2, b=t3, l8=vL8, scr=SCR * PG, t0=t0, t1=t1, l16=vL16))
e('@waitvm0')
p.add(signal(sSig))
stamp('o stored')
if OPT.get('ack'):
    e('@waitvm0')
    stamp('_ack')
if DIAG:
    e('s_mov_b32 s%d, %d' % (sIter, OPT['spin'] + 1))
if STOP <= 1:
    e('s_branch L_fin')

if WL:
    e('s_barrier')
NB = OPT.get('nb', 10)
for k in range(NA, NB):
    p.add(gudma(0, k, free[k]))
PP = OPT.get('pp', 0)
if OPT.setdefault('od', 5):
    e('s_sleep %d' % OPT['od'])
p.add(poll_pipe_issue(sPoll) if PP else poll_issue(sPoll))
stamp('_op')
for bq in range(4):
    e('ds_read_b64 %s, v%d offset:%d' % (V(vY + 2 * bq, 2), t3, 16 * bq))
for j in range(8):
    e('v_lshlrev_b32 v%d, 16, v%d' % (vX + 2 * j, vY + j))
    e('v_and_b32 v%d, 0xffff0000, v%d' % (vX + 1 + 2 * j, vY + j))
e('s_lshl_b32 s3, s%d, 7' % sTT)
e('s_add_u32 s3, s3, s%d' % sCnt)
e('s_add_u32 s%d, s3, %d' % (sSig, C_H * 128))
e('v_mov_b32 v%d, 0' % vS)
e('v_mov_b32 v%d, 0' % vQ2)
sOr = sT[4]
e('''
s_mul_i32 s3, s{kh}, 26624
v_subrev_u32 v{d0}, s3, v{w0}
v_subrev_u32 v{d1}, s3, v{w1}
s_mul_i32 s3, s{cs}, 3584
v_add_u32 v{w0}, s3, v{w0}
v_add_u32 v{w1}, s3, v{w1}
v_add_u32 v{p0}, s3, v{p0}
v_add_u32 v{p1}, s3, v{p1}
s_lshl_b32 s{r}, s{cs}, 11
s_sub_u32 s{r}, s{r}, 2048
s_mov_b32 s6, -25088
'''.format(kh=sKh, d0=vAdD, d1=vAdD + 1, w0=vAdWO, w1=vAdWO + 1, p0=vAdWOp, p1=vAdWOp + 1, cs=sCs, r=sOr))
p.add(poll_pipe_check(8, sPoll) if PP else poll_check(8, sPoll))
stamp('o flag')
if DIAG:
    e('s_sub_u32 s101, %d, s%d' % (OPT['spin'] + 1, sIter))


def oload(j):
    r = []
    if j % 2 == 0:
        r += L('s_add_u32 s{t}, s{t}, 2048\ns_and_b32 s{t}, s{t}, 0x3fff\ns_add_u32 s{o}, s{t}, s{b}'.format(t=sOr, o=sOff, b=sOff2))
    r.append(I('buffer_load_dwordx4 %s, v%d, %s, s%d offen%s sc1' % (A(aF + 4 * j, 4), vL16, S4(sWS), sOff, ' offset:1024' if j % 2 else '')))
    return r


for j in range(8):
    p.add(oload(j))
stamp('_ol')
ws = WStream()
TL = OPT.get('tl', 2)
bo = [(j, ft) for j in range(16 - TL) for ft in range(2)] + [(j, 1) for j in range(16 - TL, 16)] + [(j, 0) for j in range(16 - TL, 16)]
for j, ft in bo:
    hh, s = j >> 1, j & 1
    if 1:
        pre = []
        if s == 0 and hh and ft == (1 if j >= 16 - TL else 0):
            pre += L('s_cmp_eq_u32 s{c}, {n}\ns_cselect_b32 s{d}, s{wrap}, 3584'.format(c=sCs, n=8 - hh, d=sT[2], wrap=sT[3]))
        if hh:
            r_ = (vAdWO if s == 0 else vAdWOp) + ft
            pre += L('v_add_u32 v%d, s%d, v%d' % (r_, sT[2], r_))
        a1_ = (vAdWOp if s == 1 else vAdWO) + ft
        ws.step(vAdWO + ft, WOP * PG + 16 * s * 128, a1_, WOP * PG + (16 * s + 8) * 128,
                lambda a: mfma(vX + 16 * ft, a, A(aF + 4 * j, 4), '0' if (j == 0 and ft == 1) else None), pre)
assert TL in (0, 2)
for j in range(8, 16):
    ws.fill(j - 8, oload(j))
ws.fill(0, mkstamp('_b0'))
ws.fill(15, mkstamp('_b16'))
ws.fill(8, sweep3())
for n, k in enumerate(range(NB, 19)):
    ws.fill(min(31, 9 + (22 * n) // (19 - NB)), gudma(0, k, free[k]))
p.add(ws.build())
stamp('_bm')
for q in range(4):
    e('ds_write_b128 v%d, %s offset:%d' % (t0, V(vX + 16 + 4 * q, 4), q * 1024))
e('@waitlg0')
e('s_barrier')
for q in range(4):
    e('ds_read_b128 %s, v%d offset:%d' % (V(vX + 16 + 4 * q, 4), t1, q * 1024))
for hf_ in range(2):
    for j in range(8 * hf_, 8 * hf_ + 8, 2):
        p.add([pk('add', vX + j, vX + j, vX + 16 + j)])
    for j in range(4 * hf_, 4 * hf_ + 4):
        e('v_cvt_pk_bf16_f32 v%d, v%d, v%d' % (vY + j, vX + 2 * j, vX + 2 * j + 1))
    e('buffer_store_dwordx4 %s, v%d, %s, s%d offen%s sc1' % (V(vY + 4 * hf_, 4), vL16, S4(sWS), sT[8], ' offset:1024' if hf_ else ''))
for j in range(8):
    e('v_dot2c_f32_bf16 v%d, v%d, v%d' % (vS, vY + j, vOnes))
    e('v_dot2c_f32_bf16 v%d, v%d, v%d' % (vQ2, vY + j, vY + j))
p.add(zip_groups([halves_sum(vS, t2), halves_sum(vQ2, t3)]))
e('buffer_store_dwordx2 %s, v%d, %s, s%d offen sc1' % (V(vS, 2), vL8, S4(sWS), sT[9]))
stamp('_hs')
for j in range(8):
    e('v_accvgpr_write_b32 a%d, v%d' % (aH + j, vY + j))
e('''
v_bfe_u32 v{r}, v0, 2, 2
v_bfe_u32 v{iu}, v0, 4, 1
v_lshrrev_b32 v{hf}, 5, v0
v_lshl_add_u32 v{a}, v{hf}, 2, v{r}
v_lshlrev_b32 v{a}, 7, v{a}
v_lshl_add_u32 v{a}, v{iu}, 11, v{a}
v_and_b32 v{b}, 1, v0
v_lshl_add_u32 v{a}, v{b}, 3, v{a}
v_lshrrev_b32 v{b}, 1, v{r}
v_lshl_add_u32 v{b}, v{iu}, 1, v{b}
v_lshlrev_b32 v{b}, 1, v{b}
v_bfe_u32 v{c}, v0, 1, 1
v_xor_b32 v{b}, v{b}, v{c}
'''.format(r=u[0], iu=u[1], hf=u[2], a=t2, b=t3, c=t4))
for t in range(4):
    e('v_xor_b32 v%d, %d, v%d' % (t4, 2 * t, t3))
    e('v_lshl_add_u32 v%d, v%d, 4, v%d' % (vAdC + t, t4, t2))
sHb, sHo, sStL, sHHst, sCSp = sT[5], sT[6], sT[7], sT[10], sT[4]
e('''
s_movk_i32 s3, 1792
v_mad_u32_u24 v{a}, v{hf}, s3, v{l8}
v_lshlrev_b32 v{l8}, 1, v{l8}
s_lshl2_add_u32 s3, s{g}, s{w}
s_lshl_b32 s4, s3, 12
s_add_u32 s{stl}, s4, {sb}
s_lshl_b32 s4, s3, 15
s_add_u32 s{hb}, s4, {hbase}
s_mul_i32 s3, s3, 14
s_add_u32 s3, s3, s{am}
s_lshl_b32 s3, s3, 13
s_add_u32 s{hst}, s3, {hh}
s_lshl_b32 s3, s{w}, 7
s_add_u32 s3, s3, s{cnt}
s_add_u32 s{pl}, s3, {ch}
s_lshl_b32 s3, s{am}, 13
s_add_u32 s{csp}, s3, {cc}
'''.format(kh=sKh, d0=vAdD, d1=vAdD + 1, w0=vAdWO, w1=vAdWO + 1, a=t4, hf=u[2], l8=vL8, g=sG, w=sW, stl=sStL, sb=WS_ST,
           hb=sHb, hbase=WS_H, am=sA, hst=sHHst, hh=WS_HH, cnt=sCnt, pl=sPoll, ch=C_H * 128, csp=sCSp, cc=C_CS * 128))
e('@waitvm0')
H1S = OPT.get('h1s', 1)
if H1S:
    e('s_barrier')
    e('s_cmp_ge_u32 s%d, 2' % sW)
    e('s_cbranch_scc1 L_nohs')
    for x in signal(sSig):
        x.raw = True
        p.add([x])
    e('L_nohs:')
else:
    p.add(signal(sSig))
stamp('h stored')
if STOP <= 2:
    e('s_branch L_fin')

NC = OPT.get('nc', 2)
N1 = OPT.get('n1', 9)
w1late = [gudma(0, k, n) for n, k in enumerate(range(19, 28))]
for x in w1late[:N1]:
    p.add(x)
for k in range(NC):
    p.add(gudma(1, k, 9 + k))
if OPT.get('hd'):
    e('s_sleep %d' % OPT['hd'])
p.add(poll_pipe_issue(sPoll) if PP else poll_issue(sPoll))
stamp('_hp')
for n in range(8):
    e('v_add_u32 v%d, %d, v%d' % (vWDo + n, n * 14336, vOffWD))
e('v_add_u32 v%d, 4096, v%d' % (vL16b, vL16))
e('''
s_lshl2_add_u32 s3, s{g}, s{tt}
s_lshl1_add_u32 s3, s3, s{kh}
s_mul_i32 s3, s3, 57344
s_add_u32 s4, s3, {base}
s_lshl1_add_u32 s3, s{w}, s{half}
s_lshl_b32 s3, s3, 9
s_add_u32 s3, s3, s{cnt}
s_add_u32 s{sig}, s3, {chh}
s_lshl1_add_u32 s3, s{tt}, s{kh}
s_lshl_b32 s3, s3, 9
s_add_u32 s3, s3, s{cnt}
s_add_u32 s{st}, s3, {chh}
'''.format(g=sG, tt=sTT, kh=sKh, base=WS_HH, w=sW, half=sHalf, cnt=sCnt, sig=sSig, chh=C_HH * 128, st=sSt))
for i in range(7):
    e('s_mul_i32 s%d, s%d, 114688' % (sWDt[i], sCh + i))
    e('s_lshl_b32 s3, s%d, 13' % (sCh + i))
    e('s_add_u32 s%d, s3, s4' % sHHt[i])
e('v_accvgpr_write_b32 a%d, 0' % (aCS + 16))
e('v_accvgpr_write_b32 a%d, 0' % (aCS + 17))


def hload(k):
    r = []
    if k % 4 == 0:
        r += L('s_lshl_b32 s%d, s%d, 12\ns_add_u32 s%d, s%d, s%d' % (sHo, sCh + k // 4, sHo, sHo, sHb))
    r.append(I('buffer_load_dwordx4 %s, v%d, %s, s%d offen%s sc1' % (A(aF + 4 * k, 4), vL16, S4(sWS), sHo, ' offset:%d' % (1024 * (k % 4)) if k % 4 else '')))
    return r


h0 = hload(0)
p.add(h0[:-1])
p.add(poll_pipe_check(14, sPoll) if PP else poll_check(7 if H1S else 14, sPoll))
stamp('h flag')
HL = OPT.get('hl', 8)
p.add(h0[-1:])
for k in range(1, HL):
    p.add(hload(k))


class Win:
    def __init__(self, regs):
        self.cur = {r: 0 for r in regs}

    def fix(self, reg, off):
        base = (off // 61440) * 61440
        pre = []
        if self.cur[reg] != base:
            d = base - self.cur[reg]
            pre.append(I('v_add_u32 v%d, %d, v%d' % (reg, d, reg)) if d > 0 else I('v_subrev_u32 v%d, %d, v%d' % (reg, -d, reg)))
            self.cur[reg] = base
        return pre, off - base


winC = Win([vAdC + t for t in range(4)])
winD = Win([vAdD, vAdD + 1])
cA, cS = vCc, vCc + 2
acc_of = {0: vX, 1: vX + 16, 2: vY, 3: vY + 16, 4: 200, 5: 216, 6: vX, 7: vX + 16}


def hhstore(tile):
    d = u[8] + (tile & 1) * 4
    return [I('buffer_store_dwordx4 %s, v%d, %s, s%d offen%s sc1' % (V(d, 4), vL16b if tile >= 4 else vL16, S4(sWS), sHHst,
                                                                     ' offset:%d' % (1024 * (tile & 3)) if tile & 3 else ''), tag='hh%d' % tile)]


def eslots(tiles):
    slots = {}

    def put(sl, x):
        slots.setdefault(sl, []).append(x)
    n = 0
    for tile in tiles:
        acc = acc_of[tile]
        for el in range(8):
            tp = u[n % 6]
            put(2 * n, I('v_mul_f32 v%d, v%d, v%d' % (tp, cA, acc + el)))
            put(2 * n + 1, I('v_exp_f32 v%d, v%d' % (tp, tp)))
            put(2 * n + 2, I('v_fma_f32 v%d, v%d, v%d, v%d' % (tp, tp, cS, cS)))
            put(2 * n + 4, I('v_rcp_f32 v%d, v%d' % (tp, tp)))
            put(2 * n + 5, I('v_mul_f32 v%d, v%d, v%d' % (tp, tp, acc + 8 + el)))
            if el & 1:
                put(2 * n + 7, I('v_cvt_pk_bf16_f32 v%d, v%d, v%d' % (u[8] + (tile & 1) * 4 + el // 2, u[(n - 1) % 6], tp)))
            if el == 7:
                put(2 * n + 8, hhstore(tile))
            n += 1
    out = []
    for k in range(max(slots) + 1):
        sl = slots.get(k, [])
        sl.sort(key=lambda x: 0 if (not isinstance(x, list) and x.op in ('v_exp_f32', 'v_rcp_f32')) else 1)
        out.append(sl)
    return out


def efast(tile, tb=u[0]):
    acc = acc_of[tile]
    g = []
    for j in range(0, 8, 2):
        tp = tb + j
        g.append([pk('mul', tp, acc + j, cA, mod=BC1)] + L('v_exp_f32 v{t}, v{t}\nv_exp_f32 v{t1}, v{t1}'.format(t=tp, t1=tp + 1)) +
                 [pk('fma', tp, tp, cS, cS, mod='op_sel_hi:[1,0,0]')] + L('v_rcp_f32 v{t}, v{t}\nv_rcp_f32 v{t1}, v{t1}'.format(t=tp, t1=tp + 1)) +
                 [pk('mul', tp, tp, acc + 8 + j), I('v_cvt_pk_bf16_f32 v%d, v%d, v%d' % (u[8] + (tile & 1) * 4 + j // 2, tp, tp + 1))])
    return zip_groups(g)


def hhsig(stage):
    return L('@waitvm hh%d hh%d' % (2 * stage, 2 * stage + 1)) + signal(sSig, stage * 128)


D_ORDER = [(j, 2 * st_ + t) for st_ in range(4) for j in range(7) for t in range(2)] if OPT.get('jm', 1) else [(j, t) for t in range(8) for j in range(7)]
WDPG = {}
wd_next = [0]


def wddma(page):
    n = wd_next[0]
    wd_next[0] += 1
    j, t = D_ORDER[n]
    WDPG[n] = page
    return dma(vWDo + t, sWD, 's%d' % sWDt[j], page * PG, 'wd%d' % n)


def hhreg(n):
    return A(aR + 4 * n, 4) if n < 21 else (V(vHH + 4 * (n - 21), 4) if n < 28 else A(aF + 4 * (n - 28), 4))


def hhpoll(stage):
    return L('s_add_u32 s%d, s%d, %d' % (sPoll, sSt, stage * 128)) + poll_issue(sPoll, stage in OPT.get('hha', (0, 1, 2, 3)))


def hhload(n):
    j, t = D_ORDER[n]
    return [I('buffer_load_dwordx4 %s, v%d, %s, s%d offen%s sc1' % (hhreg(n), vL16b if t >= 4 else vL16, S4(sWS), sHHt[j],
                                                                     ' offset:%d' % (1024 * (t & 3)) if t & 3 else ''))]


ws = WStream()
BSTEP = OPT.get('bstep', 4)
DL = OPT.get('dl', 12)
freed = [(0, pg) for pg in list(range(9 + NC, 14)) + list(range(21, 28))]
carry = []
XG = OPT.get('xg', 8)
order = [(0, k) for k in range(28)] + [(1, k) for k in range(28)]
for k in range(28 + DL):
    if k < 28:
        order.append((2, k))
    if k >= DL:
        order.append((3, k - DL))
PEND = {}
for ps, k in order:
    tl = (2 * ps, 2 * ps + 1)
    if (ps, k) == (2, 0):
        todo = list(range(NC, 28))
        dslot = 2 * (28 - HL) - 1
        for gfree, pg in freed:
            dslot = max(dslot + 2, gfree + 1)
            ws.fill(dslot, gudma(1, todo.pop(0), pg) if todo else wddma(pg))
        DSLOT1 = dslot
    for t in tl:
        pre = []
        if ps == 0 and t == 0 and k == 0:
            pre += L('@waitvm ' + ' '.join('gu0_%d' % j for j in range(19 + N1)) + '\ns_barrier')
        if ps == 0 and t == 0 and k == 19 + N1:
            pre += L('@waitvm ' + ' '.join('gu0_%d' % j for j in range(19 + N1, 28)) + '\ns_barrier')
        if ps == 2 and t == tl[0] and k in (0, 10, 19):
            hi = {0: 10, 10: 19, 19: 28}[k]
            pre += L('@waitvm ' + ' '.join('gu1_%d' % j for j in range(k, hi)) + '\ns_barrier')
        pr, off = winC.fix(vAdC + (t & 3), (W1PG if ps < 2 else W2PG)[k] * PG)
        g_ = ws.step(vAdC + (t & 3), off, vAdC + (t & 3), off + 1024,
                     lambda a: mfma(acc_of[t], a, A(aF + 4 * k, 4), '0' if k == 0 else None), pre + pr)
    if ps == 0 and k + HL < 28:
        ws.fill(2 * k, hload(k + HL))
    if ps & 1 and k % BSTEP == BSTEP - 1:
        ws.fill(g_, L('s_barrier'))
        (freed if ps == 1 else carry).extend((g_, (W1PG if ps == 1 else W2PG)[kk]) for kk in range(k - BSTEP + 1, k + 1))
    if ps == 1 and k == XG - 1:
        for t in (0, 1):
            X0END = ws.extra(mfma(acc_of[t], A(aCS + 2 * t, 4), V(vMF, 4)))
    if k == 27:
        if ps:
            for t in tl:
                g_ = ws.extra(mfma(acc_of[t], A(aCS + 2 * t, 4), V(vMF, 4)))
        PEND[ps] = g_
P1END, P2END, P3END, P4END = PEND = [PEND[n] for n in range(4)]
for n, x in enumerate(w1late[N1:]):
    ws.fill(1 + 2 * n, x)
for i in range(7):
    ws.fill(1 + 2 * (i + 9 - N1), [I('buffer_load_dwordx2 %s, v%d, %s, s%d offen offset:%d sc1' % (V(vSt + 2 * i, 2), t4, S4(sWS), sStL, 256 * i))])
g1 = X0END - 16
ws.fill(g1 - OPT.get('csd', 24), poll_issue(sCSp, OPT.get('csa', 1)))
cs = poll_check(4, sCSp) + L('s_lshl_b32 s3, s%d, 11\ns_add_u32 s3, s3, %d' % (sA, WS_CS))
for n in range(4):
    cs.append(I('buffer_load_dwordx4 %s, v%d, %s, s3 offen offset:%d sc1' % (A(aCS + 4 * n, 4), vL8, S4(sWS), 512 * n)))
ws.fill(g1, cs)
st = []
for (a, b) in ((0, 2), (4, 6), (8, 10), (0, 4), (8, 12), (0, 8)):
    st += L('v_add_f32 v{a}, v{a}, v{b}\nv_add_f32 v{a1}, v{a1}, v{b1}'.format(a=vSt + a, b=vSt + b, a1=vSt + a + 1, b1=vSt + b + 1))
st += halves_sum(vSt, t2) + halves_sum(vSt + 1, t2) + ln_consts(vSt, vSt + 1, vMean, cS, vR)
st += L('v_mul_f32 v%d, 0x%x, v%d' % (cA, NEGL, vR)) + mean_frag(vMean, vMF)
for n, x in enumerate(st):
    ws.fill(X0END - 24 + n // 2, x)
assert len(st) // 2 < 22
SIGD = OPT.get('sigd', 20)
sig_at = []
spill = []
for stg, e0 in enumerate((X0END + 1, P2END + 1, P3END + 1)):
    es = eslots((2 * stg, 2 * stg + 1))
    for n, sl in enumerate(es):
        for x in sl:
            if e0 + n <= P4END:
                ws.fill(e0 + n, x)
            else:
                spill += x if isinstance(x, list) else [x]
    if stg == 0:
        assert e0 + 34 <= P2END + 1, 'temporaries of consecutive epilogues overlap'
    sig_at.append(e0 + len(es) - 1 + SIGD)
for stg in range(2):
    ws.fill(sig_at[stg], hhsig(stg))
late2 = sig_at[2] - 4 > P4END
if not late2:
    ws.fill(min(sig_at[2], P4END), hhsig(2))
PD = OPT.get('pd', 22)
CD = OPT.get('cd', 24)
busy = set()
for stg in range(2):
    ws.fill(sig_at[stg] + PD, hhpoll(stg))
    hchk = sig_at[stg] + PD + CD
    ws.fill(hchk, poll_check(7, sPoll))
    g_ = hchk - 1
    for n in range(14 * stg, 14 * stg + 14):
        g_ += 2
        if g_ <= P4END:
            ws.fill(g_, hhload(n))
            busy.add(g_)
            HHN = n + 1
    if stg == 0:
        H0 = hchk
    else:
        H1 = hchk
g_ = DSLOT1
while carry:
    g_ = max(g_ + 2, carry[0][0] + 1)
    while g_ in busy or g_ - 1 in busy or g_ + 1 in busy:
        g_ += 1
    if g_ > P4END:
        break
    ws.fill(g_, wddma(carry.pop(0)[1]))
D0 = vX + 32
dinit = []
for j in range(8):
    dinit += L('v_accvgpr_read_b32 v{t}, a{h}\nv_lshlrev_b32 v{a}, 16, v{t}\nv_and_b32 v{b}, 0xffff0000, v{t}'.format(
        t=t2, h=aH + j, a=D0 + 2 * j, b=D0 + 1 + 2 * j))
for n, x in enumerate(dinit):
    ws.fill(2 + n, x)
for nm in OPT['st'] or ():
    if nm.startswith('_g'):
        ws.fill(int(nm[2:]), mkstamp(nm))
for nm, at in (('_m0', 0), ('P1', P1END), ('P2', P2END), ('P3', P3END), ('_h0', H0 - 1), ('_h1', H0 + 1), ('_h2', H1 - 1), ('_h3', H1 + 1)):
    ws.fill(at, mkstamp(nm))
p.add(ws.build())
stamp('P4')
p.add(spill)
WPRE = wd_next[0]
rest = [hhload(n) for n in range(HHN, 28)] + [wddma(pg) for _, pg in carry]
carry = []
NE = min(OPT.get('ne', 8), len(rest))
ef = zip_groups([efast(6, vSt + 8), efast(7, vSt)])
p.add(spread(ef[:40], rest[:NE]) + ef[40:56])
rest = rest[NE:]
if late2:
    p.add(hhsig(2))
p.add(ef[56:] + hhstore(6) + hhstore(7))
stamp('_e7')
if STOP <= 3:
    p.add(hhsig(3))
    e('s_branch L_fin')

ws = WStream()
res0 = wd_next[0]
assert wd_next[0] == 40
refill = []
for n in range(16):
    refill.append(wddma(WDPG[n]))
wmid = (WPRE + 40) // 2
wpts = {0: WPRE, WPRE: wmid, wmid: 40, 40: 48, 48: 56}
TD = OPT.get('td', 4)
for n, ft in [(n, ft) for n in range(56 - TD) for ft in range(2)] + [(n, 1) for n in range(56 - TD, 56)] + [(n, 0) for n in range(56 - TD, 56)]:
    if 1:
        pre = []
        if ft == 0 and n in wpts:
            pre += L('@waitvm ' + ' '.join('wd%d' % q for q in range(n, wpts[n])) + '\ns_barrier')
        pr, off = winD.fix(vAdD + ft, WDPG[n] * PG)
        ws.step(vAdD + ft, off, vAdD + ft, off + 1024,
                lambda a: mfma(D0 + 16 * ft, a, hhreg(n), '0' if (n == 0 and ft == 1) else None), pre + pr)
ws.fill(15, L('s_barrier'))
ws.fill(31, L('s_barrier'))
D3 = OPT.get('d3', 12)
seq = [(x, 0) for x in rest]
pos = -1.0
DSTEP = OPT.get('dstep', 1.4)
while seq and pos + DSTEP < D3:
    pos += DSTEP
    ws.fill(int(pos), seq.pop(0)[0])
s3_ = hhsig(3)
ws.fill(D3, s3_[:1] + hhpoll(2) + s3_[1:] + mkstamp('hh stored'))
pos = D3
seq += [(x, 16) for x in refill[:8]]
seq += [(poll_check(7, sPoll) + hhload(28), OPT.get('d2', 28))] + [(hhload(n), 0) for n in range(29, 38)]
seq += [(hhpoll(3), OPT.get('d4', 40))] + [(hhload(n), 0) for n in range(38, 42)]
seq += [(x, 32) for x in refill[8:]]
seq += [(poll_check(7, sPoll) + hhload(42), OPT.get('d5', 56))] + [(hhload(n), 0) for n in range(43, 56)]
for grp, earliest in seq:
    pos = max(pos + DSTEP, earliest)
    ws.fill(int(pos), grp)
DPOS = pos
fin = L('''
s_lshl_b32 s3, s{w}, 12
v_add_u32 v{t0}, s3, v{l16}
s_xor_b32 s4, s3, 8192
v_add_u32 v{t1}, s4, v{l16}
s_lshl2_add_u32 s3, s{g}, s{tt}
s_mul_i32 s3, s3, 28672
s_lshl1_add_u32 s4, s{cs}, s{kh}
s_lshl_b32 s4, s4, 6
s_add_u32 s{o}, s3, s4
v_and_b32 v{a}, 31, v0
v_mul_u32_u24 v{a}, 896, v{a}
v_lshrrev_b32 v{b}, 5, v0
v_lshl_add_u32 v{a}, v{b}, 4, v{a}
'''.format(w=sW, t0=t0, t1=t1, l16=vL16, g=sG, tt=sTT, cs=sCs, kh=sKh, o=sOff2, a=t2, b=t3))
ws.fill(96, fin)
for nm in OPT['st'] or ():
    if nm.startswith('_d'):
        ws.fill(int(nm[2:]), mkstamp(nm))
for nm, at in (('D0', 27), ('D1', 55), ('D2', 83)):
    ws.fill(at, mkstamp(nm))
assert all(WDPG[n] > 3 for n in range(48, 56)), [WDPG[n] for n in range(48, 56)]
ws.fill(103 - TD, L('s_barrier'))
xw_ = [I('ds_write_b128 v%d, %s offset:%d' % (t0, V(D0 + 16 + 4 * q, 4), q * 1024)) for q in range(4)]
xr_ = L('@waitlg0\ns_barrier') + [I('ds_read_b128 %s, v%d offset:%d' % (V(vX + 4 * q, 4), t1, q * 1024)) for q in range(4)]
if TD >= 3:
    ws.fill(112 - TD + 1, xw_)
    ws.fill(111, xr_)
    p.add(ws.build())
else:
    p.add(ws.build() + xw_ + xr_)
stamp('D mfma')
for hf_ in range(2):
    for j in range(8 * hf_, 8 * hf_ + 8, 2):
        p.add([pk('add', D0 + j, D0 + j, vX + j)])
    for j in range(4 * hf_, 4 * hf_ + 4):
        e('v_cvt_pk_bf16_f32 v%d, v%d, v%d' % (vY + j, D0 + 2 * j, D0 + 2 * j + 1))
    bb = 4 * hf_
    e('v_permlane32_swap_b32 v%d, v%d' % (vY + bb, vY + bb + 2))
    e('v_permlane32_swap_b32 v%d, v%d' % (vY + bb + 1, vY + bb + 3))
    e('buffer_store_dwordx4 %s, v%d, %s, s%d offen%s%s' % (V(vY + bb, 4), t2, S4(sOUT), sOff2, ' offset:32' if hf_ else '', OPT.get('outm', '')))
e('s_branch L_fin')

main_ins = p.ins
p.ins = []
e('L_idle:')
e('''
s_lshl1_add_u32 s6, s{g}, s{half}
s_cmp_lt_u32 s6, 28
s_cselect_b32 s{gu2}, 1605632, 0
s_mul_i32 s3, s{th}, 802816
s_lshl_b32 s4, s6, 7
s_add_u32 s{o}, s3, s4
v_lshrrev_b32 v{a}, 3, v0
v_mul_u32_u24 v{a}, 3584, v{a}
v_and_b32 v{b}, 7, v0
v_lshl_add_u32 v{a}, v{b}, 4, v{a}
v_mov_b32 v{e0}, 0x3f80
v_mov_b32 v{e1}, 0x3f800000
'''.format(g=sG, half=sHalf, gu2=sGU + 2, th=sTh, o=sOff, a=t0, b=t1, e0=u[0], e1=u[1]))
for n in range(28):
    e('buffer_load_dwordx4 %s, v%d, %s, s%d offen' % (V(vF + 4 * n, 4), t0, S4(sGU), sOff))
    e('s_add_u32 s%d, s%d, 28672' % (sOff, sOff))
    if n == OPT.get('ipre', 0):
        e('s_waitcnt vmcnt(%d)' % (n + 1))
        p.add(signal(sSig))
        stamp('_i0')
        e('s_barrier')
        e('s_cmp_ge_u32 s6, 28')
        e('s_cbranch_scc1 L_idle2')
stamp('_i1')
for j in range(8):
    e('v_mov_b32 v%d, 0' % (vY + j))
for n in range(28):
    for d in range(4):
        e('v_dot2c_f32_bf16 v%d, v%d, v%d' % (vY + 2 * d, vF + 4 * n + d, u[0]))
        e('v_dot2c_f32_bf16 v%d, v%d, v%d' % (vY + 2 * d + 1, vF + 4 * n + d, u[1]))
stamp('_i2')
for j in range(8):
    e('v_mov_b32 v%d, v%d' % (vY + 8 + j, vY + j))
for j in range(8):
    e('v_permlane32_swap_b32 v%d, v%d' % (vY + 8 + j, vY + j))
for j in range(8):
    e('v_add_f32 v%d, v%d, v%d' % (vY + j, vY + j, vY + 8 + j))
for j in range(8):
    e('v_mov_b32 v%d, v%d' % (vY + 8 + j, vY + j))
for j in range(8):
    e('v_permlane16_swap_b32 v%d, v%d' % (vY + 8 + j, vY + j))
for j in range(8):
    e('v_add_f32 v%d, v%d, v%d' % (vY + j, vY + j, vY + 8 + j))
for j in range(8):
    e('v_add_f32_dpp v%d, v%d, v%d row_ror:8 row_mask:0xf bank_mask:0xf' % (vY + 8 + j, vY + j, vY + j))
e('''
s_lshl_b32 s3, s{w}, 8
v_lshl_add_u32 v{a}, v{b}, 5, s3
ds_write_b128 v{a}, {r0}
ds_write_b128 v{a}, {r1} offset:16
s_waitcnt lgkmcnt(0)
s_barrier
v_bfe_u32 v{a}, v0, 4, 1
v_lshlrev_b32 v{a}, 9, v{a}
v_and_b32 v{b}, 15, v0
v_lshl_add_u32 v{a}, v{b}, 2, v{a}
v_lshrrev_b32 v{b}, 5, v0
v_lshl_add_u32 v{a}, v{b}, 7, v{a}
ds_read_b32 v{y0}, v{a}
ds_read_b32 v{y1}, v{a} offset:256
ds_read_b32 v{y2}, v{a} offset:64
ds_read_b32 v{y3}, v{a} offset:320
v_mov_b32 v{x1}, 0
v_mov_b32 v{x3}, 0
s_lshl_b32 s3, s6, 10
s_add_u32 s3, s3, {base}
s_lshr_b32 s4, s6, 1
s_lshl_b32 s4, s4, 13
s_add_u32 s4, s4, {cc}
v_add_f32 v{y0}, v{y0}, v{y1}
v_add_f32 v{y2}, v{y2}, v{y3}
'''.format(w=sW, a=t0, b=t1, r0=V(vY + 8, 4), r1=V(vY + 12, 4), y0=vY, y1=vY + 1, y2=vY + 2, y3=vY + 3, x1=vX + 1, x3=vX + 3,
           base=WS_CS, cc=C_CS * 128))
p.add(hilo(vY, vX, t2) + hilo(vY + 2, vX + 2, t2))
stamp('_i3')
e('s_cmp_ge_u32 s%d, 2' % sW)
e('s_cbranch_scc1 L_idle1')
e('buffer_store_dwordx4 %s, v%d, %s, s3 offen sc1' % (V(vX, 4), vL16, S4(sWS)))
e('s_waitcnt vmcnt(0)')
p.add(signal(4))
e('s_waitcnt vmcnt(0)')
e('L_idle1:')
e('s_barrier')
e('L_idle2:')
stamp('_i4')
if OPT.get('idlepf', 1):
    e('''
    v_lshlrev_b32 v{a}, 7, v0
    s_lshl2_add_u32 s3, s{gl}, s{w}
    s_and_b32 s4, s2, 7
    s_mul_i32 s4, s4, 32
    s_add_u32 s3, s3, s4
    '''.format(a=t0, gl=sGl, w=sW))
    for n in range(13):
        for x in ['s_cmp_ge_u32 s3, 208', 's_cselect_b32 s4, 208, 0', 's_sub_u32 s3, s3, s4', 's_lshl_b32 s5, s3, 13',
                  'buffer_load_dword v%d, v%d, %s, s5 offen' % (vX + 8 + n, t0, S4(sWD)), 's_add_u32 s3, s3, 16']:
            e(x)
e('L_fin:')
if OPT.get('fixt'):
    e('s_waitcnt vmcnt(0) lgkmcnt(0)')
    e('L_fix:')
    for x in ['s_memrealtime s[96:97]', 's_waitcnt lgkmcnt(0)', 's_sub_u32 s96, s96, s98', 's_cmp_lt_u32 s96, %d' % OPT['fixt'], 's_cbranch_scc1 L_fix']:
        e(x, raw=True)
if DIAG:
    e('s_waitcnt vmcnt(0)')
    e('s_memtime s[76:77]' if OPT['cyc'] else 's_memrealtime s[76:77]')
    e('s_memtime s[74:75]')
    e('s_waitcnt lgkmcnt(0)')
    e('s_sub_u32 s74, s74, s100')
    e('v_mov_b32 v%d, s74' % (vX + 14))
    e('v_mov_b32 v%d, s101' % (vX + 15))
    e('s_lshl_b32 s3, s2, 2')
    e('s_add_u32 s3, s3, s%d' % sW)
    e('s_lshl_b32 s3, s3, 6')
    e('s_add_u32 s3, s3, %d' % WS_TS)
    for n in range(12):
        e('v_mov_b32 v%d, s%d' % (vX + n, sTS + 2 * n))
    e('v_mov_b32 v%d, s76' % (vX + 12))
    e('s_getreg_b32 s4, hwreg(HW_REG_XCC_ID)')
    e('v_mov_b32 v%d, s4' % (vX + 13))
    e('s_mov_b64 exec, 1')
    for q in range(4):
        e('buffer_store_dwordx4 %s, off, %s, s3 offset:%d' % (V(vX + 4 * q, 4), S4(sWS), 16 * q))
e('s_waitcnt vmcnt(0) lgkmcnt(0)')
e('L_end:')
e('s_endpgm')
tail_ins = p.ins

p.ins = main_ins
p.finalize()
body = p.text()
stats = dict(p.stats)
kinds = {}
for i in p.out:
    kinds[i.kind] = kinds.get(i.kind, 0) + 1
p.ins = tail_ins
p.finalize()
body += '\n' + p.text()

hdr = open('sequential_preLN__linear_attn_block__glu_gated_glu__prompt.s.ref').read().split('\n')
head = [l for l in hdr if l.startswith(';') and '@launch' not in l and 'Override' not in l and 'grid=ceil' not in l]
out = '\n'.join(head) + '''
; @launch grid=(256,1,1) block=(256,1,1) lds=163840
.amdgcn_target "amdgcn-amd-amdhsa--gfx950"
.text
.globl {n}
.p2align 8
.type {n},@function
{n}:
{body}
.section .rodata,"a"
.p2align 6
.amdhsa_kernel {n}
  .amdhsa_next_free_vgpr 512
  .amdhsa_next_free_sgpr 102
  .amdhsa_accum_offset 256
  .amdhsa_group_segment_fixed_size 0
  .amdhsa_kernarg_size 80
  .amdhsa_user_sgpr_count 2
  .amdhsa_user_sgpr_kernarg_segment_ptr 1
  .amdhsa_system_sgpr_workgroup_id_x 1
  .amdhsa_float_denorm_mode_32 3
.end_amdhsa_kernel
'''.format(n=NAME, body=body)
open(sys.argv[1], 'w').write(out)
print(kinds, stats, 'wpre', WPRE, 'rest', len(rest), 'spill', len(spill), 'H0', H0, H1, 'HHN', HHN, 'X0END', X0END, PEND, 'sig', sig_at, 'dslot', DSLOT1, 'dpos', DPOS, file=sys.stderr)
```

```python
import sys
from asmlib import Prog, I

NAME = 'sequential_preLN__linear_attn_block__glu_gated_glu__prompt_kernel'

OPT = dict(diag=0, stop=99, spin=200000, abl='', cyc=0, st=None)
for a in sys.argv[2:]:
    k, v = a.split('=')
    OPT[k] = eval(v)
DIAG = OPT['diag']
STOP = OPT['stop']

WS_CNT = 0
WS_KVP = 0x20000
WS_CS = 0xA0000
WS_O = 0x120000
WS_H = 0x320000
WS_ST = 0x520000
WS_HH = 0x560000
WS_TS = 0xC60000
WS_SIZE = 0xD00000
C_O, C_H, C_KV, C_HH, C_CS = 0, 8, 12, 16, 48

sX, sQKV, sWO, sGU, sWD, sOUT, sWS, sDBG = 24, 28, 32, 36, 40, 44, 48, 52
sOff, sOff2, sIter, sPoll = 56, 57, 58, 59
sG, sM, sW, sCs, sWK, sHalf, sA, sTh, sKh, sCnt = 60, 61, 62, 63, 64, 65, 66, 67, 68, 69
sCh = 70
sIdx = 77
sT = [3, 4, 5, 6, 7, 8, 9, 10, 11, 12, 13]
sMaskHi = 14
sMask28 = 16
sGl, sGood, sSig, sSt, sTT, sZero = 18, 19, 20, 21, 22, 23
sGUt = [28, 29, 30, 31, 52, 53, 54]
sWDt = [24, 25, 26, 27, 32, 33, 34]
sHHt = [0, 1, 16, 17, 19, 23, 55]
sTS = 78


def S4(b):
    return 's[%d:%d]' % (b, b + 3)


def V(b, n=1):
    return 'v%d' % b if n == 1 else 'v[%d:%d]' % (b, b + n - 1)


def A(b, n=1):
    return 'a%d' % b if n == 1 else 'a[%d:%d]' % (b, b + n - 1)


vL16, vOne, vP, vL8 = 1, 2, 3, 4
vOffX = 5
vAdX = 9
vAdC = 9
vOffKV, vAdK, vAdV, vOffQ, vAdQ = 13, 14, 15, 16, 17
vAdD = 14
vOffWO, vOffXR, vOffGU, vOffWD = 18, 19, 20, 21
vAdWO, vAdWOp = 22, 24
vT = 26
vP2, vP3 = 238, 239
vY = 32
vX = 64
vF = 128
vGUo, vWDo, vL16b, vMF, vCc, vSt, vHH = 128, 136, 144, 148, 152, 156, 172
vU = 240
aW = 0
aH = 32
aF = 40
aCS = 152
aR = 172
t0, t1, t2, t3, t4, t5 = range(vT, vT + 6)
u = [vU + i for i in range(16)]

PG = 4096
LOG2E = 0x3fb8aa3b
NEGL = 0xbfb8aa3b
EPS6 = 0x358637bd
EPS5 = 0x3727c5ac
INV448 = 0x3b124925

p = Prog()
e = p.e
nstamp = [0]
nlab = [0]


def L(x):
    return [I(t.strip()) for t in x.strip().split('\n') if t.strip()]


def mkstamp(name):
    if OPT.get('enc') == name:
        return [I('s_memrealtime s[94:95]')]
    if not DIAG:
        return []
    early = ('o flag', 'x0 landed', 'x read', 'A1 mfma', 'kv stored', 'A2 mfma', 'q done', 'kv flag', 'kv loaded', 'o stored')
    if OPT['st'] is not None:
        if name != 'start' and name not in OPT['st']:
            return []
    elif name != 'start' and ((DIAG == 1) != (name in early) or name.startswith('_')):
        return []
    n = nstamp[0]
    assert n < 11
    nstamp[0] += 1
    return [I('%s s[%d:%d] ; @%s' % ('s_memtime' if OPT['cyc'] else 's_memrealtime', sTS + 2 * n, sTS + 2 * n + 1, name))]


def stamp(name):
    p.add(mkstamp(name))


def dma(voff, srd, so, m0, tag, pre=(), imm=0):
    r = []
    if m0 is not None:
        r.append(I('s_add_u32 m0, s%d, 0x%x' % (sWK, m0)))
    r += [I(t) for t in pre]
    r.append(I('buffer_load_dwordx4 v%d, %s, %s offen%s lds' % (voff, S4(srd), so, ' offset:%d' % imm if imm else ''), tag=tag))
    return r


def poll_issue(soff, atomic=True):
    if OPT.get('apoll', 1) and atomic:
        return L('v_mov_b32 v%d, 0\ns_mov_b64 exec, 1\nbuffer_atomic_umax v%d, off, %s, s%d sc0\ns_mov_b64 exec, -1' % (vP, vP, S4(sWS), soff))
    return [I('buffer_load_dword v%d, off, %s, s%d sc1' % (vP, S4(sWS), soff))]


def poll_check(expect, soff, srd=sWS):
    n = nlab[0]
    nlab[0] += 1
    t = sT[0]
    so = soff if isinstance(soff, str) else 's%d' % soff
    r = L('''
    v_readfirstlane_b32 s%d, v%d
    s_cmp_ge_u32 s%d, %d
    s_cbranch_scc1 L_ok%d
    s_mov_b32 s%d, %d
    ''' % (t, vP, t, expect, n, sIter, OPT['spin']))
    ld = lambda v: 'buffer_load_dword v%d, off, %s, %s sc1' % (v, S4(srd), so)
    chk = lambda v: ['v_readfirstlane_b32 s%d, v%d' % (t, v), 's_nop 0', 's_cmp_ge_u32 s%d, %d' % (t, expect), 's_cbranch_scc1 L_ok%d' % n]
    loop = ['s_sub_u32 s%d, s%d, 1' % (sIter, sIter), 's_cmp_lg_u32 s%d, 0' % sIter, 's_cbranch_scc1 L_spin%d' % n]
    pm = OPT.get('pm', 0)
    if OPT.get('apoll', 1) and srd == sWS:
        body = ['L_spin%d:' % n] + (['s_sleep %d' % OPT['asl']] if OPT.get('asl') else []) + ['s_mov_b64 exec, 1', 'buffer_atomic_umax v%d, off, %s, %s sc0' % (vP, S4(srd), so), 's_mov_b64 exec, -1',
                's_waitcnt vmcnt(0)'] + chk(vP) + loop
    elif pm == 0:
        body = ['L_spin%d:' % n, ld(vP), 's_waitcnt vmcnt(0)'] + chk(vP) + loop
    elif pm < 0:
        body = ['L_spin%d:' % n, 's_sleep %d' % -pm, ld(vP), 's_waitcnt vmcnt(0)'] + chk(vP) + loop
    else:
        body = [ld(vP), 'L_spin%d:' % n, 's_sleep %d' % pm, ld(vP2), 's_waitcnt vmcnt(1)'] + chk(vP) + \
               ['s_sleep %d' % pm, ld(vP), 's_waitcnt vmcnt(1)'] + chk(vP2) + loop
    for x in body:
        r.append(I(x, raw=True))
    r.append(I('L_ok%d:' % n))
    return r


def poll_pipe_issue(soff):
    return L('v_mov_b32 v%d, 0\nv_mov_b32 v%d, 0' % (vP2, vP3)) + poll_issue(soff)


def poll_pipe_check(expect, soff):
    n = nlab[0]
    nlab[0] += 1
    t = sT[0]
    at = lambda v: 'buffer_atomic_umax v%d, off, %s, s%d sc0' % (v, S4(sWS), soff)
    chk = lambda v: ['s_waitcnt vmcnt(2)', 'v_readfirstlane_b32 s%d, v%d' % (t, v), 's_nop 0', 's_cmp_ge_u32 s%d, %d' % (t, expect),
                     's_cbranch_scc1 L_ok%d' % n]
    sl = 's_sleep %d' % OPT.get('psl', 3)
    body = ['s_mov_b32 s%d, %d' % (sIter, OPT['spin']), 's_mov_b64 exec, 1', at(vP2), sl, 'L_spin%d:' % n, at(vP3)] + chk(vP) + \
           [at(vP)] + chk(vP2) + [at(vP2)] + chk(vP3) + \
           ['s_sub_u32 s%d, s%d, 1' % (sIter, sIter), 's_cmp_lg_u32 s%d, 0' % sIter, 's_cbranch_scc1 L_spin%d' % n]
    r = [I(x, raw=True) for x in body]
    return r + [I('L_ok%d:' % n), I('s_mov_b64 exec, -1'), I('@assumevm0')]


def signal(soff, imm=0):
    return L('''
    s_mov_b64 exec, 1
    buffer_atomic_add v%d, off, %s, s%d%s
    s_mov_b64 exec, -1
    ''' % (vOne, S4(sWS), soff, ' offset:%d' % imm if imm else ''))


def mfma(d, a, b, c=None):
    return I('v_mfma_f32_32x32x16_bf16 %s, %s, %s, %s' % (V(d, 16), a, b, V(d, 16) if c is None else c))


def colsum4(acc, q, first):
    return [I('v_mfma_f32_4x4x4_16b_bf16 %s, %s, %s, %s' % (V(acc + 4 * h, 4), V(vOnes, 2), A(q + 2 * h, 2), '0' if first else V(acc + 4 * h, 4))) for h in range(2)]


class WStream:
    def __init__(self, look=7, nbuf=8, wper=4):
        self.items = []
        self.look = look
        self.nbuf = nbuf
        self.wper = wper
        self.n = 0
        self.fills = {}

    def step(self, addr0, off0, addr1, off1, mk, pre=None, post=None):
        q = aW + 4 * (self.n % self.nbuf)
        self.n += 1
        rd = list(pre or [])
        rd.append(I('ds_read_b64_tr_b16 %s, v%d offset:%d' % (A(q, 2), addr0, off0)))
        rd.append(I('ds_read_b64_tr_b16 %s, v%d offset:%d' % (A(q + 2, 2), addr1, off1)))
        self.items.append((rd, mk(A(q, 4)), post(q) if post else []))
        return len(self.items) - 1

    def extra(self, m):
        self.items.append(([], m, []))
        return len(self.items) - 1

    def fill(self, idx, grp):
        g = grp if isinstance(grp, list) else [grp]
        ab = OPT['abl']
        if ab and not any(x.kind in ('label', 'sctl') or 'exec' in x.text for x in g):
            if 'v' in ab:
                g = [x for x in g if x.kind != 'valu']
            if 'd' in ab and any(x.kind == 'dma' for x in g):
                g = []
            if 'b' in ab:
                g = [x for x in g if x.kind != 'barrier']
        if g:
            self.fills.setdefault(idx, []).append(g)

    def build(self):
        out = []
        n = len(self.items)
        withrd = [i for i in range(n) if self.items[i][0]]
        nxt = 0
        used = 0
        while nxt < min(self.look, len(withrd)):
            out += self.items[withrd[nxt]][0]
            nxt += 1
        for i in range(n):
            rd, m, post = self.items[i]
            if rd:
                if used % self.wper == 0:
                    m.ahead = 2 * min(self.wper - 1, nxt - used - 1)
                used += 1
            out.append(m)
            gs = self.fills.pop(i, [])
            first = [g for g in gs if g[0].kind == 'barrier']
            rest = [g for g in gs if g[0].kind != 'barrier']
            for g in first:
                out += g
            mem = [g for g in rest if not all(x.kind == 'valu' for x in g)]
            if mem and mem[0][0].kind == 'salu' and mem[0][-1].kind == 'dma':
                out.append(mem[0][0])
                mem[0] = mem[0][1:]
            if rd and nxt < len(withrd):
                out += self.items[withrd[nxt]][0]
                nxt += 1
            for g in mem:
                out += g
            for g in rest:
                if all(x.kind == 'valu' for x in g):
                    out += g
            out += post
        assert not self.fills, list(self.fills)
        return out


def spread(main, fill):
    out = []
    n, m = len(main), len(fill)
    j = 0
    for i, x in enumerate(main):
        out.append(x)
        while j < m and (j + 1) * n <= (i + 1) * (m + 1):
            out.extend(fill[j])
            j += 1
    while j < m:
        out.extend(fill[j])
        j += 1
    return out


def zip_groups(groups):
    out = []
    n = max(len(g) for g in groups)
    for k in range(n):
        for g in groups:
            if k < len(g):
                out.append(g[k])
    return out


def pk(op, d, a, b, c=None, mod=''):
    f = lambda r: r if isinstance(r, str) else V(r, 2)
    return I('v_pk_%s_f32 %s, %s, %s%s %s' % (op, f(d), f(a), f(b), '' if c is None else ', ' + f(c), mod))


def halves_sum(x, t):
    return L('''
    v_mov_b32 v{t}, v{x}
    v_permlane32_swap_b32 v{t}, v{x}
    v_add_f32 v{x}, v{t}, v{x}
    '''.format(t=t, x=x))


def ln_consts(s, q, mean, std, r):
    return L('''
    v_mul_f32 v{a}, 0x{i:x}, v{s}
    v_mul_f32 v{b}, 0x{i:x}, v{q}
    v_fma_f32 v{b}, -v{a}, v{a}, v{b}
    v_max_f32 v{b}, 0, v{b}
    v_cvt_pk_bf16_f32 v{a}, v{a}, v{b}
    v_and_b32 v{b}, 0xffff0000, v{a}
    v_lshlrev_b32 v{a}, 16, v{a}
    v_add_f32 v{b}, 0x{e:x}, v{b}
    v_cvt_pk_bf16_f32 v{b}, v{b}, v{b}
    v_lshlrev_b32 v{b}, 16, v{b}
    v_sqrt_f32 v{b}, v{b}
    v_cvt_pk_bf16_f32 v{b}, v{b}, v{b}
    v_lshlrev_b32 v{b}, 16, v{b}
    v_rcp_f32 v{r}, v{b}
    '''.format(a=mean, b=std, s=s, q=q, r=r, i=INV448, e=EPS5))


def mean_frag(mean, d):
    return L('''
    v_cvt_pk_bf16_f32 v{d}, -v{m}, -v{m}
    v_mov_b32 v{d1}, 0
    v_mov_b32 v{d2}, 0
    v_mov_b32 v{d3}, 0
    v_cndmask_b32 v{d}, v{d}, 0, s[{h}:{h1}]
    '''.format(d=d, d1=d + 1, d2=d + 2, d3=d + 3, m=mean, h=sMaskHi, h1=sMaskHi + 1))


def hilo(c, d, t):
    return L('''
    v_cvt_pk_bf16_f32 v{t}, v{c}, v{c}
    v_lshlrev_b32 v{t}, 16, v{t}
    v_sub_f32 v{t}, v{c}, v{t}
    v_cvt_pk_bf16_f32 v{d}, v{c}, v{t}
    '''.format(c=c, d=d, t=t))


e('s_cmp_ge_u32 s2, 256')
e('s_cbranch_scc1 L_end')
if OPT.get('fixt') or OPT.get('enc'):
    e('s_memrealtime s[98:99]')
    e('s_memrealtime s[94:95]')
stamp('start')
if DIAG:
    e('s_memtime s[100:101]')
e('s_load_dwordx4 s[4:7], s[0:1], 0')
e('s_load_dwordx2 s[%d:%d], s[0:1], 16' % (sWO, sWO + 1))
e('s_load_dwordx8 s[8:15], s[0:1], 32')
e('s_load_dwordx4 s[20:23], s[0:1], 64')
XP0 = 12
e("""
v_lshrrev_b32 v{t0}, 6, v0
v_and_b32 v0, 63, v0
v_readfirstlane_b32 s{w}, v{t0}
s_lshr_b32 s{idx}, s2, 3
""".format(t0=t0, w=sW, idx=sIdx))
if OPT.get('cpf', 1):
    sCODE = 72
    e('s_getpc_b64 s[%d:%d]' % (sCODE, sCODE + 1))
    e('L_pc:')
    e("""
    s_mov_b32 s{c2}, L_end-L_pc
    s_mov_b32 s{c3}, 0x20000
    s_lshl2_add_u32 s3, s{idx}, s{w}
    s_lshl_b32 s3, s3, 9
    v_and_b32 v{t3}, 3, v0
    v_lshlrev_b32 v{t3}, 7, v{t3}
    buffer_load_dword v{d}, v{t3}, {code}, s3 offen
    """.format(c2=sCODE + 2, c3=sCODE + 3, idx=sIdx, w=sW, t3=t3, d=t5, code=S4(sCODE)))
e("""
s_bfe_u32 s3, s2, 0x20001
s_and_b32 s{gl}, s{idx}, 3
s_lshr_b32 s{cs}, s{idx}, 2
s_lshl2_add_u32 s{g}, s3, s{gl}
s_lshl1_add_u32 s{c0}, s{gl}, s{cs}
s_add_u32 s{c0}, s{c0}, s3
s_mul_i32 s3, s{c0}, 37
s_lshr_b32 s3, s3, 8
s_mul_i32 s3, s3, 7
s_sub_u32 s{c0}, s{c0}, s3
v_lshrrev_b32 v{u0}, 3, v0
v_and_b32 v{u1}, 7, v0
v_lshrrev_b32 v{u2}, 4, v0
s_lshl2_add_u32 s3, s{g}, s{w}
s_mul_i32 s3, s3, 28672
v_mul_u32_u24 v{t0}, 896, v{u0}
v_xor_b32 v{t1}, v{u1}, v{u2}
v_add_u32 v{t0}, s3, v{t0}
v_lshl_add_u32 v{x0}, v{t1}, 4, v{t0}
v_xor_b32 v{t1}, 4, v{t1}
v_lshl_add_u32 v{x1}, v{t1}, 4, v{t0}
v_add_u32 v{x2}, 12288, v{x0}
v_add_u32 v{x3}, 18432, v{x1}
v_add_u32 v{x1}, 6144, v{x1}
s_mul_i32 s{o2}, s{w}, {xs}
s_add_u32 s{o2}, s{o2}, {xb}
s_mov_b32 s{X2}, 1835008
s_mov_b32 s{X3}, 0x20000
""".format(t0=t0, t1=t1, w=sW, idx=sIdx, gl=sGl, cs=sCs, g=sG, c0=sCh, u0=u[0], u1=u[1], u2=u[2],
           x0=vOffX, x1=vOffX + 1, x2=vOffX + 2, x3=vOffX + 3, o2=sOff2, xs=7 * PG, xb=XP0 * PG, X2=sX + 2, X3=sX + 3))


def nextch(i):
    e('s_add_u32 s%d, s%d, 1' % (sCh + i, sCh + i - 1))
    e('s_cmp_ge_u32 s%d, 7' % (sCh + i))
    e('s_cselect_b32 s%d, 0, s%d' % (sCh + i, sCh + i))


def xdma(i):
    r = L('s_add_u32 m0, s%d, %d\ns_lshl_b32 s%d, s%d, 7' % (sOff2, i * PG, sOff, sCh + i))
    for q in range(4):
        r.append(I('buffer_load_dwordx4 v%d, %s, s%d offen%s lds' % (vOffX + q, S4(sX), sOff, ' offset:%d' % (q * 1024) if q else ''), tag='x%d' % i))
    return r


nextch(1)
stamp('_prek')
e('@waitlg0')
stamp('_karg')
e('s_mov_b32 s%d, s4' % sX)
e('s_mov_b32 s%d, s5' % (sX + 1))
p.add(xdma(0))
p.add(xdma(1))
stamp('_x01')
for i in range(2, 7):
    nextch(i)
e("""
s_and_b32 s{half}, s2, 1
s_lshl3_add_u32 s{m}, s{half}, s{cs}
s_sub_u32 s{a}, s{m}, s{half}
s_lshl_b32 s{wk}, s{w}, 10
s_lshl_b32 s{cnt}, s{g}, 13
s_and_b32 s{th}, s{w}, 1
s_lshr_b32 s{kh}, s{w}, 1
s_mov_b32 s{q}, s6
s_mov_b32 s{q1}, s7
s_cmp_lt_u32 s{w}, 2
s_cselect_b32 s{gu}, s8, s10
s_cselect_b32 s{gu1}, s9, s11
s_mov_b32 s{wd}, s12
s_mov_b32 s{wd1}, s13
s_mov_b32 s{out}, s14
s_mov_b32 s{out1}, s15
s_mov_b32 s{dbg}, s20
s_mov_b32 s{dbg1}, s21
s_mov_b32 s{ws}, s22
s_mov_b32 s{ws1}, s23
s_cmp_lt_u32 s{cs}, 7
s_cselect_b32 s{wo2}, 401408, 0
s_cselect_b32 s{gu2}, 1605632, 0
s_lshl1_add_u32 s{tt}, s{half}, s{th}
""".format(half=sHalf, m=sM, cs=sCs, a=sA, wk=sWK, w=sW, cnt=sCnt, g=sG, th=sTh, kh=sKh, q=sQKV, q1=sQKV + 1,
           gu=sGU, gu1=sGU + 1, wd=sWD, wd1=sWD + 1, out=sOUT, out1=sOUT + 1, dbg=sDBG, dbg1=sDBG + 1,
           ws=sWS, ws1=sWS + 1, wo2=sWO + 2, gu2=sGU + 2, tt=sTT))
for srd, size in ((sQKV, 1204224), (sWO, None), (sWD, 1605632), (sGU, None), (sOUT, 1835008), (sDBG, 256), (sWS, WS_SIZE)):
    if size:
        e('s_mov_b32 s%d, 0x%x' % (srd + 2, size))
    e('s_mov_b32 s%d, 0x20000' % (srd + 3))
e("""
v_lshlrev_b32 v{l16}, 4, v0
v_lshlrev_b32 v{l8}, 3, v0
v_mov_b32 v{one}, 1
v_and_b32 v{u3}, 31, v0
v_lshrrev_b32 v{u4}, 5, v0
v_bfe_u32 v{u5}, v0, 2, 2
v_and_b32 v{u6}, 3, v0
v_bfe_u32 v{u7}, v0, 4, 1
""".format(l16=vL16, l8=vL8, one=vOne, u3=u[3], u4=u[4], u5=u[5], u6=u[6], u7=u[7]))
e("""
s_cmp_eq_u32 s{m}, 15
s_cselect_b32 s3, 1, 0
s_cmp_eq_u32 s{w}, 0
s_cselect_b32 s{z}, s3, 0
s_cmp_eq_u32 s{z}, 0
s_cbranch_scc1 L_nozero
v_lshlrev_b32 v{t3}, 7, v0
v_mov_b32 v{t4}, 0
""".format(m=sM, w=sW, t3=t3, t4=t4, z=sZero))
e('buffer_store_dword v%d, v%d, %s, s%d offen sc1' % (t4, t3, S4(sWS), sCnt), raw=True)
e('L_nozero:')
e('v_cmp_lt_u32 s[%d:%d], 31, v0' % (sMaskHi, sMaskHi + 1))
e('v_cmp_eq_u32 s[%d:%d], 28, v%d' % (sMask28, sMask28 + 1, u[3]))
e('''
v_lshlrev_b32 v{t0}, 7, v{u3}
v_add_u32 v{t0}, s{xb}, v{t0}
v_bfe_u32 v{t1}, v0, 1, 3
v_xor_b32 v{t1}, v{t1}, v{u4}
'''.format(t0=t0, t1=t1, u3=u[3], u4=u[4], xb=sOff2))
for ks in range(4):
    e('v_xor_b32 v%d, %d, v%d' % (t2, 2 * ks, t1))
    e('v_lshl_add_u32 v%d, v%d, 4, v%d' % (vAdX + ks, t2, t0))
e('''
v_lshlrev_b32 v{t0}, 2, v{u7}
v_xor_b32 v{t0}, v{t0}, v{u1}
v_lshlrev_b32 v{t4}, 4, v{t0}
v_lshrrev_b32 v{t1}, 2, v{t0}
v_and_b32 v{t0}, 3, v{t0}
v_lshlrev_b32 v{t2}, 1, v{t0}
v_min_u32 v{t2}, 5, v{t2}
v_lshlrev_b32 v{t2}, 3, v{t2}
s_movk_i32 s{k}, 896
v_mad_u32_u24 v{t2}, v{t1}, s{k}, v{t2}
v_mad_u32_u24 v{t4}, v{u0}, s{k}, v{t4}
s_lshl_b32 s3, s{w}, 3
v_add_u32 v{t3}, s3, v{u0}
s_movk_i32 s{k}, 2688
v_mad_u32_u24 v{t2}, v{t3}, s{k}, v{t2}
s_mul_i32 s3, s{m}, 56
s_add_u32 s4, s3, 896
v_add_u32 v{kv}, s4, v{t2}
'''.format(t0=t0, t1=t1, t2=t2, t3=t3, t4=t4, u0=u[0], u1=u[1], u7=u[7], k=sOff, w=sW, m=sM, kv=vOffKV))
e('''
s_lshl_b32 s6, s{cs}, 7
s_mul_i32 s4, s{w}, 7168
s_add_u32 s4, s4, s6
v_add_u32 v{wo}, s4, v{t4}
s_mul_i32 s4, s{kh}, 802816
s_mul_i32 s5, s{th}, 7168
s_add_u32 s4, s4, s5
s_add_u32 s4, s4, s6
v_add_u32 v{wd}, s4, v{t4}
'''.format(t4=t4, cs=sCs, w=sW, kh=sKh, th=sTh, wo=vOffWO, wd=vOffWD))
e('''
v_lshlrev_b32 v{t2}, 1, v{u6}
v_min_u32 v{t2}, 5, v{t2}
v_lshlrev_b32 v{t2}, 3, v{t2}
v_lshrrev_b32 v{t3}, 2, v0
v_mul_u32_u24 v{t4}, 896, v{t3}
s_lshl_b32 s4, s{w}, 4
v_add_u32 v{t3}, s4, v{t3}
v_mad_u32_u24 v{t2}, v{t3}, s{k}, v{t2}
v_add_u32 v{q}, s3, v{t2}
s_lshl2_add_u32 s4, s{g}, s{tt}
s_mul_i32 s4, s4, 28672
s_add_u32 s4, s4, s6
s_lshl_b32 s5, s{kh}, 6
s_add_u32 s4, s4, s5
v_lshl_add_u32 v{t4}, v{u6}, 4, v{t4}
v_add_u32 v{xr}, s4, v{t4}
'''.format(t2=t2, t3=t3, t4=t4, u6=u[6], k=sOff, w=sW, q=vOffQ, g=sG, tt=sTT, kh=sKh, xr=vOffXR))
WQP = 14
e('''
v_lshlrev_b32 v{t0}, 3, v{u6}
v_lshl_add_u32 v{t0}, v{u7}, 5, v{t0}
v_lshrrev_b32 v{t1}, 1, v{u6}
v_and_b32 v{t1}, v{t1}, v{u7}
v_lshlrev_b32 v{t1}, 3, v{t1}
v_xor_b32 v{t1}, v{t0}, v{t1}
v_lshrrev_b32 v{t2}, 1, v{u5}
v_lshlrev_b32 v{t2}, 6, v{t2}
v_lshl_add_u32 v{t3}, v{u4}, 3, v{u5}
v_xor_b32 v{t4}, v{t1}, v{t2}
v_lshl_add_u32 v{ak}, v{t3}, 7, v{t4}
v_xor_b32 v{av}, 64, v{ak}
v_lshl_add_u32 v{aq}, v{t3}, 6, v{t1}
v_add_u32 v{aq}, {qb}, v{aq}
'''.format(t0=t0, t1=t1, t2=t2, t3=t3, t4=t4, u4=u[4], u5=u[5], u6=u[6], u7=u[7], ak=vAdK, av=vAdV, aq=vAdQ, qb=WQP * PG))
e('''
v_xor_b32 v{t4}, v{t0}, v{t2}
s_lshl_b32 s3, s{kh}, 6
v_xor_b32 v{t4}, s3, v{t4}
v_lshl_add_u32 v{t4}, v{u5}, 7, v{t4}
s_mul_i32 s3, s{kh}, 28672
v_add_u32 v{p0}, s3, v{t4}
v_xor_b32 v{p1}, 64, v{p0}
v_lshl_add_u32 v{a0}, v{u4}, 9, v{p0}
v_xor_b32 v{a1}, 64, v{a0}
'''.format(t0=t0, t2=t2, t4=t4, u4=u[4], u5=u[5], kh=sKh, p0=vAdWOp, p1=vAdWOp + 1, a0=vAdWO, a1=vAdWO + 1))
e('''
s_lshl_b32 s4, s{kh}, 2
v_lshl_add_u32 v{t0}, v{u7}, 1, s4
v_xor_b32 v{t0}, v{t0}, v{u1}
v_lshlrev_b32 v{t0}, 4, v{t0}
s_movk_i32 s{k}, 3584
v_mad_u32_u24 v{t0}, v{u0}, s{k}, v{t0}
s_mul_i32 s4, s{th}, 28672
s_lshl_b32 s5, s{a}, 8
s_add_u32 s4, s4, s5
v_add_u32 v{gu}, s4, v{t0}
'''.format(t0=t0, u0=u[0], u1=u[1], u7=u[7], k=sOff, kh=sKh, th=sTh, a=sA, gu=vOffGU))
vSw = vY
sSW = 8
e('''
s_mul_i32 s3, s{idx}, 14
s_lshl2_add_u32 s3, s{w}, s3
s_mul_i32 s3, s3, 2688
s_mul_i32 s4, s{half}, 384
s_add_u32 s3, s3, s4
v_mul_u32_u24 v{t0}, 2688, v{u2}
v_bfe_u32 v{t1}, v0, 2, 2
v_min_u32 v{t1}, 2, v{t1}
v_mul_u32_u24 v{t1}, 896, v{t1}
v_and_b32 v{t2}, 3, v0
v_lshl_add_u32 v{t1}, v{t2}, 7, v{t1}
v_add3_u32 v{c}, v{t0}, v{t1}, s3
s_add_u32 s3, s{cs}, 1
s_lshr_b32 s3, s3, 1
s_mul_i32 s4, s{gl}, 5
s_add_u32 s3, s3, s4
s_lshl1_add_u32 s4, s3, s{th}
s_mul_i32 s4, s4, 3
s_bfe_u32 s5, s2, 0x20001
s_mul_i32 s5, s5, 112
s_add_u32 s4, s4, s5
s_mul_i32 s4, s4, 3584
s_mul_i32 s5, s{half}, 1792
s_add_u32 s4, s4, s5
v_min_u32 v{t0}, 2, v{u2}
v_mul_u32_u24 v{t0}, 3584, v{t0}
v_and_b32 v{t1}, {swm}, v0
v_min_u32 v{t1}, {swx}, v{t1}
v_lshl_add_u32 v{t0}, v{t1}, 7, v{t0}
v_add_u32 v{a}, s4, v{t0}
v_min_u32 v{t1}, 6, v{u1}
s_lshl2_add_u32 s3, s3, s{w}
s_min_u32 s3, s3, 55
s_and_b32 s4, s2, 7
s_mul_i32 s4, s4, 56
s_add_u32 s3, s3, s4
s_mul_i32 s3, s3, 896
v_lshlrev_b32 v{t1}, 7, v{t1}
v_add_u32 v{b}, s3, v{t1}
s_mul_i32 s3, s{half}, 42
s_add_u32 s3, s3, 0xab
s_lshr_b32 s3, s3, s{cs}
s_and_b32 s{good}, s3, 1
'''.format(cs=sCs, gl=sGl, th=sTh, half=sHalf, w=sW, t0=t0, t1=t1, t2=t2, u0=u[0], u1=u[1], u2=u[2], a=vSw, b=vSw + 1, c=vY + 13,
           good=sGood, idx=sIdx, swm=14 if OPT.get('swh') else 15, swx=12 if OPT.get('swh') else 13))


if OPT.get('swf', 0):
    e('''
    s_add_u32 s3, s{cs}, 1
    s_lshr_b32 s3, s3, 1
    s_mul_i32 s4, s{gl}, 5
    s_add_u32 s3, s3, s4
    s_lshl1_add_u32 s4, s3, s{th}
    s_mul_i32 s4, s4, 43008
    s_mul_i32 s5, s{half}, 1792
    s_add_u32 s4, s4, s5
    v_min_u32 v{t1}, 6, v{u1}
    v_mul_u32_u24 v{t0}, 3584, v{u0}
    v_lshl_add_u32 v{t0}, v{t1}, 8, v{t0}
    v_add_u32 v{a2}, s4, v{t0}
    v_min_u32 v{t0}, 3, v{u0}
    v_mul_u32_u24 v{t0}, 3584, v{t0}
    v_lshl_add_u32 v{t0}, v{t1}, 8, v{t0}
    s_add_u32 s4, s4, 28672
    v_add_u32 v{a3}, s4, v{t0}
    s_lshl2_add_u32 s3, s3, s{w}
    s_mul_i32 s3, s3, 5376
    v_min_u32 v{t0}, 5, v{u0}
    v_mul_u32_u24 v{t0}, 896, v{t0}
    v_lshl_add_u32 v{t0}, v{t1}, 7, v{t0}
    v_add_u32 v{b}, s3, v{t0}
    '''.format(cs=sCs, gl=sGl, th=sTh, half=sHalf, w=sW, t0=t0, t1=t1, u0=u[0], u1=u[1], a2=vY + 14, a3=vY + 15, b=vSw + 1))


def sweep1():
    return L('buffer_load_dword a249, v%d, %s, 0 offen' % (vY + 13, S4(sQKV))) if OPT.get('sw1', 0) else []


def sweep():
    r = L('''
    s_mov_b32 s{sw}, s{gu}
    s_mov_b32 s{sw1}, s{gu1}
    s_mul_i32 s{sw2}, s{good}, 1605632
    s_mov_b32 s{sw3}, 0x20000
    buffer_load_dword a250, v{a}, {srd}, 0 offen
    s_mov_b32 s{sw}, s{wo}
    s_mov_b32 s{sw1}, s{wo1}
    s_mul_i32 s{sw2}, s{good}, 401408
    buffer_load_dword a251, v{b}, {srd}, 0 offen
    '''.format(sw=sSW, sw1=sSW + 1, sw2=sSW + 2, sw3=sSW + 3, gu=sGU, gu1=sGU + 1, wo=sWO, wo1=sWO + 1, a=vSw, b=vSw + 1,
               srd=S4(sSW), good=sGood))
    if OPT.get('swf', 0):
        x = L('buffer_load_dword a248, v%d, %s, 0 offen\nbuffer_load_dword a247, v%d, %s, 0 offen' % (vY + 14, S4(sSW), vY + 15, S4(sSW)))
        r = r[:4] + x + (r[4:5] if OPT['swf'] == 2 else []) + r[5:]
    return r


def sweep3():
    r = L('''
    s_mul_i32 s3, s{g}, 14
    s_add_u32 s3, s3, s{a}
    s_lshl2_add_u32 s3, s3, s{w}
    s_mul_i32 s3, s3, 1792
    v_min_u32 v{t}, 13, v0
    v_lshlrev_b32 v{t}, 7, v{t}
    buffer_load_dword a252, v{t}, {srd}, s3 offen
    '''.format(g=sG, a=sA, w=sW, t=t5, srd=S4(sWD)))
    return r if OPT.get('sw3', 0) else []


def kvdma(pg):
    pre = ['s_mul_i32 s%d, s%d, 172032' % (sOff, sCh + (pg >> 1))]
    if pg & 1:
        pre.append('s_add_u32 s%d, s%d, 86016' % (sOff, sOff))
    return dma(vOffKV, sQKV, 's%d' % sOff, pg * PG, 'kv%d' % pg, pre)


def qdma(i):
    return dma(vOffQ, sQKV, 's%d' % sOff, (WQP + i) * PG, 'q%d' % i, ['s_mul_i32 s%d, s%d, 172032' % (sOff, sCh + i)])


vS, vQ2, vOnes = u[8], u[9], u[10]
vMean, vStd, vR, vRL = u[6], u[7], u[12], u[14]
e('v_mov_b32 v%d, 0' % vS)
e('v_mov_b32 v%d, 0' % vQ2)
e('v_mov_b32 v%d, 0x3f803f80' % vOnes)
e('v_mov_b32 v%d, 0x3f803f80' % (vOnes + 1))
SCR, KVS, XRP, WOP = 21, 25, 26, 0
e('''
s_lshl_b32 s3, s{w}, 8
s_add_u32 s3, s3, {b}
v_lshl_add_u32 v{a}, v{u3}, 2, s3
v_lshl_add_u32 v{c}, v{u4}, 4, s3
'''.format(w=sW, b=KVS * PG + 2048, a=t3, c=t4, u3=u[3], u4=u[4]))


def xdots(i):
    r = []
    for j in range(16):
        reg = vF + 16 * i + j
        r.append(I('v_dot2c_f32_bf16 v%d, v%d, v%d' % (vS, reg, vOnes)))
        r.append(I('v_dot2c_f32_bf16 v%d, v%d, v%d' % (vQ2, reg, reg)))
    return r


stamp('_addr')
SW1 = OPT.get('sw1', 0)
if SW1 == 2:
    p.add(sweep1())
p.add(xdma(2))
if SW1 == 1:
    p.add(sweep1())
kv_next = 0
XW = OPT.get('xw', [[], [], [], [3], [2], [1, 3], [2]])
for i in range(7):
    e('@waitvm x%d' % i)
    stamp('_xl%d' % i)
    if i == 0:
        stamp('x0 landed')
    if i == 2:
        e('s_cmp_eq_u32 s%d, 0' % sZero)
        e('s_cbranch_scc1 L_nozero2')
        e('s_mov_b64 exec, 1')
        e('buffer_atomic_add v%d, off, %s, 0' % (vOne, S4(sDBG)), raw=True)
        e('s_mov_b64 exec, -1')
        e('L_nozero2:')
    for ks in range(4):
        e('ds_read_b128 %s, v%d offset:%d' % (V(vF + 16 * i + 4 * ks, 4), vAdX + ks, i * PG))
    dots = xdots(i - 1) if i else []
    d = [[], [], [], []]
    if i + 3 < 7:
        x_ = xdma(i + 3)
        d = [x_[:3], x_[3:4], x_[4:5], x_[5:6]]
    for q in XW[i]:
        if kv_next == 0 and SW1 == 3:
            d[q] = d[q] + sweep1()
        d[q] = d[q] + kvdma(kv_next)
        kv_next += 1
    for q in range(4):
        p.add(d[q] + dots[8 * q:8 * q + 8])
p.add(xdots(6))
p.add(kvdma(kv_next))
kv_next += 1
stamp('x read')

aK, aV, vRr = vX, vX + 16, vX + 32
aCK, aCV = 40, 56
vAdKw, vAdVw, vAdQw, vO4, vMA, vCx = vY + 2, vY + 3, vY + 12, vY + 8, vY + 4, vY + 16
e('''
s_lshl_b32 s3, s{w}, 11
v_add_u32 v{kw}, s3, v{k}
v_add_u32 v{vw}, s3, v{v}
v_add_u32 v{qw}, s{wk}, v{q}
'''.format(w=sW, kw=vAdKw, vw=vAdVw, qw=vAdQw, k=vAdK, v=vAdV, q=vAdQ, wk=sWK))
for n in range(4):
    e('v_mov_b32 v%d, 0x3f803f80' % (vO4 + n))


def mfma_ones(acc, b, first):
    return I('v_mfma_f32_32x32x16_bf16 %s, %s, %s, %s' % (A(acc, 16), V(vO4, 4), b, '0' if first else A(acc, 16)))


ws = WStream(look=4, wper=2)
pgap = {}
kb = OPT.get('kvb', (0, 2, 4, 7, 10, 12, 13))
KVB = dict(zip(kb, kb[1:] + (14,)))
for pg in range(14):
    pre = None
    if pg in KVB:
        pre = L('@waitvm ' + ' '.join('kv%d' % q for q in range(pg, KVB[pg])) + '\ns_barrier')
    if pg & 1:
        for (acc, ad) in ((aCK, vAdKw), (aCV, vAdVw)):
            off = (pg - 1) * PG
            glast = ws.step(ad, off, ad, off + 512, lambda a: mfma_ones(acc, a, pg == 1), pre)
            pre = None
    for ks2 in range(2):
        k = 2 * pg + ks2
        for (acc, ad) in ((aK, vAdK), (aV, vAdV)):
            off = pg * PG + ks2 * 2048
            g_ = ws.step(ad, off, ad, off + 512, lambda a: mfma(acc, V(vF + 4 * k, 4), a, '0' if k == 0 else None), pre)
            pre = None
    pgap[pg] = g_
for pg in range(kv_next, 14):
    glw = max(pgap[max(pg - OPT.get('kvl', 14), 0)], 2 * (pg - kv_next) + 1)
    ws.fill(glw, kvdma(pg))
st = halves_sum(vS, t0) + halves_sum(vQ2, t0) + ln_consts(vS, vQ2, vMean, vStd, vR)
st += L('''
v_mul_f32 v{c}, v{m}, v{r}
v_mul_f32 v{rl}, 0x{l:x}, v{r}
v_sub_f32 v{c}, 0, v{c}
'''.format(c=t0, m=vMean, r=vR, rl=vRL, l=LOG2E))
for n, x in enumerate(st):
    ws.fill(2 + n, x)
ws.fill(28, L('ds_write_b32 v{a}, v{r}\nds_write_b32 v{a}, v{c} offset:128'.format(a=t3, r=vR, c=t0)))
for n in range(8):
    ws.fill(30 + n, I('ds_read_b128 %s, v%d offset:%d' % (V(vRr + 4 * n, 4), t4, (n & 3) * 32 + (n >> 2) * 128)))
pre_e = mean_frag(vMean, vMA) + L('''
v_lshlrev_b32 v{t0}, 3, v{u3}
v_add_u32 v{t5}, {cx}, v{t0}
v_mov_b32 v{c}, 0x{l:x}
v_mov_b32 v{u5}, v{u3}
'''.format(t0=t0, u3=u[3], t5=t5, cx=KVS * PG + 3072, c=u[4], l=LOG2E, u5=u[5]))
for n, x in enumerate(pre_e):
    ws.fill(30 + n, x)
ws.fill(40, L('''
s_lshl_b32 s3, s{w}, 8
v_add_u32 v{t4}, s3, v{t5}
s_lshl4_add_u32 s3, s{m}, s{g}
s_lshl2_add_u32 s3, s3, s{w}
s_lshl_b32 s3, s3, 9
s_add_u32 s{o2}, s3, {base}
'''.format(w=sW, t4=t4, t5=t5, m=sM, g=sG, o2=sOff2, base=WS_KVP)))
ws.fill(44, L('''
s_lshl_b32 s3, s{m}, 6
s_add_u32 s3, s3, s{w}
s_lshl_b32 s3, s3, 7
s_add_u32 s{pl}, s3, {kv}
'''.format(m=sM, w=sW, pl=sPoll, kv=C_KV * 128)))
SW2 = OPT.get('sw2', 1)
if SW2 == 1:
    ws.fill(glw + 2, sweep())
ws.fill(pgap[11] + 1, qdma(0))
ws.fill(pgap[12] + 1, qdma(1))
ws.fill(glast + 2, L('''
v_accvgpr_read_b32 v{a}, a{k}
v_accvgpr_read_b32 v{b}, a{v}
ds_write_b64 v{ad}, v[{a}:{b}]
'''.format(a=t0, b=t1, k=aCK, v=aCV, ad=t4)))
xch = L('@waitlg0\ns_barrier')
for n in range(4):
    xch.append(I('ds_read_b64 %s, v%d offset:%d' % (V(vCx + 2 * n, 2), t5, 256 * n)))
ws.fill(glast + 3, xch)
for nm, at in (('_a1', 0), ('_a8', 9), ('_a16', 19), ('_a24', 29), ('_a32', 39), ('_a40', 49), ('_a48', 59)):
    ws.fill(at, mkstamp(nm))
p.add(ws.build())
stamp('A1 mfma')


def phi(acc, dst, pre):
    r = []
    for j in range(0, 16, 4):
        g = []
        for jj in (j, j + 2):
            a = acc + jj
            tp = u[0] + (jj & 2)
            g.append(pre(jj, tp) + L('''
            v_min_f32 v{t}, 0, v{t}
            v_min_f32 v{t1}, 0, v{t1}
            v_exp_f32 v{t}, v{t}
            v_exp_f32 v{t1}, v{t1}
            v_max_f32 v{a}, 0x{e:x}, v{a}
            v_max_f32 v{a1}, 0x{e:x}, v{a1}
            '''.format(t=tp, t1=tp + 1, a=a, a1=a + 1, e=EPS6)) + [pk('add', a, a, tp), I('v_cvt_pk_bf16_f32 v%d, v%d, v%d' % (dst + jj // 2, a, a + 1))])
        r += zip_groups(g)
    return r


vPK, vVV, aKV = vCx, vY + 24, vX + 32
BC1 = 'op_sel_hi:[1,0]'
ea = [pk('add', vCx, vCx, vCx + 2), pk('add', vCx + 4, vCx + 4, vCx + 6), pk('add', t0, vCx, vCx + 4)]
ea += L('v_mov_b32 v%d, v%d' % (t2, t1))
gv = []
for j in range(0, 16, 2):
    tp = u[0] + (j & 2)
    gv.append([pk('mul', tp, vRr + 16 + j, t2, mod=BC1), pk('fma', aV + j, aV + j, vRr + j, tp),
               I('v_cvt_pk_bf16_f32 v%d, v%d, v%d' % (vVV + j // 2, aV + j, aV + j + 1)),
               I('v_cndmask_b32 v%d, v%d, v%d, s[%d:%d]' % (vVV + j // 2, vVV + j // 2, vOnes, sMask28, sMask28 + 1))])
for j in range(0, 8, 2):
    ea += zip_groups(gv[j:j + 2])
ea += phi(aK, vPK, lambda j, tp: [pk('mul', tp, vRr + 16 + j, t0, mod=BC1), pk('fma', aK + j, aK + j, vRr + j, tp),
                                  pk('mul', tp, aK + j, u[4], mod=BC1)])
p.add(spread(ea, [qdma(2), qdma(3), qdma(4)]))
p.add([mfma(aKV, V(vPK, 4), V(vVV, 4), '0'), mfma(aKV, V(vPK + 4, 4), V(vVV + 4, 4))])
e('''
s_lshl_b32 s3, s{w}, 12
s_add_u32 s3, s3, {scr}
v_add_u32 v{t0}, s3, v{l16}
s_add_u32 s3, s{wk}, {scr}
v_add_u32 v{t1}, s3, v{l16}
buffer_load_dword v{p}, off, {dbg}, 0 sc1
v_lshlrev_b32 v{t5}, 2, v{u3}
v_add_u32 v{t5}, {cx}, v{t5}
s_lshl_b32 s3, s{w}, 7
v_add_u32 v{t4}, s3, v{t5}
'''.format(w=sW, wk=sWK, scr=SCR * PG, t0=t0, t1=t1, l16=vL16, p=vP, dbg=S4(sDBG), t4=t4, t5=t5, u3=u[5], cx=KVS * PG + 2048))
for q in range(4):
    e('ds_write_b128 v%d, %s offset:%d' % (t0, V(aKV + 4 * q, 4), q * 1024))
e('@waitlg0')
e('s_barrier')
for j in range(4):
    e('ds_read_b128 %s, v%d offset:%d' % (V(vX + 4 * j, 4), t1, j * PG))
for (a, b) in ((0, 4), (2, 6), (8, 12), (10, 14), (0, 8), (2, 10)):
    p.add([pk('add', vX + a, vX + a, vX + b)])
e('v_cvt_pk_bf16_f32 v%d, v%d, v%d' % (vX, vX, vX + 1))
e('v_cvt_pk_bf16_f32 v%d, v%d, v%d' % (vX + 1, vX + 2, vX + 3))
e('buffer_store_dwordx2 %s, v%d, %s, s%d offen sc1' % (V(vX, 2), vL8, S4(sWS), sOff2), tag='kvp')
stamp('kv stored')
p.add(qdma(5) + qdma(6) + (sweep() if SW2 == 2 else []))

W1PG = {}
W2PG = {}


def wodma(n):
    c, uu = sCh + (n >> 1), n & 1
    r = L("""
    s_lshl_b32 s{t}, s{c}, 13
    s_add_u32 s{t}, s{t}, s{wk}
    s_add_u32 m0, s{t}, {lo}
    s_mul_i32 s{o}, s{c}, 57344
    """.format(t=sT[3], c=c, wk=sWK, lo=WOP * PG + uu * PG, o=sOff))
    if uu:
        r += L('s_add_u32 s%d, s%d, 28672' % (sOff, sOff))
    return r + dma(vOffWO, sWO, 's%d' % sOff, None, 'wo')


def xrdma(uu):
    return L('s_lshl1_add_u32 s{t}, s{wk}, 0\ns_add_u32 m0, s{t}, {lo}\ns_movk_i32 s{o}, {so}'.format(
        t=sT[3], wk=sWK, lo=XRP * PG + uu * 1024, o=sOff, so=uu * 14336)) + dma(vOffXR, sX, 's%d' % sOff, None, 'xr')


def gudma(half, k, page):
    (W2PG if half else W1PG)[k] = page
    return dma(vGUo + (k & 3) + 4 * half, sGU, 's%d' % sGUt[k >> 2], page * PG, 'gu%d_%d' % (half, k))


aQ, vCQ = vX + 16, vY + 24
ws = WStream(look=5, wper=2)
for i in range(7):
    pre = None
    if i == 0:
        pre = L('@waitvm q0 q1 q2 q3 q4\ns_barrier')
    if i == 5:
        pre = L('@waitvm q5 q6\ns_barrier')
    glast = ws.step(vAdQw, i * PG, vAdQw, i * PG + 256, lambda a: mfma_ones(aCK, a, i == 0), pre)
    for ks in range(4):
        k = 4 * i + ks
        off = i * PG + ks * 1024
        ws.step(vAdQ, off, vAdQ, off + 256, lambda a: mfma(aQ, a, V(vF + 4 * k, 4), '0' if k == 0 else None))
ws.fill(OPT.get('kvs', 17), L('@waitvm kvp') + poll_check(16, '0', sDBG) + signal(sPoll))
for n in range(1, 4):
    ws.fill(2 + n, I('v_mov_b32 v%d, 0' % (vCQ + n)))
NW = OPT.get('nw', 8)
for n in range(NW):
    ws.fill(OPT.get('kvs', 17) + 1 + 2 * n, wodma(n))
for nm in OPT['st'] or ():
    if nm.startswith('_q'):
        ws.fill(int(nm[2:]), mkstamp(nm))
ws.fill(glast + 2, L('v_accvgpr_read_b32 v{a}, a{k}\nds_write_b32 v{ad}, v{a}'.format(a=t0, k=aCK, ad=t4)))
xch = L('@waitlg0\ns_barrier')
for n in range(4):
    xch.append(I('ds_read_b32 v%d, v%d offset:%d' % (vY + 28 + n, t5, 128 * n)))
ws.fill(glast + 3, xch)
p.add(ws.build())
stamp('A2 mfma')
e('''
v_add_f32 v{a}, v{y0}, v{y1}
v_add_f32 v{b}, v{y2}, v{y3}
v_add_f32 v{a}, v{a}, v{b}
'''.format(a=t0, b=t1, y0=vY + 28, y1=vY + 29, y2=vY + 30, y3=vY + 31))
p.add(hilo(t0, vCQ, t1))
p.add([mfma(aQ, V(vCQ, 4), V(vMA, 4))])
for n in range(8):
    e('v_add_u32 v%d, %d, v%d' % (vGUo + n, (n & 3) * 57344 + (n >> 2) * 128, vOffGU))
for i in range(7):
    e('s_mul_i32 s%d, s%d, 229376' % (sGUt[i], sCh + i))
vPQ = vY
ph = phi(aQ, vPQ, lambda j, tp: [pk('mul', tp, aQ + j, vRL, mod=BC1), pk('mul', aQ + j, aQ + j, vR, mod=BC1)])
free = list(range(28, 40)) + list(range(14, 21))
N0 = OPT.get('n0', 0)
WL = OPT.get('wl', 0)
wrest = [wodma(n) for n in range(NW, 14)] + [xrdma(0), xrdma(1)]
p.add(spread(ph[:56], ([] if WL else wrest) + [gudma(0, k, free[k]) for k in range(N0)]) if (N0 or not WL) else ph[:OPT.get('php', 8)])
stamp('_ph')
p.add(poll_issue(sPoll, OPT.get('kva', 0)))
p.add(ph[56:] if (N0 or not WL) else ph[OPT.get('php', 8):])
e('v_cndmask_b32 v%d, v%d, 0, s[%d:%d]' % (vPQ + 6, vPQ + 6, sMaskHi, sMaskHi + 1))
e('v_cndmask_b32 v%d, v%d, 0, s[%d:%d]' % (vPQ + 7, vPQ + 7, sMaskHi, sMaskHi + 1))
e("""
s_lshl_b32 s3, s{m}, 15
s_lshl_b32 s4, s{w}, 9
s_add_u32 s3, s3, s4
s_add_u32 s{o2}, s3, {base}
s_lshl_b32 s5, s{gl}, 13
s_add_u32 s{o}, s{o2}, s5
v_mov_b32 v{e0}, 0x3f80
v_mov_b32 v{e1}, 0x3f800000
s_add_u32 s4, s4, {kvs}
v_add_u32 v{t0}, s4, v{l8}
v_add_u32 v{t1}, {kvs}, v{l8}
s_lshl2_add_u32 s3, s{g}, s{w}
s_lshl4_add_u32 s3, s3, s{m}
s_lshl_b32 s3, s3, 11
s_add_u32 s{st}, s3, {ob}
s_lshl1_add_u32 s3, s{w}, s{half}
s_lshl_b32 s3, s3, 7
s_add_u32 s{sig}, s3, s{cnt}
""".format(m=sM, w=sW, o=sOff, o2=sOff2, base=WS_KVP, gl=sGl, e0=u[0], e1=u[1], kvs=KVS * PG, t0=t0, t1=t1, l8=vL8,
           g=sG, st=sSt, ob=WS_O, half=sHalf, sig=sSig, cnt=sCnt))
for j in range(4):
    e('v_mov_b32 v%d, 0' % (vX + 32 + j))
stamp('q done')
p.add(poll_check(16, sPoll))
stamp('kv flag')

for gg in range(16):
    if gg and gg % 2 == 0:
        e('s_add_u32 s5, s5, 4096')
        e('s_and_b32 s5, s5, 0x7fff')
        e('s_add_u32 s%d, s%d, s5' % (sOff, sOff2))
    e('buffer_load_dwordx2 %s, v%d, %s, s%d offen%s sc1' % (V(vX + 2 * gg, 2), vL8, S4(sWS), sOff, ' offset:2048' if gg & 1 else ''))
NA = OPT.get('na', 6)
if WL:
    for x in wrest[::-1]:
        p.add(x)
for k in range(N0, NA):
    p.add(gudma(0, k, free[k]))
for gg in range(16):
    for d in range(2):
        e('v_dot2c_f32_bf16 v%d, v%d, v%d' % (vX + 32 + 2 * d, vX + 2 * gg + d, u[0]))
        e('v_dot2c_f32_bf16 v%d, v%d, v%d' % (vX + 33 + 2 * d, vX + 2 * gg + d, u[1]))
stamp('kv loaded')
e('v_cvt_pk_bf16_f32 v%d, v%d, v%d' % (vX, vX + 32, vX + 33))
e('v_cvt_pk_bf16_f32 v%d, v%d, v%d' % (vX + 1, vX + 34, vX + 35))
e('ds_write_b64 v%d, %s' % (t0, V(vX, 2)))
e('@waitlg0')
e('s_barrier')
vKVF = vY + 8
for q in range(4):
    e('ds_read_b64 %s, v%d offset:%d' % (V(vKVF + 2 * q, 2), t1, q * 512))
aO = vX + 16
p.add([mfma(aO, V(vKVF, 4), V(vPQ, 4), '0'), mfma(aO, V(vKVF + 4, 4), V(vPQ + 4, 4))])
e('''
v_mov_b32 v{a}, v{d}
v_mov_b32 v{b}, v{d}
v_permlane32_swap_b32 v{a}, v{b}
v_add_f32 v{b}, 0x{eps:x}, v{b}
v_rcp_f32 v{r}, v{b}
v_cndmask_b32 v{r2}, v{r}, 0, s[{mh}:{mh1}]
'''.format(a=t2, b=t3, d=aO + 12, eps=EPS6, r=u[0], r2=u[2], mh=sMaskHi, mh1=sMaskHi + 1))
for hf_ in range(2):
    for j in range(8 * hf_, 8 * hf_ + 8, 2):
        p.add([pk('mul', aO + j, aO + j, u[2] if j >= 12 else u[0], mod=BC1)])
    for j in range(4 * hf_, 4 * hf_ + 4):
        e('v_cvt_pk_bf16_f32 v%d, v%d, v%d' % (vX + j, aO + 2 * j, aO + 2 * j + 1))
    e('buffer_store_dwordx4 %s, v%d, %s, s%d offen%s sc1' % (V(vX + 4 * hf_, 4), vL16, S4(sWS), sSt, ' offset:1024' if hf_ else ''))
e('s_cmp_ge_u32 s%d, 7' % sCs)
e('s_cbranch_scc1 L_idle')
stamp('_os')
e('''
s_lshl1_add_u32 s3, s{tt}, s{kh}
s_lshl_b32 s3, s3, 7
s_add_u32 s{pl}, s3, s{cnt}
s_lshl2_add_u32 s3, s{g}, s{tt}
s_lshl1_add_u32 s4, s3, s{kh}
s_lshl_b32 s4, s4, 14
s_add_u32 s{o2}, s4, {ob}
s_lshl1_add_u32 s4, s{cs}, s{kh}
s_lshl4_add_u32 s3, s3, s4
s_lshl_b32 s4, s3, 11
s_add_u32 s{st}, s4, {hb}
s_lshl_b32 s4, s3, 8
s_add_u32 s{st2}, s4, {sb}
s_lshl_b32 s3, s{w}, 11
s_add_u32 s3, s3, {xr}
v_and_b32 v{a}, 31, v0
v_lshrrev_b32 v{b}, 5, v0
v_lshlrev_b32 v{b}, 3, v{b}
v_lshl_add_u32 v{b}, v{a}, 6, v{b}
v_add_u32 v{b}, s3, v{b}
v_lshlrev_b32 v{l8}, 3, v{a}
s_lshl_b32 s3, s{w}, 12
s_add_u32 s3, s3, {scr}
v_add_u32 v{t0}, s3, v{l16}
s_xor_b32 s4, s{w}, 2
s_lshl_b32 s4, s4, 12
s_add_u32 s4, s4, {scr}
v_add_u32 v{t1}, s4, v{l16}
'''.format(tt=sTT, kh=sKh, pl=sPoll, cnt=sCnt, g=sG, o2=sOff2, ob=WS_O, cs=sCs, st=sT[8], hb=WS_H, st2=sT[9], sb=WS_ST,
           w=sW, xr=XRP * PG, a=t2, b=t3, l8=vL8, scr=SCR * PG, t0=t0, t1=t1, l16=vL16))
e('@waitvm0')
p.add(signal(sSig))
stamp('o stored')
if OPT.get('ack'):
    e('@waitvm0')
    stamp('_ack')
if DIAG:
    e('s_mov_b32 s%d, %d' % (sIter, OPT['spin'] + 1))
if STOP <= 1:
    e('s_branch L_fin')

if WL:
    e('s_barrier')
NB = OPT.get('nb', 10)
for k in range(NA, NB):
    p.add(gudma(0, k, free[k]))
PP = OPT.get('pp', 0)
if OPT.setdefault('od', 5):
    e('s_sleep %d' % OPT['od'])
p.add(poll_pipe_issue(sPoll) if PP else poll_issue(sPoll))
stamp('_op')
for bq in range(4):
    e('ds_read_b64 %s, v%d offset:%d' % (V(vY + 2 * bq, 2), t3, 16 * bq))
for j in range(8):
    e('v_lshlrev_b32 v%d, 16, v%d' % (vX + 2 * j, vY + j))
    e('v_and_b32 v%d, 0xffff0000, v%d' % (vX + 1 + 2 * j, vY + j))
e('s_lshl_b32 s3, s%d, 7' % sTT)
e('s_add_u32 s3, s3, s%d' % sCnt)
e('s_add_u32 s%d, s3, %d' % (sSig, C_H * 128))
e('v_mov_b32 v%d, 0' % vS)
e('v_mov_b32 v%d, 0' % vQ2)
sOr = sT[4]
e('''
s_mul_i32 s3, s{kh}, 26624
v_subrev_u32 v{d0}, s3, v{w0}
v_subrev_u32 v{d1}, s3, v{w1}
s_mul_i32 s3, s{cs}, 3584
v_add_u32 v{w0}, s3, v{w0}
v_add_u32 v{w1}, s3, v{w1}
v_add_u32 v{p0}, s3, v{p0}
v_add_u32 v{p1}, s3, v{p1}
s_lshl_b32 s{r}, s{cs}, 11
s_sub_u32 s{r}, s{r}, 2048
s_mov_b32 s6, -25088
'''.format(kh=sKh, d0=vAdD, d1=vAdD + 1, w0=vAdWO, w1=vAdWO + 1, p0=vAdWOp, p1=vAdWOp + 1, cs=sCs, r=sOr))
p.add(poll_pipe_check(8, sPoll) if PP else poll_check(8, sPoll))
stamp('o flag')
if DIAG:
    e('s_sub_u32 s101, %d, s%d' % (OPT['spin'] + 1, sIter))


def oload(j):
    r = []
    if j % 2 == 0:
        r += L('s_add_u32 s{t}, s{t}, 2048\ns_and_b32 s{t}, s{t}, 0x3fff\ns_add_u32 s{o}, s{t}, s{b}'.format(t=sOr, o=sOff, b=sOff2))
    r.append(I('buffer_load_dwordx4 %s, v%d, %s, s%d offen%s sc1' % (A(aF + 4 * j, 4), vL16, S4(sWS), sOff, ' offset:1024' if j % 2 else '')))
    return r


for j in range(8):
    p.add(oload(j))
stamp('_ol')
ws = WStream()
TL = OPT.get('tl', 2)
bo = [(j, ft) for j in range(16 - TL) for ft in range(2)] + [(j, 1) for j in range(16 - TL, 16)] + [(j, 0) for j in range(16 - TL, 16)]
for j, ft in bo:
    hh, s = j >> 1, j & 1
    if 1:
        pre = []
        if s == 0 and hh and ft == (1 if j >= 16 - TL else 0):
            pre += L('s_cmp_eq_u32 s{c}, {n}\ns_cselect_b32 s{d}, s{wrap}, 3584'.format(c=sCs, n=8 - hh, d=sT[2], wrap=sT[3]))
        if hh:
            r_ = (vAdWO if s == 0 else vAdWOp) + ft
            pre += L('v_add_u32 v%d, s%d, v%d' % (r_, sT[2], r_))
        a1_ = (vAdWOp if s == 1 else vAdWO) + ft
        ws.step(vAdWO + ft, WOP * PG + 16 * s * 128, a1_, WOP * PG + (16 * s + 8) * 128,
                lambda a: mfma(vX + 16 * ft, a, A(aF + 4 * j, 4), '0' if (j == 0 and ft == 1) else None), pre)
assert TL in (0, 2)
for j in range(8, 16):
    ws.fill(j - 8, oload(j))
ws.fill(0, mkstamp('_b0'))
ws.fill(15, mkstamp('_b16'))
ws.fill(8, sweep3())
for n, k in enumerate(range(NB, 19)):
    ws.fill(min(31, 9 + (22 * n) // (19 - NB)), gudma(0, k, free[k]))
p.add(ws.build())
stamp('_bm')
for q in range(4):
    e('ds_write_b128 v%d, %s offset:%d' % (t0, V(vX + 16 + 4 * q, 4), q * 1024))
e('@waitlg0')
e('s_barrier')
for q in range(4):
    e('ds_read_b128 %s, v%d offset:%d' % (V(vX + 16 + 4 * q, 4), t1, q * 1024))
for hf_ in range(2):
    for j in range(8 * hf_, 8 * hf_ + 8, 2):
        p.add([pk('add', vX + j, vX + j, vX + 16 + j)])
    for j in range(4 * hf_, 4 * hf_ + 4):
        e('v_cvt_pk_bf16_f32 v%d, v%d, v%d' % (vY + j, vX + 2 * j, vX + 2 * j + 1))
    e('buffer_store_dwordx4 %s, v%d, %s, s%d offen%s sc1' % (V(vY + 4 * hf_, 4), vL16, S4(sWS), sT[8], ' offset:1024' if hf_ else ''))
for j in range(8):
    e('v_dot2c_f32_bf16 v%d, v%d, v%d' % (vS, vY + j, vOnes))
    e('v_dot2c_f32_bf16 v%d, v%d, v%d' % (vQ2, vY + j, vY + j))
p.add(zip_groups([halves_sum(vS, t2), halves_sum(vQ2, t3)]))
e('buffer_store_dwordx2 %s, v%d, %s, s%d offen sc1' % (V(vS, 2), vL8, S4(sWS), sT[9]))
stamp('_hs')
for j in range(8):
    e('v_accvgpr_write_b32 a%d, v%d' % (aH + j, vY + j))
e('''
v_bfe_u32 v{r}, v0, 2, 2
v_bfe_u32 v{iu}, v0, 4, 1
v_lshrrev_b32 v{hf}, 5, v0
v_lshl_add_u32 v{a}, v{hf}, 2, v{r}
v_lshlrev_b32 v{a}, 7, v{a}
v_lshl_add_u32 v{a}, v{iu}, 11, v{a}
v_and_b32 v{b}, 1, v0
v_lshl_add_u32 v{a}, v{b}, 3, v{a}
v_lshrrev_b32 v{b}, 1, v{r}
v_lshl_add_u32 v{b}, v{iu}, 1, v{b}
v_lshlrev_b32 v{b}, 1, v{b}
v_bfe_u32 v{c}, v0, 1, 1
v_xor_b32 v{b}, v{b}, v{c}
'''.format(r=u[0], iu=u[1], hf=u[2], a=t2, b=t3, c=t4))
for t in range(4):
    e('v_xor_b32 v%d, %d, v%d' % (t4, 2 * t, t3))
    e('v_lshl_add_u32 v%d, v%d, 4, v%d' % (vAdC + t, t4, t2))
sHb, sHo, sStL, sHHst, sCSp = sT[5], sT[6], sT[7], sT[10], sT[4]
e('''
s_movk_i32 s3, 1792
v_mad_u32_u24 v{a}, v{hf}, s3, v{l8}
v_lshlrev_b32 v{l8}, 1, v{l8}
s_lshl2_add_u32 s3, s{g}, s{w}
s_lshl_b32 s4, s3, 12
s_add_u32 s{stl}, s4, {sb}
s_lshl_b32 s4, s3, 15
s_add_u32 s{hb}, s4, {hbase}
s_mul_i32 s3, s3, 14
s_add_u32 s3, s3, s{am}
s_lshl_b32 s3, s3, 13
s_add_u32 s{hst}, s3, {hh}
s_lshl_b32 s3, s{w}, 7
s_add_u32 s3, s3, s{cnt}
s_add_u32 s{pl}, s3, {ch}
s_lshl_b32 s3, s{am}, 13
s_add_u32 s{csp}, s3, {cc}
'''.format(kh=sKh, d0=vAdD, d1=vAdD + 1, w0=vAdWO, w1=vAdWO + 1, a=t4, hf=u[2], l8=vL8, g=sG, w=sW, stl=sStL, sb=WS_ST,
           hb=sHb, hbase=WS_H, am=sA, hst=sHHst, hh=WS_HH, cnt=sCnt, pl=sPoll, ch=C_H * 128, csp=sCSp, cc=C_CS * 128))
e('@waitvm0')
H1S = OPT.get('h1s', 1)
if H1S:
    e('s_barrier')
    e('s_cmp_ge_u32 s%d, 2' % sW)
    e('s_cbranch_scc1 L_nohs')
    for x in signal(sSig):
        x.raw = True
        p.add([x])
    e('L_nohs:')
else:
    p.add(signal(sSig))
stamp('h stored')
if STOP <= 2:
    e('s_branch L_fin')

NC = OPT.get('nc', 2)
N1 = OPT.get('n1', 9)
w1late = [gudma(0, k, n) for n, k in enumerate(range(19, 28))]
for x in w1late[:N1]:
    p.add(x)
for k in range(NC):
    p.add(gudma(1, k, 9 + k))
if OPT.get('hd'):
    e('s_sleep %d' % OPT['hd'])
p.add(poll_pipe_issue(sPoll) if PP else poll_issue(sPoll))
stamp('_hp')
for n in range(8):
    e('v_add_u32 v%d, %d, v%d' % (vWDo + n, n * 14336, vOffWD))
e('v_add_u32 v%d, 4096, v%d' % (vL16b, vL16))
e('''
s_lshl2_add_u32 s3, s{g}, s{tt}
s_lshl1_add_u32 s3, s3, s{kh}
s_mul_i32 s3, s3, 57344
s_add_u32 s4, s3, {base}
s_lshl1_add_u32 s3, s{w}, s{half}
s_lshl_b32 s3, s3, 9
s_add_u32 s3, s3, s{cnt}
s_add_u32 s{sig}, s3, {chh}
s_lshl1_add_u32 s3, s{tt}, s{kh}
s_lshl_b32 s3, s3, 9
s_add_u32 s3, s3, s{cnt}
s_add_u32 s{st}, s3, {chh}
'''.format(g=sG, tt=sTT, kh=sKh, base=WS_HH, w=sW, half=sHalf, cnt=sCnt, sig=sSig, chh=C_HH * 128, st=sSt))
for i in range(7):
    e('s_mul_i32 s%d, s%d, 114688' % (sWDt[i], sCh + i))
    e('s_lshl_b32 s3, s%d, 13' % (sCh + i))
    e('s_add_u32 s%d, s3, s4' % sHHt[i])
e('v_accvgpr_write_b32 a%d, 0' % (aCS + 16))
e('v_accvgpr_write_b32 a%d, 0' % (aCS + 17))


def hload(k):
    r = []
    if k % 4 == 0:
        r += L('s_lshl_b32 s%d, s%d, 12\ns_add_u32 s%d, s%d, s%d' % (sHo, sCh + k // 4, sHo, sHo, sHb))
    r.append(I('buffer_load_dwordx4 %s, v%d, %s, s%d offen%s sc1' % (A(aF + 4 * k, 4), vL16, S4(sWS), sHo, ' offset:%d' % (1024 * (k % 4)) if k % 4 else '')))
    return r


h0 = hload(0)
p.add(h0[:-1])
p.add(poll_pipe_check(14, sPoll) if PP else poll_check(7 if H1S else 14, sPoll))
stamp('h flag')
HL = OPT.get('hl', 8)
p.add(h0[-1:])
for k in range(1, HL):
    p.add(hload(k))


class Win:
    def __init__(self, regs):
        self.cur = {r: 0 for r in regs}

    def fix(self, reg, off):
        base = (off // 61440) * 61440
        pre = []
        if self.cur[reg] != base:
            d = base - self.cur[reg]
            pre.append(I('v_add_u32 v%d, %d, v%d' % (reg, d, reg)) if d > 0 else I('v_subrev_u32 v%d, %d, v%d' % (reg, -d, reg)))
            self.cur[reg] = base
        return pre, off - base


winC = Win([vAdC + t for t in range(4)])
winD = Win([vAdD, vAdD + 1])
cA, cS = vCc, vCc + 2
acc_of = {0: vX, 1: vX + 16, 2: vY, 3: vY + 16, 4: 200, 5: 216, 6: vX, 7: vX + 16}


def hhstore(tile):
    d = u[8] + (tile & 1) * 4
    return [I('buffer_store_dwordx4 %s, v%d, %s, s%d offen%s sc1' % (V(d, 4), vL16b if tile >= 4 else vL16, S4(sWS), sHHst,
                                                                     ' offset:%d' % (1024 * (tile & 3)) if tile & 3 else ''), tag='hh%d' % tile)]


def eslots(tiles):
    slots = {}

    def put(sl, x):
        slots.setdefault(sl, []).append(x)
    n = 0
    for tile in tiles:
        acc = acc_of[tile]
        for el in range(8):
            tp = u[n % 6]
            put(2 * n, I('v_mul_f32 v%d, v%d, v%d' % (tp, cA, acc + el)))
            put(2 * n + 1, I('v_exp_f32 v%d, v%d' % (tp, tp)))
            put(2 * n + 2, I('v_fma_f32 v%d, v%d, v%d, v%d' % (tp, tp, cS, cS)))
            put(2 * n + 4, I('v_rcp_f32 v%d, v%d' % (tp, tp)))
            put(2 * n + 5, I('v_mul_f32 v%d, v%d, v%d' % (tp, tp, acc + 8 + el)))
            if el & 1:
                put(2 * n + 7, I('v_cvt_pk_bf16_f32 v%d, v%d, v%d' % (u[8] + (tile & 1) * 4 + el // 2, u[(n - 1) % 6], tp)))
            if el == 7:
                put(2 * n + 8, hhstore(tile))
            n += 1
    out = []
    for k in range(max(slots) + 1):
        sl = slots.get(k, [])
        sl.sort(key=lambda x: 0 if (not isinstance(x, list) and x.op in ('v_exp_f32', 'v_rcp_f32')) else 1)
        out.append(sl)
    return out


def efast(tile, tb=u[0]):
    acc = acc_of[tile]
    g = []
    for j in range(0, 8, 2):
        tp = tb + j
        g.append([pk('mul', tp, acc + j, cA, mod=BC1)] + L('v_exp_f32 v{t}, v{t}\nv_exp_f32 v{t1}, v{t1}'.format(t=tp, t1=tp + 1)) +
                 [pk('fma', tp, tp, cS, cS, mod='op_sel_hi:[1,0,0]')] + L('v_rcp_f32 v{t}, v{t}\nv_rcp_f32 v{t1}, v{t1}'.format(t=tp, t1=tp + 1)) +
                 [pk('mul', tp, tp, acc + 8 + j), I('v_cvt_pk_bf16_f32 v%d, v%d, v%d' % (u[8] + (tile & 1) * 4 + j // 2, tp, tp + 1))])
    return zip_groups(g)


def hhsig(stage):
    return L('@waitvm hh%d hh%d' % (2 * stage, 2 * stage + 1)) + signal(sSig, stage * 128)


D_ORDER = [(j, 2 * st_ + t) for st_ in range(4) for j in range(7) for t in range(2)] if OPT.get('jm', 1) else [(j, t) for t in range(8) for j in range(7)]
WDPG = {}
wd_next = [0]


def wddma(page):
    n = wd_next[0]
    wd_next[0] += 1
    j, t = D_ORDER[n]
    WDPG[n] = page
    return dma(vWDo + t, sWD, 's%d' % sWDt[j], page * PG, 'wd%d' % n)


def hhreg(n):
    return A(aR + 4 * n, 4) if n < 21 else (V(vHH + 4 * (n - 21), 4) if n < 28 else A(aF + 4 * (n - 28), 4))


def hhpoll(stage):
    return L('s_add_u32 s%d, s%d, %d' % (sPoll, sSt, stage * 128)) + poll_issue(sPoll, stage in OPT.get('hha', (0, 1, 2, 3)))


def hhload(n):
    j, t = D_ORDER[n]
    return [I('buffer_load_dwordx4 %s, v%d, %s, s%d offen%s sc1' % (hhreg(n), vL16b if t >= 4 else vL16, S4(sWS), sHHt[j],
                                                                     ' offset:%d' % (1024 * (t & 3)) if t & 3 else ''))]


ws = WStream()
BSTEP = OPT.get('bstep', 4)
DL = OPT.get('dl', 12)
freed = [(0, pg) for pg in list(range(9 + NC, 14)) + list(range(21, 28))]
carry = []
XG = OPT.get('xg', 8)
order = [(0, k) for k in range(28)] + [(1, k) for k in range(28)]
for k in range(28 + DL):
    if k < 28:
        order.append((2, k))
    if k >= DL:
        order.append((3, k - DL))
PEND = {}
for ps, k in order:
    tl = (2 * ps, 2 * ps + 1)
    if (ps, k) == (2, 0):
        todo = list(range(NC, 28))
        dslot = 2 * (28 - HL) - 1
        for gfree, pg in freed:
            dslot = max(dslot + 2, gfree + 1)
            ws.fill(dslot, gudma(1, todo.pop(0), pg) if todo else wddma(pg))
        DSLOT1 = dslot
    for t in tl:
        pre = []
        if ps == 0 and t == 0 and k == 0:
            pre += L('@waitvm ' + ' '.join('gu0_%d' % j for j in range(19 + N1)) + '\ns_barrier')
        if ps == 0 and t == 0 and k == 19 + N1:
            pre += L('@waitvm ' + ' '.join('gu0_%d' % j for j in range(19 + N1, 28)) + '\ns_barrier')
        if ps == 2 and t == tl[0] and k in (0, 10, 19):
            hi = {0: 10, 10: 19, 19: 28}[k]
            pre += L('@waitvm ' + ' '.join('gu1_%d' % j for j in range(k, hi)) + '\ns_barrier')
        pr, off = winC.fix(vAdC + (t & 3), (W1PG if ps < 2 else W2PG)[k] * PG)
        g_ = ws.step(vAdC + (t & 3), off, vAdC + (t & 3), off + 1024,
                     lambda a: mfma(acc_of[t], a, A(aF + 4 * k, 4), '0' if k == 0 else None), pre + pr)
    if ps == 0 and k + HL < 28:
        ws.fill(2 * k, hload(k + HL))
    if ps & 1 and k % BSTEP == BSTEP - 1:
        ws.fill(g_, L('s_barrier'))
        (freed if ps == 1 else carry).extend((g_, (W1PG if ps == 1 else W2PG)[kk]) for kk in range(k - BSTEP + 1, k + 1))
    if ps == 1 and k == XG - 1:
        for t in (0, 1):
            X0END = ws.extra(mfma(acc_of[t], A(aCS + 2 * t, 4), V(vMF, 4)))
    if k == 27:
        if ps:
            for t in tl:
                g_ = ws.extra(mfma(acc_of[t], A(aCS + 2 * t, 4), V(vMF, 4)))
        PEND[ps] = g_
P1END, P2END, P3END, P4END = PEND = [PEND[n] for n in range(4)]
for n, x in enumerate(w1late[N1:]):
    ws.fill(1 + 2 * n, x)
for i in range(7):
    ws.fill(1 + 2 * (i + 9 - N1), [I('buffer_load_dwordx2 %s, v%d, %s, s%d offen offset:%d sc1' % (V(vSt + 2 * i, 2), t4, S4(sWS), sStL, 256 * i))])
g1 = X0END - 16
ws.fill(g1 - OPT.get('csd', 24), poll_issue(sCSp, OPT.get('csa', 1)))
cs = poll_check(4, sCSp) + L('s_lshl_b32 s3, s%d, 11\ns_add_u32 s3, s3, %d' % (sA, WS_CS))
for n in range(4):
    cs.append(I('buffer_load_dwordx4 %s, v%d, %s, s3 offen offset:%d sc1' % (A(aCS + 4 * n, 4), vL8, S4(sWS), 512 * n)))
ws.fill(g1, cs)
st = []
for (a, b) in ((0, 2), (4, 6), (8, 10), (0, 4), (8, 12), (0, 8)):
    st += L('v_add_f32 v{a}, v{a}, v{b}\nv_add_f32 v{a1}, v{a1}, v{b1}'.format(a=vSt + a, b=vSt + b, a1=vSt + a + 1, b1=vSt + b + 1))
st += halves_sum(vSt, t2) + halves_sum(vSt + 1, t2) + ln_consts(vSt, vSt + 1, vMean, cS, vR)
st += L('v_mul_f32 v%d, 0x%x, v%d' % (cA, NEGL, vR)) + mean_frag(vMean, vMF)
for n, x in enumerate(st):
    ws.fill(X0END - 24 + n // 2, x)
assert len(st) // 2 < 22
SIGD = OPT.get('sigd', 20)
sig_at = []
spill = []
for stg, e0 in enumerate((X0END + 1, P2END + 1, P3END + 1)):
    es = eslots((2 * stg, 2 * stg + 1))
    for n, sl in enumerate(es):
        for x in sl:
            if e0 + n <= P4END:
                ws.fill(e0 + n, x)
            else:
                spill += x if isinstance(x, list) else [x]
    if stg == 0:
        assert e0 + 34 <= P2END + 1, 'temporaries of consecutive epilogues overlap'
    sig_at.append(e0 + len(es) - 1 + SIGD)
for stg in range(2):
    ws.fill(sig_at[stg], hhsig(stg))
late2 = sig_at[2] - 4 > P4END
if not late2:
    ws.fill(min(sig_at[2], P4END), hhsig(2))
PD = OPT.get('pd', 22)
CD = OPT.get('cd', 24)
busy = set()
for stg in range(2):
    ws.fill(sig_at[stg] + PD, hhpoll(stg))
    hchk = sig_at[stg] + PD + CD
    ws.fill(hchk, poll_check(7, sPoll))
    g_ = hchk - 1
    for n in range(14 * stg, 14 * stg + 14):
        g_ += 2
        if g_ <= P4END:
            ws.fill(g_, hhload(n))
            busy.add(g_)
            HHN = n + 1
    if stg == 0:
        H0 = hchk
    else:
        H1 = hchk
g_ = DSLOT1
while carry:
    g_ = max(g_ + 2, carry[0][0] + 1)
    while g_ in busy or g_ - 1 in busy or g_ + 1 in busy:
        g_ += 1
    if g_ > P4END:
        break
    ws.fill(g_, wddma(carry.pop(0)[1]))
D0 = vX + 32
dinit = []
for j in range(8):
    dinit += L('v_accvgpr_read_b32 v{t}, a{h}\nv_lshlrev_b32 v{a}, 16, v{t}\nv_and_b32 v{b}, 0xffff0000, v{t}'.format(
        t=t2, h=aH + j, a=D0 + 2 * j, b=D0 + 1 + 2 * j))
for n, x in enumerate(dinit):
    ws.fill(2 + n, x)
for nm in OPT['st'] or ():
    if nm.startswith('_g'):
        ws.fill(int(nm[2:]), mkstamp(nm))
for nm, at in (('_m0', 0), ('P1', P1END), ('P2', P2END), ('P3', P3END), ('_h0', H0 - 1), ('_h1', H0 + 1), ('_h2', H1 - 1), ('_h3', H1 + 1)):
    ws.fill(at, mkstamp(nm))
p.add(ws.build())
stamp('P4')
p.add(spill)
WPRE = wd_next[0]
rest = [hhload(n) for n in range(HHN, 28)] + [wddma(pg) for _, pg in carry]
carry = []
NE = min(OPT.get('ne', 8), len(rest))
ef = zip_groups([efast(6, vSt + 8), efast(7, vSt)])
p.add(spread(ef[:40], rest[:NE]) + ef[40:56])
rest = rest[NE:]
if late2:
    p.add(hhsig(2))
p.add(ef[56:] + hhstore(6) + hhstore(7))
stamp('_e7')
if STOP <= 3:
    p.add(hhsig(3))
    e('s_branch L_fin')

ws = WStream()
res0 = wd_next[0]
assert wd_next[0] == 40
refill = []
for n in range(16):
    refill.append(wddma(WDPG[n]))
wmid = (WPRE + 40) // 2
wpts = {0: WPRE, WPRE: wmid, wmid: 40, 40: 48, 48: 56}
TD = OPT.get('td', 4)
for n, ft in [(n, ft) for n in range(56 - TD) for ft in range(2)] + [(n, 1) for n in range(56 - TD, 56)] + [(n, 0) for n in range(56 - TD, 56)]:
    if 1:
        pre = []
        if ft == 0 and n in wpts:
            pre += L('@waitvm ' + ' '.join('wd%d' % q for q in range(n, wpts[n])) + '\ns_barrier')
        pr, off = winD.fix(vAdD + ft, WDPG[n] * PG)
        ws.step(vAdD + ft, off, vAdD + ft, off + 1024,
                lambda a: mfma(D0 + 16 * ft, a, hhreg(n), '0' if (n == 0 and ft == 1) else None), pre + pr)
ws.fill(15, L('s_barrier'))
ws.fill(31, L('s_barrier'))
D3 = OPT.get('d3', 12)
seq = [(x, 0) for x in rest]
pos = -1.0
DSTEP = OPT.get('dstep', 1.4)
while seq and pos + DSTEP < D3:
    pos += DSTEP
    ws.fill(int(pos), seq.pop(0)[0])
s3_ = hhsig(3)
ws.fill(D3, s3_[:1] + hhpoll(2) + s3_[1:] + mkstamp('hh stored'))
pos = D3
seq += [(x, 16) for x in refill[:8]]
seq += [(poll_check(7, sPoll) + hhload(28), OPT.get('d2', 28))] + [(hhload(n), 0) for n in range(29, 38)]
seq += [(hhpoll(3), OPT.get('d4', 40))] + [(hhload(n), 0) for n in range(38, 42)]
seq += [(x, 32) for x in refill[8:]]
seq += [(poll_check(7, sPoll) + hhload(42), OPT.get('d5', 56))] + [(hhload(n), 0) for n in range(43, 56)]
for grp, earliest in seq:
    pos = max(pos + DSTEP, earliest)
    ws.fill(int(pos), grp)
DPOS = pos
fin = L('''
s_lshl_b32 s3, s{w}, 12
v_add_u32 v{t0}, s3, v{l16}
s_xor_b32 s4, s3, 8192
v_add_u32 v{t1}, s4, v{l16}
s_lshl2_add_u32 s3, s{g}, s{tt}
s_mul_i32 s3, s3, 28672
s_lshl1_add_u32 s4, s{cs}, s{kh}
s_lshl_b32 s4, s4, 6
s_add_u32 s{o}, s3, s4
v_and_b32 v{a}, 31, v0
v_mul_u32_u24 v{a}, 896, v{a}
v_lshrrev_b32 v{b}, 5, v0
v_lshl_add_u32 v{a}, v{b}, 4, v{a}
'''.format(w=sW, t0=t0, t1=t1, l16=vL16, g=sG, tt=sTT, cs=sCs, kh=sKh, o=sOff2, a=t2, b=t3))
ws.fill(96, fin)
for nm in OPT['st'] or ():
    if nm.startswith('_d'):
        ws.fill(int(nm[2:]), mkstamp(nm))
for nm, at in (('D0', 27), ('D1', 55), ('D2', 83)):
    ws.fill(at, mkstamp(nm))
assert all(WDPG[n] > 3 for n in range(48, 56)), [WDPG[n] for n in range(48, 56)]
ws.fill(103 - TD, L('s_barrier'))
xw_ = [I('ds_write_b128 v%d, %s offset:%d' % (t0, V(D0 + 16 + 4 * q, 4), q * 1024)) for q in range(4)]
xr_ = L('@waitlg0\ns_barrier') + [I('ds_read_b128 %s, v%d offset:%d' % (V(vX + 4 * q, 4), t1, q * 1024)) for q in range(4)]
if TD >= 3:
    ws.fill(112 - TD + 1, xw_)
    ws.fill(111, xr_)
    p.add(ws.build())
else:
    p.add(ws.build() + xw_ + xr_)
stamp('D mfma')
for hf_ in range(2):
    for j in range(8 * hf_, 8 * hf_ + 8, 2):
        p.add([pk('add', D0 + j, D0 + j, vX + j)])
    for j in range(4 * hf_, 4 * hf_ + 4):
        e('v_cvt_pk_bf16_f32 v%d, v%d, v%d' % (vY + j, D0 + 2 * j, D0 + 2 * j + 1))
    bb = 4 * hf_
    e('v_permlane32_swap_b32 v%d, v%d' % (vY + bb, vY + bb + 2))
    e('v_permlane32_swap_b32 v%d, v%d' % (vY + bb + 1, vY + bb + 3))
    e('buffer_store_dwordx4 %s, v%d, %s, s%d offen%s%s' % (V(vY + bb, 4), t2, S4(sOUT), sOff2, ' offset:32' if hf_ else '', OPT.get('outm', '')))
e('s_branch L_fin')

main_ins = p.ins
p.ins = []
e('L_idle:')
e('''
s_lshl1_add_u32 s6, s{g}, s{half}
s_cmp_lt_u32 s6, 28
s_cselect_b32 s{gu2}, 1605632, 0
s_mul_i32 s3, s{th}, 802816
s_lshl_b32 s4, s6, 7
s_add_u32 s{o}, s3, s4
v_lshrrev_b32 v{a}, 3, v0
v_mul_u32_u24 v{a}, 3584, v{a}
v_and_b32 v{b}, 7, v0
v_lshl_add_u32 v{a}, v{b}, 4, v{a}
v_mov_b32 v{e0}, 0x3f80
v_mov_b32 v{e1}, 0x3f800000
'''.format(g=sG, half=sHalf, gu2=sGU + 2, th=sTh, o=sOff, a=t0, b=t1, e0=u[0], e1=u[1]))
for n in range(28):
    e('buffer_load_dwordx4 %s, v%d, %s, s%d offen' % (V(vF + 4 * n, 4), t0, S4(sGU), sOff))
    e('s_add_u32 s%d, s%d, 28672' % (sOff, sOff))
    if n == OPT.get('ipre', 0):
        e('s_waitcnt vmcnt(%d)' % (n + 1))
        p.add(signal(sSig))
        stamp('_i0')
        e('s_barrier')
        e('s_cmp_ge_u32 s6, 28')
        e('s_cbranch_scc1 L_idle2')
stamp('_i1')
for j in range(8):
    e('v_mov_b32 v%d, 0' % (vY + j))
for n in range(28):
    for d in range(4):
        e('v_dot2c_f32_bf16 v%d, v%d, v%d' % (vY + 2 * d, vF + 4 * n + d, u[0]))
        e('v_dot2c_f32_bf16 v%d, v%d, v%d' % (vY + 2 * d + 1, vF + 4 * n + d, u[1]))
stamp('_i2')
for j in range(8):
    e('v_mov_b32 v%d, v%d' % (vY + 8 + j, vY + j))
for j in range(8):
    e('v_permlane32_swap_b32 v%d, v%d' % (vY + 8 + j, vY + j))
for j in range(8):
    e('v_add_f32 v%d, v%d, v%d' % (vY + j, vY + j, vY + 8 + j))
for j in range(8):
    e('v_mov_b32 v%d, v%d' % (vY + 8 + j, vY + j))
for j in range(8):
    e('v_permlane16_swap_b32 v%d, v%d' % (vY + 8 + j, vY + j))
for j in range(8):
    e('v_add_f32 v%d, v%d, v%d' % (vY + j, vY + j, vY + 8 + j))
for j in range(8):
    e('v_add_f32_dpp v%d, v%d, v%d row_ror:8 row_mask:0xf bank_mask:0xf' % (vY + 8 + j, vY + j, vY + j))
e('''
s_lshl_b32 s3, s{w}, 8
v_lshl_add_u32 v{a}, v{b}, 5, s3
ds_write_b128 v{a}, {r0}
ds_write_b128 v{a}, {r1} offset:16
s_waitcnt lgkmcnt(0)
s_barrier
v_bfe_u32 v{a}, v0, 4, 1
v_lshlrev_b32 v{a}, 9, v{a}
v_and_b32 v{b}, 15, v0
v_lshl_add_u32 v{a}, v{b}, 2, v{a}
v_lshrrev_b32 v{b}, 5, v0
v_lshl_add_u32 v{a}, v{b}, 7, v{a}
ds_read_b32 v{y0}, v{a}
ds_read_b32 v{y1}, v{a} offset:256
ds_read_b32 v{y2}, v{a} offset:64
ds_read_b32 v{y3}, v{a} offset:320
v_mov_b32 v{x1}, 0
v_mov_b32 v{x3}, 0
s_lshl_b32 s3, s6, 10
s_add_u32 s3, s3, {base}
s_lshr_b32 s4, s6, 1
s_lshl_b32 s4, s4, 13
s_add_u32 s4, s4, {cc}
v_add_f32 v{y0}, v{y0}, v{y1}
v_add_f32 v{y2}, v{y2}, v{y3}
'''.format(w=sW, a=t0, b=t1, r0=V(vY + 8, 4), r1=V(vY + 12, 4), y0=vY, y1=vY + 1, y2=vY + 2, y3=vY + 3, x1=vX + 1, x3=vX + 3,
           base=WS_CS, cc=C_CS * 128))
p.add(hilo(vY, vX, t2) + hilo(vY + 2, vX + 2, t2))
stamp('_i3')
e('s_cmp_ge_u32 s%d, 2' % sW)
e('s_cbranch_scc1 L_idle1')
e('buffer_store_dwordx4 %s, v%d, %s, s3 offen sc1' % (V(vX, 4), vL16, S4(sWS)))
e('s_waitcnt vmcnt(0)')
p.add(signal(4))
e('s_waitcnt vmcnt(0)')
e('L_idle1:')
e('s_barrier')
e('L_idle2:')
stamp('_i4')
if OPT.get('idlepf', 1):
    e('''
    v_lshlrev_b32 v{a}, 7, v0
    s_lshl2_add_u32 s3, s{gl}, s{w}
    s_and_b32 s4, s2, 7
    s_mul_i32 s4, s4, 32
    s_add_u32 s3, s3, s4
    '''.format(a=t0, gl=sGl, w=sW))
    for n in range(13):
        for x in ['s_cmp_ge_u32 s3, 208', 's_cselect_b32 s4, 208, 0', 's_sub_u32 s3, s3, s4', 's_lshl_b32 s5, s3, 13',
                  'buffer_load_dword v%d, v%d, %s, s5 offen' % (vX + 8 + n, t0, S4(sWD)), 's_add_u32 s3, s3, 16']:
            e(x)
e('L_fin:')
if OPT.get('enc'):
    e('s_waitcnt vmcnt(0) lgkmcnt(0)')
    if OPT['enc'] == 'end':
        e('s_memrealtime s[94:95]')
        e('s_waitcnt lgkmcnt(0)')
    e('s_cmp_ge_u32 s%d, 7' % sCs)
    e('s_cbranch_scc1 L_end')
    e('s_sub_u32 s94, s94, s98')
    e('s_mul_i32 s94, s94, 4')
    e('s_add_u32 s94, s94, 3000')
    e('L_fix:')
    for x in ['s_sleep 4', 's_memrealtime s[96:97]', 's_waitcnt lgkmcnt(0)', 's_sub_u32 s96, s96, s98', 's_cmp_lt_u32 s96, s94', 's_cbranch_scc1 L_fix']:
        e(x, raw=True)
if OPT.get('fixt'):
    e('s_waitcnt vmcnt(0) lgkmcnt(0)')
    e('L_fix:')
    for x in ['s_memrealtime s[96:97]', 's_waitcnt lgkmcnt(0)', 's_sub_u32 s96, s96, s98', 's_cmp_lt_u32 s96, %d' % OPT['fixt'], 's_cbranch_scc1 L_fix']:
        e(x, raw=True)
if DIAG:
    e('s_waitcnt vmcnt(0)')
    e('s_memtime s[76:77]' if OPT['cyc'] else 's_memrealtime s[76:77]')
    e('s_memtime s[74:75]')
    e('s_waitcnt lgkmcnt(0)')
    e('s_sub_u32 s74, s74, s100')
    e('v_mov_b32 v%d, s74' % (vX + 14))
    e('v_mov_b32 v%d, s101' % (vX + 15))
    e('s_lshl_b32 s3, s2, 2')
    e('s_add_u32 s3, s3, s%d' % sW)
    e('s_lshl_b32 s3, s3, 6')
    e('s_add_u32 s3, s3, %d' % WS_TS)
    for n in range(12):
        e('v_mov_b32 v%d, s%d' % (vX + n, sTS + 2 * n))
    e('v_mov_b32 v%d, s76' % (vX + 12))
    e('s_getreg_b32 s4, hwreg(HW_REG_XCC_ID)')
    e('v_mov_b32 v%d, s4' % (vX + 13))
    e('s_mov_b64 exec, 1')
    for q in range(4):
        e('buffer_store_dwordx4 %s, off, %s, s3 offset:%d' % (V(vX + 4 * q, 4), S4(sWS), 16 * q))
e('s_waitcnt vmcnt(0) lgkmcnt(0)')
e('L_end:')
e('s_endpgm')
tail_ins = p.ins

p.ins = main_ins
p.finalize()
body = p.text()
stats = dict(p.stats)
kinds = {}
for i in p.out:
    kinds[i.kind] = kinds.get(i.kind, 0) + 1
p.ins = tail_ins
p.finalize()
body += '\n' + p.text()

hdr = open('sequential_preLN__linear_attn_block__glu_gated_glu__prompt.s.ref').read().split('\n')
head = [l for l in hdr if l.startswith(';') and '@launch' not in l and 'Override' not in l and 'grid=ceil' not in l]
out = '\n'.join(head) + '''
; @launch grid=(256,1,1) block=(256,1,1) lds=163840
.amdgcn_target "amdgcn-amd-amdhsa--gfx950"
.text
.globl {n}
.p2align 8
.type {n},@function
{n}:
{body}
.section .rodata,"a"
.p2align 6
.amdhsa_kernel {n}
  .amdhsa_next_free_vgpr 512
  .amdhsa_next_free_sgpr 102
  .amdhsa_accum_offset 256
  .amdhsa_group_segment_fixed_size 0
  .amdhsa_kernarg_size 80
  .amdhsa_user_sgpr_count 2
  .amdhsa_user_sgpr_kernarg_segment_ptr 1
  .amdhsa_system_sgpr_workgroup_id_x 1
  .amdhsa_float_denorm_mode_32 3
.end_amdhsa_kernel
'''.format(n=NAME, body=body)
open(sys.argv[1], 'w').write(out)
print(kinds, stats, 'wpre', WPRE, 'rest', len(rest), 'spill', len(spill), 'H0', H0, H1, 'HHN', HHN, 'X0END', X0END, PEND, 'sig', sig_at, 'dslot', DSLOT1, 'dpos', DPOS, file=sys.stderr)
```

```python
import sys
from asmlib import Prog, I

NAME = 'sequential_preLN__linear_attn_block__glu_gated_glu__prompt_kernel'

OPT = dict(diag=0, stop=99, spin=200000, abl='', cyc=0, st=None, swh=2)
for a in sys.argv[2:]:
    k, v = a.split('=')
    OPT[k] = eval(v)
DIAG = OPT['diag']
STOP = OPT['stop']

WS_CNT = 0
WS_KVP = 0x20000
WS_CS = 0xA0000
WS_O = 0x120000
WS_H = 0x320000
WS_ST = 0x520000
WS_HH = 0x560000
WS_TS = 0xC60000
WS_SIZE = 0xD00000
C_O, C_H, C_KV, C_HH, C_CS = 0, 8, 12, 16, 48

sX, sQKV, sWO, sGU, sWD, sOUT, sWS, sDBG = 24, 28, 32, 36, 40, 44, 48, 52
sOff, sOff2, sIter, sPoll = 56, 57, 58, 59
sG, sM, sW, sCs, sWK, sHalf, sA, sTh, sKh, sCnt = 60, 61, 62, 63, 64, 65, 66, 67, 68, 69
sCh = 70
sIdx = 77
sT = [3, 4, 5, 6, 7, 8, 9, 10, 11, 12, 13]
sMaskHi = 14
sMask28 = 16
sGl, sGood, sSig, sSt, sTT, sZero = 18, 19, 20, 21, 22, 23
sGUt = [28, 29, 30, 31, 52, 53, 54]
sWDt = [24, 25, 26, 27, 32, 33, 34]
sHHt = [0, 1, 16, 17, 19, 23, 55]
sTS = 78


def S4(b):
    return 's[%d:%d]' % (b, b + 3)


def V(b, n=1):
    return 'v%d' % b if n == 1 else 'v[%d:%d]' % (b, b + n - 1)


def A(b, n=1):
    return 'a%d' % b if n == 1 else 'a[%d:%d]' % (b, b + n - 1)


vL16, vOne, vP, vL8 = 1, 2, 3, 4
vOffX = 5
vAdX = 9
vAdC = 9
vOffKV, vAdK, vAdV, vOffQ, vAdQ = 13, 14, 15, 16, 17
vAdD = 14
vOffWO, vOffXR, vOffGU, vOffWD = 18, 19, 20, 21
vAdWO, vAdWOp = 22, 24
vT = 26
vP2, vP3 = 238, 239
vY = 32
vX = 64
vF = 128
vGUo, vWDo, vL16b, vMF, vCc, vSt, vHH = 128, 136, 144, 148, 152, 156, 172
vU = 240
aW = 0
aH = 32
aF = 40
aCS = 152
aR = 172
t0, t1, t2, t3, t4, t5 = range(vT, vT + 6)
u = [vU + i for i in range(16)]

PG = 4096
LOG2E = 0x3fb8aa3b
NEGL = 0xbfb8aa3b
EPS6 = 0x358637bd
EPS5 = 0x3727c5ac
INV448 = 0x3b124925

p = Prog()
e = p.e
nstamp = [0]
nlab = [0]


def L(x):
    return [I(t.strip()) for t in x.strip().split('\n') if t.strip()]


def mkstamp(name):
    if OPT.get('enc') == name:
        return [I('s_memrealtime s[94:95]')]
    if not DIAG:
        return []
    early = ('o flag', 'x0 landed', 'x read', 'A1 mfma', 'kv stored', 'A2 mfma', 'q done', 'kv flag', 'kv loaded', 'o stored')
    if OPT['st'] is not None:
        if name != 'start' and name not in OPT['st']:
            return []
    elif name != 'start' and ((DIAG == 1) != (name in early) or name.startswith('_')):
        return []
    n = nstamp[0]
    assert n < 11
    nstamp[0] += 1
    return [I('%s s[%d:%d] ; @%s' % ('s_memtime' if OPT['cyc'] else 's_memrealtime', sTS + 2 * n, sTS + 2 * n + 1, name))]


def stamp(name):
    p.add(mkstamp(name))


def dma(voff, srd, so, m0, tag, pre=(), imm=0):
    r = []
    if m0 is not None:
        r.append(I('s_add_u32 m0, s%d, 0x%x' % (sWK, m0)))
    r += [I(t) for t in pre]
    r.append(I('buffer_load_dwordx4 v%d, %s, %s offen%s lds' % (voff, S4(srd), so, ' offset:%d' % imm if imm else ''), tag=tag))
    return r


def poll_issue(soff, atomic=True):
    if OPT.get('apoll', 1) and atomic:
        return L('v_mov_b32 v%d, 0\ns_mov_b64 exec, 1\nbuffer_atomic_umax v%d, off, %s, s%d sc0\ns_mov_b64 exec, -1' % (vP, vP, S4(sWS), soff))
    return [I('buffer_load_dword v%d, off, %s, s%d sc1' % (vP, S4(sWS), soff))]


def poll_check(expect, soff, srd=sWS):
    n = nlab[0]
    nlab[0] += 1
    t = sT[0]
    so = soff if isinstance(soff, str) else 's%d' % soff
    r = L('''
    v_readfirstlane_b32 s%d, v%d
    s_cmp_ge_u32 s%d, %d
    s_cbranch_scc1 L_ok%d
    s_mov_b32 s%d, %d
    ''' % (t, vP, t, expect, n, sIter, OPT['spin']))
    ld = lambda v: 'buffer_load_dword v%d, off, %s, %s sc1' % (v, S4(srd), so)
    chk = lambda v: ['v_readfirstlane_b32 s%d, v%d' % (t, v), 's_nop 0', 's_cmp_ge_u32 s%d, %d' % (t, expect), 's_cbranch_scc1 L_ok%d' % n]
    loop = ['s_sub_u32 s%d, s%d, 1' % (sIter, sIter), 's_cmp_lg_u32 s%d, 0' % sIter, 's_cbranch_scc1 L_spin%d' % n]
    pm = OPT.get('pm', 0)
    if OPT.get('apoll', 1) and srd == sWS:
        body = ['L_spin%d:' % n] + (['s_sleep %d' % OPT['asl']] if OPT.get('asl') else []) + ['s_mov_b64 exec, 1', 'buffer_atomic_umax v%d, off, %s, %s sc0' % (vP, S4(srd), so), 's_mov_b64 exec, -1',
                's_waitcnt vmcnt(0)'] + chk(vP) + loop
    elif pm == 0:
        body = ['L_spin%d:' % n, ld(vP), 's_waitcnt vmcnt(0)'] + chk(vP) + loop
    elif pm < 0:
        body = ['L_spin%d:' % n, 's_sleep %d' % -pm, ld(vP), 's_waitcnt vmcnt(0)'] + chk(vP) + loop
    else:
        body = [ld(vP), 'L_spin%d:' % n, 's_sleep %d' % pm, ld(vP2), 's_waitcnt vmcnt(1)'] + chk(vP) + \
               ['s_sleep %d' % pm, ld(vP), 's_waitcnt vmcnt(1)'] + chk(vP2) + loop
    for x in body:
        r.append(I(x, raw=True))
    r.append(I('L_ok%d:' % n))
    return r


def poll_pipe_issue(soff):
    return L('v_mov_b32 v%d, 0\nv_mov_b32 v%d, 0' % (vP2, vP3)) + poll_issue(soff)


def poll_pipe_check(expect, soff):
    n = nlab[0]
    nlab[0] += 1
    t = sT[0]
    at = lambda v: 'buffer_atomic_umax v%d, off, %s, s%d sc0' % (v, S4(sWS), soff)
    chk = lambda v: ['s_waitcnt vmcnt(2)', 'v_readfirstlane_b32 s%d, v%d' % (t, v), 's_nop 0', 's_cmp_ge_u32 s%d, %d' % (t, expect),
                     's_cbranch_scc1 L_ok%d' % n]
    sl = 's_sleep %d' % OPT.get('psl', 3)
    body = ['s_mov_b32 s%d, %d' % (sIter, OPT['spin']), 's_mov_b64 exec, 1', at(vP2), sl, 'L_spin%d:' % n, at(vP3)] + chk(vP) + \
           [at(vP)] + chk(vP2) + [at(vP2)] + chk(vP3) + \
           ['s_sub_u32 s%d, s%d, 1' % (sIter, sIter), 's_cmp_lg_u32 s%d, 0' % sIter, 's_cbranch_scc1 L_spin%d' % n]
    r = [I(x, raw=True) for x in body]
    return r + [I('L_ok%d:' % n), I('s_mov_b64 exec, -1'), I('@assumevm0')]


def signal(soff, imm=0):
    return L('''
    s_mov_b64 exec, 1
    buffer_atomic_add v%d, off, %s, s%d%s
    s_mov_b64 exec, -1
    ''' % (vOne, S4(sWS), soff, ' offset:%d' % imm if imm else ''))


def mfma(d, a, b, c=None):
    return I('v_mfma_f32_32x32x16_bf16 %s, %s, %s, %s' % (V(d, 16), a, b, V(d, 16) if c is None else c))


def colsum4(acc, q, first):
    return [I('v_mfma_f32_4x4x4_16b_bf16 %s, %s, %s, %s' % (V(acc + 4 * h, 4), V(vOnes, 2), A(q + 2 * h, 2), '0' if first else V(acc + 4 * h, 4))) for h in range(2)]


class WStream:
    def __init__(self, look=7, nbuf=8, wper=4):
        self.items = []
        self.look = look
        self.nbuf = nbuf
        self.wper = wper
        self.n = 0
        self.fills = {}

    def step(self, addr0, off0, addr1, off1, mk, pre=None, post=None):
        q = aW + 4 * (self.n % self.nbuf)
        self.n += 1
        rd = list(pre or [])
        rd.append(I('ds_read_b64_tr_b16 %s, v%d offset:%d' % (A(q, 2), addr0, off0)))
        rd.append(I('ds_read_b64_tr_b16 %s, v%d offset:%d' % (A(q + 2, 2), addr1, off1)))
        self.items.append((rd, mk(A(q, 4)), post(q) if post else []))
        return len(self.items) - 1

    def extra(self, m):
        self.items.append(([], m, []))
        return len(self.items) - 1

    def fill(self, idx, grp):
        g = grp if isinstance(grp, list) else [grp]
        ab = OPT['abl']
        if ab and not any(x.kind in ('label', 'sctl') or 'exec' in x.text for x in g):
            if 'v' in ab:
                g = [x for x in g if x.kind != 'valu']
            if 'd' in ab and any(x.kind == 'dma' for x in g):
                g = []
            if 'b' in ab:
                g = [x for x in g if x.kind != 'barrier']
        if g:
            self.fills.setdefault(idx, []).append(g)

    def build(self):
        out = []
        n = len(self.items)
        withrd = [i for i in range(n) if self.items[i][0]]
        nxt = 0
        used = 0
        while nxt < min(self.look, len(withrd)):
            out += self.items[withrd[nxt]][0]
            nxt += 1
        for i in range(n):
            rd, m, post = self.items[i]
            if rd:
                if used % self.wper == 0:
                    m.ahead = 2 * min(self.wper - 1, nxt - used - 1)
                used += 1
            out.append(m)
            gs = self.fills.pop(i, [])
            first = [g for g in gs if g[0].kind == 'barrier']
            rest = [g for g in gs if g[0].kind != 'barrier']
            for g in first:
                out += g
            mem = [g for g in rest if not all(x.kind == 'valu' for x in g)]
            if mem and mem[0][0].kind == 'salu' and mem[0][-1].kind == 'dma':
                out.append(mem[0][0])
                mem[0] = mem[0][1:]
            if rd and nxt < len(withrd):
                out += self.items[withrd[nxt]][0]
                nxt += 1
            for g in mem:
                out += g
            for g in rest:
                if all(x.kind == 'valu' for x in g):
                    out += g
            out += post
        assert not self.fills, list(self.fills)
        return out


def spread(main, fill):
    out = []
    n, m = len(main), len(fill)
    j = 0
    for i, x in enumerate(main):
        out.append(x)
        while j < m and (j + 1) * n <= (i + 1) * (m + 1):
            out.extend(fill[j])
            j += 1
    while j < m:
        out.extend(fill[j])
        j += 1
    return out


def zip_groups(groups):
    out = []
    n = max(len(g) for g in groups)
    for k in range(n):
        for g in groups:
            if k < len(g):
                out.append(g[k])
    return out


def pk(op, d, a, b, c=None, mod=''):
    f = lambda r: r if isinstance(r, str) else V(r, 2)
    return I('v_pk_%s_f32 %s, %s, %s%s %s' % (op, f(d), f(a), f(b), '' if c is None else ', ' + f(c), mod))


def halves_sum(x, t):
    return L('''
    v_mov_b32 v{t}, v{x}
    v_permlane32_swap_b32 v{t}, v{x}
    v_add_f32 v{x}, v{t}, v{x}
    '''.format(t=t, x=x))


def ln_consts(s, q, mean, std, r):
    return L('''
    v_mul_f32 v{a}, 0x{i:x}, v{s}
    v_mul_f32 v{b}, 0x{i:x}, v{q}
    v_fma_f32 v{b}, -v{a}, v{a}, v{b}
    v_max_f32 v{b}, 0, v{b}
    v_cvt_pk_bf16_f32 v{a}, v{a}, v{b}
    v_and_b32 v{b}, 0xffff0000, v{a}
    v_lshlrev_b32 v{a}, 16, v{a}
    v_add_f32 v{b}, 0x{e:x}, v{b}
    v_cvt_pk_bf16_f32 v{b}, v{b}, v{b}
    v_lshlrev_b32 v{b}, 16, v{b}
    v_sqrt_f32 v{b}, v{b}
    v_cvt_pk_bf16_f32 v{b}, v{b}, v{b}
    v_lshlrev_b32 v{b}, 16, v{b}
    v_rcp_f32 v{r}, v{b}
    '''.format(a=mean, b=std, s=s, q=q, r=r, i=INV448, e=EPS5))


def mean_frag(mean, d):
    return L('''
    v_cvt_pk_bf16_f32 v{d}, -v{m}, -v{m}
    v_mov_b32 v{d1}, 0
    v_mov_b32 v{d2}, 0
    v_mov_b32 v{d3}, 0
    v_cndmask_b32 v{d}, v{d}, 0, s[{h}:{h1}]
    '''.format(d=d, d1=d + 1, d2=d + 2, d3=d + 3, m=mean, h=sMaskHi, h1=sMaskHi + 1))


def hilo(c, d, t):
    return L('''
    v_cvt_pk_bf16_f32 v{t}, v{c}, v{c}
    v_lshlrev_b32 v{t}, 16, v{t}
    v_sub_f32 v{t}, v{c}, v{t}
    v_cvt_pk_bf16_f32 v{d}, v{c}, v{t}
    '''.format(c=c, d=d, t=t))


e('s_cmp_ge_u32 s2, 256')
e('s_cbranch_scc1 L_end')
if OPT.get('fixt') or OPT.get('enc'):
    e('s_memrealtime s[98:99]')
    e('s_memrealtime s[94:95]')
stamp('start')
if DIAG:
    e('s_memtime s[100:101]')
e('s_load_dwordx4 s[4:7], s[0:1], 0')
e('s_load_dwordx2 s[%d:%d], s[0:1], 16' % (sWO, sWO + 1))
e('s_load_dwordx8 s[8:15], s[0:1], 32')
e('s_load_dwordx4 s[20:23], s[0:1], 64')
XP0 = 12
e("""
v_lshrrev_b32 v{t0}, 6, v0
v_and_b32 v0, 63, v0
v_readfirstlane_b32 s{w}, v{t0}
s_lshr_b32 s{idx}, s2, 3
""".format(t0=t0, w=sW, idx=sIdx))
if OPT.get('cpf', 1):
    sCODE = 72
    e('s_getpc_b64 s[%d:%d]' % (sCODE, sCODE + 1))
    e('L_pc:')
    e("""
    s_mov_b32 s{c2}, L_end-L_pc
    s_mov_b32 s{c3}, 0x20000
    s_lshl2_add_u32 s3, s{idx}, s{w}
    s_lshl_b32 s3, s3, 9
    v_and_b32 v{t3}, 3, v0
    v_lshlrev_b32 v{t3}, 7, v{t3}
    buffer_load_dword v{d}, v{t3}, {code}, s3 offen
    """.format(c2=sCODE + 2, c3=sCODE + 3, idx=sIdx, w=sW, t3=t3, d=t5, code=S4(sCODE)))
e("""
s_bfe_u32 s3, s2, 0x20001
s_and_b32 s{gl}, s{idx}, 3
s_lshr_b32 s{cs}, s{idx}, 2
s_lshl2_add_u32 s{g}, s3, s{gl}
s_lshl1_add_u32 s{c0}, s{gl}, s{cs}
s_add_u32 s{c0}, s{c0}, s3
s_mul_i32 s3, s{c0}, 37
s_lshr_b32 s3, s3, 8
s_mul_i32 s3, s3, 7
s_sub_u32 s{c0}, s{c0}, s3
v_lshrrev_b32 v{u0}, 3, v0
v_and_b32 v{u1}, 7, v0
v_lshrrev_b32 v{u2}, 4, v0
s_lshl2_add_u32 s3, s{g}, s{w}
s_mul_i32 s3, s3, 28672
v_mul_u32_u24 v{t0}, 896, v{u0}
v_xor_b32 v{t1}, v{u1}, v{u2}
v_add_u32 v{t0}, s3, v{t0}
v_lshl_add_u32 v{x0}, v{t1}, 4, v{t0}
v_xor_b32 v{t1}, 4, v{t1}
v_lshl_add_u32 v{x1}, v{t1}, 4, v{t0}
v_add_u32 v{x2}, 12288, v{x0}
v_add_u32 v{x3}, 18432, v{x1}
v_add_u32 v{x1}, 6144, v{x1}
s_mul_i32 s{o2}, s{w}, {xs}
s_add_u32 s{o2}, s{o2}, {xb}
s_mov_b32 s{X2}, 1835008
s_mov_b32 s{X3}, 0x20000
""".format(t0=t0, t1=t1, w=sW, idx=sIdx, gl=sGl, cs=sCs, g=sG, c0=sCh, u0=u[0], u1=u[1], u2=u[2],
           x0=vOffX, x1=vOffX + 1, x2=vOffX + 2, x3=vOffX + 3, o2=sOff2, xs=7 * PG, xb=XP0 * PG, X2=sX + 2, X3=sX + 3))


def nextch(i):
    e('s_add_u32 s%d, s%d, 1' % (sCh + i, sCh + i - 1))
    e('s_cmp_ge_u32 s%d, 7' % (sCh + i))
    e('s_cselect_b32 s%d, 0, s%d' % (sCh + i, sCh + i))


def xdma(i):
    r = L('s_add_u32 m0, s%d, %d\ns_lshl_b32 s%d, s%d, 7' % (sOff2, i * PG, sOff, sCh + i))
    for q in range(4):
        r.append(I('buffer_load_dwordx4 v%d, %s, s%d offen%s lds' % (vOffX + q, S4(sX), sOff, ' offset:%d' % (q * 1024) if q else ''), tag='x%d' % i))
    return r


nextch(1)
if OPT.get('sw1') in (4, 5):
    e('''
    s_mul_i32 s3, s{idx}, 14
    s_lshl2_add_u32 s3, s{w}, s3
    s_mul_i32 s3, s3, 2688
    s_and_b32 s16, s2, 1
    s_mul_i32 s16, s16, 384
    s_add_u32 s3, s3, s16
    v_mul_u32_u24 v{t0}, 2688, v{u2}
    v_bfe_u32 v{t1}, v0, 2, 2
    v_min_u32 v{t1}, {np}, v{t1}
    v_mul_u32_u24 v{t1}, 896, v{t1}
    v_and_b32 v{t2}, 3, v0
    v_lshl_add_u32 v{t1}, v{t2}, 7, v{t1}
    v_add3_u32 v{c}, v{t0}, v{t1}, s3
    s_mov_b32 s{q2}, 1204224
    s_mov_b32 s{q3}, 0x20000
    '''.format(idx=sIdx, w=sW, t0=t0, t1=t1, t2=t2, u2=u[2], c=vY + 14, q2=sQKV + 2, q3=sQKV + 3, np=2 if OPT['sw1'] == 4 else 1))
stamp('_prek')
e('@waitlg0')
stamp('_karg')
e('s_mov_b32 s%d, s4' % sX)
e('s_mov_b32 s%d, s5' % (sX + 1))
p.add(xdma(0))
if OPT.get('sw1') in (4, 5):
    e('s_mov_b32 s%d, s6' % sQKV)
    e('s_mov_b32 s%d, s7' % (sQKV + 1))
    e('buffer_load_dword a249, v%d, %s, 0 offen%s' % (vY + 14, S4(sQKV), '' if OPT['sw1'] == 4 else ' offset:896'))
else:
    p.add(xdma(1))
stamp('_x01')
for i in range(2, 7):
    nextch(i)
e("""
s_and_b32 s{half}, s2, 1
s_lshl3_add_u32 s{m}, s{half}, s{cs}
s_sub_u32 s{a}, s{m}, s{half}
s_lshl_b32 s{wk}, s{w}, 10
s_lshl_b32 s{cnt}, s{g}, 13
s_and_b32 s{th}, s{w}, 1
s_lshr_b32 s{kh}, s{w}, 1
s_mov_b32 s{q}, s6
s_mov_b32 s{q1}, s7
s_cmp_lt_u32 s{w}, 2
s_cselect_b32 s{gu}, s8, s10
s_cselect_b32 s{gu1}, s9, s11
s_mov_b32 s{wd}, s12
s_mov_b32 s{wd1}, s13
s_mov_b32 s{out}, s14
s_mov_b32 s{out1}, s15
s_mov_b32 s{dbg}, s20
s_mov_b32 s{dbg1}, s21
s_mov_b32 s{ws}, s22
s_mov_b32 s{ws1}, s23
s_cmp_lt_u32 s{cs}, 7
s_cselect_b32 s{wo2}, 401408, 0
s_cselect_b32 s{gu2}, 1605632, 0
s_lshl1_add_u32 s{tt}, s{half}, s{th}
""".format(half=sHalf, m=sM, cs=sCs, a=sA, wk=sWK, w=sW, cnt=sCnt, g=sG, th=sTh, kh=sKh, q=sQKV, q1=sQKV + 1,
           gu=sGU, gu1=sGU + 1, wd=sWD, wd1=sWD + 1, out=sOUT, out1=sOUT + 1, dbg=sDBG, dbg1=sDBG + 1,
           ws=sWS, ws1=sWS + 1, wo2=sWO + 2, gu2=sGU + 2, tt=sTT))
for srd, size in ((sQKV, 1204224), (sWO, None), (sWD, 1605632), (sGU, None), (sOUT, 1835008), (sDBG, 256), (sWS, WS_SIZE)):
    if size:
        e('s_mov_b32 s%d, 0x%x' % (srd + 2, size))
    e('s_mov_b32 s%d, 0x20000' % (srd + 3))
e("""
v_lshlrev_b32 v{l16}, 4, v0
v_lshlrev_b32 v{l8}, 3, v0
v_mov_b32 v{one}, 1
v_and_b32 v{u3}, 31, v0
v_lshrrev_b32 v{u4}, 5, v0
v_bfe_u32 v{u5}, v0, 2, 2
v_and_b32 v{u6}, 3, v0
v_bfe_u32 v{u7}, v0, 4, 1
""".format(l16=vL16, l8=vL8, one=vOne, u3=u[3], u4=u[4], u5=u[5], u6=u[6], u7=u[7]))
e("""
s_cmp_eq_u32 s{m}, 15
s_cselect_b32 s3, 1, 0
s_cmp_eq_u32 s{w}, 0
s_cselect_b32 s{z}, s3, 0
s_cmp_eq_u32 s{z}, 0
s_cbranch_scc1 L_nozero
v_lshlrev_b32 v{t3}, 7, v0
v_mov_b32 v{t4}, 0
""".format(m=sM, w=sW, t3=t3, t4=t4, z=sZero))
e('buffer_store_dword v%d, v%d, %s, s%d offen sc1' % (t4, t3, S4(sWS), sCnt), raw=True)
e('L_nozero:')
e('v_cmp_lt_u32 s[%d:%d], 31, v0' % (sMaskHi, sMaskHi + 1))
e('v_cmp_eq_u32 s[%d:%d], 28, v%d' % (sMask28, sMask28 + 1, u[3]))
e('''
v_lshlrev_b32 v{t0}, 7, v{u3}
v_add_u32 v{t0}, s{xb}, v{t0}
v_bfe_u32 v{t1}, v0, 1, 3
v_xor_b32 v{t1}, v{t1}, v{u4}
'''.format(t0=t0, t1=t1, u3=u[3], u4=u[4], xb=sOff2))
for ks in range(4):
    e('v_xor_b32 v%d, %d, v%d' % (t2, 2 * ks, t1))
    e('v_lshl_add_u32 v%d, v%d, 4, v%d' % (vAdX + ks, t2, t0))
e('''
v_lshlrev_b32 v{t0}, 2, v{u7}
v_xor_b32 v{t0}, v{t0}, v{u1}
v_lshlrev_b32 v{t4}, 4, v{t0}
v_lshrrev_b32 v{t1}, 2, v{t0}
v_and_b32 v{t0}, 3, v{t0}
v_lshlrev_b32 v{t2}, 1, v{t0}
v_min_u32 v{t2}, 5, v{t2}
v_lshlrev_b32 v{t2}, 3, v{t2}
s_movk_i32 s{k}, 896
v_mad_u32_u24 v{t2}, v{t1}, s{k}, v{t2}
v_mad_u32_u24 v{t4}, v{u0}, s{k}, v{t4}
s_lshl_b32 s3, s{w}, 3
v_add_u32 v{t3}, s3, v{u0}
s_movk_i32 s{k}, 2688
v_mad_u32_u24 v{t2}, v{t3}, s{k}, v{t2}
s_mul_i32 s3, s{m}, 56
s_add_u32 s4, s3, 896
v_add_u32 v{kv}, s4, v{t2}
'''.format(t0=t0, t1=t1, t2=t2, t3=t3, t4=t4, u0=u[0], u1=u[1], u7=u[7], k=sOff, w=sW, m=sM, kv=vOffKV))
e('''
s_lshl_b32 s6, s{cs}, 7
s_mul_i32 s4, s{w}, 7168
s_add_u32 s4, s4, s6
v_add_u32 v{wo}, s4, v{t4}
s_mul_i32 s4, s{kh}, 802816
s_mul_i32 s5, s{th}, 7168
s_add_u32 s4, s4, s5
s_add_u32 s4, s4, s6
v_add_u32 v{wd}, s4, v{t4}
'''.format(t4=t4, cs=sCs, w=sW, kh=sKh, th=sTh, wo=vOffWO, wd=vOffWD))
e('''
v_lshlrev_b32 v{t2}, 1, v{u6}
v_min_u32 v{t2}, 5, v{t2}
v_lshlrev_b32 v{t2}, 3, v{t2}
v_lshrrev_b32 v{t3}, 2, v0
v_mul_u32_u24 v{t4}, 896, v{t3}
s_lshl_b32 s4, s{w}, 4
v_add_u32 v{t3}, s4, v{t3}
v_mad_u32_u24 v{t2}, v{t3}, s{k}, v{t2}
v_add_u32 v{q}, s3, v{t2}
s_lshl2_add_u32 s4, s{g}, s{tt}
s_mul_i32 s4, s4, 28672
s_add_u32 s4, s4, s6
s_lshl_b32 s5, s{kh}, 6
s_add_u32 s4, s4, s5
v_lshl_add_u32 v{t4}, v{u6}, 4, v{t4}
v_add_u32 v{xr}, s4, v{t4}
'''.format(t2=t2, t3=t3, t4=t4, u6=u[6], k=sOff, w=sW, q=vOffQ, g=sG, tt=sTT, kh=sKh, xr=vOffXR))
WQP = 14
e('''
v_lshlrev_b32 v{t0}, 3, v{u6}
v_lshl_add_u32 v{t0}, v{u7}, 5, v{t0}
v_lshrrev_b32 v{t1}, 1, v{u6}
v_and_b32 v{t1}, v{t1}, v{u7}
v_lshlrev_b32 v{t1}, 3, v{t1}
v_xor_b32 v{t1}, v{t0}, v{t1}
v_lshrrev_b32 v{t2}, 1, v{u5}
v_lshlrev_b32 v{t2}, 6, v{t2}
v_lshl_add_u32 v{t3}, v{u4}, 3, v{u5}
v_xor_b32 v{t4}, v{t1}, v{t2}
v_lshl_add_u32 v{ak}, v{t3}, 7, v{t4}
v_xor_b32 v{av}, 64, v{ak}
v_lshl_add_u32 v{aq}, v{t3}, 6, v{t1}
v_add_u32 v{aq}, {qb}, v{aq}
'''.format(t0=t0, t1=t1, t2=t2, t3=t3, t4=t4, u4=u[4], u5=u[5], u6=u[6], u7=u[7], ak=vAdK, av=vAdV, aq=vAdQ, qb=WQP * PG))
e('''
v_xor_b32 v{t4}, v{t0}, v{t2}
s_lshl_b32 s3, s{kh}, 6
v_xor_b32 v{t4}, s3, v{t4}
v_lshl_add_u32 v{t4}, v{u5}, 7, v{t4}
s_mul_i32 s3, s{kh}, 28672
v_add_u32 v{p0}, s3, v{t4}
v_xor_b32 v{p1}, 64, v{p0}
v_lshl_add_u32 v{a0}, v{u4}, 9, v{p0}
v_xor_b32 v{a1}, 64, v{a0}
'''.format(t0=t0, t2=t2, t4=t4, u4=u[4], u5=u[5], kh=sKh, p0=vAdWOp, p1=vAdWOp + 1, a0=vAdWO, a1=vAdWO + 1))
e('''
s_lshl_b32 s4, s{kh}, 2
v_lshl_add_u32 v{t0}, v{u7}, 1, s4
v_xor_b32 v{t0}, v{t0}, v{u1}
v_lshlrev_b32 v{t0}, 4, v{t0}
s_movk_i32 s{k}, 3584
v_mad_u32_u24 v{t0}, v{u0}, s{k}, v{t0}
s_mul_i32 s4, s{th}, 28672
s_lshl_b32 s5, s{a}, 8
s_add_u32 s4, s4, s5
v_add_u32 v{gu}, s4, v{t0}
'''.format(t0=t0, u0=u[0], u1=u[1], u7=u[7], k=sOff, kh=sKh, th=sTh, a=sA, gu=vOffGU))
vSw = vY
sSW = 8
e('''
s_mul_i32 s3, s{idx}, 14
s_lshl2_add_u32 s3, s{w}, s3
s_mul_i32 s3, s3, 2688
s_mul_i32 s4, s{half}, 384
s_add_u32 s3, s3, s4
v_mul_u32_u24 v{t0}, 2688, v{u2}
v_bfe_u32 v{t1}, v0, 2, 2
v_min_u32 v{t1}, 2, v{t1}
v_mul_u32_u24 v{t1}, 896, v{t1}
v_and_b32 v{t2}, 3, v0
v_lshl_add_u32 v{t1}, v{t2}, 7, v{t1}
v_add3_u32 v{c}, v{t0}, v{t1}, s3
s_add_u32 s3, s{cs}, 1
s_lshr_b32 s3, s3, 1
s_mul_i32 s4, s{gl}, 5
s_add_u32 s3, s3, s4
s_lshl1_add_u32 s4, s3, s{th}
s_mul_i32 s4, s4, 3
s_bfe_u32 s5, s2, 0x20001
s_mul_i32 s5, s5, 112
s_add_u32 s4, s4, s5
s_mul_i32 s4, s4, 3584
s_mul_i32 s5, s{half}, 1792
s_add_u32 s4, s4, s5
v_min_u32 v{t0}, 2, v{u2}
v_mul_u32_u24 v{t0}, 3584, v{t0}
v_and_b32 v{t1}, {swm}, v0
v_min_u32 v{t1}, {swx}, v{t1}
v_lshl_add_u32 v{t0}, v{t1}, 7, v{t0}
v_add_u32 v{a}, s4, v{t0}
v_min_u32 v{t1}, 6, v{u1}
s_lshl2_add_u32 s3, s3, s{w}
s_min_u32 s3, s3, 55
s_and_b32 s4, s2, 7
s_mul_i32 s4, s4, 56
s_add_u32 s3, s3, s4
s_mul_i32 s3, s3, 896
v_lshlrev_b32 v{t1}, 7, v{t1}
v_add_u32 v{b}, s3, v{t1}
s_mul_i32 s3, s{half}, 42
s_add_u32 s3, s3, 0xab
s_lshr_b32 s3, s3, s{cs}
s_and_b32 s{good}, s3, 1
'''.format(cs=sCs, gl=sGl, th=sTh, half=sHalf, w=sW, t0=t0, t1=t1, t2=t2, u0=u[0], u1=u[1], u2=u[2], a=vSw, b=vSw + 1, c=vY + 13,
           good=sGood, idx=sIdx, swm=14 if OPT.get('swh') else 15, swx=12 if OPT.get('swh') else 13))


if OPT.get('swf', 0):
    e('''
    s_add_u32 s3, s{cs}, 1
    s_lshr_b32 s3, s3, 1
    s_mul_i32 s4, s{gl}, 5
    s_add_u32 s3, s3, s4
    s_lshl1_add_u32 s4, s3, s{th}
    s_mul_i32 s4, s4, 43008
    s_mul_i32 s5, s{half}, 1792
    s_add_u32 s4, s4, s5
    v_min_u32 v{t1}, 6, v{u1}
    v_mul_u32_u24 v{t0}, 3584, v{u0}
    v_lshl_add_u32 v{t0}, v{t1}, 8, v{t0}
    v_add_u32 v{a2}, s4, v{t0}
    v_min_u32 v{t0}, 3, v{u0}
    v_mul_u32_u24 v{t0}, 3584, v{t0}
    v_lshl_add_u32 v{t0}, v{t1}, 8, v{t0}
    s_add_u32 s4, s4, 28672
    v_add_u32 v{a3}, s4, v{t0}
    s_lshl2_add_u32 s3, s3, s{w}
    s_mul_i32 s3, s3, 5376
    v_min_u32 v{t0}, 5, v{u0}
    v_mul_u32_u24 v{t0}, 896, v{t0}
    v_lshl_add_u32 v{t0}, v{t1}, 7, v{t0}
    v_add_u32 v{b}, s3, v{t0}
    '''.format(cs=sCs, gl=sGl, th=sTh, half=sHalf, w=sW, t0=t0, t1=t1, u0=u[0], u1=u[1], a2=vY + 14, a3=vY + 15, b=vSw + 1))


def sweep1():
    return L('buffer_load_dword a249, v%d, %s, 0 offen' % (vY + 13, S4(sQKV))) if OPT.get('sw1', 0) else []


def sweep():
    r = L('''
    s_mov_b32 s{sw}, s{gu}
    s_mov_b32 s{sw1}, s{gu1}
    s_mul_i32 s{sw2}, s{good}, 1605632
    s_mov_b32 s{sw3}, 0x20000
    buffer_load_dword a250, v{a}, {srd}, 0 offen
    s_mov_b32 s{sw}, s{wo}
    s_mov_b32 s{sw1}, s{wo1}
    s_mul_i32 s{sw2}, s{good}, 401408
    buffer_load_dword a251, v{b}, {srd}, 0 offen
    '''.format(sw=sSW, sw1=sSW + 1, sw2=sSW + 2, sw3=sSW + 3, gu=sGU, gu1=sGU + 1, wo=sWO, wo1=sWO + 1, a=vSw, b=vSw + 1,
               srd=S4(sSW), good=sGood))
    if OPT.get('swf', 0):
        x = L('buffer_load_dword a248, v%d, %s, 0 offen\nbuffer_load_dword a247, v%d, %s, 0 offen' % (vY + 14, S4(sSW), vY + 15, S4(sSW)))
        r = r[:4] + x + (r[4:5] if OPT['swf'] == 2 else []) + r[5:]
    return r


def sweep3():
    r = L('''
    s_mul_i32 s3, s{g}, 14
    s_add_u32 s3, s3, s{a}
    s_lshl2_add_u32 s3, s3, s{w}
    s_mul_i32 s3, s3, 1792
    v_min_u32 v{t}, 13, v0
    v_lshlrev_b32 v{t}, 7, v{t}
    buffer_load_dword a252, v{t}, {srd}, s3 offen
    '''.format(g=sG, a=sA, w=sW, t=t5, srd=S4(sWD)))
    return r if OPT.get('sw3', 0) else []


def kvdma(pg):
    pre = ['s_mul_i32 s%d, s%d, 172032' % (sOff, sCh + (pg >> 1))]
    if pg & 1:
        pre.append('s_add_u32 s%d, s%d, 86016' % (sOff, sOff))
    return dma(vOffKV, sQKV, 's%d' % sOff, pg * PG, 'kv%d' % pg, pre)


def qdma(i):
    return dma(vOffQ, sQKV, 's%d' % sOff, (WQP + i) * PG, 'q%d' % i, ['s_mul_i32 s%d, s%d, 172032' % (sOff, sCh + i)])


vS, vQ2, vOnes = u[8], u[9], u[10]
vMean, vStd, vR, vRL = u[6], u[7], u[12], u[14]
e('v_mov_b32 v%d, 0' % vS)
e('v_mov_b32 v%d, 0' % vQ2)
e('v_mov_b32 v%d, 0x3f803f80' % vOnes)
e('v_mov_b32 v%d, 0x3f803f80' % (vOnes + 1))
SCR, KVS, XRP, WOP = 21, 25, 26, 0
e('''
s_lshl_b32 s3, s{w}, 8
s_add_u32 s3, s3, {b}
v_lshl_add_u32 v{a}, v{u3}, 2, s3
v_lshl_add_u32 v{c}, v{u4}, 4, s3
'''.format(w=sW, b=KVS * PG + 2048, a=t3, c=t4, u3=u[3], u4=u[4]))


def xdots(i):
    r = []
    for j in range(16):
        reg = vF + 16 * i + j
        r.append(I('v_dot2c_f32_bf16 v%d, v%d, v%d' % (vS, reg, vOnes)))
        r.append(I('v_dot2c_f32_bf16 v%d, v%d, v%d' % (vQ2, reg, reg)))
    return r


stamp('_addr')
SW1 = OPT.get('sw1', 0)
if SW1 == 2:
    p.add(sweep1())
if SW1 in (4, 5):
    p.add(xdma(1))
p.add(xdma(2))
if SW1 == 1:
    p.add(sweep1())
kv_next = 0
XW = OPT.get('xw', [[], [], [], [3], [2], [1, 3], [2]])
for i in range(7):
    e('@waitvm x%d' % i)
    stamp('_xl%d' % i)
    if i == 0:
        stamp('x0 landed')
    if i == 2:
        e('s_cmp_eq_u32 s%d, 0' % sZero)
        e('s_cbranch_scc1 L_nozero2')
        e('s_mov_b64 exec, 1')
        e('buffer_atomic_add v%d, off, %s, 0' % (vOne, S4(sDBG)), raw=True)
        e('s_mov_b64 exec, -1')
        e('L_nozero2:')
    for ks in range(4):
        e('ds_read_b128 %s, v%d offset:%d' % (V(vF + 16 * i + 4 * ks, 4), vAdX + ks, i * PG))
    dots = xdots(i - 1) if i else []
    d = [[], [], [], []]
    if i + 3 < 7:
        x_ = xdma(i + 3)
        d = [x_[:3], x_[3:4], x_[4:5], x_[5:6]]
    for q in XW[i]:
        if kv_next == 0 and SW1 == 3:
            d[q] = d[q] + sweep1()
        d[q] = d[q] + kvdma(kv_next)
        kv_next += 1
    for q in range(4):
        p.add(d[q] + dots[8 * q:8 * q + 8])
p.add(xdots(6))
p.add(kvdma(kv_next))
kv_next += 1
stamp('x read')

aK, aV, vRr = vX, vX + 16, vX + 32
aCK, aCV = 40, 56
vAdKw, vAdVw, vAdQw, vO4, vMA, vCx = vY + 2, vY + 3, vY + 12, vY + 8, vY + 4, vY + 16
e('''
s_lshl_b32 s3, s{w}, 11
v_add_u32 v{kw}, s3, v{k}
v_add_u32 v{vw}, s3, v{v}
v_add_u32 v{qw}, s{wk}, v{q}
'''.format(w=sW, kw=vAdKw, vw=vAdVw, qw=vAdQw, k=vAdK, v=vAdV, q=vAdQ, wk=sWK))
for n in range(4):
    e('v_mov_b32 v%d, 0x3f803f80' % (vO4 + n))


def mfma_ones(acc, b, first):
    return I('v_mfma_f32_32x32x16_bf16 %s, %s, %s, %s' % (A(acc, 16), V(vO4, 4), b, '0' if first else A(acc, 16)))


ws = WStream(look=OPT.get('a1l', 4), wper=OPT.get('a1w', 2))
pgap = {}
kb = OPT.get('kvb', (0, 2, 4, 7, 10, 12, 13))
KVB = dict(zip(kb, kb[1:] + (14,)))
for pg in range(14):
    pre = None
    if pg in KVB:
        pre = L('@waitvm ' + ' '.join('kv%d' % q for q in range(pg, KVB[pg])) + '\ns_barrier')
    if pg & 1:
        for (acc, ad) in ((aCK, vAdKw), (aCV, vAdVw)):
            off = (pg - 1) * PG
            glast = ws.step(ad, off, ad, off + 512, lambda a: mfma_ones(acc, a, pg == 1), pre)
            pre = None
    for ks2 in range(2):
        k = 2 * pg + ks2
        for (acc, ad) in ((aK, vAdK), (aV, vAdV)):
            off = pg * PG + ks2 * 2048
            g_ = ws.step(ad, off, ad, off + 512, lambda a: mfma(acc, V(vF + 4 * k, 4), a, '0' if k == 0 else None), pre)
            pre = None
    pgap[pg] = g_
KVP = OPT.get('kvp')
if KVP:
    for pg in range(kv_next, 14 - len(KVP)):
        p.add(kvdma(pg))
    for n, glw in enumerate(KVP):
        ws.fill(glw, kvdma(14 - len(KVP) + n))
else:
    for pg in range(kv_next, 14):
        glw = max(pgap[max(pg - OPT.get('kvl', 14), 0)], 2 * (pg - kv_next) + 1)
        ws.fill(glw, kvdma(pg))
st = halves_sum(vS, t0) + halves_sum(vQ2, t0) + ln_consts(vS, vQ2, vMean, vStd, vR)
st += L('''
v_mul_f32 v{c}, v{m}, v{r}
v_mul_f32 v{rl}, 0x{l:x}, v{r}
v_sub_f32 v{c}, 0, v{c}
'''.format(c=t0, m=vMean, r=vR, rl=vRL, l=LOG2E))
for n, x in enumerate(st):
    ws.fill(2 + n, x)
ws.fill(28, L('ds_write_b32 v{a}, v{r}\nds_write_b32 v{a}, v{c} offset:128'.format(a=t3, r=vR, c=t0)))
for n in range(8):
    ws.fill(30 + n, I('ds_read_b128 %s, v%d offset:%d' % (V(vRr + 4 * n, 4), t4, (n & 3) * 32 + (n >> 2) * 128)))
pre_e = mean_frag(vMean, vMA) + L('''
v_lshlrev_b32 v{t0}, 3, v{u3}
v_add_u32 v{t5}, {cx}, v{t0}
v_mov_b32 v{c}, 0x{l:x}
v_mov_b32 v{u5}, v{u3}
'''.format(t0=t0, u3=u[3], t5=t5, cx=KVS * PG + 3072, c=u[4], l=LOG2E, u5=u[5]))
for n, x in enumerate(pre_e):
    ws.fill(30 + n, x)
ws.fill(40, L('''
s_lshl_b32 s3, s{w}, 8
v_add_u32 v{t4}, s3, v{t5}
s_lshl4_add_u32 s3, s{m}, s{g}
s_lshl2_add_u32 s3, s3, s{w}
s_lshl_b32 s3, s3, 9
s_add_u32 s{o2}, s3, {base}
'''.format(w=sW, t4=t4, t5=t5, m=sM, g=sG, o2=sOff2, base=WS_KVP)))
ws.fill(44, L('''
s_lshl_b32 s3, s{m}, 6
s_add_u32 s3, s3, s{w}
s_lshl_b32 s3, s3, 7
s_add_u32 s{pl}, s3, {kv}
'''.format(m=sM, w=sW, pl=sPoll, kv=C_KV * 128)))
SW2 = OPT.get('sw2', 1)
if SW2 == 1:
    ws.fill(OPT.get('swp', max(glw + 2, 40)), sweep())
ws.fill(pgap[11] + 1, qdma(0))
ws.fill(pgap[12] + 1, qdma(1))
ws.fill(glast + 2, L('''
v_accvgpr_read_b32 v{a}, a{k}
v_accvgpr_read_b32 v{b}, a{v}
ds_write_b64 v{ad}, v[{a}:{b}]
'''.format(a=t0, b=t1, k=aCK, v=aCV, ad=t4)))
xch = L('@waitlg0\ns_barrier')
for n in range(4):
    xch.append(I('ds_read_b64 %s, v%d offset:%d' % (V(vCx + 2 * n, 2), t5, 256 * n)))
ws.fill(glast + 3, xch)
for nm, at in (('_a1', 0), ('_a8', 9), ('_a16', 19), ('_a24', 29), ('_a32', 39), ('_a40', 49), ('_a48', 59)):
    ws.fill(at, mkstamp(nm))
p.add(ws.build())
stamp('A1 mfma')


def phi(acc, dst, pre):
    r = []
    for j in range(0, 16, 4):
        g = []
        for jj in (j, j + 2):
            a = acc + jj
            tp = u[0] + (jj & 2)
            g.append(pre(jj, tp) + L('''
            v_min_f32 v{t}, 0, v{t}
            v_min_f32 v{t1}, 0, v{t1}
            v_exp_f32 v{t}, v{t}
            v_exp_f32 v{t1}, v{t1}
            v_max_f32 v{a}, 0x{e:x}, v{a}
            v_max_f32 v{a1}, 0x{e:x}, v{a1}
            '''.format(t=tp, t1=tp + 1, a=a, a1=a + 1, e=EPS6)) + [pk('add', a, a, tp), I('v_cvt_pk_bf16_f32 v%d, v%d, v%d' % (dst + jj // 2, a, a + 1))])
        r += zip_groups(g)
    return r


vPK, vVV, aKV = vCx, vY + 24, vX + 32
BC1 = 'op_sel_hi:[1,0]'
ea = [pk('add', vCx, vCx, vCx + 2), pk('add', vCx + 4, vCx + 4, vCx + 6), pk('add', t0, vCx, vCx + 4)]
ea += L('v_mov_b32 v%d, v%d' % (t2, t1))
gv = []
for j in range(0, 16, 2):
    tp = u[0] + (j & 2)
    gv.append([pk('mul', tp, vRr + 16 + j, t2, mod=BC1), pk('fma', aV + j, aV + j, vRr + j, tp),
               I('v_cvt_pk_bf16_f32 v%d, v%d, v%d' % (vVV + j // 2, aV + j, aV + j + 1)),
               I('v_cndmask_b32 v%d, v%d, v%d, s[%d:%d]' % (vVV + j // 2, vVV + j // 2, vOnes, sMask28, sMask28 + 1))])
for j in range(0, 8, 2):
    ea += zip_groups(gv[j:j + 2])
ea += phi(aK, vPK, lambda j, tp: [pk('mul', tp, vRr + 16 + j, t0, mod=BC1), pk('fma', aK + j, aK + j, vRr + j, tp),
                                  pk('mul', tp, aK + j, u[4], mod=BC1)])
p.add(spread(ea, [qdma(2), qdma(3), qdma(4)]))
p.add([mfma(aKV, V(vPK, 4), V(vVV, 4), '0'), mfma(aKV, V(vPK + 4, 4), V(vVV + 4, 4))])
e('''
s_lshl_b32 s3, s{w}, 12
s_add_u32 s3, s3, {scr}
v_add_u32 v{t0}, s3, v{l16}
s_add_u32 s3, s{wk}, {scr}
v_add_u32 v{t1}, s3, v{l16}
buffer_load_dword v{p}, off, {dbg}, 0 sc1
v_lshlrev_b32 v{t5}, 2, v{u3}
v_add_u32 v{t5}, {cx}, v{t5}
s_lshl_b32 s3, s{w}, 7
v_add_u32 v{t4}, s3, v{t5}
'''.format(w=sW, wk=sWK, scr=SCR * PG, t0=t0, t1=t1, l16=vL16, p=vP, dbg=S4(sDBG), t4=t4, t5=t5, u3=u[5], cx=KVS * PG + 2048))
for q in range(4):
    e('ds_write_b128 v%d, %s offset:%d' % (t0, V(aKV + 4 * q, 4), q * 1024))
e('@waitlg0')
e('s_barrier')
for j in range(4):
    e('ds_read_b128 %s, v%d offset:%d' % (V(vX + 4 * j, 4), t1, j * PG))
for (a, b) in ((0, 4), (2, 6), (8, 12), (10, 14), (0, 8), (2, 10)):
    p.add([pk('add', vX + a, vX + a, vX + b)])
e('v_cvt_pk_bf16_f32 v%d, v%d, v%d' % (vX, vX, vX + 1))
e('v_cvt_pk_bf16_f32 v%d, v%d, v%d' % (vX + 1, vX + 2, vX + 3))
e('buffer_store_dwordx2 %s, v%d, %s, s%d offen sc1' % (V(vX, 2), vL8, S4(sWS), sOff2), tag='kvp')
stamp('kv stored')
p.add(qdma(5) + qdma(6) + (sweep() if SW2 == 2 else []))
if OPT.get('swh') == 2:
    x_ = sweep()[:5]
    x_[4] = I(x_[4].text.replace('a250', 'a248') + ' offset:128')
    p.add(x_)

W1PG = {}
W2PG = {}


def wodma(n):
    c, uu = sCh + (n >> 1), n & 1
    r = L("""
    s_lshl_b32 s{t}, s{c}, 13
    s_add_u32 s{t}, s{t}, s{wk}
    s_add_u32 m0, s{t}, {lo}
    s_mul_i32 s{o}, s{c}, 57344
    """.format(t=sT[3], c=c, wk=sWK, lo=WOP * PG + uu * PG, o=sOff))
    if uu:
        r += L('s_add_u32 s%d, s%d, 28672' % (sOff, sOff))
    return r + dma(vOffWO, sWO, 's%d' % sOff, None, 'wo')


def xrdma(uu):
    return L('s_lshl1_add_u32 s{t}, s{wk}, 0\ns_add_u32 m0, s{t}, {lo}\ns_movk_i32 s{o}, {so}'.format(
        t=sT[3], wk=sWK, lo=XRP * PG + uu * 1024, o=sOff, so=uu * 14336)) + dma(vOffXR, sX, 's%d' % sOff, None, 'xr')


def gudma(half, k, page):
    (W2PG if half else W1PG)[k] = page
    return dma(vGUo + (k & 3) + 4 * half, sGU, 's%d' % sGUt[k >> 2], page * PG, 'gu%d_%d' % (half, k))


aQ, vCQ = vX + 16, vY + 24
ws = WStream(look=5, wper=2)
for i in range(7):
    pre = None
    if i == 0:
        pre = L('@waitvm q0 q1 q2 q3 q4\ns_barrier')
    if i == 5:
        pre = L('@waitvm q5 q6\ns_barrier')
    glast = ws.step(vAdQw, i * PG, vAdQw, i * PG + 256, lambda a: mfma_ones(aCK, a, i == 0), pre)
    for ks in range(4):
        k = 4 * i + ks
        off = i * PG + ks * 1024
        ws.step(vAdQ, off, vAdQ, off + 256, lambda a: mfma(aQ, a, V(vF + 4 * k, 4), '0' if k == 0 else None))
ws.fill(OPT.get('kvs', 17), L('@waitvm kvp') + poll_check(16, '0', sDBG) + signal(sPoll))
for n in range(1, 4):
    ws.fill(2 + n, I('v_mov_b32 v%d, 0' % (vCQ + n)))
NW = OPT.get('nw', 8)
for n in range(NW):
    ws.fill(OPT.get('kvs', 17) + 1 + 2 * n, wodma(n))
for nm in OPT['st'] or ():
    if nm.startswith('_q'):
        ws.fill(int(nm[2:]), mkstamp(nm))
ws.fill(glast + 2, L('v_accvgpr_read_b32 v{a}, a{k}\nds_write_b32 v{ad}, v{a}'.format(a=t0, k=aCK, ad=t4)))
xch = L('@waitlg0\ns_barrier')
for n in range(4):
    xch.append(I('ds_read_b32 v%d, v%d offset:%d' % (vY + 28 + n, t5, 128 * n)))
ws.fill(glast + 3, xch)
p.add(ws.build())
stamp('A2 mfma')
e('''
v_add_f32 v{a}, v{y0}, v{y1}
v_add_f32 v{b}, v{y2}, v{y3}
v_add_f32 v{a}, v{a}, v{b}
'''.format(a=t0, b=t1, y0=vY + 28, y1=vY + 29, y2=vY + 30, y3=vY + 31))
p.add(hilo(t0, vCQ, t1))
p.add([mfma(aQ, V(vCQ, 4), V(vMA, 4))])
for n in range(8):
    e('v_add_u32 v%d, %d, v%d' % (vGUo + n, (n & 3) * 57344 + (n >> 2) * 128, vOffGU))
for i in range(7):
    e('s_mul_i32 s%d, s%d, 229376' % (sGUt[i], sCh + i))
vPQ = vY
ph = phi(aQ, vPQ, lambda j, tp: [pk('mul', tp, aQ + j, vRL, mod=BC1), pk('mul', aQ + j, aQ + j, vR, mod=BC1)])
free = list(range(28, 40)) + list(range(14, 21))
N0 = OPT.get('n0', 0)
WL = OPT.get('wl', 0)
wrest = [wodma(n) for n in range(NW, 14)] + [xrdma(0), xrdma(1)]
p.add(spread(ph[:56], ([] if WL else wrest) + [gudma(0, k, free[k]) for k in range(N0)]) if (N0 or not WL) else ph[:OPT.get('php', 8)])
stamp('_ph')
p.add(poll_issue(sPoll, OPT.get('kva', 0)))
p.add(ph[56:] if (N0 or not WL) else ph[OPT.get('php', 8):])
e('v_cndmask_b32 v%d, v%d, 0, s[%d:%d]' % (vPQ + 6, vPQ + 6, sMaskHi, sMaskHi + 1))
e('v_cndmask_b32 v%d, v%d, 0, s[%d:%d]' % (vPQ + 7, vPQ + 7, sMaskHi, sMaskHi + 1))
e("""
s_lshl_b32 s3, s{m}, 15
s_lshl_b32 s4, s{w}, 9
s_add_u32 s3, s3, s4
s_add_u32 s{o2}, s3, {base}
s_lshl_b32 s5, s{gl}, 13
s_add_u32 s{o}, s{o2}, s5
v_mov_b32 v{e0}, 0x3f80
v_mov_b32 v{e1}, 0x3f800000
s_add_u32 s4, s4, {kvs}
v_add_u32 v{t0}, s4, v{l8}
v_add_u32 v{t1}, {kvs}, v{l8}
s_lshl2_add_u32 s3, s{g}, s{w}
s_lshl4_add_u32 s3, s3, s{m}
s_lshl_b32 s3, s3, 11
s_add_u32 s{st}, s3, {ob}
s_lshl1_add_u32 s3, s{w}, s{half}
s_lshl_b32 s3, s3, 7
s_add_u32 s{sig}, s3, s{cnt}
""".format(m=sM, w=sW, o=sOff, o2=sOff2, base=WS_KVP, gl=sGl, e0=u[0], e1=u[1], kvs=KVS * PG, t0=t0, t1=t1, l8=vL8,
           g=sG, st=sSt, ob=WS_O, half=sHalf, sig=sSig, cnt=sCnt))
for j in range(4):
    e('v_mov_b32 v%d, 0' % (vX + 32 + j))
stamp('q done')
p.add(poll_check(16, sPoll))
stamp('kv flag')

for gg in range(16):
    if gg and gg % 2 == 0:
        e('s_add_u32 s5, s5, 4096')
        e('s_and_b32 s5, s5, 0x7fff')
        e('s_add_u32 s%d, s%d, s5' % (sOff, sOff2))
    e('buffer_load_dwordx2 %s, v%d, %s, s%d offen%s sc1' % (V(vX + 2 * gg, 2), vL8, S4(sWS), sOff, ' offset:2048' if gg & 1 else ''))
NA = OPT.get('na', 6)
if WL:
    for x in wrest[::-1]:
        p.add(x)
for k in range(N0, NA):
    p.add(gudma(0, k, free[k]))
for gg in range(16):
    for d in range(2):
        e('v_dot2c_f32_bf16 v%d, v%d, v%d' % (vX + 32 + 2 * d, vX + 2 * gg + d, u[0]))
        e('v_dot2c_f32_bf16 v%d, v%d, v%d' % (vX + 33 + 2 * d, vX + 2 * gg + d, u[1]))
stamp('kv loaded')
e('v_cvt_pk_bf16_f32 v%d, v%d, v%d' % (vX, vX + 32, vX + 33))
e('v_cvt_pk_bf16_f32 v%d, v%d, v%d' % (vX + 1, vX + 34, vX + 35))
e('ds_write_b64 v%d, %s' % (t0, V(vX, 2)))
e('@waitlg0')
e('s_barrier')
vKVF = vY + 8
for q in range(4):
    e('ds_read_b64 %s, v%d offset:%d' % (V(vKVF + 2 * q, 2), t1, q * 512))
aO = vX + 16
p.add([mfma(aO, V(vKVF, 4), V(vPQ, 4), '0'), mfma(aO, V(vKVF + 4, 4), V(vPQ + 4, 4))])
e('''
v_mov_b32 v{a}, v{d}
v_mov_b32 v{b}, v{d}
v_permlane32_swap_b32 v{a}, v{b}
v_add_f32 v{b}, 0x{eps:x}, v{b}
v_rcp_f32 v{r}, v{b}
v_cndmask_b32 v{r2}, v{r}, 0, s[{mh}:{mh1}]
'''.format(a=t2, b=t3, d=aO + 12, eps=EPS6, r=u[0], r2=u[2], mh=sMaskHi, mh1=sMaskHi + 1))
for hf_ in range(2):
    for j in range(8 * hf_, 8 * hf_ + 8, 2):
        p.add([pk('mul', aO + j, aO + j, u[2] if j >= 12 else u[0], mod=BC1)])
    for j in range(4 * hf_, 4 * hf_ + 4):
        e('v_cvt_pk_bf16_f32 v%d, v%d, v%d' % (vX + j, aO + 2 * j, aO + 2 * j + 1))
    e('buffer_store_dwordx4 %s, v%d, %s, s%d offen%s sc1' % (V(vX + 4 * hf_, 4), vL16, S4(sWS), sSt, ' offset:1024' if hf_ else ''))
e('s_cmp_ge_u32 s%d, 7' % sCs)
e('s_cbranch_scc1 L_idle')
stamp('_os')
e('''
s_lshl1_add_u32 s3, s{tt}, s{kh}
s_lshl_b32 s3, s3, 7
s_add_u32 s{pl}, s3, s{cnt}
s_lshl2_add_u32 s3, s{g}, s{tt}
s_lshl1_add_u32 s4, s3, s{kh}
s_lshl_b32 s4, s4, 14
s_add_u32 s{o2}, s4, {ob}
s_lshl1_add_u32 s4, s{cs}, s{kh}
s_lshl4_add_u32 s3, s3, s4
s_lshl_b32 s4, s3, 11
s_add_u32 s{st}, s4, {hb}
s_lshl_b32 s4, s3, 8
s_add_u32 s{st2}, s4, {sb}
s_lshl_b32 s3, s{w}, 11
s_add_u32 s3, s3, {xr}
v_and_b32 v{a}, 31, v0
v_lshrrev_b32 v{b}, 5, v0
v_lshlrev_b32 v{b}, 3, v{b}
v_lshl_add_u32 v{b}, v{a}, 6, v{b}
v_add_u32 v{b}, s3, v{b}
v_lshlrev_b32 v{l8}, 3, v{a}
s_lshl_b32 s3, s{w}, 12
s_add_u32 s3, s3, {scr}
v_add_u32 v{t0}, s3, v{l16}
s_xor_b32 s4, s{w}, 2
s_lshl_b32 s4, s4, 12
s_add_u32 s4, s4, {scr}
v_add_u32 v{t1}, s4, v{l16}
'''.format(tt=sTT, kh=sKh, pl=sPoll, cnt=sCnt, g=sG, o2=sOff2, ob=WS_O, cs=sCs, st=sT[8], hb=WS_H, st2=sT[9], sb=WS_ST,
           w=sW, xr=XRP * PG, a=t2, b=t3, l8=vL8, scr=SCR * PG, t0=t0, t1=t1, l16=vL16))
e('@waitvm0')
p.add(signal(sSig))
stamp('o stored')
if OPT.get('ack'):
    e('@waitvm0')
    stamp('_ack')
if DIAG:
    e('s_mov_b32 s%d, %d' % (sIter, OPT['spin'] + 1))
if STOP <= 1:
    e('s_branch L_fin')

if WL:
    e('s_barrier')
NB = OPT.get('nb', 10)
for k in range(NA, NB):
    p.add(gudma(0, k, free[k]))
PP = OPT.get('pp', 0)
if OPT.setdefault('od', 5):
    e('s_sleep %d' % OPT['od'])
p.add(poll_pipe_issue(sPoll) if PP else poll_issue(sPoll))
stamp('_op')
for bq in range(4):
    e('ds_read_b64 %s, v%d offset:%d' % (V(vY + 2 * bq, 2), t3, 16 * bq))
for j in range(8):
    e('v_lshlrev_b32 v%d, 16, v%d' % (vX + 2 * j, vY + j))
    e('v_and_b32 v%d, 0xffff0000, v%d' % (vX + 1 + 2 * j, vY + j))
e('s_lshl_b32 s3, s%d, 7' % sTT)
e('s_add_u32 s3, s3, s%d' % sCnt)
e('s_add_u32 s%d, s3, %d' % (sSig, C_H * 128))
e('v_mov_b32 v%d, 0' % vS)
e('v_mov_b32 v%d, 0' % vQ2)
sOr = sT[4]
e('''
s_mul_i32 s3, s{kh}, 26624
v_subrev_u32 v{d0}, s3, v{w0}
v_subrev_u32 v{d1}, s3, v{w1}
s_mul_i32 s3, s{cs}, 3584
v_add_u32 v{w0}, s3, v{w0}
v_add_u32 v{w1}, s3, v{w1}
v_add_u32 v{p0}, s3, v{p0}
v_add_u32 v{p1}, s3, v{p1}
s_lshl_b32 s{r}, s{cs}, 11
s_sub_u32 s{r}, s{r}, 2048
s_mov_b32 s6, -25088
'''.format(kh=sKh, d0=vAdD, d1=vAdD + 1, w0=vAdWO, w1=vAdWO + 1, p0=vAdWOp, p1=vAdWOp + 1, cs=sCs, r=sOr))
p.add(poll_pipe_check(8, sPoll) if PP else poll_check(8, sPoll))
stamp('o flag')
if DIAG:
    e('s_sub_u32 s101, %d, s%d' % (OPT['spin'] + 1, sIter))


def oload(j):
    r = []
    if j % 2 == 0:
        r += L('s_add_u32 s{t}, s{t}, 2048\ns_and_b32 s{t}, s{t}, 0x3fff\ns_add_u32 s{o}, s{t}, s{b}'.format(t=sOr, o=sOff, b=sOff2))
    r.append(I('buffer_load_dwordx4 %s, v%d, %s, s%d offen%s sc1' % (A(aF + 4 * j, 4), vL16, S4(sWS), sOff, ' offset:1024' if j % 2 else '')))
    return r


for j in range(8):
    p.add(oload(j))
stamp('_ol')
ws = WStream()
TL = OPT.get('tl', 2)
bo = [(j, ft) for j in range(16 - TL) for ft in range(2)] + [(j, 1) for j in range(16 - TL, 16)] + [(j, 0) for j in range(16 - TL, 16)]
for j, ft in bo:
    hh, s = j >> 1, j & 1
    if 1:
        pre = []
        if s == 0 and hh and ft == (1 if j >= 16 - TL else 0):
            pre += L('s_cmp_eq_u32 s{c}, {n}\ns_cselect_b32 s{d}, s{wrap}, 3584'.format(c=sCs, n=8 - hh, d=sT[2], wrap=sT[3]))
        if hh:
            r_ = (vAdWO if s == 0 else vAdWOp) + ft
            pre += L('v_add_u32 v%d, s%d, v%d' % (r_, sT[2], r_))
        a1_ = (vAdWOp if s == 1 else vAdWO) + ft
        ws.step(vAdWO + ft, WOP * PG + 16 * s * 128, a1_, WOP * PG + (16 * s + 8) * 128,
                lambda a: mfma(vX + 16 * ft, a, A(aF + 4 * j, 4), '0' if (j == 0 and ft == 1) else None), pre)
assert TL in (0, 2)
for j in range(8, 16):
    ws.fill(j - 8, oload(j))
ws.fill(0, mkstamp('_b0'))
ws.fill(15, mkstamp('_b16'))
ws.fill(8, sweep3())
for n, k in enumerate(range(NB, 19)):
    ws.fill(min(31, 9 + (22 * n) // (19 - NB)), gudma(0, k, free[k]))
p.add(ws.build())
stamp('_bm')
for q in range(4):
    e('ds_write_b128 v%d, %s offset:%d' % (t0, V(vX + 16 + 4 * q, 4), q * 1024))
e('@waitlg0')
e('s_barrier')
for q in range(4):
    e('ds_read_b128 %s, v%d offset:%d' % (V(vX + 16 + 4 * q, 4), t1, q * 1024))
for hf_ in range(2):
    for j in range(8 * hf_, 8 * hf_ + 8, 2):
        p.add([pk('add', vX + j, vX + j, vX + 16 + j)])
    for j in range(4 * hf_, 4 * hf_ + 4):
        e('v_cvt_pk_bf16_f32 v%d, v%d, v%d' % (vY + j, vX + 2 * j, vX + 2 * j + 1))
    e('buffer_store_dwordx4 %s, v%d, %s, s%d offen%s sc1' % (V(vY + 4 * hf_, 4), vL16, S4(sWS), sT[8], ' offset:1024' if hf_ else ''))
for j in range(8):
    e('v_dot2c_f32_bf16 v%d, v%d, v%d' % (vS, vY + j, vOnes))
    e('v_dot2c_f32_bf16 v%d, v%d, v%d' % (vQ2, vY + j, vY + j))
p.add(zip_groups([halves_sum(vS, t2), halves_sum(vQ2, t3)]))
e('buffer_store_dwordx2 %s, v%d, %s, s%d offen sc1' % (V(vS, 2), vL8, S4(sWS), sT[9]))
stamp('_hs')
for j in range(8):
    e('v_accvgpr_write_b32 a%d, v%d' % (aH + j, vY + j))
e('''
v_bfe_u32 v{r}, v0, 2, 2
v_bfe_u32 v{iu}, v0, 4, 1
v_lshrrev_b32 v{hf}, 5, v0
v_lshl_add_u32 v{a}, v{hf}, 2, v{r}
v_lshlrev_b32 v{a}, 7, v{a}
v_lshl_add_u32 v{a}, v{iu}, 11, v{a}
v_and_b32 v{b}, 1, v0
v_lshl_add_u32 v{a}, v{b}, 3, v{a}
v_lshrrev_b32 v{b}, 1, v{r}
v_lshl_add_u32 v{b}, v{iu}, 1, v{b}
v_lshlrev_b32 v{b}, 1, v{b}
v_bfe_u32 v{c}, v0, 1, 1
v_xor_b32 v{b}, v{b}, v{c}
'''.format(r=u[0], iu=u[1], hf=u[2], a=t2, b=t3, c=t4))
for t in range(4):
    e('v_xor_b32 v%d, %d, v%d' % (t4, 2 * t, t3))
    e('v_lshl_add_u32 v%d, v%d, 4, v%d' % (vAdC + t, t4, t2))
sHb, sHo, sStL, sHHst, sCSp = sT[5], sT[6], sT[7], sT[10], sT[4]
e('''
s_movk_i32 s3, 1792
v_mad_u32_u24 v{a}, v{hf}, s3, v{l8}
v_lshlrev_b32 v{l8}, 1, v{l8}
s_lshl2_add_u32 s3, s{g}, s{w}
s_lshl_b32 s4, s3, 12
s_add_u32 s{stl}, s4, {sb}
s_lshl_b32 s4, s3, 15
s_add_u32 s{hb}, s4, {hbase}
s_mul_i32 s3, s3, 14
s_add_u32 s3, s3, s{am}
s_lshl_b32 s3, s3, 13
s_add_u32 s{hst}, s3, {hh}
s_lshl_b32 s3, s{w}, 7
s_add_u32 s3, s3, s{cnt}
s_add_u32 s{pl}, s3, {ch}
s_lshl_b32 s3, s{am}, 13
s_add_u32 s{csp}, s3, {cc}
'''.format(kh=sKh, d0=vAdD, d1=vAdD + 1, w0=vAdWO, w1=vAdWO + 1, a=t4, hf=u[2], l8=vL8, g=sG, w=sW, stl=sStL, sb=WS_ST,
           hb=sHb, hbase=WS_H, am=sA, hst=sHHst, hh=WS_HH, cnt=sCnt, pl=sPoll, ch=C_H * 128, csp=sCSp, cc=C_CS * 128))
e('@waitvm0')
H1S = OPT.get('h1s', 1)
if H1S:
    e('s_barrier')
    e('s_cmp_ge_u32 s%d, 2' % sW)
    e('s_cbranch_scc1 L_nohs')
    for x in signal(sSig):
        x.raw = True
        p.add([x])
    e('L_nohs:')
else:
    p.add(signal(sSig))
stamp('h stored')
if STOP <= 2:
    e('s_branch L_fin')

NC = OPT.get('nc', 2)
N1 = OPT.get('n1', 9)
w1late = [gudma(0, k, n) for n, k in enumerate(range(19, 28))]
for x in w1late[:N1]:
    p.add(x)
for k in range(NC):
    p.add(gudma(1, k, 9 + k))
if OPT.get('hd'):
    e('s_sleep %d' % OPT['hd'])
p.add(poll_pipe_issue(sPoll) if PP else poll_issue(sPoll))
stamp('_hp')
for n in range(8):
    e('v_add_u32 v%d, %d, v%d' % (vWDo + n, n * 14336, vOffWD))
e('v_add_u32 v%d, 4096, v%d' % (vL16b, vL16))
e('''
s_lshl2_add_u32 s3, s{g}, s{tt}
s_lshl1_add_u32 s3, s3, s{kh}
s_mul_i32 s3, s3, 57344
s_add_u32 s4, s3, {base}
s_lshl1_add_u32 s3, s{w}, s{half}
s_lshl_b32 s3, s3, 9
s_add_u32 s3, s3, s{cnt}
s_add_u32 s{sig}, s3, {chh}
s_lshl1_add_u32 s3, s{tt}, s{kh}
s_lshl_b32 s3, s3, 9
s_add_u32 s3, s3, s{cnt}
s_add_u32 s{st}, s3, {chh}
'''.format(g=sG, tt=sTT, kh=sKh, base=WS_HH, w=sW, half=sHalf, cnt=sCnt, sig=sSig, chh=C_HH * 128, st=sSt))
for i in range(7):
    e('s_mul_i32 s%d, s%d, 114688' % (sWDt[i], sCh + i))
    e('s_lshl_b32 s3, s%d, 13' % (sCh + i))
    e('s_add_u32 s%d, s3, s4' % sHHt[i])
e('v_accvgpr_write_b32 a%d, 0' % (aCS + 16))
e('v_accvgpr_write_b32 a%d, 0' % (aCS + 17))


def hload(k):
    r = []
    if k % 4 == 0:
        r += L('s_lshl_b32 s%d, s%d, 12\ns_add_u32 s%d, s%d, s%d' % (sHo, sCh + k // 4, sHo, sHo, sHb))
    r.append(I('buffer_load_dwordx4 %s, v%d, %s, s%d offen%s sc1' % (A(aF + 4 * k, 4), vL16, S4(sWS), sHo, ' offset:%d' % (1024 * (k % 4)) if k % 4 else '')))
    return r


h0 = hload(0)
p.add(h0[:-1])
p.add(poll_pipe_check(14, sPoll) if PP else poll_check(7 if H1S else 14, sPoll))
stamp('h flag')
HL = OPT.get('hl', 8)
p.add(h0[-1:])
for k in range(1, HL):
    p.add(hload(k))


class Win:
    def __init__(self, regs):
        self.cur = {r: 0 for r in regs}

    def fix(self, reg, off):
        base = (off // 61440) * 61440
        pre = []
        if self.cur[reg] != base:
            d = base - self.cur[reg]
            pre.append(I('v_add_u32 v%d, %d, v%d' % (reg, d, reg)) if d > 0 else I('v_subrev_u32 v%d, %d, v%d' % (reg, -d, reg)))
            self.cur[reg] = base
        return pre, off - base


winC = Win([vAdC + t for t in range(4)])
winD = Win([vAdD, vAdD + 1])
cA, cS = vCc, vCc + 2
acc_of = {0: vX, 1: vX + 16, 2: vY, 3: vY + 16, 4: 200, 5: 216, 6: vX, 7: vX + 16}


def hhstore(tile):
    d = u[8] + (tile & 1) * 4
    return [I('buffer_store_dwordx4 %s, v%d, %s, s%d offen%s sc1' % (V(d, 4), vL16b if tile >= 4 else vL16, S4(sWS), sHHst,
                                                                     ' offset:%d' % (1024 * (tile & 3)) if tile & 3 else ''), tag='hh%d' % tile)]


def eslots(tiles):
    slots = {}

    def put(sl, x):
        slots.setdefault(sl, []).append(x)
    n = 0
    for tile in tiles:
        acc = acc_of[tile]
        for el in range(8):
            tp = u[n % 6]
            put(2 * n, I('v_mul_f32 v%d, v%d, v%d' % (tp, cA, acc + el)))
            put(2 * n + 1, I('v_exp_f32 v%d, v%d' % (tp, tp)))
            put(2 * n + 2, I('v_fma_f32 v%d, v%d, v%d, v%d' % (tp, tp, cS, cS)))
            put(2 * n + 4, I('v_rcp_f32 v%d, v%d' % (tp, tp)))
            put(2 * n + 5, I('v_mul_f32 v%d, v%d, v%d' % (tp, tp, acc + 8 + el)))
            if el & 1:
                put(2 * n + 7, I('v_cvt_pk_bf16_f32 v%d, v%d, v%d' % (u[8] + (tile & 1) * 4 + el // 2, u[(n - 1) % 6], tp)))
            if el == 7:
                put(2 * n + 8, hhstore(tile))
            n += 1
    out = []
    for k in range(max(slots) + 1):
        sl = slots.get(k, [])
        sl.sort(key=lambda x: 0 if (not isinstance(x, list) and x.op in ('v_exp_f32', 'v_rcp_f32')) else 1)
        out.append(sl)
    return out


def efast(tile, tb=u[0]):
    acc = acc_of[tile]
    g = []
    for j in range(0, 8, 2):
        tp = tb + j
        g.append([pk('mul', tp, acc + j, cA, mod=BC1)] + L('v_exp_f32 v{t}, v{t}\nv_exp_f32 v{t1}, v{t1}'.format(t=tp, t1=tp + 1)) +
                 [pk('fma', tp, tp, cS, cS, mod='op_sel_hi:[1,0,0]')] + L('v_rcp_f32 v{t}, v{t}\nv_rcp_f32 v{t1}, v{t1}'.format(t=tp, t1=tp + 1)) +
                 [pk('mul', tp, tp, acc + 8 + j), I('v_cvt_pk_bf16_f32 v%d, v%d, v%d' % (u[8] + (tile & 1) * 4 + j // 2, tp, tp + 1))])
    return zip_groups(g)


def hhsig(stage):
    return L('@waitvm hh%d hh%d' % (2 * stage, 2 * stage + 1)) + signal(sSig, stage * 128)


D_ORDER = [(j, 2 * st_ + t) for st_ in range(4) for j in range(7) for t in range(2)] if OPT.get('jm', 1) else [(j, t) for t in range(8) for j in range(7)]
WDPG = {}
wd_next = [0]


def wddma(page):
    n = wd_next[0]
    wd_next[0] += 1
    j, t = D_ORDER[n]
    WDPG[n] = page
    return dma(vWDo + t, sWD, 's%d' % sWDt[j], page * PG, 'wd%d' % n)


def hhreg(n):
    return A(aR + 4 * n, 4) if n < 21 else (V(vHH + 4 * (n - 21), 4) if n < 28 else A(aF + 4 * (n - 28), 4))


def hhpoll(stage):
    return L('s_add_u32 s%d, s%d, %d' % (sPoll, sSt, stage * 128)) + poll_issue(sPoll, stage in OPT.get('hha', (0, 1, 2, 3)))


def hhload(n):
    j, t = D_ORDER[n]
    return [I('buffer_load_dwordx4 %s, v%d, %s, s%d offen%s sc1' % (hhreg(n), vL16b if t >= 4 else vL16, S4(sWS), sHHt[j],
                                                                     ' offset:%d' % (1024 * (t & 3)) if t & 3 else ''))]


ws = WStream()
BSTEP = OPT.get('bstep', 4)
DL = OPT.get('dl', 12)
freed = [(0, pg) for pg in list(range(9 + NC, 14)) + list(range(21, 28))]
carry = []
XG = OPT.get('xg', 8)
order = [(0, k) for k in range(28)] + [(1, k) for k in range(28)]
for k in range(28 + DL):
    if k < 28:
        order.append((2, k))
    if k >= DL:
        order.append((3, k - DL))
PEND = {}
for ps, k in order:
    tl = (2 * ps, 2 * ps + 1)
    if (ps, k) == (2, 0):
        todo = list(range(NC, 28))
        dslot = 2 * (28 - HL) - 1
        for gfree, pg in freed:
            dslot = max(dslot + 2, gfree + 1)
            ws.fill(dslot, gudma(1, todo.pop(0), pg) if todo else wddma(pg))
        DSLOT1 = dslot
    for t in tl:
        pre = []
        if ps == 0 and t == 0 and k == 0:
            pre += L('@waitvm ' + ' '.join('gu0_%d' % j for j in range(19 + N1)) + '\ns_barrier')
        if ps == 0 and t == 0 and k == 19 + N1:
            pre += L('@waitvm ' + ' '.join('gu0_%d' % j for j in range(19 + N1, 28)) + '\ns_barrier')
        if ps == 2 and t == tl[0] and k in (0, 10, 19):
            hi = {0: 10, 10: 19, 19: 28}[k]
            pre += L('@waitvm ' + ' '.join('gu1_%d' % j for j in range(k, hi)) + '\ns_barrier')
        pr, off = winC.fix(vAdC + (t & 3), (W1PG if ps < 2 else W2PG)[k] * PG)
        g_ = ws.step(vAdC + (t & 3), off, vAdC + (t & 3), off + 1024,
                     lambda a: mfma(acc_of[t], a, A(aF + 4 * k, 4), '0' if k == 0 else None), pre + pr)
    if ps == 0 and k + HL < 28:
        ws.fill(2 * k, hload(k + HL))
    if ps & 1 and k % BSTEP == BSTEP - 1:
        ws.fill(g_, L('s_barrier'))
        (freed if ps == 1 else carry).extend((g_, (W1PG if ps == 1 else W2PG)[kk]) for kk in range(k - BSTEP + 1, k + 1))
    if ps == 1 and k == XG - 1:
        for t in (0, 1):
            X0END = ws.extra(mfma(acc_of[t], A(aCS + 2 * t, 4), V(vMF, 4)))
    if k == 27:
        if ps:
            for t in tl:
                g_ = ws.extra(mfma(acc_of[t], A(aCS + 2 * t, 4), V(vMF, 4)))
        PEND[ps] = g_
P1END, P2END, P3END, P4END = PEND = [PEND[n] for n in range(4)]
for n, x in enumerate(w1late[N1:]):
    ws.fill(1 + 2 * n, x)
for i in range(7):
    ws.fill(1 + 2 * (i + 9 - N1), [I('buffer_load_dwordx2 %s, v%d, %s, s%d offen offset:%d sc1' % (V(vSt + 2 * i, 2), t4, S4(sWS), sStL, 256 * i))])
g1 = X0END - 16
ws.fill(g1 - OPT.get('csd', 24), poll_issue(sCSp, OPT.get('csa', 1)))
cs = poll_check(4, sCSp) + L('s_lshl_b32 s3, s%d, 11\ns_add_u32 s3, s3, %d' % (sA, WS_CS))
for n in range(4):
    cs.append(I('buffer_load_dwordx4 %s, v%d, %s, s3 offen offset:%d sc1' % (A(aCS + 4 * n, 4), vL8, S4(sWS), 512 * n)))
ws.fill(g1, cs)
st = []
for (a, b) in ((0, 2), (4, 6), (8, 10), (0, 4), (8, 12), (0, 8)):
    st += L('v_add_f32 v{a}, v{a}, v{b}\nv_add_f32 v{a1}, v{a1}, v{b1}'.format(a=vSt + a, b=vSt + b, a1=vSt + a + 1, b1=vSt + b + 1))
st += halves_sum(vSt, t2) + halves_sum(vSt + 1, t2) + ln_consts(vSt, vSt + 1, vMean, cS, vR)
st += L('v_mul_f32 v%d, 0x%x, v%d' % (cA, NEGL, vR)) + mean_frag(vMean, vMF)
for n, x in enumerate(st):
    ws.fill(X0END - 24 + n // 2, x)
assert len(st) // 2 < 22
SIGD = OPT.get('sigd', 20)
sig_at = []
spill = []
for stg, e0 in enumerate((X0END + 1, P2END + 1, P3END + 1)):
    es = eslots((2 * stg, 2 * stg + 1))
    for n, sl in enumerate(es):
        for x in sl:
            if e0 + n <= P4END:
                ws.fill(e0 + n, x)
            else:
                spill += x if isinstance(x, list) else [x]
    if stg == 0:
        assert e0 + 34 <= P2END + 1, 'temporaries of consecutive epilogues overlap'
    sig_at.append(e0 + len(es) - 1 + SIGD)
for stg in range(2):
    ws.fill(sig_at[stg], hhsig(stg))
late2 = sig_at[2] - 4 > P4END
if not late2:
    ws.fill(min(sig_at[2], P4END), hhsig(2))
PD = OPT.get('pd', 22)
CD = OPT.get('cd', 24)
busy = set()
for stg in range(2):
    ws.fill(sig_at[stg] + PD, hhpoll(stg))
    hchk = sig_at[stg] + PD + CD
    ws.fill(hchk, poll_check(7, sPoll))
    g_ = hchk - 1
    for n in range(14 * stg, 14 * stg + 14):
        g_ += 2
        if g_ <= P4END:
            ws.fill(g_, hhload(n))
            busy.add(g_)
            HHN = n + 1
    if stg == 0:
        H0 = hchk
    else:
        H1 = hchk
g_ = DSLOT1
while carry:
    g_ = max(g_ + 2, carry[0][0] + 1)
    while g_ in busy or g_ - 1 in busy or g_ + 1 in busy:
        g_ += 1
    if g_ > P4END:
        break
    ws.fill(g_, wddma(carry.pop(0)[1]))
D0 = vX + 32
dinit = []
for j in range(8):
    dinit += L('v_accvgpr_read_b32 v{t}, a{h}\nv_lshlrev_b32 v{a}, 16, v{t}\nv_and_b32 v{b}, 0xffff0000, v{t}'.format(
        t=t2, h=aH + j, a=D0 + 2 * j, b=D0 + 1 + 2 * j))
for n, x in enumerate(dinit):
    ws.fill(2 + n, x)
for nm in OPT['st'] or ():
    if nm.startswith('_g'):
        ws.fill(int(nm[2:]), mkstamp(nm))
for nm, at in (('_m0', 0), ('P1', P1END), ('P2', P2END), ('P3', P3END), ('_h0', H0 - 1), ('_h1', H0 + 1), ('_h2', H1 - 1), ('_h3', H1 + 1)):
    ws.fill(at, mkstamp(nm))
p.add(ws.build())
stamp('P4')
p.add(spill)
stamp('_sp')
WPRE = wd_next[0]
rest = [hhload(n) for n in range(HHN, 28)] + [wddma(pg) for _, pg in carry]
carry = []
NE = min(OPT.get('ne', 0), len(rest))
ef = zip_groups([efast(6, vSt + 8), efast(7, vSt)])
p.add((spread(ef[:40], rest[:NE]) if NE else ef[:40]) + ef[40:56])
rest = rest[NE:]
if late2 and not OPT.get('s2l', 1):
    p.add(hhsig(2))
p.add(ef[56:] + hhstore(6) + hhstore(7))
stamp('_st7')
if late2 and OPT.get('s2l', 1):
    p.add(hhsig(2))
NP = OPT.get('np', 3)
for x in rest[:NP]:
    p.add(x)
rest = rest[NP:]
stamp('_e7')
if STOP <= 3:
    p.add(hhsig(3))
    e('s_branch L_fin')

ws = WStream()
res0 = wd_next[0]
assert wd_next[0] == 40
refill = []
for n in range(16):
    refill.append(wddma(WDPG[n]))
wmid = (WPRE + 40) // 2
wpts = {0: WPRE, WPRE: wmid, wmid: 40, 40: 48, 48: 56}
TD = OPT.get('td', 4)
for n, ft in [(n, ft) for n in range(56 - TD) for ft in range(2)] + [(n, 1) for n in range(56 - TD, 56)] + [(n, 0) for n in range(56 - TD, 56)]:
    if 1:
        pre = []
        if ft == 0 and n in wpts:
            pre += L('@waitvm ' + ' '.join('wd%d' % q for q in range(n, wpts[n])) + '\ns_barrier')
        pr, off = winD.fix(vAdD + ft, WDPG[n] * PG)
        ws.step(vAdD + ft, off, vAdD + ft, off + 1024,
                lambda a: mfma(D0 + 16 * ft, a, hhreg(n), '0' if (n == 0 and ft == 1) else None), pre + pr)
ws.fill(15, L('s_barrier'))
ws.fill(31, L('s_barrier'))
D3 = OPT.get('d3', 8)
seq = [(x, 0) for x in rest]
pos = -1.0
DSTEP = OPT.get('dstep', 1.4)
while seq and pos + DSTEP < D3:
    pos += DSTEP
    ws.fill(int(pos), seq.pop(0)[0])
s3_ = hhsig(3)
P2A = OPT.get('p2a', 0)
ws.fill(D3, s3_[:1] + ([] if P2A else hhpoll(2)) + s3_[1:] + mkstamp('hh stored'))
if P2A:
    ws.fill(P2A, hhpoll(2))
pos = D3
seq += [(x, 16) for x in refill[:8]]
seq += [(poll_check(7, sPoll) + hhload(28), OPT.get('d2', 28))] + [(hhload(n), 0) for n in range(29, 38)]
seq += [(hhpoll(3), OPT.get('d4', 40))] + [(hhload(n), 0) for n in range(38, 42)]
seq += [(x, 32) for x in refill[8:]]
seq += [(poll_check(7, sPoll) + hhload(42), OPT.get('d5', 56))] + [(hhload(n), 0) for n in range(43, 56)]
for grp, earliest in seq:
    pos = max(pos + DSTEP, earliest)
    ws.fill(int(pos), grp)
DPOS = pos
fin = L('''
s_lshl_b32 s3, s{w}, 12
v_add_u32 v{t0}, s3, v{l16}
s_xor_b32 s4, s3, 8192
v_add_u32 v{t1}, s4, v{l16}
s_lshl2_add_u32 s3, s{g}, s{tt}
s_mul_i32 s3, s3, 28672
s_lshl1_add_u32 s4, s{cs}, s{kh}
s_lshl_b32 s4, s4, 6
s_add_u32 s{o}, s3, s4
v_and_b32 v{a}, 31, v0
v_mul_u32_u24 v{a}, 896, v{a}
v_lshrrev_b32 v{b}, 5, v0
v_lshl_add_u32 v{a}, v{b}, 4, v{a}
'''.format(w=sW, t0=t0, t1=t1, l16=vL16, g=sG, tt=sTT, cs=sCs, kh=sKh, o=sOff2, a=t2, b=t3))
ws.fill(96, fin)
for nm in OPT['st'] or ():
    if nm.startswith('_d'):
        ws.fill(int(nm[2:]), mkstamp(nm))
for nm, at in (('D0', 27), ('D1', 55), ('D2', 83)):
    ws.fill(at, mkstamp(nm))
assert all(WDPG[n] > 3 for n in range(48, 56)), [WDPG[n] for n in range(48, 56)]
ws.fill(103 - TD, L('s_barrier'))
xw_ = [I('ds_write_b128 v%d, %s offset:%d' % (t0, V(D0 + 16 + 4 * q, 4), q * 1024)) for q in range(4)]
xr_ = L('@waitlg0\ns_barrier') + [I('ds_read_b128 %s, v%d offset:%d' % (V(vX + 4 * q, 4), t1, q * 1024)) for q in range(4)]
if TD >= 3:
    ws.fill(112 - TD + 1, xw_)
    ws.fill(111, xr_)
    p.add(ws.build())
else:
    p.add(ws.build() + xw_ + xr_)
stamp('D mfma')
for hf_ in range(2):
    for j in range(8 * hf_, 8 * hf_ + 8, 2):
        p.add([pk('add', D0 + j, D0 + j, vX + j)])
    for j in range(4 * hf_, 4 * hf_ + 4):
        e('v_cvt_pk_bf16_f32 v%d, v%d, v%d' % (vY + j, D0 + 2 * j, D0 + 2 * j + 1))
    bb = 4 * hf_
    e('v_permlane32_swap_b32 v%d, v%d' % (vY + bb, vY + bb + 2))
    e('v_permlane32_swap_b32 v%d, v%d' % (vY + bb + 1, vY + bb + 3))
    e('buffer_store_dwordx4 %s, v%d, %s, s%d offen%s%s' % (V(vY + bb, 4), t2, S4(sOUT), sOff2, ' offset:32' if hf_ else '', OPT.get('outm', '')))
e('s_branch L_fin')

main_ins = p.ins
p.ins = []
e('L_idle:')
e('''
s_lshl1_add_u32 s6, s{g}, s{half}
s_cmp_lt_u32 s6, 28
s_cselect_b32 s{gu2}, 1605632, 0
s_mul_i32 s3, s{th}, 802816
s_lshl_b32 s4, s6, 7
s_add_u32 s{o}, s3, s4
v_lshrrev_b32 v{a}, 3, v0
v_mul_u32_u24 v{a}, 3584, v{a}
v_and_b32 v{b}, 7, v0
v_lshl_add_u32 v{a}, v{b}, 4, v{a}
v_mov_b32 v{e0}, 0x3f80
v_mov_b32 v{e1}, 0x3f800000
'''.format(g=sG, half=sHalf, gu2=sGU + 2, th=sTh, o=sOff, a=t0, b=t1, e0=u[0], e1=u[1]))
for n in range(28):
    e('buffer_load_dwordx4 %s, v%d, %s, s%d offen' % (V(vF + 4 * n, 4), t0, S4(sGU), sOff))
    e('s_add_u32 s%d, s%d, 28672' % (sOff, sOff))
    if n == OPT.get('ipre', 0):
        e('s_waitcnt vmcnt(%d)' % (n + 1))
        p.add(signal(sSig))
        stamp('_i0')
        e('s_barrier')
        e('s_cmp_ge_u32 s6, 28')
        e('s_cbranch_scc1 L_idle2')
stamp('_i1')
for j in range(8):
    e('v_mov_b32 v%d, 0' % (vY + j))
for n in range(28):
    for d in range(4):
        e('v_dot2c_f32_bf16 v%d, v%d, v%d' % (vY + 2 * d, vF + 4 * n + d, u[0]))
        e('v_dot2c_f32_bf16 v%d, v%d, v%d' % (vY + 2 * d + 1, vF + 4 * n + d, u[1]))
stamp('_i2')
for j in range(8):
    e('v_mov_b32 v%d, v%d' % (vY + 8 + j, vY + j))
for j in range(8):
    e('v_permlane32_swap_b32 v%d, v%d' % (vY + 8 + j, vY + j))
for j in range(8):
    e('v_add_f32 v%d, v%d, v%d' % (vY + j, vY + j, vY + 8 + j))
for j in range(8):
    e('v_mov_b32 v%d, v%d' % (vY + 8 + j, vY + j))
for j in range(8):
    e('v_permlane16_swap_b32 v%d, v%d' % (vY + 8 + j, vY + j))
for j in range(8):
    e('v_add_f32 v%d, v%d, v%d' % (vY + j, vY + j, vY + 8 + j))
for j in range(8):
    e('v_add_f32_dpp v%d, v%d, v%d row_ror:8 row_mask:0xf bank_mask:0xf' % (vY + 8 + j, vY + j, vY + j))
e('''
s_lshl_b32 s3, s{w}, 8
v_lshl_add_u32 v{a}, v{b}, 5, s3
ds_write_b128 v{a}, {r0}
ds_write_b128 v{a}, {r1} offset:16
s_waitcnt lgkmcnt(0)
s_barrier
v_bfe_u32 v{a}, v0, 4, 1
v_lshlrev_b32 v{a}, 9, v{a}
v_and_b32 v{b}, 15, v0
v_lshl_add_u32 v{a}, v{b}, 2, v{a}
v_lshrrev_b32 v{b}, 5, v0
v_lshl_add_u32 v{a}, v{b}, 7, v{a}
ds_read_b32 v{y0}, v{a}
ds_read_b32 v{y1}, v{a} offset:256
ds_read_b32 v{y2}, v{a} offset:64
ds_read_b32 v{y3}, v{a} offset:320
v_mov_b32 v{x1}, 0
v_mov_b32 v{x3}, 0
s_lshl_b32 s3, s6, 10
s_add_u32 s3, s3, {base}
s_lshr_b32 s4, s6, 1
s_lshl_b32 s4, s4, 13
s_add_u32 s4, s4, {cc}
v_add_f32 v{y0}, v{y0}, v{y1}
v_add_f32 v{y2}, v{y2}, v{y3}
'''.format(w=sW, a=t0, b=t1, r0=V(vY + 8, 4), r1=V(vY + 12, 4), y0=vY, y1=vY + 1, y2=vY + 2, y3=vY + 3, x1=vX + 1, x3=vX + 3,
           base=WS_CS, cc=C_CS * 128))
p.add(hilo(vY, vX, t2) + hilo(vY + 2, vX + 2, t2))
stamp('_i3')
e('s_cmp_ge_u32 s%d, 2' % sW)
e('s_cbranch_scc1 L_idle1')
e('buffer_store_dwordx4 %s, v%d, %s, s3 offen sc1' % (V(vX, 4), vL16, S4(sWS)))
e('s_waitcnt vmcnt(0)')
p.add(signal(4))
e('s_waitcnt vmcnt(0)')
e('L_idle1:')
e('s_barrier')
e('L_idle2:')
stamp('_i4')
if OPT.get('idlepf', 1):
    e('''
    v_lshlrev_b32 v{a}, 7, v0
    s_lshl2_add_u32 s3, s{gl}, s{w}
    s_and_b32 s4, s2, 7
    s_mul_i32 s4, s4, {st}
    s_add_u32 s3, s3, s4
    '''.format(a=t0, gl=sGl, w=sW, st=32 if OPT.get('ipn', 2) == 13 else 25))
    for n in range(OPT.get('ipn', 2)):
        for x in ['s_cmp_ge_u32 s3, 208', 's_cselect_b32 s4, 208, 0', 's_sub_u32 s3, s3, s4', 's_lshl_b32 s5, s3, 13',
                  'buffer_load_dword v%d, v%d, %s, s5 offen' % (vX + 8 + n, t0, S4(sWD)), 's_add_u32 s3, s3, 16']:
            e(x)
e('L_fin:')
if OPT.get('enc'):
    e('s_waitcnt vmcnt(0) lgkmcnt(0)')
    if OPT['enc'] == 'end':
        e('s_memrealtime s[94:95]')
        e('s_waitcnt lgkmcnt(0)')
    e('s_cmp_ge_u32 s%d, 7' % sCs)
    e('s_cbranch_scc1 L_end')
    e('s_sub_u32 s94, s94, s98')
    e('s_mul_i32 s94, s94, 4')
    e('s_add_u32 s94, s94, 3000')
    e('L_fix:')
    for x in ['s_sleep 4', 's_memrealtime s[96:97]', 's_waitcnt lgkmcnt(0)', 's_sub_u32 s96, s96, s98', 's_cmp_lt_u32 s96, s94', 's_cbranch_scc1 L_fix']:
        e(x, raw=True)
if OPT.get('fixt'):
    e('s_waitcnt vmcnt(0) lgkmcnt(0)')
    e('L_fix:')
    for x in ['s_sleep 2', 's_memrealtime s[96:97]', 's_waitcnt lgkmcnt(0)', 's_sub_u32 s96, s96, s98', 's_cmp_lt_u32 s96, %d' % OPT['fixt'], 's_cbranch_scc1 L_fix']:
        e(x, raw=True)
if DIAG:
    e('s_waitcnt vmcnt(0)')
    e('s_memtime s[76:77]' if OPT['cyc'] else 's_memrealtime s[76:77]')
    e('s_memtime s[74:75]')
    e('s_waitcnt lgkmcnt(0)')
    e('s_sub_u32 s74, s74, s100')
    e('v_mov_b32 v%d, s74' % (vX + 14))
    e('v_mov_b32 v%d, s101' % (vX + 15))
    e('s_lshl_b32 s3, s2, 2')
    e('s_add_u32 s3, s3, s%d' % sW)
    e('s_lshl_b32 s3, s3, 6')
    e('s_add_u32 s3, s3, %d' % WS_TS)
    for n in range(12):
        e('v_mov_b32 v%d, s%d' % (vX + n, sTS + 2 * n))
    e('v_mov_b32 v%d, s76' % (vX + 12))
    e('s_getreg_b32 s4, hwreg(HW_REG_XCC_ID)')
    e('v_mov_b32 v%d, s4' % (vX + 13))
    e('s_mov_b64 exec, 1')
    for q in range(4):
        e('buffer_store_dwordx4 %s, off, %s, s3 offset:%d' % (V(vX + 4 * q, 4), S4(sWS), 16 * q))
e('s_waitcnt vmcnt(0) lgkmcnt(0)')
e('L_end:')
e('s_endpgm')
tail_ins = p.ins

p.ins = main_ins
p.finalize()
body = p.text()
stats = dict(p.stats)
kinds = {}
for i in p.out:
    kinds[i.kind] = kinds.get(i.kind, 0) + 1
p.ins = tail_ins
p.finalize()
body += '\n' + p.text()

hdr = open('sequential_preLN__linear_attn_block__glu_gated_glu__prompt.s.ref').read().split('\n')
head = [l for l in hdr if l.startswith(';') and '@launch' not in l and 'Override' not in l and 'grid=ceil' not in l]
out = '\n'.join(head) + '''
; @launch grid=(256,1,1) block=(256,1,1) lds=163840
.amdgcn_target "amdgcn-amd-amdhsa--gfx950"
.text
.globl {n}
.p2align 8
.type {n},@function
{n}:
{body}
.section .rodata,"a"
.p2align 6
.amdhsa_kernel {n}
  .amdhsa_next_free_vgpr 512
  .amdhsa_next_free_sgpr 102
  .amdhsa_accum_offset 256
  .amdhsa_group_segment_fixed_size 0
  .amdhsa_kernarg_size 80
  .amdhsa_user_sgpr_count 2
  .amdhsa_user_sgpr_kernarg_segment_ptr 1
  .amdhsa_system_sgpr_workgroup_id_x 1
  .amdhsa_float_denorm_mode_32 3
.end_amdhsa_kernel
'''.format(n=NAME, body=body)
open(sys.argv[1], 'w').write(out)
print(kinds, stats, 'wpre', WPRE, 'rest', len(rest), 'spill', len(spill), 'H0', H0, H1, 'HHN', HHN, 'X0END', X0END, PEND, 'sig', sig_at, 'dslot', DSLOT1, 'dpos', DPOS, file=sys.stderr)
```

```python
import sys
from asmlib import Prog, I

NAME = 'sequential_preLN__linear_attn_block__glu_gated_glu__prompt_kernel'

OPT = dict(diag=0, stop=99, spin=200000, abl='', cyc=0, st=None, swh=2)
for a in sys.argv[2:]:
    k, v = a.split('=')
    OPT[k] = eval(v)
DIAG = OPT['diag']
STOP = OPT['stop']

WS_CNT = 0
WS_KVP = 0x20000
WS_CS = 0xA0000
WS_O = 0x120000
WS_H = 0x320000
WS_ST = 0x520000
WS_HH = 0x560000
WS_TS = 0xC60000
WS_SIZE = 0xD00000
C_O, C_H, C_KV, C_HH, C_CS = 0, 8, 12, 16, 48

sX, sQKV, sWO, sGU, sWD, sOUT, sWS, sDBG = 24, 28, 32, 36, 40, 44, 48, 52
sOff, sOff2, sIter, sPoll = 56, 57, 58, 59
sG, sM, sW, sCs, sWK, sHalf, sA, sTh, sKh, sCnt = 60, 61, 62, 63, 64, 65, 66, 67, 68, 69
sCh = 70
sIdx = 77
sT = [3, 4, 5, 6, 7, 8, 9, 10, 11, 12, 13]
sMaskHi = 14
sMask28 = 16
sGl, sGood, sSig, sSt, sTT, sZero = 18, 19, 20, 21, 22, 23
sGUt = [28, 29, 30, 31, 52, 53, 54]
sWDt = [24, 25, 26, 27, 32, 33, 34]
sHHt = [0, 1, 16, 17, 19, 23, 55]
sTS = 78


def S4(b):
    return 's[%d:%d]' % (b, b + 3)


def V(b, n=1):
    return 'v%d' % b if n == 1 else 'v[%d:%d]' % (b, b + n - 1)


def A(b, n=1):
    return 'a%d' % b if n == 1 else 'a[%d:%d]' % (b, b + n - 1)


vL16, vOne, vP, vL8 = 1, 2, 3, 4
vOffX = 5
vAdX = 9
vAdC = 9
vOffKV, vAdK, vAdV, vOffQ, vAdQ = 13, 14, 15, 16, 17
vAdD = 14
vOffWO, vOffXR, vOffGU, vOffWD = 18, 19, 20, 21
vAdWO, vAdWOp = 22, 24
vT = 26
vP2, vP3 = 238, 239
vY = 32
vX = 64
vF = 128
vGUo, vWDo, vL16b, vMF, vCc, vSt, vHH = 128, 136, 144, 148, 152, 156, 172
vU = 240
aW = 0
aH = 32
aF = 40
aCS = 152
aR = 172
t0, t1, t2, t3, t4, t5 = range(vT, vT + 6)
u = [vU + i for i in range(16)]

PG = 4096
LOG2E = 0x3fb8aa3b
NEGL = 0xbfb8aa3b
EPS6 = 0x358637bd
EPS5 = 0x3727c5ac
INV448 = 0x3b124925

p = Prog()
e = p.e
nstamp = [0]
nlab = [0]


def L(x):
    return [I(t.strip()) for t in x.strip().split('\n') if t.strip()]


def mkstamp(name):
    if OPT.get('enc') == name:
        return [I('s_memrealtime s[94:95]')]
    if not DIAG:
        return []
    early = ('o flag', 'x0 landed', 'x read', 'A1 mfma', 'kv stored', 'A2 mfma', 'q done', 'kv flag', 'kv loaded', 'o stored')
    if OPT['st'] is not None:
        if name != 'start' and name not in OPT['st']:
            return []
    elif name != 'start' and ((DIAG == 1) != (name in early) or name.startswith('_')):
        return []
    n = nstamp[0]
    assert n < 11
    nstamp[0] += 1
    return [I('%s s[%d:%d] ; @%s' % ('s_memtime' if OPT['cyc'] else 's_memrealtime', sTS + 2 * n, sTS + 2 * n + 1, name))]


def stamp(name):
    p.add(mkstamp(name))


def dma(voff, srd, so, m0, tag, pre=(), imm=0):
    r = []
    if m0 is not None:
        r.append(I('s_add_u32 m0, s%d, 0x%x' % (sWK, m0)))
    r += [I(t) for t in pre]
    r.append(I('buffer_load_dwordx4 v%d, %s, %s offen%s lds' % (voff, S4(srd), so, ' offset:%d' % imm if imm else ''), tag=tag))
    return r


def poll_issue(soff, atomic=True):
    if OPT.get('apoll', 1) and atomic:
        return L('v_mov_b32 v%d, 0\ns_mov_b64 exec, 1\nbuffer_atomic_umax v%d, off, %s, s%d sc0\ns_mov_b64 exec, -1' % (vP, vP, S4(sWS), soff))
    return [I('buffer_load_dword v%d, off, %s, s%d sc1' % (vP, S4(sWS), soff))]


def poll_check(expect, soff, srd=sWS):
    n = nlab[0]
    nlab[0] += 1
    t = sT[0]
    so = soff if isinstance(soff, str) else 's%d' % soff
    r = L('''
    v_readfirstlane_b32 s%d, v%d
    s_cmp_ge_u32 s%d, %d
    s_cbranch_scc1 L_ok%d
    s_mov_b32 s%d, %d
    ''' % (t, vP, t, expect, n, sIter, OPT['spin']))
    ld = lambda v: 'buffer_load_dword v%d, off, %s, %s sc1' % (v, S4(srd), so)
    chk = lambda v: ['v_readfirstlane_b32 s%d, v%d' % (t, v), 's_nop 0', 's_cmp_ge_u32 s%d, %d' % (t, expect), 's_cbranch_scc1 L_ok%d' % n]
    loop = ['s_sub_u32 s%d, s%d, 1' % (sIter, sIter), 's_cmp_lg_u32 s%d, 0' % sIter, 's_cbranch_scc1 L_spin%d' % n]
    pm = OPT.get('pm', 0)
    if OPT.get('apoll', 1) and srd == sWS:
        body = ['L_spin%d:' % n] + (['s_sleep %d' % OPT['asl']] if OPT.get('asl') else []) + ['s_mov_b64 exec, 1', 'buffer_atomic_umax v%d, off, %s, %s sc0' % (vP, S4(srd), so), 's_mov_b64 exec, -1',
                's_waitcnt vmcnt(0)'] + chk(vP) + loop
    elif pm == 0:
        body = ['L_spin%d:' % n, ld(vP), 's_waitcnt vmcnt(0)'] + chk(vP) + loop
    elif pm < 0:
        body = ['L_spin%d:' % n, 's_sleep %d' % -pm, ld(vP), 's_waitcnt vmcnt(0)'] + chk(vP) + loop
    else:
        body = [ld(vP), 'L_spin%d:' % n, 's_sleep %d' % pm, ld(vP2), 's_waitcnt vmcnt(1)'] + chk(vP) + \
               ['s_sleep %d' % pm, ld(vP), 's_waitcnt vmcnt(1)'] + chk(vP2) + loop
    for x in body:
        r.append(I(x, raw=True))
    r.append(I('L_ok%d:' % n))
    return r


def poll_pipe_issue(soff):
    return L('v_mov_b32 v%d, 0\nv_mov_b32 v%d, 0' % (vP2, vP3)) + poll_issue(soff)


def poll_pipe_check(expect, soff):
    n = nlab[0]
    nlab[0] += 1
    t = sT[0]
    at = lambda v: 'buffer_atomic_umax v%d, off, %s, s%d sc0' % (v, S4(sWS), soff)
    chk = lambda v: ['s_waitcnt vmcnt(2)', 'v_readfirstlane_b32 s%d, v%d' % (t, v), 's_nop 0', 's_cmp_ge_u32 s%d, %d' % (t, expect),
                     's_cbranch_scc1 L_ok%d' % n]
    sl = 's_sleep %d' % OPT.get('psl', 3)
    body = ['s_mov_b32 s%d, %d' % (sIter, OPT['spin']), 's_mov_b64 exec, 1', at(vP2), sl, 'L_spin%d:' % n, at(vP3)] + chk(vP) + \
           [at(vP)] + chk(vP2) + [at(vP2)] + chk(vP3) + \
           ['s_sub_u32 s%d, s%d, 1' % (sIter, sIter), 's_cmp_lg_u32 s%d, 0' % sIter, 's_cbranch_scc1 L_spin%d' % n]
    r = [I(x, raw=True) for x in body]
    return r + [I('L_ok%d:' % n), I('s_mov_b64 exec, -1'), I('@assumevm0')]


def signal(soff, imm=0):
    return L('''
    s_mov_b64 exec, 1
    buffer_atomic_add v%d, off, %s, s%d%s
    s_mov_b64 exec, -1
    ''' % (vOne, S4(sWS), soff, ' offset:%d' % imm if imm else ''))


def mfma(d, a, b, c=None):
    return I('v_mfma_f32_32x32x16_bf16 %s, %s, %s, %s' % (V(d, 16), a, b, V(d, 16) if c is None else c))


def colsum4(acc, q, first):
    return [I('v_mfma_f32_4x4x4_16b_bf16 %s, %s, %s, %s' % (V(acc + 4 * h, 4), V(vOnes, 2), A(q + 2 * h, 2), '0' if first else V(acc + 4 * h, 4))) for h in range(2)]


class WStream:
    def __init__(self, look=7, nbuf=8, wper=4):
        self.items = []
        self.look = look
        self.nbuf = nbuf
        self.wper = wper
        self.n = 0
        self.fills = {}

    def step(self, addr0, off0, addr1, off1, mk, pre=None, post=None):
        q = aW + 4 * (self.n % self.nbuf)
        self.n += 1
        rd = list(pre or [])
        rd.append(I('ds_read_b64_tr_b16 %s, v%d offset:%d' % (A(q, 2), addr0, off0)))
        rd.append(I('ds_read_b64_tr_b16 %s, v%d offset:%d' % (A(q + 2, 2), addr1, off1)))
        self.items.append((rd, mk(A(q, 4)), post(q) if post else []))
        return len(self.items) - 1

    def extra(self, m):
        self.items.append(([], m, []))
        return len(self.items) - 1

    def fill(self, idx, grp):
        g = grp if isinstance(grp, list) else [grp]
        ab = OPT['abl']
        if ab and not any(x.kind in ('label', 'sctl') or 'exec' in x.text for x in g):
            if 'v' in ab:
                g = [x for x in g if x.kind != 'valu']
            if 'd' in ab and any(x.kind == 'dma' for x in g):
                g = []
            if 'b' in ab:
                g = [x for x in g if x.kind != 'barrier']
        if g:
            self.fills.setdefault(idx, []).append(g)

    def build(self):
        out = []
        n = len(self.items)
        withrd = [i for i in range(n) if self.items[i][0]]
        nxt = 0
        used = 0
        while nxt < min(self.look, len(withrd)):
            out += self.items[withrd[nxt]][0]
            nxt += 1
        for i in range(n):
            rd, m, post = self.items[i]
            if rd:
                if used % self.wper == 0:
                    m.ahead = 2 * min(self.wper - 1, nxt - used - 1)
                used += 1
            out.append(m)
            gs = self.fills.pop(i, [])
            first = [g for g in gs if g[0].kind == 'barrier']
            rest = [g for g in gs if g[0].kind != 'barrier']
            for g in first:
                out += g
            mem = [g for g in rest if not all(x.kind == 'valu' for x in g)]
            if mem and mem[0][0].kind == 'salu' and mem[0][-1].kind == 'dma':
                out.append(mem[0][0])
                mem[0] = mem[0][1:]
            if rd and nxt < len(withrd):
                out += self.items[withrd[nxt]][0]
                nxt += 1
            for g in mem:
                out += g
            for g in rest:
                if all(x.kind == 'valu' for x in g):
                    out += g
            out += post
        assert not self.fills, list(self.fills)
        return out


def spread(main, fill):
    out = []
    n, m = len(main), len(fill)
    j = 0
    for i, x in enumerate(main):
        out.append(x)
        while j < m and (j + 1) * n <= (i + 1) * (m + 1):
            out.extend(fill[j])
            j += 1
    while j < m:
        out.extend(fill[j])
        j += 1
    return out


def zip_groups(groups):
    out = []
    n = max(len(g) for g in groups)
    for k in range(n):
        for g in groups:
            if k < len(g):
                out.append(g[k])
    return out


def pk(op, d, a, b, c=None, mod=''):
    f = lambda r: r if isinstance(r, str) else V(r, 2)
    return I('v_pk_%s_f32 %s, %s, %s%s %s' % (op, f(d), f(a), f(b), '' if c is None else ', ' + f(c), mod))


def halves_sum(x, t):
    return L('''
    v_mov_b32 v{t}, v{x}
    v_permlane32_swap_b32 v{t}, v{x}
    v_add_f32 v{x}, v{t}, v{x}
    '''.format(t=t, x=x))


def ln_consts(s, q, mean, std, r):
    return L('''
    v_mul_f32 v{a}, 0x{i:x}, v{s}
    v_mul_f32 v{b}, 0x{i:x}, v{q}
    v_fma_f32 v{b}, -v{a}, v{a}, v{b}
    v_max_f32 v{b}, 0, v{b}
    v_cvt_pk_bf16_f32 v{a}, v{a}, v{b}
    v_and_b32 v{b}, 0xffff0000, v{a}
    v_lshlrev_b32 v{a}, 16, v{a}
    v_add_f32 v{b}, 0x{e:x}, v{b}
    v_cvt_pk_bf16_f32 v{b}, v{b}, v{b}
    v_lshlrev_b32 v{b}, 16, v{b}
    v_sqrt_f32 v{b}, v{b}
    v_cvt_pk_bf16_f32 v{b}, v{b}, v{b}
    v_lshlrev_b32 v{b}, 16, v{b}
    v_rcp_f32 v{r}, v{b}
    '''.format(a=mean, b=std, s=s, q=q, r=r, i=INV448, e=EPS5))


def mean_frag(mean, d):
    return L('''
    v_cvt_pk_bf16_f32 v{d}, -v{m}, -v{m}
    v_mov_b32 v{d1}, 0
    v_mov_b32 v{d2}, 0
    v_mov_b32 v{d3}, 0
    v_cndmask_b32 v{d}, v{d}, 0, s[{h}:{h1}]
    '''.format(d=d, d1=d + 1, d2=d + 2, d3=d + 3, m=mean, h=sMaskHi, h1=sMaskHi + 1))


def hilo(c, d, t):
    return L('''
    v_cvt_pk_bf16_f32 v{t}, v{c}, v{c}
    v_lshlrev_b32 v{t}, 16, v{t}
    v_sub_f32 v{t}, v{c}, v{t}
    v_cvt_pk_bf16_f32 v{d}, v{c}, v{t}
    '''.format(c=c, d=d, t=t))


e('s_cmp_ge_u32 s2, 256')
e('s_cbranch_scc1 L_end')
if OPT.get('fixt') or OPT.get('enc'):
    e('s_memrealtime s[98:99]')
    e('s_memrealtime s[94:95]')
stamp('start')
if DIAG:
    e('s_memtime s[100:101]')
e('s_load_dwordx4 s[4:7], s[0:1], 0')
e('s_load_dwordx2 s[%d:%d], s[0:1], 16' % (sWO, sWO + 1))
e('s_load_dwordx8 s[8:15], s[0:1], 32')
e('s_load_dwordx4 s[20:23], s[0:1], 64')
XP0 = 12
e("""
v_lshrrev_b32 v{t0}, 6, v0
v_and_b32 v0, 63, v0
v_readfirstlane_b32 s{w}, v{t0}
s_lshr_b32 s{idx}, s2, 3
""".format(t0=t0, w=sW, idx=sIdx))
if OPT.get('cpf', 1):
    sCODE = 72
    e('s_getpc_b64 s[%d:%d]' % (sCODE, sCODE + 1))
    e('L_pc:')
    e("""
    s_mov_b32 s{c2}, L_end-L_pc
    s_mov_b32 s{c3}, 0x20000
    s_lshl2_add_u32 s3, s{idx}, s{w}
    s_lshl_b32 s3, s3, 9
    v_and_b32 v{t3}, 3, v0
    v_lshlrev_b32 v{t3}, 7, v{t3}
    buffer_load_dword v{d}, v{t3}, {code}, s3 offen
    """.format(c2=sCODE + 2, c3=sCODE + 3, idx=sIdx, w=sW, t3=t3, d=t5, code=S4(sCODE)))
e("""
s_bfe_u32 s3, s2, 0x20001
s_and_b32 s{gl}, s{idx}, 3
s_lshr_b32 s{cs}, s{idx}, 2
s_lshl2_add_u32 s{g}, s3, s{gl}
s_lshl1_add_u32 s{c0}, s{gl}, s{cs}
s_add_u32 s{c0}, s{c0}, s3
s_mul_i32 s3, s{c0}, 37
s_lshr_b32 s3, s3, 8
s_mul_i32 s3, s3, 7
s_sub_u32 s{c0}, s{c0}, s3
v_lshrrev_b32 v{u0}, 3, v0
v_and_b32 v{u1}, 7, v0
v_lshrrev_b32 v{u2}, 4, v0
s_lshl2_add_u32 s3, s{g}, s{w}
s_mul_i32 s3, s3, 28672
v_mul_u32_u24 v{t0}, 896, v{u0}
v_xor_b32 v{t1}, v{u1}, v{u2}
v_add_u32 v{t0}, s3, v{t0}
v_lshl_add_u32 v{x0}, v{t1}, 4, v{t0}
v_xor_b32 v{t1}, 4, v{t1}
v_lshl_add_u32 v{x1}, v{t1}, 4, v{t0}
v_add_u32 v{x2}, 12288, v{x0}
v_add_u32 v{x3}, 18432, v{x1}
v_add_u32 v{x1}, 6144, v{x1}
s_mul_i32 s{o2}, s{w}, {xs}
s_add_u32 s{o2}, s{o2}, {xb}
s_mov_b32 s{X2}, 1835008
s_mov_b32 s{X3}, 0x20000
""".format(t0=t0, t1=t1, w=sW, idx=sIdx, gl=sGl, cs=sCs, g=sG, c0=sCh, u0=u[0], u1=u[1], u2=u[2],
           x0=vOffX, x1=vOffX + 1, x2=vOffX + 2, x3=vOffX + 3, o2=sOff2, xs=7 * PG, xb=XP0 * PG, X2=sX + 2, X3=sX + 3))


def nextch(i):
    e('s_add_u32 s%d, s%d, 1' % (sCh + i, sCh + i - 1))
    e('s_cmp_ge_u32 s%d, 7' % (sCh + i))
    e('s_cselect_b32 s%d, 0, s%d' % (sCh + i, sCh + i))


def xdma(i):
    r = L('s_add_u32 m0, s%d, %d\ns_lshl_b32 s%d, s%d, 7' % (sOff2, i * PG, sOff, sCh + i))
    for q in range(4):
        r.append(I('buffer_load_dwordx4 v%d, %s, s%d offen%s lds' % (vOffX + q, S4(sX), sOff, ' offset:%d' % (q * 1024) if q else ''), tag='x%d' % i))
    return r


nextch(1)
if OPT.get('sw1') in (4, 5):
    e('''
    s_mul_i32 s3, s{idx}, 14
    s_lshl2_add_u32 s3, s{w}, s3
    s_mul_i32 s3, s3, 2688
    s_and_b32 s16, s2, 1
    s_mul_i32 s16, s16, 384
    s_add_u32 s3, s3, s16
    v_mul_u32_u24 v{t0}, 2688, v{u2}
    v_bfe_u32 v{t1}, v0, 2, 2
    v_min_u32 v{t1}, {np}, v{t1}
    v_mul_u32_u24 v{t1}, 896, v{t1}
    v_and_b32 v{t2}, 3, v0
    v_lshl_add_u32 v{t1}, v{t2}, 7, v{t1}
    v_add3_u32 v{c}, v{t0}, v{t1}, s3
    s_mov_b32 s{q2}, 1204224
    s_mov_b32 s{q3}, 0x20000
    '''.format(idx=sIdx, w=sW, t0=t0, t1=t1, t2=t2, u2=u[2], c=vY + 14, q2=sQKV + 2, q3=sQKV + 3, np=2 if OPT['sw1'] == 4 else 1))
stamp('_prek')
e('@waitlg0')
stamp('_karg')
e('s_mov_b32 s%d, s4' % sX)
e('s_mov_b32 s%d, s5' % (sX + 1))
p.add(xdma(0))
if OPT.get('sw1') in (4, 5):
    e('s_mov_b32 s%d, s6' % sQKV)
    e('s_mov_b32 s%d, s7' % (sQKV + 1))
    e('buffer_load_dword a249, v%d, %s, 0 offen%s' % (vY + 14, S4(sQKV), '' if OPT['sw1'] == 4 else ' offset:896'))
else:
    p.add(xdma(1))
stamp('_x01')
for i in range(2, 7):
    nextch(i)
e("""
s_and_b32 s{half}, s2, 1
s_lshl3_add_u32 s{m}, s{half}, s{cs}
s_sub_u32 s{a}, s{m}, s{half}
s_lshl_b32 s{wk}, s{w}, 10
s_lshl_b32 s{cnt}, s{g}, 13
s_and_b32 s{th}, s{w}, 1
s_lshr_b32 s{kh}, s{w}, 1
s_mov_b32 s{q}, s6
s_mov_b32 s{q1}, s7
s_cmp_lt_u32 s{w}, 2
s_cselect_b32 s{gu}, s8, s10
s_cselect_b32 s{gu1}, s9, s11
s_mov_b32 s{wd}, s12
s_mov_b32 s{wd1}, s13
s_mov_b32 s{out}, s14
s_mov_b32 s{out1}, s15
s_mov_b32 s{dbg}, s20
s_mov_b32 s{dbg1}, s21
s_mov_b32 s{ws}, s22
s_mov_b32 s{ws1}, s23
s_cmp_lt_u32 s{cs}, 7
s_cselect_b32 s{wo2}, 401408, 0
s_cselect_b32 s{gu2}, 1605632, 0
s_lshl1_add_u32 s{tt}, s{half}, s{th}
""".format(half=sHalf, m=sM, cs=sCs, a=sA, wk=sWK, w=sW, cnt=sCnt, g=sG, th=sTh, kh=sKh, q=sQKV, q1=sQKV + 1,
           gu=sGU, gu1=sGU + 1, wd=sWD, wd1=sWD + 1, out=sOUT, out1=sOUT + 1, dbg=sDBG, dbg1=sDBG + 1,
           ws=sWS, ws1=sWS + 1, wo2=sWO + 2, gu2=sGU + 2, tt=sTT))
for srd, size in ((sQKV, 1204224), (sWO, None), (sWD, 1605632), (sGU, None), (sOUT, 1835008), (sDBG, 256), (sWS, WS_SIZE)):
    if size:
        e('s_mov_b32 s%d, 0x%x' % (srd + 2, size))
    e('s_mov_b32 s%d, 0x20000' % (srd + 3))
e("""
v_lshlrev_b32 v{l16}, 4, v0
v_lshlrev_b32 v{l8}, 3, v0
v_mov_b32 v{one}, 1
v_and_b32 v{u3}, 31, v0
v_lshrrev_b32 v{u4}, 5, v0
v_bfe_u32 v{u5}, v0, 2, 2
v_and_b32 v{u6}, 3, v0
v_bfe_u32 v{u7}, v0, 4, 1
""".format(l16=vL16, l8=vL8, one=vOne, u3=u[3], u4=u[4], u5=u[5], u6=u[6], u7=u[7]))
e("""
s_cmp_eq_u32 s{m}, 15
s_cselect_b32 s3, 1, 0
s_cmp_eq_u32 s{w}, 0
s_cselect_b32 s{z}, s3, 0
s_cmp_eq_u32 s{z}, 0
s_cbranch_scc1 L_nozero
v_lshlrev_b32 v{t3}, 7, v0
v_mov_b32 v{t4}, 0
""".format(m=sM, w=sW, t3=t3, t4=t4, z=sZero))
e('buffer_store_dword v%d, v%d, %s, s%d offen sc1' % (t4, t3, S4(sWS), sCnt), raw=True)
e('L_nozero:')
e('v_cmp_lt_u32 s[%d:%d], 31, v0' % (sMaskHi, sMaskHi + 1))
e('v_cmp_eq_u32 s[%d:%d], 28, v%d' % (sMask28, sMask28 + 1, u[3]))
e('''
v_lshlrev_b32 v{t0}, 7, v{u3}
v_add_u32 v{t0}, s{xb}, v{t0}
v_bfe_u32 v{t1}, v0, 1, 3
v_xor_b32 v{t1}, v{t1}, v{u4}
'''.format(t0=t0, t1=t1, u3=u[3], u4=u[4], xb=sOff2))
for ks in range(4):
    e('v_xor_b32 v%d, %d, v%d' % (t2, 2 * ks, t1))
    e('v_lshl_add_u32 v%d, v%d, 4, v%d' % (vAdX + ks, t2, t0))
e('''
v_lshlrev_b32 v{t0}, 2, v{u7}
v_xor_b32 v{t0}, v{t0}, v{u1}
v_lshlrev_b32 v{t4}, 4, v{t0}
v_lshrrev_b32 v{t1}, 2, v{t0}
v_and_b32 v{t0}, 3, v{t0}
v_lshlrev_b32 v{t2}, 1, v{t0}
v_min_u32 v{t2}, 5, v{t2}
v_lshlrev_b32 v{t2}, 3, v{t2}
s_movk_i32 s{k}, 896
v_mad_u32_u24 v{t2}, v{t1}, s{k}, v{t2}
v_mad_u32_u24 v{t4}, v{u0}, s{k}, v{t4}
s_lshl_b32 s3, s{w}, 3
v_add_u32 v{t3}, s3, v{u0}
s_movk_i32 s{k}, 2688
v_mad_u32_u24 v{t2}, v{t3}, s{k}, v{t2}
s_mul_i32 s3, s{m}, 56
s_add_u32 s4, s3, 896
v_add_u32 v{kv}, s4, v{t2}
'''.format(t0=t0, t1=t1, t2=t2, t3=t3, t4=t4, u0=u[0], u1=u[1], u7=u[7], k=sOff, w=sW, m=sM, kv=vOffKV))
e('''
s_lshl_b32 s6, s{cs}, 7
s_mul_i32 s4, s{w}, 7168
s_add_u32 s4, s4, s6
v_add_u32 v{wo}, s4, v{t4}
s_mul_i32 s4, s{kh}, 802816
s_mul_i32 s5, s{th}, 7168
s_add_u32 s4, s4, s5
s_add_u32 s4, s4, s6
v_add_u32 v{wd}, s4, v{t4}
'''.format(t4=t4, cs=sCs, w=sW, kh=sKh, th=sTh, wo=vOffWO, wd=vOffWD))
e('''
v_lshlrev_b32 v{t2}, 1, v{u6}
v_min_u32 v{t2}, 5, v{t2}
v_lshlrev_b32 v{t2}, 3, v{t2}
v_lshrrev_b32 v{t3}, 2, v0
v_mul_u32_u24 v{t4}, 896, v{t3}
s_lshl_b32 s4, s{w}, 4
v_add_u32 v{t3}, s4, v{t3}
v_mad_u32_u24 v{t2}, v{t3}, s{k}, v{t2}
v_add_u32 v{q}, s3, v{t2}
s_lshl2_add_u32 s4, s{g}, s{tt}
s_mul_i32 s4, s4, 28672
s_add_u32 s4, s4, s6
s_lshl_b32 s5, s{kh}, 6
s_add_u32 s4, s4, s5
v_lshl_add_u32 v{t4}, v{u6}, 4, v{t4}
v_add_u32 v{xr}, s4, v{t4}
'''.format(t2=t2, t3=t3, t4=t4, u6=u[6], k=sOff, w=sW, q=vOffQ, g=sG, tt=sTT, kh=sKh, xr=vOffXR))
WQP = 14
e('''
v_lshlrev_b32 v{t0}, 3, v{u6}
v_lshl_add_u32 v{t0}, v{u7}, 5, v{t0}
v_lshrrev_b32 v{t1}, 1, v{u6}
v_and_b32 v{t1}, v{t1}, v{u7}
v_lshlrev_b32 v{t1}, 3, v{t1}
v_xor_b32 v{t1}, v{t0}, v{t1}
v_lshrrev_b32 v{t2}, 1, v{u5}
v_lshlrev_b32 v{t2}, 6, v{t2}
v_lshl_add_u32 v{t3}, v{u4}, 3, v{u5}
v_xor_b32 v{t4}, v{t1}, v{t2}
v_lshl_add_u32 v{ak}, v{t3}, 7, v{t4}
v_xor_b32 v{av}, 64, v{ak}
v_lshl_add_u32 v{aq}, v{t3}, 6, v{t1}
v_add_u32 v{aq}, {qb}, v{aq}
'''.format(t0=t0, t1=t1, t2=t2, t3=t3, t4=t4, u4=u[4], u5=u[5], u6=u[6], u7=u[7], ak=vAdK, av=vAdV, aq=vAdQ, qb=WQP * PG))
e('''
v_xor_b32 v{t4}, v{t0}, v{t2}
s_lshl_b32 s3, s{kh}, 6
v_xor_b32 v{t4}, s3, v{t4}
v_lshl_add_u32 v{t4}, v{u5}, 7, v{t4}
s_mul_i32 s3, s{kh}, 28672
v_add_u32 v{p0}, s3, v{t4}
v_xor_b32 v{p1}, 64, v{p0}
v_lshl_add_u32 v{a0}, v{u4}, 9, v{p0}
v_xor_b32 v{a1}, 64, v{a0}
'''.format(t0=t0, t2=t2, t4=t4, u4=u[4], u5=u[5], kh=sKh, p0=vAdWOp, p1=vAdWOp + 1, a0=vAdWO, a1=vAdWO + 1))
e('''
s_lshl_b32 s4, s{kh}, 2
v_lshl_add_u32 v{t0}, v{u7}, 1, s4
v_xor_b32 v{t0}, v{t0}, v{u1}
v_lshlrev_b32 v{t0}, 4, v{t0}
s_movk_i32 s{k}, 3584
v_mad_u32_u24 v{t0}, v{u0}, s{k}, v{t0}
s_mul_i32 s4, s{th}, 28672
s_lshl_b32 s5, s{a}, 8
s_add_u32 s4, s4, s5
v_add_u32 v{gu}, s4, v{t0}
'''.format(t0=t0, u0=u[0], u1=u[1], u7=u[7], k=sOff, kh=sKh, th=sTh, a=sA, gu=vOffGU))
vSw = vY
sSW = 8
e('''
s_mul_i32 s3, s{idx}, 14
s_lshl2_add_u32 s3, s{w}, s3
s_mul_i32 s3, s3, 2688
s_mul_i32 s4, s{half}, 384
s_add_u32 s3, s3, s4
v_mul_u32_u24 v{t0}, 2688, v{u2}
v_bfe_u32 v{t1}, v0, 2, 2
v_min_u32 v{t1}, 2, v{t1}
v_mul_u32_u24 v{t1}, 896, v{t1}
v_and_b32 v{t2}, 3, v0
v_lshl_add_u32 v{t1}, v{t2}, 7, v{t1}
v_add3_u32 v{c}, v{t0}, v{t1}, s3
s_add_u32 s3, s{cs}, 1
s_lshr_b32 s3, s3, 1
s_mul_i32 s4, s{gl}, 5
s_add_u32 s3, s3, s4
s_lshl1_add_u32 s4, s3, s{th}
s_mul_i32 s4, s4, 3
s_bfe_u32 s5, s2, 0x20001
s_mul_i32 s5, s5, 112
s_add_u32 s4, s4, s5
s_mul_i32 s4, s4, 3584
s_mul_i32 s5, s{half}, 1792
s_add_u32 s4, s4, s5
v_min_u32 v{t0}, 2, v{u2}
v_mul_u32_u24 v{t0}, 3584, v{t0}
v_and_b32 v{t1}, {swm}, v0
v_min_u32 v{t1}, {swx}, v{t1}
v_lshl_add_u32 v{t0}, v{t1}, 7, v{t0}
v_add_u32 v{a}, s4, v{t0}
v_min_u32 v{t1}, 6, v{u1}
s_lshl2_add_u32 s3, s3, s{w}
s_min_u32 s3, s3, 55
s_and_b32 s4, s2, 7
s_mul_i32 s4, s4, 56
s_add_u32 s3, s3, s4
s_mul_i32 s3, s3, 896
v_lshlrev_b32 v{t1}, 7, v{t1}
v_add_u32 v{b}, s3, v{t1}
s_mul_i32 s3, s{half}, 42
s_add_u32 s3, s3, 0xab
s_lshr_b32 s3, s3, s{cs}
s_and_b32 s{good}, s3, 1
'''.format(cs=sCs, gl=sGl, th=sTh, half=sHalf, w=sW, t0=t0, t1=t1, t2=t2, u0=u[0], u1=u[1], u2=u[2], a=vSw, b=vSw + 1, c=vY + 13,
           good=sGood, idx=sIdx, swm=14 if OPT.get('swh') else 15, swx=12 if OPT.get('swh') else 13))


if OPT.get('swf', 0):
    e('''
    s_add_u32 s3, s{cs}, 1
    s_lshr_b32 s3, s3, 1
    s_mul_i32 s4, s{gl}, 5
    s_add_u32 s3, s3, s4
    s_lshl1_add_u32 s4, s3, s{th}
    s_mul_i32 s4, s4, 43008
    s_mul_i32 s5, s{half}, 1792
    s_add_u32 s4, s4, s5
    v_min_u32 v{t1}, 6, v{u1}
    v_mul_u32_u24 v{t0}, 3584, v{u0}
    v_lshl_add_u32 v{t0}, v{t1}, 8, v{t0}
    v_add_u32 v{a2}, s4, v{t0}
    v_min_u32 v{t0}, 3, v{u0}
    v_mul_u32_u24 v{t0}, 3584, v{t0}
    v_lshl_add_u32 v{t0}, v{t1}, 8, v{t0}
    s_add_u32 s4, s4, 28672
    v_add_u32 v{a3}, s4, v{t0}
    s_lshl2_add_u32 s3, s3, s{w}
    s_mul_i32 s3, s3, 5376
    v_min_u32 v{t0}, 5, v{u0}
    v_mul_u32_u24 v{t0}, 896, v{t0}
    v_lshl_add_u32 v{t0}, v{t1}, 7, v{t0}
    v_add_u32 v{b}, s3, v{t0}
    '''.format(cs=sCs, gl=sGl, th=sTh, half=sHalf, w=sW, t0=t0, t1=t1, u0=u[0], u1=u[1], a2=vY + 14, a3=vY + 15, b=vSw + 1))


def sweep1():
    return L('buffer_load_dword a249, v%d, %s, 0 offen' % (vY + 13, S4(sQKV))) if OPT.get('sw1', 0) else []


def sweep():
    r = L('''
    s_mov_b32 s{sw}, s{gu}
    s_mov_b32 s{sw1}, s{gu1}
    s_mul_i32 s{sw2}, s{good}, 1605632
    s_mov_b32 s{sw3}, 0x20000
    buffer_load_dword a250, v{a}, {srd}, 0 offen
    s_mov_b32 s{sw}, s{wo}
    s_mov_b32 s{sw1}, s{wo1}
    s_mul_i32 s{sw2}, s{good}, 401408
    buffer_load_dword a251, v{b}, {srd}, 0 offen
    '''.format(sw=sSW, sw1=sSW + 1, sw2=sSW + 2, sw3=sSW + 3, gu=sGU, gu1=sGU + 1, wo=sWO, wo1=sWO + 1, a=vSw, b=vSw + 1,
               srd=S4(sSW), good=sGood))
    if OPT.get('swf', 0):
        x = L('buffer_load_dword a248, v%d, %s, 0 offen\nbuffer_load_dword a247, v%d, %s, 0 offen' % (vY + 14, S4(sSW), vY + 15, S4(sSW)))
        r = r[:4] + x + (r[4:5] if OPT['swf'] == 2 else []) + r[5:]
    return r


def sweep3():
    r = L('''
    s_mul_i32 s3, s{g}, 14
    s_add_u32 s3, s3, s{a}
    s_lshl2_add_u32 s3, s3, s{w}
    s_mul_i32 s3, s3, 1792
    v_min_u32 v{t}, 13, v0
    v_lshlrev_b32 v{t}, 7, v{t}
    buffer_load_dword a252, v{t}, {srd}, s3 offen
    '''.format(g=sG, a=sA, w=sW, t=t5, srd=S4(sWD)))
    return r if OPT.get('sw3', 0) else []


def kvdma(pg):
    pre = ['s_mul_i32 s%d, s%d, 172032' % (sOff, sCh + (pg >> 1))]
    if pg & 1:
        pre.append('s_add_u32 s%d, s%d, 86016' % (sOff, sOff))
    return dma(vOffKV, sQKV, 's%d' % sOff, pg * PG, 'kv%d' % pg, pre)


def qdma(i):
    return dma(vOffQ, sQKV, 's%d' % sOff, (WQP + i) * PG, 'q%d' % i, ['s_mul_i32 s%d, s%d, 172032' % (sOff, sCh + i)])


vS, vQ2, vOnes = u[8], u[9], u[10]
vMean, vStd, vR, vRL = u[6], u[7], u[12], u[14]
e('v_mov_b32 v%d, 0' % vS)
e('v_mov_b32 v%d, 0' % vQ2)
e('v_mov_b32 v%d, 0x3f803f80' % vOnes)
e('v_mov_b32 v%d, 0x3f803f80' % (vOnes + 1))
SCR, KVS, XRP, WOP = 21, 25, 26, 0
e('''
s_lshl_b32 s3, s{w}, 8
s_add_u32 s3, s3, {b}
v_lshl_add_u32 v{a}, v{u3}, 2, s3
v_lshl_add_u32 v{c}, v{u4}, 4, s3
'''.format(w=sW, b=KVS * PG + 2048, a=t3, c=t4, u3=u[3], u4=u[4]))


def xdots(i):
    r = []
    for j in range(16):
        reg = vF + 16 * i + j
        r.append(I('v_dot2c_f32_bf16 v%d, v%d, v%d' % (vS, reg, vOnes)))
        r.append(I('v_dot2c_f32_bf16 v%d, v%d, v%d' % (vQ2, reg, reg)))
    return r


stamp('_addr')
SW1 = OPT.get('sw1', 0)
if SW1 == 2:
    p.add(sweep1())
if SW1 in (4, 5):
    p.add(xdma(1))
p.add(xdma(2))
if SW1 == 1:
    p.add(sweep1())
kv_next = 0
XW = OPT.get('xw', [[], [], [], [3], [2], [1, 3], [2]])
for i in range(7):
    e('@waitvm x%d' % i)
    stamp('_xl%d' % i)
    if i == 0:
        stamp('x0 landed')
    if i == 2:
        e('s_cmp_eq_u32 s%d, 0' % sZero)
        e('s_cbranch_scc1 L_nozero2')
        e('s_mov_b64 exec, 1')
        e('buffer_atomic_add v%d, off, %s, 0' % (vOne, S4(sDBG)), raw=True)
        e('s_mov_b64 exec, -1')
        e('L_nozero2:')
    for ks in range(4):
        e('ds_read_b128 %s, v%d offset:%d' % (V(vF + 16 * i + 4 * ks, 4), vAdX + ks, i * PG))
    dots = xdots(i - 1) if i else []
    d = [[], [], [], []]
    if i + 3 < 7:
        x_ = xdma(i + 3)
        d = [x_[:3], x_[3:4], x_[4:5], x_[5:6]]
    for q in XW[i]:
        if kv_next == 0 and SW1 == 3:
            d[q] = d[q] + sweep1()
        d[q] = d[q] + kvdma(kv_next)
        kv_next += 1
    for q in range(4):
        p.add(d[q] + dots[8 * q:8 * q + 8])
p.add(xdots(6))
p.add(kvdma(kv_next))
kv_next += 1
stamp('x read')

aK, aV, vRr = vX, vX + 16, vX + 32
aCK, aCV = 40, 56
vAdKw, vAdVw, vAdQw, vO4, vMA, vCx = vY + 2, vY + 3, vY + 12, vY + 8, vY + 4, vY + 16
e('''
s_lshl_b32 s3, s{w}, 11
v_add_u32 v{kw}, s3, v{k}
v_add_u32 v{vw}, s3, v{v}
v_add_u32 v{qw}, s{wk}, v{q}
'''.format(w=sW, kw=vAdKw, vw=vAdVw, qw=vAdQw, k=vAdK, v=vAdV, q=vAdQ, wk=sWK))
for n in range(4):
    e('v_mov_b32 v%d, 0x3f803f80' % (vO4 + n))


def mfma_ones(acc, b, first):
    return I('v_mfma_f32_32x32x16_bf16 %s, %s, %s, %s' % (A(acc, 16), V(vO4, 4), b, '0' if first else A(acc, 16)))


ws = WStream(look=OPT.get('a1l', 4), wper=OPT.get('a1w', 2))
pgap = {}
kb = OPT.get('kvb', (0, 2, 4, 7, 10, 12, 13))
KVB = dict(zip(kb, kb[1:] + (14,)))
for pg in range(14):
    pre = None
    if pg in KVB:
        pre = L('@waitvm ' + ' '.join('kv%d' % q for q in range(pg, KVB[pg])) + '\ns_barrier')
    if pg & 1:
        for (acc, ad) in ((aCK, vAdKw), (aCV, vAdVw)):
            off = (pg - 1) * PG
            glast = ws.step(ad, off, ad, off + 512, lambda a: mfma_ones(acc, a, pg == 1), pre)
            pre = None
    for ks2 in range(2):
        k = 2 * pg + ks2
        for (acc, ad) in ((aK, vAdK), (aV, vAdV)):
            off = pg * PG + ks2 * 2048
            g_ = ws.step(ad, off, ad, off + 512, lambda a: mfma(acc, V(vF + 4 * k, 4), a, '0' if k == 0 else None), pre)
            pre = None
    pgap[pg] = g_
KVP = OPT.get('kvp')
if KVP:
    for pg in range(kv_next, 14 - len(KVP)):
        p.add(kvdma(pg))
    for n, glw in enumerate(KVP):
        ws.fill(glw, kvdma(14 - len(KVP) + n))
else:
    for pg in range(kv_next, 14):
        glw = max(pgap[max(pg - OPT.get('kvl', 14), 0)], 2 * (pg - kv_next) + 1)
        ws.fill(glw, kvdma(pg))
st = halves_sum(vS, t0) + halves_sum(vQ2, t0) + ln_consts(vS, vQ2, vMean, vStd, vR)
st += L('''
v_mul_f32 v{c}, v{m}, v{r}
v_mul_f32 v{rl}, 0x{l:x}, v{r}
v_sub_f32 v{c}, 0, v{c}
'''.format(c=t0, m=vMean, r=vR, rl=vRL, l=LOG2E))
for n, x in enumerate(st):
    ws.fill(2 + n, x)
ws.fill(28, L('ds_write_b32 v{a}, v{r}\nds_write_b32 v{a}, v{c} offset:128'.format(a=t3, r=vR, c=t0)))
for n in range(8):
    ws.fill(30 + n, I('ds_read_b128 %s, v%d offset:%d' % (V(vRr + 4 * n, 4), t4, (n & 3) * 32 + (n >> 2) * 128)))
pre_e = mean_frag(vMean, vMA) + L('''
v_lshlrev_b32 v{t0}, 3, v{u3}
v_add_u32 v{t5}, {cx}, v{t0}
v_mov_b32 v{c}, 0x{l:x}
v_mov_b32 v{u5}, v{u3}
'''.format(t0=t0, u3=u[3], t5=t5, cx=KVS * PG + 3072, c=u[4], l=LOG2E, u5=u[5]))
for n, x in enumerate(pre_e):
    ws.fill(30 + n, x)
ws.fill(40, L('''
s_lshl_b32 s3, s{w}, 8
v_add_u32 v{t4}, s3, v{t5}
s_lshl4_add_u32 s3, s{m}, s{g}
s_lshl2_add_u32 s3, s3, s{w}
s_lshl_b32 s3, s3, 9
s_add_u32 s{o2}, s3, {base}
'''.format(w=sW, t4=t4, t5=t5, m=sM, g=sG, o2=sOff2, base=WS_KVP)))
ws.fill(44, L('''
s_lshl_b32 s3, s{m}, 6
s_add_u32 s3, s3, s{w}
s_lshl_b32 s3, s3, 7
s_add_u32 s{pl}, s3, {kv}
'''.format(m=sM, w=sW, pl=sPoll, kv=C_KV * 128)))
SW2 = OPT.get('sw2', 1)
if SW2 == 1:
    ws.fill(OPT.get('swp', max(glw + 2, 40)), sweep())
QG = OPT.get('qg', (44, 49, 54, 59, 64))
for n, g_ in enumerate(QG):
    ws.fill(g_, qdma(n))
vRa, vRb = vY + 14, vY + 15
ws.fill(48, L('''
s_lshl_b32 s3, s{w}, 12
s_add_u32 s3, s3, {scr}
v_add_u32 v{t0}, s3, v{l16}
s_add_u32 s3, s{wk}, {scr}
v_add_u32 v{t1}, s3, v{l16}
'''.format(w=sW, wk=sWK, scr=SCR * PG, t0=vRa, t1=vRb, l16=vL16)))
ws.fill(glast + 2, L('''
v_accvgpr_read_b32 v{a}, a{k}
v_accvgpr_read_b32 v{b}, a{v}
ds_write_b64 v{ad}, v[{a}:{b}]
'''.format(a=t0, b=t1, k=aCK, v=aCV, ad=t4)))
xch = L('@waitlg0\ns_barrier')
for n in range(4):
    xch.append(I('ds_read_b64 %s, v%d offset:%d' % (V(vCx + 2 * n, 2), t5, 256 * n)))
ws.fill(glast + 3, xch)
for nm, at in (('_a1', 0), ('_a8', 9), ('_a16', 19), ('_a24', 29), ('_a32', 39), ('_a40', 49), ('_a48', 59)):
    ws.fill(at, mkstamp(nm))
p.add(ws.build())
stamp('A1 mfma')


def phi(acc, dst, pre):
    r = []
    for j in range(0, 16, 4):
        g = []
        for jj in (j, j + 2):
            a = acc + jj
            tp = u[0] + (jj & 2)
            g.append(pre(jj, tp) + L('''
            v_exp_f32 v{t}, v{t} clamp
            v_exp_f32 v{t1}, v{t1} clamp
            v_max_f32 v{a}, 0x{e:x}, v{a}
            v_max_f32 v{a1}, 0x{e:x}, v{a1}
            '''.format(t=tp, t1=tp + 1, a=a, a1=a + 1, e=EPS6)) + [pk('add', a, a, tp), I('v_cvt_pk_bf16_f32 v%d, v%d, v%d' % (dst + jj // 2, a, a + 1))])
        r += zip_groups(g)
    return r


vPK, vVV, aKV = vCx, vY + 24, vX + 32
BC1 = 'op_sel_hi:[1,0]'
ea = [pk('add', vCx, vCx, vCx + 2), pk('add', vCx + 4, vCx + 4, vCx + 6), pk('add', t0, vCx, vCx + 4)]
ea += L('v_mov_b32 v%d, v%d' % (t2, t1))
gv = []
for j in range(0, 16, 2):
    tp = u[0] + (j & 2)
    gv.append([pk('mul', tp, vRr + 16 + j, t2, mod=BC1), pk('fma', aV + j, aV + j, vRr + j, tp),
               I('v_cvt_pk_bf16_f32 v%d, v%d, v%d' % (vVV + j // 2, aV + j, aV + j + 1)),
               I('v_cndmask_b32 v%d, v%d, v%d, s[%d:%d]' % (vVV + j // 2, vVV + j // 2, vOnes, sMask28, sMask28 + 1))])
for j in range(0, 8, 2):
    ea += zip_groups(gv[j:j + 2])
ea += phi(aK, vPK, lambda j, tp: [pk('mul', tp, vRr + 16 + j, t0, mod=BC1), pk('fma', aK + j, aK + j, vRr + j, tp),
                                  pk('mul', tp, aK + j, u[4], mod=BC1)])
QE = OPT.get('qe', 5)
p.add(spread(ea, [qdma(n) for n in range(len(QG), QE)]) if QE > len(QG) else ea)
p.add([mfma(aKV, V(vPK, 4), V(vVV, 4), '0'), mfma(aKV, V(vPK + 4, 4), V(vVV + 4, 4))])
e('''
buffer_load_dword v{p}, off, {dbg}, 0 sc1
v_lshlrev_b32 v{t5}, 2, v{u3}
v_add_u32 v{t5}, {cx}, v{t5}
s_lshl_b32 s3, s{w}, 7
v_add_u32 v{t4}, s3, v{t5}
'''.format(w=sW, wk=sWK, scr=SCR * PG, t0=t0, t1=t1, l16=vL16, p=vP, dbg=S4(sDBG), t4=t4, t5=t5, u3=u[5], cx=KVS * PG + 2048))
for q in range(4):
    e('ds_write_b128 v%d, %s offset:%d' % (vRa, V(aKV + 4 * q, 4), q * 1024))
e('@waitlg0')
e('s_barrier')
for j in range(4):
    e('ds_read_b128 %s, v%d offset:%d' % (V(vX + 4 * j, 4), vRb, j * PG))
for (a, b) in ((0, 4), (2, 6), (8, 12), (10, 14), (0, 8), (2, 10)):
    p.add([pk('add', vX + a, vX + a, vX + b)])
e('v_cvt_pk_bf16_f32 v%d, v%d, v%d' % (vX, vX, vX + 1))
e('v_cvt_pk_bf16_f32 v%d, v%d, v%d' % (vX + 1, vX + 2, vX + 3))
e('buffer_store_dwordx2 %s, v%d, %s, s%d offen sc1' % (V(vX, 2), vL8, S4(sWS), sOff2), tag='kvp')
stamp('kv stored')
for n in range(QE, 7):
    p.add(qdma(n))
p.add(sweep() if SW2 == 2 else [])
if OPT.get('swh') == 2:
    x_ = sweep()[:5]
    x_[4] = I(x_[4].text.replace('a250', 'a248') + ' offset:128')
    p.add(x_)

W1PG = {}
W2PG = {}


def wodma(n):
    c, uu = sCh + (n >> 1), n & 1
    r = L("""
    s_lshl_b32 s{t}, s{c}, 13
    s_add_u32 s{t}, s{t}, s{wk}
    s_add_u32 m0, s{t}, {lo}
    s_mul_i32 s{o}, s{c}, 57344
    """.format(t=sT[3], c=c, wk=sWK, lo=WOP * PG + uu * PG, o=sOff))
    if uu:
        r += L('s_add_u32 s%d, s%d, 28672' % (sOff, sOff))
    return r + dma(vOffWO, sWO, 's%d' % sOff, None, 'wo')


def xrdma(uu):
    return L('s_lshl1_add_u32 s{t}, s{wk}, 0\ns_add_u32 m0, s{t}, {lo}\ns_movk_i32 s{o}, {so}'.format(
        t=sT[3], wk=sWK, lo=XRP * PG + uu * 1024, o=sOff, so=uu * 14336)) + dma(vOffXR, sX, 's%d' % sOff, None, 'xr')


def gudma(half, k, page):
    (W2PG if half else W1PG)[k] = page
    return dma(vGUo + (k & 3) + 4 * half, sGU, 's%d' % sGUt[k >> 2], page * PG, 'gu%d_%d' % (half, k))


aQ, vCQ = vX + 16, vY + 24
ws = WStream(look=5, wper=2)
for i in range(7):
    pre = None
    if i == 0:
        pre = L('@waitvm q0 q1 q2 q3 q4\ns_barrier')
    if i == 5:
        pre = L('@waitvm q5 q6\ns_barrier')
    glast = ws.step(vAdQw, i * PG, vAdQw, i * PG + 256, lambda a: mfma_ones(aCK, a, i == 0), pre)
    for ks in range(4):
        k = 4 * i + ks
        off = i * PG + ks * 1024
        ws.step(vAdQ, off, vAdQ, off + 256, lambda a: mfma(aQ, a, V(vF + 4 * k, 4), '0' if k == 0 else None))
ws.fill(OPT.get('kvs', 17), L('@waitvm kvp') + poll_check(16, '0', sDBG) + signal(sPoll))
for n in range(1, 4):
    ws.fill(2 + n, I('v_mov_b32 v%d, 0' % (vCQ + n)))
NW = OPT.get('nw', 8)
for n in range(NW):
    ws.fill(OPT.get('kvs', 17) + 1 + 2 * n, wodma(n))
for nm in OPT['st'] or ():
    if nm.startswith('_q'):
        ws.fill(int(nm[2:]), mkstamp(nm))
ws.fill(glast + 2, L('v_accvgpr_read_b32 v{a}, a{k}\nds_write_b32 v{ad}, v{a}'.format(a=t0, k=aCK, ad=t4)))
xch = L('@waitlg0\ns_barrier')
for n in range(4):
    xch.append(I('ds_read_b32 v%d, v%d offset:%d' % (vY + 28 + n, t5, 128 * n)))
ws.fill(glast + 3, xch)
p.add(ws.build())
stamp('A2 mfma')
e('''
v_add_f32 v{a}, v{y0}, v{y1}
v_add_f32 v{b}, v{y2}, v{y3}
v_add_f32 v{a}, v{a}, v{b}
'''.format(a=t0, b=t1, y0=vY + 28, y1=vY + 29, y2=vY + 30, y3=vY + 31))
p.add(hilo(t0, vCQ, t1))
p.add([mfma(aQ, V(vCQ, 4), V(vMA, 4))])
tabs = []
for n in range(8):
    tabs += L('v_add_u32 v%d, %d, v%d' % (vGUo + n, (n & 3) * 57344 + (n >> 2) * 128, vOffGU))
for i in range(7):
    tabs += L('s_mul_i32 s%d, s%d, 229376' % (sGUt[i], sCh + i))
if OPT.get('n0', 0):
    p.add(tabs)
    tabs = []
vPQ = vY
ph = phi(aQ, vPQ, lambda j, tp: [pk('mul', tp, aQ + j, vRL, mod=BC1), pk('mul', aQ + j, aQ + j, vR, mod=BC1)])
free = list(range(28, 40)) + list(range(14, 21))
N0 = OPT.get('n0', 0)
WL = OPT.get('wl', 2)
wrest = [wodma(n) for n in range(NW, 14)] + [xrdma(0), xrdma(1)]
p.add(spread(ph[:40], ([] if WL else wrest) + [gudma(0, k, free[k]) for k in range(N0)]) if (N0 or not WL) else ph[:OPT.get('php', 8)])
stamp('_ph')
p.add(poll_issue(sPoll, OPT.get('kva', 0)))
p.add(ph[40:] if (N0 or not WL) else ph[OPT.get('php', 8):])
e('v_cndmask_b32 v%d, v%d, 0, s[%d:%d]' % (vPQ + 6, vPQ + 6, sMaskHi, sMaskHi + 1))
e('v_cndmask_b32 v%d, v%d, 0, s[%d:%d]' % (vPQ + 7, vPQ + 7, sMaskHi, sMaskHi + 1))
e("""
s_lshl_b32 s3, s{m}, 15
s_lshl_b32 s4, s{w}, 9
s_add_u32 s3, s3, s4
s_add_u32 s{o2}, s3, {base}
s_lshl_b32 s5, s{gl}, 13
s_add_u32 s{o}, s{o2}, s5
v_mov_b32 v{e0}, 0x3f80
v_mov_b32 v{e1}, 0x3f800000
s_add_u32 s4, s4, {kvs}
v_add_u32 v{t0}, s4, v{l8}
v_add_u32 v{t1}, {kvs}, v{l8}
s_lshl2_add_u32 s3, s{g}, s{w}
s_lshl4_add_u32 s3, s3, s{m}
s_lshl_b32 s3, s3, 11
s_add_u32 s{st}, s3, {ob}
s_lshl1_add_u32 s3, s{w}, s{half}
s_lshl_b32 s3, s3, 7
s_add_u32 s{sig}, s3, s{cnt}
""".format(m=sM, w=sW, o=sOff, o2=sOff2, base=WS_KVP, gl=sGl, e0=u[0], e1=u[1], kvs=KVS * PG, t0=t0, t1=t1, l8=vL8,
           g=sG, st=sSt, ob=WS_O, half=sHalf, sig=sSig, cnt=sCnt))
for j in range(4):
    e('v_mov_b32 v%d, 0' % (vX + 32 + j))
stamp('q done')
p.add(poll_check(16, sPoll))
stamp('kv flag')

for gg in range(16):
    if gg and gg % 2 == 0:
        e('s_add_u32 s5, s5, 4096')
        e('s_and_b32 s5, s5, 0x7fff')
        e('s_add_u32 s%d, s%d, s5' % (sOff, sOff2))
    e('buffer_load_dwordx2 %s, v%d, %s, s%d offen%s sc1' % (V(vX + 2 * gg, 2), vL8, S4(sWS), sOff, ' offset:2048' if gg & 1 else ''))
NA = OPT.get('na', 6)
p.add(tabs)
if WL:
    for x in (wrest[::-1] if WL == 1 else wrest[-2:]):
        p.add(x)
for k in range(N0, NA):
    p.add(gudma(0, k, free[k]))
for gg in range(16):
    for d in range(2):
        e('v_dot2c_f32_bf16 v%d, v%d, v%d' % (vX + 32 + 2 * d, vX + 2 * gg + d, u[0]))
        e('v_dot2c_f32_bf16 v%d, v%d, v%d' % (vX + 33 + 2 * d, vX + 2 * gg + d, u[1]))
stamp('kv loaded')
e('v_cvt_pk_bf16_f32 v%d, v%d, v%d' % (vX, vX + 32, vX + 33))
e('v_cvt_pk_bf16_f32 v%d, v%d, v%d' % (vX + 1, vX + 34, vX + 35))
e('ds_write_b64 v%d, %s' % (t0, V(vX, 2)))
e('@waitlg0')
e('s_barrier')
vKVF = vY + 8
for q in range(4):
    e('ds_read_b64 %s, v%d offset:%d' % (V(vKVF + 2 * q, 2), t1, q * 512))
aO = vX + 16
p.add([mfma(aO, V(vKVF, 4), V(vPQ, 4), '0'), mfma(aO, V(vKVF + 4, 4), V(vPQ + 4, 4))])
e('''
v_mov_b32 v{a}, v{d}
v_mov_b32 v{b}, v{d}
v_permlane32_swap_b32 v{a}, v{b}
v_add_f32 v{b}, 0x{eps:x}, v{b}
v_rcp_f32 v{r}, v{b}
v_cndmask_b32 v{r2}, v{r}, 0, s[{mh}:{mh1}]
'''.format(a=t2, b=t3, d=aO + 12, eps=EPS6, r=u[0], r2=u[2], mh=sMaskHi, mh1=sMaskHi + 1))
for hf_ in range(2):
    for j in range(8 * hf_, 8 * hf_ + 8, 2):
        p.add([pk('mul', aO + j, aO + j, u[2] if j >= 12 else u[0], mod=BC1)])
    for j in range(4 * hf_, 4 * hf_ + 4):
        e('v_cvt_pk_bf16_f32 v%d, v%d, v%d' % (vX + j, aO + 2 * j, aO + 2 * j + 1))
    e('buffer_store_dwordx4 %s, v%d, %s, s%d offen%s sc1' % (V(vX + 4 * hf_, 4), vL16, S4(sWS), sSt, ' offset:1024' if hf_ else ''))
e('s_cmp_ge_u32 s%d, 7' % sCs)
e('s_cbranch_scc1 L_idle')
stamp('_os')
e('''
s_lshl1_add_u32 s3, s{tt}, s{kh}
s_lshl_b32 s3, s3, 7
s_add_u32 s{pl}, s3, s{cnt}
s_lshl2_add_u32 s3, s{g}, s{tt}
s_lshl1_add_u32 s4, s3, s{kh}
s_lshl_b32 s4, s4, 14
s_add_u32 s{o2}, s4, {ob}
s_lshl1_add_u32 s4, s{cs}, s{kh}
s_lshl4_add_u32 s3, s3, s4
s_lshl_b32 s4, s3, 11
s_add_u32 s{st}, s4, {hb}
s_lshl_b32 s4, s3, 8
s_add_u32 s{st2}, s4, {sb}
s_lshl_b32 s3, s{w}, 11
s_add_u32 s3, s3, {xr}
v_and_b32 v{a}, 31, v0
v_lshrrev_b32 v{b}, 5, v0
v_lshlrev_b32 v{b}, 3, v{b}
v_lshl_add_u32 v{b}, v{a}, 6, v{b}
v_add_u32 v{b}, s3, v{b}
v_lshlrev_b32 v{l8}, 3, v{a}
s_lshl_b32 s3, s{w}, 12
s_add_u32 s3, s3, {scr}
v_add_u32 v{t0}, s3, v{l16}
s_xor_b32 s4, s{w}, 2
s_lshl_b32 s4, s4, 12
s_add_u32 s4, s4, {scr}
v_add_u32 v{t1}, s4, v{l16}
'''.format(tt=sTT, kh=sKh, pl=sPoll, cnt=sCnt, g=sG, o2=sOff2, ob=WS_O, cs=sCs, st=sT[8], hb=WS_H, st2=sT[9], sb=WS_ST,
           w=sW, xr=XRP * PG, a=t2, b=t3, l8=vL8, scr=SCR * PG, t0=t0, t1=t1, l16=vL16))
e('@waitvm0')
p.add(signal(sSig))
stamp('o stored')
if OPT.get('ack'):
    e('@waitvm0')
    stamp('_ack')
if DIAG:
    e('s_mov_b32 s%d, %d' % (sIter, OPT['spin'] + 1))
if STOP <= 1:
    e('s_branch L_fin')

if WL == 1:
    e('s_barrier')
if WL == 2:
    for x in wrest[:-2]:
        p.add(x)
NB = OPT.get('nb', 10)
for k in range(NA, NB):
    p.add(gudma(0, k, free[k]))
PP = OPT.get('pp', 0)
if OPT.setdefault('od', 0):
    e('s_sleep %d' % OPT['od'])
p.add(poll_pipe_issue(sPoll) if PP else poll_issue(sPoll))
stamp('_op')
for bq in range(4):
    e('ds_read_b64 %s, v%d offset:%d' % (V(vY + 2 * bq, 2), t3, 16 * bq))
for j in range(8):
    e('v_lshlrev_b32 v%d, 16, v%d' % (vX + 2 * j, vY + j))
    e('v_and_b32 v%d, 0xffff0000, v%d' % (vX + 1 + 2 * j, vY + j))
e('s_lshl_b32 s3, s%d, 7' % sTT)
e('s_add_u32 s3, s3, s%d' % sCnt)
e('s_add_u32 s%d, s3, %d' % (sSig, C_H * 128))
e('v_mov_b32 v%d, 0' % vS)
e('v_mov_b32 v%d, 0' % vQ2)
sOr = sT[4]
e('''
s_mul_i32 s3, s{kh}, 26624
v_subrev_u32 v{d0}, s3, v{w0}
v_subrev_u32 v{d1}, s3, v{w1}
s_mul_i32 s3, s{cs}, 3584
v_add_u32 v{w0}, s3, v{w0}
v_add_u32 v{w1}, s3, v{w1}
v_add_u32 v{p0}, s3, v{p0}
v_add_u32 v{p1}, s3, v{p1}
s_lshl_b32 s{r}, s{cs}, 11
s_sub_u32 s{r}, s{r}, 2048
s_mov_b32 s6, -25088
'''.format(kh=sKh, d0=vAdD, d1=vAdD + 1, w0=vAdWO, w1=vAdWO + 1, p0=vAdWOp, p1=vAdWOp + 1, cs=sCs, r=sOr))
p.add(poll_pipe_check(8, sPoll) if PP else poll_check(8, sPoll))
stamp('o flag')
if DIAG:
    e('s_sub_u32 s101, %d, s%d' % (OPT['spin'] + 1, sIter))


def oload(j):
    r = []
    if j % 2 == 0:
        r += L('s_add_u32 s{t}, s{t}, 2048\ns_and_b32 s{t}, s{t}, 0x3fff\ns_add_u32 s{o}, s{t}, s{b}'.format(t=sOr, o=sOff, b=sOff2))
    r.append(I('buffer_load_dwordx4 %s, v%d, %s, s%d offen%s sc1' % (A(aF + 4 * j, 4), vL16, S4(sWS), sOff, ' offset:1024' if j % 2 else '')))
    return r


for j in range(8):
    p.add(oload(j))
if WL == 2:
    e('s_barrier')
stamp('_ol')
ws = WStream()
TL = OPT.get('tl', 4)
bo = [(j, ft) for j in range(16 - TL) for ft in range(2)] + [(j, 1) for j in range(16 - TL, 16)] + [(j, 0) for j in range(16 - TL, 16)]
for j, ft in bo:
    hh, s = j >> 1, j & 1
    if 1:
        pre = []
        if s == 0 and hh and (ft == 0 or j >= 16 - TL):
            pre += L('s_cmp_eq_u32 s{c}, {n}\ns_cselect_b32 s{d}, s{wrap}, 3584'.format(c=sCs, n=8 - hh, d=sT[2], wrap=sT[3]))
        if hh:
            r_ = (vAdWO if s == 0 else vAdWOp) + ft
            pre += L('v_add_u32 v%d, s%d, v%d' % (r_, sT[2], r_))
        a1_ = (vAdWOp if s == 1 else vAdWO) + ft
        ws.step(vAdWO + ft, WOP * PG + 16 * s * 128, a1_, WOP * PG + (16 * s + 8) * 128,
                lambda a: mfma(vX + 16 * ft, a, A(aF + 4 * j, 4), '0' if (j == 0 and ft == 1) else None), pre)
assert TL in (0, 2, 4)
for j in range(8, 16):
    ws.fill(j - 8, oload(j))
ws.fill(0, mkstamp('_b0'))
ws.fill(15, mkstamp('_b16'))
ws.fill(8, sweep3())
for n, k in enumerate(range(NB, 19)):
    ws.fill(9 + (OPT.get('bsp', 18) * n) // (19 - NB), gudma(0, k, free[k]))
xw_ = [I('ds_write_b128 v%d, %s offset:%d' % (t0, V(vX + 16 + 4 * q, 4), q * 1024)) for q in range(4)]
xr_ = L('@waitlg0\ns_barrier') + [I('ds_read_b128 %s, v%d offset:%d' % (V(vX + 32 + 4 * q, 4), t1, q * 1024)) for q in range(4)]
if TL >= 4:
    ws.fill(33 - TL, xw_)
    ws.fill(31, xr_)
    p.add(ws.build())
else:
    p.add(ws.build() + xw_ + xr_)
stamp('_bm')
for hf_ in range(2):
    for j in range(8 * hf_, 8 * hf_ + 8, 2):
        p.add([pk('add', vX + j, vX + j, vX + 32 + j)])
    for j in range(4 * hf_, 4 * hf_ + 4):
        e('v_cvt_pk_bf16_f32 v%d, v%d, v%d' % (vY + j, vX + 2 * j, vX + 2 * j + 1))
    e('buffer_store_dwordx4 %s, v%d, %s, s%d offen%s sc1' % (V(vY + 4 * hf_, 4), vL16, S4(sWS), sT[8], ' offset:1024' if hf_ else ''))
for j in range(8):
    e('v_dot2c_f32_bf16 v%d, v%d, v%d' % (vS, vY + j, vOnes))
    e('v_dot2c_f32_bf16 v%d, v%d, v%d' % (vQ2, vY + j, vY + j))
p.add(zip_groups([halves_sum(vS, t2), halves_sum(vQ2, t3)]))
e('buffer_store_dwordx2 %s, v%d, %s, s%d offen sc1' % (V(vS, 2), vL8, S4(sWS), sT[9]))
stamp('_hs')
for j in range(8):
    e('v_accvgpr_write_b32 a%d, v%d' % (aH + j, vY + j))
e('''
v_bfe_u32 v{r}, v0, 2, 2
v_bfe_u32 v{iu}, v0, 4, 1
v_lshrrev_b32 v{hf}, 5, v0
v_lshl_add_u32 v{a}, v{hf}, 2, v{r}
v_lshlrev_b32 v{a}, 7, v{a}
v_lshl_add_u32 v{a}, v{iu}, 11, v{a}
v_and_b32 v{b}, 1, v0
v_lshl_add_u32 v{a}, v{b}, 3, v{a}
v_lshrrev_b32 v{b}, 1, v{r}
v_lshl_add_u32 v{b}, v{iu}, 1, v{b}
v_lshlrev_b32 v{b}, 1, v{b}
v_bfe_u32 v{c}, v0, 1, 1
v_xor_b32 v{b}, v{b}, v{c}
'''.format(r=u[0], iu=u[1], hf=u[2], a=t2, b=t3, c=t4))
for t in range(4):
    e('v_xor_b32 v%d, %d, v%d' % (t4, 2 * t, t3))
    e('v_lshl_add_u32 v%d, v%d, 4, v%d' % (vAdC + t, t4, t2))
sHb, sHo, sStL, sHHst, sCSp = sT[5], sT[6], sT[7], sT[10], sT[4]
e('''
s_movk_i32 s3, 1792
v_mad_u32_u24 v{a}, v{hf}, s3, v{l8}
v_lshlrev_b32 v{l8}, 1, v{l8}
s_lshl2_add_u32 s3, s{g}, s{w}
s_lshl_b32 s4, s3, 12
s_add_u32 s{stl}, s4, {sb}
s_lshl_b32 s4, s3, 15
s_add_u32 s{hb}, s4, {hbase}
s_mul_i32 s3, s3, 14
s_add_u32 s3, s3, s{am}
s_lshl_b32 s3, s3, 13
s_add_u32 s{hst}, s3, {hh}
s_lshl_b32 s3, s{w}, 7
s_add_u32 s3, s3, s{cnt}
s_add_u32 s{pl}, s3, {ch}
s_lshl_b32 s3, s{am}, 13
s_add_u32 s{csp}, s3, {cc}
'''.format(kh=sKh, d0=vAdD, d1=vAdD + 1, w0=vAdWO, w1=vAdWO + 1, a=t4, hf=u[2], l8=vL8, g=sG, w=sW, stl=sStL, sb=WS_ST,
           hb=sHb, hbase=WS_H, am=sA, hst=sHHst, hh=WS_HH, cnt=sCnt, pl=sPoll, ch=C_H * 128, csp=sCSp, cc=C_CS * 128))
e('@waitvm0')
H1S = OPT.get('h1s', 1)
if H1S:
    e('s_barrier')
    e('s_cmp_ge_u32 s%d, 2' % sW)
    e('s_cbranch_scc1 L_nohs')
    for x in signal(sSig):
        x.raw = True
        p.add([x])
    e('L_nohs:')
else:
    p.add(signal(sSig))
stamp('h stored')
if STOP <= 2:
    e('s_branch L_fin')

NC = OPT.get('nc', 2)
N1 = OPT.get('n1', 9)
w1late = [gudma(0, k, n) for n, k in enumerate(range(19, 28))]
for x in w1late[:N1]:
    p.add(x)
for k in range(NC):
    p.add(gudma(1, k, 9 + k))
if OPT.get('hd'):
    e('s_sleep %d' % OPT['hd'])
p.add(poll_pipe_issue(sPoll) if PP else poll_issue(sPoll))
stamp('_hp')
for n in range(8):
    e('v_add_u32 v%d, %d, v%d' % (vWDo + n, n * 14336, vOffWD))
e('v_add_u32 v%d, 4096, v%d' % (vL16b, vL16))
e('''
s_lshl2_add_u32 s3, s{g}, s{tt}
s_lshl1_add_u32 s3, s3, s{kh}
s_mul_i32 s3, s3, 57344
s_add_u32 s4, s3, {base}
s_lshl1_add_u32 s3, s{w}, s{half}
s_lshl_b32 s3, s3, 9
s_add_u32 s3, s3, s{cnt}
s_add_u32 s{sig}, s3, {chh}
s_lshl1_add_u32 s3, s{tt}, s{kh}
s_lshl_b32 s3, s3, 9
s_add_u32 s3, s3, s{cnt}
s_add_u32 s{st}, s3, {chh}
'''.format(g=sG, tt=sTT, kh=sKh, base=WS_HH, w=sW, half=sHalf, cnt=sCnt, sig=sSig, chh=C_HH * 128, st=sSt))
for i in range(7):
    e('s_mul_i32 s%d, s%d, 114688' % (sWDt[i], sCh + i))
    e('s_lshl_b32 s3, s%d, 13' % (sCh + i))
    e('s_add_u32 s%d, s3, s4' % sHHt[i])
e('v_accvgpr_write_b32 a%d, 0' % (aCS + 16))
e('v_accvgpr_write_b32 a%d, 0' % (aCS + 17))


def hload(k):
    r = []
    if k % 4 == 0:
        r += L('s_lshl_b32 s%d, s%d, 12\ns_add_u32 s%d, s%d, s%d' % (sHo, sCh + k // 4, sHo, sHo, sHb))
    r.append(I('buffer_load_dwordx4 %s, v%d, %s, s%d offen%s sc1' % (A(aF + 4 * k, 4), vL16, S4(sWS), sHo, ' offset:%d' % (1024 * (k % 4)) if k % 4 else '')))
    return r


h0 = hload(0)
p.add(h0[:-1])
p.add(poll_pipe_check(14, sPoll) if PP else poll_check(7 if H1S else 14, sPoll))
stamp('h flag')
HL = OPT.get('hl', 8)
p.add(h0[-1:])
for k in range(1, HL):
    p.add(hload(k))


class Win:
    def __init__(self, regs):
        self.cur = {r: 0 for r in regs}

    def fix(self, reg, off):
        base = (off // 61440) * 61440
        pre = []
        if self.cur[reg] != base:
            d = base - self.cur[reg]
            pre.append(I('v_add_u32 v%d, %d, v%d' % (reg, d, reg)) if d > 0 else I('v_subrev_u32 v%d, %d, v%d' % (reg, -d, reg)))
            self.cur[reg] = base
        return pre, off - base


winC = Win([vAdC + t for t in range(4)])
winD = Win([vAdD, vAdD + 1])
cA, cS = vCc, vCc + 2
acc_of = {0: vX, 1: vX + 16, 2: vY, 3: vY + 16, 4: 200, 5: 216, 6: vX, 7: vX + 16}


def hhstore(tile):
    d = u[8] + (tile & 1) * 4
    return [I('buffer_store_dwordx4 %s, v%d, %s, s%d offen%s sc1' % (V(d, 4), vL16b if tile >= 4 else vL16, S4(sWS), sHHst,
                                                                     ' offset:%d' % (1024 * (tile & 3)) if tile & 3 else ''), tag='hh%d' % tile)]


def eslots(tiles):
    slots = {}

    def put(sl, x):
        slots.setdefault(sl, []).append(x)
    n = 0
    for tile in tiles:
        acc = acc_of[tile]
        for el in range(8):
            tp = u[n % 6]
            put(2 * n, I('v_mul_f32 v%d, v%d, v%d' % (tp, cA, acc + el)))
            put(2 * n + 1, I('v_exp_f32 v%d, v%d' % (tp, tp)))
            put(2 * n + 2, I('v_fma_f32 v%d, v%d, v%d, v%d' % (tp, tp, cS, cS)))
            put(2 * n + 4, I('v_rcp_f32 v%d, v%d' % (tp, tp)))
            put(2 * n + 5, I('v_mul_f32 v%d, v%d, v%d' % (tp, tp, acc + 8 + el)))
            if el & 1:
                put(2 * n + 7, I('v_cvt_pk_bf16_f32 v%d, v%d, v%d' % (u[8] + (tile & 1) * 4 + el // 2, u[(n - 1) % 6], tp)))
            if el == 7:
                put(2 * n + 8, hhstore(tile))
            n += 1
    out = []
    for k in range(max(slots) + 1):
        sl = slots.get(k, [])
        sl.sort(key=lambda x: 0 if (not isinstance(x, list) and x.op in ('v_exp_f32', 'v_rcp_f32')) else 1)
        out.append(sl)
    return out


def efast(tile, tb=u[0]):
    acc = acc_of[tile]
    g = []
    for j in range(0, 8, 2):
        tp = tb + j
        g.append([pk('mul', tp, acc + j, cA, mod=BC1)] + L('v_exp_f32 v{t}, v{t}\nv_exp_f32 v{t1}, v{t1}'.format(t=tp, t1=tp + 1)) +
                 [pk('fma', tp, tp, cS, cS, mod='op_sel_hi:[1,0,0]')] + L('v_rcp_f32 v{t}, v{t}\nv_rcp_f32 v{t1}, v{t1}'.format(t=tp, t1=tp + 1)) +
                 [pk('mul', tp, tp, acc + 8 + j), I('v_cvt_pk_bf16_f32 v%d, v%d, v%d' % (u[8] + (tile & 1) * 4 + j // 2, tp, tp + 1))])
    return zip_groups(g)


def hhsig(stage):
    return L('@waitvm hh%d hh%d' % (2 * stage, 2 * stage + 1)) + signal(sSig, stage * 128)


D_ORDER = [(j, 2 * st_ + t) for st_ in range(4) for j in range(7) for t in range(2)] if OPT.get('jm', 1) else [(j, t) for t in range(8) for j in range(7)]
WDPG = {}
wd_next = [0]


def wddma(page):
    n = wd_next[0]
    wd_next[0] += 1
    j, t = D_ORDER[n]
    WDPG[n] = page
    return dma(vWDo + t, sWD, 's%d' % sWDt[j], page * PG, 'wd%d' % n)


def hhreg(n):
    return A(aR + 4 * n, 4) if n < 21 else (V(vHH + 4 * (n - 21), 4) if n < 28 else A(aF + 4 * (n - 28), 4))


def hhpoll(stage):
    return L('s_add_u32 s%d, s%d, %d' % (sPoll, sSt, stage * 128)) + poll_issue(sPoll, stage in OPT.get('hha', (0, 1, 2, 3)))


def hhload(n):
    j, t = D_ORDER[n]
    return [I('buffer_load_dwordx4 %s, v%d, %s, s%d offen%s sc1' % (hhreg(n), vL16b if t >= 4 else vL16, S4(sWS), sHHt[j],
                                                                     ' offset:%d' % (1024 * (t & 3)) if t & 3 else ''))]


ws = WStream()
BSTEP = OPT.get('bstep', 4)
DL = OPT.get('dl', 12)
freed = [(0, pg) for pg in list(range(9 + NC, 14)) + list(range(21, 28))]
carry = []
XG = OPT.get('xg', 8)
order = [(0, k) for k in range(28)] + [(1, k) for k in range(28)]
for k in range(28 + DL):
    if k < 28:
        order.append((2, k))
    if k >= DL:
        order.append((3, k - DL))
PEND = {}
for ps, k in order:
    tl = (2 * ps, 2 * ps + 1)
    if (ps, k) == (2, 0):
        todo = list(range(NC, 28))
        dslot = 2 * (28 - HL) - 1
        for gfree, pg in freed:
            dslot = max(dslot + 2, gfree + 1)
            ws.fill(dslot, gudma(1, todo.pop(0), pg) if todo else wddma(pg))
        DSLOT1 = dslot
    for t in tl:
        pre = []
        if ps == 0 and t == 0 and k == 0:
            pre += L('@waitvm ' + ' '.join('gu0_%d' % j for j in range(19 + N1)) + '\ns_barrier')
        if ps == 0 and t == 0 and k == 19 + N1:
            pre += L('@waitvm ' + ' '.join('gu0_%d' % j for j in range(19 + N1, 28)) + '\ns_barrier')
        if ps == 2 and t == tl[0] and k in (0, 10, 19):
            hi = {0: 10, 10: 19, 19: 28}[k]
            pre += L('@waitvm ' + ' '.join('gu1_%d' % j for j in range(k, hi)) + '\ns_barrier')
        pr, off = winC.fix(vAdC + (t & 3), (W1PG if ps < 2 else W2PG)[k] * PG)
        g_ = ws.step(vAdC + (t & 3), off, vAdC + (t & 3), off + 1024,
                     lambda a: mfma(acc_of[t], a, A(aF + 4 * k, 4), '0' if k == 0 else None), pre + pr)
    if ps == 0 and k + HL < 28:
        ws.fill(2 * k, hload(k + HL))
    if ps & 1 and k % BSTEP == BSTEP - 1:
        ws.fill(g_, L('s_barrier'))
        (freed if ps == 1 else carry).extend((g_, (W1PG if ps == 1 else W2PG)[kk]) for kk in range(k - BSTEP + 1, k + 1))
    if ps == 1 and k == XG - 1:
        for t in (0, 1):
            X0END = ws.extra(mfma(acc_of[t], A(aCS + 2 * t, 4), V(vMF, 4)))
    if k == 27:
        if ps:
            for t in tl:
                g_ = ws.extra(mfma(acc_of[t], A(aCS + 2 * t, 4), V(vMF, 4)))
        PEND[ps] = g_
P1END, P2END, P3END, P4END = PEND = [PEND[n] for n in range(4)]
for n, x in enumerate(w1late[N1:]):
    ws.fill(1 + 2 * n, x)
for i in range(7):
    ws.fill(1 + 2 * (i + 9 - N1), [I('buffer_load_dwordx2 %s, v%d, %s, s%d offen offset:%d sc1' % (V(vSt + 2 * i, 2), t4, S4(sWS), sStL, 256 * i))])
g1 = X0END - 16
ws.fill(g1 - OPT.get('csd', 24), poll_issue(sCSp, OPT.get('csa', 1)))
cs = poll_check(4, sCSp) + L('s_lshl_b32 s3, s%d, 11\ns_add_u32 s3, s3, %d' % (sA, WS_CS))
for n in range(4):
    cs.append(I('buffer_load_dwordx4 %s, v%d, %s, s3 offen offset:%d sc1' % (A(aCS + 4 * n, 4), vL8, S4(sWS), 512 * n)))
ws.fill(g1, cs)
st = []
for (a, b) in ((0, 2), (4, 6), (8, 10), (0, 4), (8, 12), (0, 8)):
    st += L('v_add_f32 v{a}, v{a}, v{b}\nv_add_f32 v{a1}, v{a1}, v{b1}'.format(a=vSt + a, b=vSt + b, a1=vSt + a + 1, b1=vSt + b + 1))
st += halves_sum(vSt, t2) + halves_sum(vSt + 1, t2) + ln_consts(vSt, vSt + 1, vMean, cS, vR)
st += L('v_mul_f32 v%d, 0x%x, v%d' % (cA, NEGL, vR)) + mean_frag(vMean, vMF)
for n, x in enumerate(st):
    ws.fill(X0END - 24 + n // 2, x)
assert len(st) // 2 < 22
SIGD = OPT.get('sigd', 20)
sig_at = []
spill = []
for stg, e0 in enumerate((X0END + 1, P2END + 1, P3END + 1)):
    es = eslots((2 * stg, 2 * stg + 1))
    for n, sl in enumerate(es):
        for x in sl:
            if e0 + n <= P4END:
                ws.fill(e0 + n, x)
            else:
                spill += x if isinstance(x, list) else [x]
    if stg == 0:
        assert e0 + 34 <= P2END + 1, 'temporaries of consecutive epilogues overlap'
    sig_at.append(e0 + len(es) - 1 + SIGD)
for stg in range(2):
    ws.fill(sig_at[stg], hhsig(stg))
late2 = sig_at[2] - 4 > P4END
if not late2:
    ws.fill(min(sig_at[2], P4END), hhsig(2))
PD = OPT.get('pd', 22)
CD = OPT.get('cd', 24)
busy = set()
for stg in range(2):
    ws.fill(sig_at[stg] + PD, hhpoll(stg))
    hchk = sig_at[stg] + PD + CD
    ws.fill(hchk, poll_check(7, sPoll))
    g_ = hchk - 1
    for n in range(14 * stg, 14 * stg + 14):
        g_ += 2
        if g_ <= P4END:
            ws.fill(g_, hhload(n))
            busy.add(g_)
            HHN = n + 1
    if stg == 0:
        H0 = hchk
    else:
        H1 = hchk
g_ = DSLOT1
while carry:
    g_ = max(g_ + 2, carry[0][0] + 1)
    while g_ in busy or g_ - 1 in busy or g_ + 1 in busy:
        g_ += 1
    if g_ > P4END:
        break
    ws.fill(g_, wddma(carry.pop(0)[1]))
D0 = vX + 32
dinit = []
for j in range(8):
    dinit += L('v_accvgpr_read_b32 v{t}, a{h}\nv_lshlrev_b32 v{a}, 16, v{t}\nv_and_b32 v{b}, 0xffff0000, v{t}'.format(
        t=t2, h=aH + j, a=D0 + 2 * j, b=D0 + 1 + 2 * j))
for n, x in enumerate(dinit):
    ws.fill(2 + n, x)
for nm in OPT['st'] or ():
    if nm.startswith('_g'):
        ws.fill(int(nm[2:]), mkstamp(nm))
for nm, at in (('_m0', 0), ('P1', P1END), ('P2', P2END), ('P3', P3END), ('_h0', H0 - 1), ('_h1', H0 + 1), ('_h2', H1 - 1), ('_h3', H1 + 1)):
    ws.fill(at, mkstamp(nm))
p.add(ws.build())
stamp('P4')
p.add(spill)
stamp('_sp')
WPRE = wd_next[0]
rest = [hhload(n) for n in range(HHN, 28)] + [wddma(pg) for _, pg in carry]
carry = []
NE = min(OPT.get('ne', 0), len(rest))
ef = zip_groups([efast(6, vSt + 8), efast(7, vSt)])
p.add((spread(ef[:40], rest[:NE]) if NE else ef[:40]) + ef[40:56])
rest = rest[NE:]
if late2 and not OPT.get('s2l', 1):
    p.add(hhsig(2))
p.add(ef[56:] + hhstore(6) + hhstore(7))
stamp('_st7')
if late2 and OPT.get('s2l', 1):
    p.add(hhsig(2))
NP = OPT.get('np', 3)
for x in rest[:NP]:
    p.add(x)
rest = rest[NP:]
stamp('_e7')
if STOP <= 3:
    p.add(hhsig(3))
    e('s_branch L_fin')

ws = WStream()
res0 = wd_next[0]
assert wd_next[0] == 40
refill = []
for n in range(16):
    refill.append(wddma(WDPG[n]))
wmid = (WPRE + 40) // 2
wpts = {0: WPRE, WPRE: wmid, wmid: 40, 40: 48, 48: 56}
TD = OPT.get('td', 4)
for n, ft in [(n, ft) for n in range(56 - TD) for ft in range(2)] + [(n, 1) for n in range(56 - TD, 56)] + [(n, 0) for n in range(56 - TD, 56)]:
    if 1:
        pre = []
        if ft == 0 and n in wpts:
            pre += L('@waitvm ' + ' '.join('wd%d' % q for q in range(n, wpts[n])) + '\ns_barrier')
        pr, off = winD.fix(vAdD + ft, WDPG[n] * PG)
        ws.step(vAdD + ft, off, vAdD + ft, off + 1024,
                lambda a: mfma(D0 + 16 * ft, a, hhreg(n), '0' if (n == 0 and ft == 1) else None), pre + pr)
ws.fill(15, L('s_barrier'))
ws.fill(31, L('s_barrier'))
D3 = OPT.get('d3', 8)
seq = [(x, 0) for x in rest]
pos = -1.0
DSTEP = OPT.get('dstep', 1.4)
while seq and pos + DSTEP < D3:
    pos += DSTEP
    ws.fill(int(pos), seq.pop(0)[0])
s3_ = hhsig(3)
P2A = OPT.get('p2a', 0)
ws.fill(D3, s3_[:1] + ([] if P2A else hhpoll(2)) + s3_[1:] + mkstamp('hh stored'))
if P2A:
    ws.fill(P2A, hhpoll(2))
pos = D3
seq += [(x, 16) for x in refill[:8]]
seq += [(poll_check(7, sPoll) + hhload(28), OPT.get('d2', 28))] + [(hhload(n), 0) for n in range(29, 38)]
seq += [(hhpoll(3), OPT.get('d4', 40))] + [(hhload(n), 0) for n in range(38, 42)]
seq += [(x, 32) for x in refill[8:]]
seq += [(poll_check(7, sPoll) + hhload(42), OPT.get('d5', 56))] + [(hhload(n), 0) for n in range(43, 56)]
for grp, earliest in seq:
    pos = max(pos + DSTEP, earliest)
    ws.fill(int(pos), grp)
DPOS = pos
XB = [b for b in range(0, 35) if all(not (b <= WDPG[n] < b + 6) for n in range(47, 56))][0]
FL = OPT.get('fl', 1)
fin = L('''
s_lshl_b32 s3, s{w}, 12
s_xor_b32 s4, s3, 8192
s_add_u32 s3, s3, {xb}
s_add_u32 s4, s4, {xb}
v_add_u32 v{t0}, s3, v{l16}
v_add_u32 v{t1}, s4, v{l16}
'''.format(w=sW, t0=t0, t1=t1, l16=vL16, xb=XB * PG))
if FL:
    fin2 = L('''
    v_and_b32 v{a}, 31, v0
    v_lshrrev_b32 v{b}, 5, v0
    s_lshl_b32 s3, s{kh}, 2
    v_add_u32 v{b}, s3, v{b}
    v_xor_b32 v{b}, v{b}, v{a}
    v_and_b32 v{b}, 7, v{b}
    v_lshlrev_b32 v{a}, 7, v{a}
    v_lshl_add_u32 v{a}, v{b}, 4, v{a}
    s_lshl_b32 s3, s{th}, 12
    s_add_u32 s3, s3, {tb}
    v_add_u32 v{wa}, s3, v{a}
    v_xor_b32 v{wb}, 32, v{wa}
    '''.format(a=t2, b=t3, kh=sKh, th=sTh, tb=(XB + 4) * PG, wa=u[0], wb=u[1]))
    fin3 = L('''
    v_lshrrev_b32 v{a}, 3, v0
    v_xor_b32 v{b}, v{a}, v0
    v_and_b32 v{b}, 7, v{b}
    v_lshlrev_b32 v{b}, 4, v{b}
    v_lshl_add_u32 v{b}, v{a}, 7, v{b}
    s_lshl_b32 s3, s{w}, 11
    s_add_u32 s3, s3, {tb}
    v_add_u32 v{ra}, s3, v{b}
    v_mul_u32_u24 v{a}, 896, v{a}
    v_and_b32 v{b}, 7, v0
    v_lshl_add_u32 v{a}, v{b}, 4, v{a}
    s_lshl1_add_u32 s3, s{g}, s{half}
    s_lshl2_add_u32 s3, s3, s{w}
    s_mul_i32 s3, s3, 14336
    s_lshl_b32 s4, s{cs}, 7
    s_add_u32 s{o}, s3, s4
    s_add_u32 s{o1}, s{o}, 7168
    '''.format(a=t2, b=t3, w=sW, tb=(XB + 4) * PG, ra=u[2], g=sG, half=sHalf, cs=sCs, o=sOff2, o1=sOff))
    ws.fill(92, fin2)
    ws.fill(94, fin3)
else:
    fin += L('''
    s_lshl2_add_u32 s3, s{g}, s{tt}
    s_mul_i32 s3, s3, 28672
    s_lshl1_add_u32 s4, s{cs}, s{kh}
    s_lshl_b32 s4, s4, 6
    s_add_u32 s{o}, s3, s4
    v_and_b32 v{a}, 31, v0
    v_mul_u32_u24 v{a}, 896, v{a}
    v_lshrrev_b32 v{b}, 5, v0
    v_lshl_add_u32 v{a}, v{b}, 4, v{a}
    '''.format(g=sG, tt=sTT, cs=sCs, kh=sKh, o=sOff2, a=t2, b=t3))
ws.fill(96, fin)
for nm in OPT['st'] or ():
    if nm.startswith('_d'):
        ws.fill(int(nm[2:]), mkstamp(nm))
for nm, at in (('D0', 27), ('D1', 55), ('D2', 83)):
    ws.fill(at, mkstamp(nm))
ws.fill(95, L('s_barrier'))
xw_ = [I('ds_write_b128 v%d, %s offset:%d' % (t0, V(D0 + 16 + 4 * q, 4), q * 1024)) for q in range(4)]
xr_ = L('@waitlg0\ns_barrier') + [I('ds_read_b128 %s, v%d offset:%d' % (V(vX + 4 * q, 4), t1, q * 1024)) for q in range(4)]
if TD >= 3:
    ws.fill(112 - TD + 1, xw_)
    ws.fill(111, xr_)
    p.add(ws.build())
else:
    p.add(ws.build() + xw_ + xr_)
stamp('D mfma')
for hf_ in range(2):
    for j in range(8 * hf_, 8 * hf_ + 8, 2):
        p.add([pk('add', D0 + j, D0 + j, vX + j)])
    for j in range(4 * hf_, 4 * hf_ + 4):
        e('v_cvt_pk_bf16_f32 v%d, v%d, v%d' % (vY + j, D0 + 2 * j, D0 + 2 * j + 1))
    bb = 4 * hf_
    e('v_permlane32_swap_b32 v%d, v%d' % (vY + bb, vY + bb + 2))
    e('v_permlane32_swap_b32 v%d, v%d' % (vY + bb + 1, vY + bb + 3))
    if FL:
        e('ds_write_b128 v%d, %s' % (u[hf_], V(vY + bb, 4)))
    else:
        e('buffer_store_dwordx4 %s, v%d, %s, s%d offen%s%s' % (V(vY + bb, 4), t2, S4(sOUT), sOff2, ' offset:32' if hf_ else '', OPT.get('outm', '')))
if FL:
    e('@waitlg0')
    e('s_barrier')
    for q in range(2):
        e('ds_read_b128 %s, v%d offset:%d' % (V(vY + 8 + 4 * q, 4), u[2], 1024 * q))
    for q in range(2):
        e('buffer_store_dwordx4 %s, v%d, %s, s%d offen%s' % (V(vY + 8 + 4 * q, 4), t2, S4(sOUT), sOff if q else sOff2, OPT.get('outm', ' sc1')))
e('s_branch L_fin')

main_ins = p.ins
p.ins = []
e('L_idle:')
e('''
s_lshl1_add_u32 s6, s{g}, s{half}
s_cmp_lt_u32 s6, 28
s_cselect_b32 s{gu2}, 1605632, 0
s_mul_i32 s3, s{th}, 802816
s_lshl_b32 s4, s6, 7
s_add_u32 s{o}, s3, s4
v_lshrrev_b32 v{a}, 3, v0
v_mul_u32_u24 v{a}, 3584, v{a}
v_and_b32 v{b}, 7, v0
v_lshl_add_u32 v{a}, v{b}, 4, v{a}
v_mov_b32 v{e0}, 0x3f80
v_mov_b32 v{e1}, 0x3f800000
'''.format(g=sG, half=sHalf, gu2=sGU + 2, th=sTh, o=sOff, a=t0, b=t1, e0=u[0], e1=u[1]))
for n in range(28):
    e('buffer_load_dwordx4 %s, v%d, %s, s%d offen' % (V(vF + 4 * n, 4), t0, S4(sGU), sOff))
    e('s_add_u32 s%d, s%d, 28672' % (sOff, sOff))
    if n == OPT.get('ipre', 0):
        e('s_waitcnt vmcnt(%d)' % (n + 1))
        p.add(signal(sSig))
        stamp('_i0')
        e('s_barrier')
        e('s_cmp_ge_u32 s6, 28')
        e('s_cbranch_scc1 L_idle2')
stamp('_i1')
for j in range(8):
    e('v_mov_b32 v%d, 0' % (vY + j))
for n in range(28):
    for d in range(4):
        e('v_dot2c_f32_bf16 v%d, v%d, v%d' % (vY + 2 * d, vF + 4 * n + d, u[0]))
        e('v_dot2c_f32_bf16 v%d, v%d, v%d' % (vY + 2 * d + 1, vF + 4 * n + d, u[1]))
stamp('_i2')
for j in range(8):
    e('v_mov_b32 v%d, v%d' % (vY + 8 + j, vY + j))
for j in range(8):
    e('v_permlane32_swap_b32 v%d, v%d' % (vY + 8 + j, vY + j))
for j in range(8):
    e('v_add_f32 v%d, v%d, v%d' % (vY + j, vY + j, vY + 8 + j))
for j in range(8):
    e('v_mov_b32 v%d, v%d' % (vY + 8 + j, vY + j))
for j in range(8):
    e('v_permlane16_swap_b32 v%d, v%d' % (vY + 8 + j, vY + j))
for j in range(8):
    e('v_add_f32 v%d, v%d, v%d' % (vY + j, vY + j, vY + 8 + j))
for j in range(8):
    e('v_add_f32_dpp v%d, v%d, v%d row_ror:8 row_mask:0xf bank_mask:0xf' % (vY + 8 + j, vY + j, vY + j))
e('''
s_lshl_b32 s3, s{w}, 8
v_lshl_add_u32 v{a}, v{b}, 5, s3
ds_write_b128 v{a}, {r0}
ds_write_b128 v{a}, {r1} offset:16
s_waitcnt lgkmcnt(0)
s_barrier
v_bfe_u32 v{a}, v0, 4, 1
v_lshlrev_b32 v{a}, 9, v{a}
v_and_b32 v{b}, 15, v0
v_lshl_add_u32 v{a}, v{b}, 2, v{a}
v_lshrrev_b32 v{b}, 5, v0
v_lshl_add_u32 v{a}, v{b}, 7, v{a}
ds_read_b32 v{y0}, v{a}
ds_read_b32 v{y1}, v{a} offset:256
ds_read_b32 v{y2}, v{a} offset:64
ds_read_b32 v{y3}, v{a} offset:320
v_mov_b32 v{x1}, 0
v_mov_b32 v{x3}, 0
s_lshl_b32 s3, s6, 10
s_add_u32 s3, s3, {base}
s_lshr_b32 s4, s6, 1
s_lshl_b32 s4, s4, 13
s_add_u32 s4, s4, {cc}
v_add_f32 v{y0}, v{y0}, v{y1}
v_add_f32 v{y2}, v{y2}, v{y3}
'''.format(w=sW, a=t0, b=t1, r0=V(vY + 8, 4), r1=V(vY + 12, 4), y0=vY, y1=vY + 1, y2=vY + 2, y3=vY + 3, x1=vX + 1, x3=vX + 3,
           base=WS_CS, cc=C_CS * 128))
p.add(hilo(vY, vX, t2) + hilo(vY + 2, vX + 2, t2))
stamp('_i3')
e('s_cmp_ge_u32 s%d, 2' % sW)
e('s_cbranch_scc1 L_idle1')
e('buffer_store_dwordx4 %s, v%d, %s, s3 offen sc1' % (V(vX, 4), vL16, S4(sWS)))
e('s_waitcnt vmcnt(0)')
p.add(signal(4))
e('s_waitcnt vmcnt(0)')
e('L_idle1:')
e('s_barrier')
e('L_idle2:')
stamp('_i4')
if OPT.get('idlepf', 1):
    e('''
    v_lshlrev_b32 v{a}, 7, v0
    s_lshl2_add_u32 s3, s{gl}, s{w}
    s_and_b32 s4, s2, 7
    s_mul_i32 s4, s4, {st}
    s_add_u32 s3, s3, s4
    '''.format(a=t0, gl=sGl, w=sW, st=32 if OPT.get('ipn', 2) == 13 else 25))
    for n in range(OPT.get('ipn', 2)):
        for x in ['s_cmp_ge_u32 s3, 208', 's_cselect_b32 s4, 208, 0', 's_sub_u32 s3, s3, s4', 's_lshl_b32 s5, s3, 13',
                  'buffer_load_dword v%d, v%d, %s, s5 offen' % (vX + 8 + n, t0, S4(sWD)), 's_add_u32 s3, s3, 16']:
            e(x)
e('L_fin:')
if OPT.get('enc'):
    e('s_waitcnt vmcnt(0) lgkmcnt(0)')
    if OPT['enc'] == 'end':
        e('s_memrealtime s[94:95]')
        e('s_waitcnt lgkmcnt(0)')
    e('s_cmp_ge_u32 s%d, 7' % sCs)
    e('s_cbranch_scc1 L_end')
    e('s_sub_u32 s94, s94, s98')
    e('s_mul_i32 s94, s94, 4')
    e('s_add_u32 s94, s94, 3000')
    e('L_fix:')
    for x in ['s_sleep 4', 's_memrealtime s[96:97]', 's_waitcnt lgkmcnt(0)', 's_sub_u32 s96, s96, s98', 's_cmp_lt_u32 s96, s94', 's_cbranch_scc1 L_fix']:
        e(x, raw=True)
if OPT.get('fixt'):
    e('s_waitcnt vmcnt(0) lgkmcnt(0)')
    e('L_fix:')
    for x in ['s_sleep 2', 's_memrealtime s[96:97]', 's_waitcnt lgkmcnt(0)', 's_sub_u32 s96, s96, s98', 's_cmp_lt_u32 s96, %d' % OPT['fixt'], 's_cbranch_scc1 L_fix']:
        e(x, raw=True)
if DIAG:
    e('s_waitcnt vmcnt(0)')
    e('s_memtime s[76:77]' if OPT['cyc'] else 's_memrealtime s[76:77]')
    e('s_memtime s[74:75]')
    e('s_waitcnt lgkmcnt(0)')
    e('s_sub_u32 s74, s74, s100')
    e('v_mov_b32 v%d, s74' % (vX + 14))
    e('v_mov_b32 v%d, s101' % (vX + 15))
    e('s_lshl_b32 s3, s2, 2')
    e('s_add_u32 s3, s3, s%d' % sW)
    e('s_lshl_b32 s3, s3, 6')
    e('s_add_u32 s3, s3, %d' % WS_TS)
    for n in range(12):
        e('v_mov_b32 v%d, s%d' % (vX + n, sTS + 2 * n))
    e('v_mov_b32 v%d, s76' % (vX + 12))
    e('s_getreg_b32 s4, hwreg(HW_REG_XCC_ID)')
    e('v_mov_b32 v%d, s4' % (vX + 13))
    e('s_mov_b64 exec, 1')
    for q in range(4):
        e('buffer_store_dwordx4 %s, off, %s, s3 offset:%d' % (V(vX + 4 * q, 4), S4(sWS), 16 * q))
e('s_waitcnt vmcnt(0) lgkmcnt(0)')
e('L_end:')
e('s_endpgm')
tail_ins = p.ins

p.ins = main_ins
p.finalize()
body = p.text()
stats = dict(p.stats)
kinds = {}
for i in p.out:
    kinds[i.kind] = kinds.get(i.kind, 0) + 1
p.ins = tail_ins
p.finalize()
body += '\n' + p.text()

hdr = open('sequential_preLN__linear_attn_block__glu_gated_glu__prompt.s.ref').read().split('\n')
head = [l for l in hdr if l.startswith(';') and '@launch' not in l and 'Override' not in l and 'grid=ceil' not in l]
out = '\n'.join(head) + '''
; @launch grid=(256,1,1) block=(256,1,1) lds=163840
.amdgcn_target "amdgcn-amd-amdhsa--gfx950"
.text
.globl {n}
.p2align 8
.type {n},@function
{n}:
{body}
.section .rodata,"a"
.p2align 6
.amdhsa_kernel {n}
  .amdhsa_next_free_vgpr 512
  .amdhsa_next_free_sgpr 102
  .amdhsa_accum_offset 256
  .amdhsa_group_segment_fixed_size 0
  .amdhsa_kernarg_size 80
  .amdhsa_user_sgpr_count 2
  .amdhsa_user_sgpr_kernarg_segment_ptr 1
  .amdhsa_system_sgpr_workgroup_id_x 1
  .amdhsa_float_denorm_mode_32 3
.end_amdhsa_kernel
'''.format(n=NAME, body=body)
open(sys.argv[1], 'w').write(out)
print(kinds, stats, 'wpre', WPRE, 'rest', len(rest), 'spill', len(spill), 'H0', H0, H1, 'HHN', HHN, 'X0END', X0END, PEND, 'sig', sig_at, 'dslot', DSLOT1, 'dpos', DPOS, file=sys.stderr)
```

```python
import sys
from asmlib import Prog, I

NAME = 'sequential_preLN__linear_attn_block__glu_gated_glu__prompt_kernel'

OPT = dict(diag=0, stop=99, spin=200000, abl='', cyc=0, st=None, swh=2, sw1=6, kvp=(2, 8, 14, 20, 26, 32, 38), kvb=(0, 2, 4, 6, 8, 10, 12, 13))
for a in sys.argv[2:]:
    k, v = a.split('=')
    OPT[k] = eval(v)
DIAG = OPT['diag']
STOP = OPT['stop']

WS_CNT = 0
WS_KVP = 0x20000
WS_CS = 0xA0000
WS_O = 0x120000
WS_H = 0x320000
WS_ST = 0x520000
WS_HH = 0x560000
WS_TS = 0xC60000
WS_SIZE = 0xD00000
C_O, C_H, C_KV, C_HH, C_CS = 0, 8, 12, 16, 48

sX, sQKV, sWO, sGU, sWD, sOUT, sWS, sDBG = 24, 28, 32, 36, 40, 44, 48, 52
sOff, sOff2, sIter, sPoll = 56, 57, 58, 59
sG, sM, sW, sCs, sWK, sHalf, sA, sTh, sKh, sCnt = 60, 61, 62, 63, 64, 65, 66, 67, 68, 69
sCh = 70
sIdx = 77
sT = [3, 4, 5, 6, 7, 8, 9, 10, 11, 12, 13]
sMaskHi = 14
sMask28 = 16
sGl, sGood, sSig, sSt, sTT, sZero = 18, 19, 20, 21, 22, 23
sGUt = [28, 29, 30, 31, 52, 53, 54]
sWDt = [24, 25, 26, 27, 32, 33, 34]
sHHt = [0, 1, 16, 17, 19, 23, 55]
sTS = 78


def S4(b):
    return 's[%d:%d]' % (b, b + 3)


def V(b, n=1):
    return 'v%d' % b if n == 1 else 'v[%d:%d]' % (b, b + n - 1)


def A(b, n=1):
    return 'a%d' % b if n == 1 else 'a[%d:%d]' % (b, b + n - 1)


vL16, vOne, vP, vL8 = 1, 2, 3, 4
vOffX = 5
vAdX = 9
vAdC = 9
vOffKV, vAdK, vAdV, vOffQ, vAdQ = 13, 14, 15, 16, 17
vAdD = 14
vOffWO, vOffXR, vOffGU, vOffWD = 18, 19, 20, 21
vAdWO, vAdWOp = 22, 24
vT = 26
vP2, vP3 = 238, 239
vY = 32
vX = 64
vF = 128
vGUo, vWDo, vL16b, vMF, vCc, vSt, vHH = 128, 136, 144, 148, 152, 156, 172
vU = 240
aW = 0
aH = 32
aF = 40
aCS = 152
aR = 172
t0, t1, t2, t3, t4, t5 = range(vT, vT + 6)
u = [vU + i for i in range(16)]

PG = 4096
LOG2E = 0x3fb8aa3b
NEGL = 0xbfb8aa3b
EPS6 = 0x358637bd
EPS5 = 0x3727c5ac
INV448 = 0x3b124925

p = Prog()
e = p.e
nstamp = [0]
nlab = [0]


def L(x):
    return [I(t.strip()) for t in x.strip().split('\n') if t.strip()]


def mkstamp(name):
    if OPT.get('enc') == name:
        return [I('s_memrealtime s[94:95]')]
    if not DIAG:
        return []
    early = ('o flag', 'x0 landed', 'x read', 'A1 mfma', 'kv stored', 'A2 mfma', 'q done', 'kv flag', 'kv loaded', 'o stored')
    if OPT['st'] is not None:
        if name != 'start' and name not in OPT['st']:
            return []
    elif name != 'start' and ((DIAG == 1) != (name in early) or name.startswith('_')):
        return []
    n = nstamp[0]
    assert n < 11
    nstamp[0] += 1
    return [I('%s s[%d:%d] ; @%s' % ('s_memtime' if OPT['cyc'] else 's_memrealtime', sTS + 2 * n, sTS + 2 * n + 1, name))]


def stamp(name):
    p.add(mkstamp(name))


def dma(voff, srd, so, m0, tag, pre=(), imm=0):
    r = []
    if m0 is not None:
        r.append(I('s_add_u32 m0, s%d, 0x%x' % (sWK, m0)))
    r += [I(t) for t in pre]
    r.append(I('buffer_load_dwordx4 v%d, %s, %s offen%s lds' % (voff, S4(srd), so, ' offset:%d' % imm if imm else ''), tag=tag))
    return r


def poll_issue(soff, atomic=True):
    if OPT.get('apoll', 1) and atomic:
        return L('v_mov_b32 v%d, 0\ns_mov_b64 exec, 1\nbuffer_atomic_umax v%d, off, %s, s%d sc0\ns_mov_b64 exec, -1' % (vP, vP, S4(sWS), soff))
    return [I('buffer_load_dword v%d, off, %s, s%d sc1' % (vP, S4(sWS), soff))]


def poll_check(expect, soff, srd=sWS):
    n = nlab[0]
    nlab[0] += 1
    t = sT[0]
    so = soff if isinstance(soff, str) else 's%d' % soff
    r = L('''
    v_readfirstlane_b32 s%d, v%d
    s_cmp_ge_u32 s%d, %d
    s_cbranch_scc1 L_ok%d
    s_mov_b32 s%d, %d
    ''' % (t, vP, t, expect, n, sIter, OPT['spin']))
    ld = lambda v: 'buffer_load_dword v%d, off, %s, %s sc1' % (v, S4(srd), so)
    chk = lambda v: ['v_readfirstlane_b32 s%d, v%d' % (t, v), 's_nop 0', 's_cmp_ge_u32 s%d, %d' % (t, expect), 's_cbranch_scc1 L_ok%d' % n]
    loop = ['s_sub_u32 s%d, s%d, 1' % (sIter, sIter), 's_cmp_lg_u32 s%d, 0' % sIter, 's_cbranch_scc1 L_spin%d' % n]
    pm = OPT.get('pm', 0)
    if OPT.get('apoll', 1) and srd == sWS:
        body = ['L_spin%d:' % n] + (['s_sleep %d' % OPT['asl']] if OPT.get('asl') else []) + ['s_mov_b64 exec, 1', 'buffer_atomic_umax v%d, off, %s, %s sc0' % (vP, S4(srd), so), 's_mov_b64 exec, -1',
                's_waitcnt vmcnt(0)'] + chk(vP) + loop
    elif pm == 0:
        body = ['L_spin%d:' % n, ld(vP), 's_waitcnt vmcnt(0)'] + chk(vP) + loop
    elif pm < 0:
        body = ['L_spin%d:' % n, 's_sleep %d' % -pm, ld(vP), 's_waitcnt vmcnt(0)'] + chk(vP) + loop
    else:
        body = [ld(vP), 'L_spin%d:' % n, 's_sleep %d' % pm, ld(vP2), 's_waitcnt vmcnt(1)'] + chk(vP) + \
               ['s_sleep %d' % pm, ld(vP), 's_waitcnt vmcnt(1)'] + chk(vP2) + loop
    for x in body:
        r.append(I(x, raw=True))
    r.append(I('L_ok%d:' % n))
    return r


def poll_pipe_issue(soff):
    return L('v_mov_b32 v%d, 0\nv_mov_b32 v%d, 0' % (vP2, vP3)) + poll_issue(soff)


def poll_pipe_check(expect, soff):
    n = nlab[0]
    nlab[0] += 1
    t = sT[0]
    at = lambda v: 'buffer_atomic_umax v%d, off, %s, s%d sc0' % (v, S4(sWS), soff)
    chk = lambda v: ['s_waitcnt vmcnt(2)', 'v_readfirstlane_b32 s%d, v%d' % (t, v), 's_nop 0', 's_cmp_ge_u32 s%d, %d' % (t, expect),
                     's_cbranch_scc1 L_ok%d' % n]
    sl = 's_sleep %d' % OPT.get('psl', 3)
    body = ['s_mov_b32 s%d, %d' % (sIter, OPT['spin']), 's_mov_b64 exec, 1', at(vP2), sl, 'L_spin%d:' % n, at(vP3)] + chk(vP) + \
           [at(vP)] + chk(vP2) + [at(vP2)] + chk(vP3) + \
           ['s_sub_u32 s%d, s%d, 1' % (sIter, sIter), 's_cmp_lg_u32 s%d, 0' % sIter, 's_cbranch_scc1 L_spin%d' % n]
    r = [I(x, raw=True) for x in body]
    return r + [I('L_ok%d:' % n), I('s_mov_b64 exec, -1'), I('@assumevm0')]


def signal(soff, imm=0):
    return L('''
    s_mov_b64 exec, 1
    buffer_atomic_add v%d, off, %s, s%d%s
    s_mov_b64 exec, -1
    ''' % (vOne, S4(sWS), soff, ' offset:%d' % imm if imm else ''))


def mfma(d, a, b, c=None):
    return I('v_mfma_f32_32x32x16_bf16 %s, %s, %s, %s' % (V(d, 16), a, b, V(d, 16) if c is None else c))


def colsum4(acc, q, first):
    return [I('v_mfma_f32_4x4x4_16b_bf16 %s, %s, %s, %s' % (V(acc + 4 * h, 4), V(vOnes, 2), A(q + 2 * h, 2), '0' if first else V(acc + 4 * h, 4))) for h in range(2)]


class WStream:
    def __init__(self, look=OPT.get('look', 7), nbuf=8, wper=OPT.get('wper', 4)):
        self.items = []
        self.look = look
        self.nbuf = nbuf
        self.wper = wper
        self.n = 0
        self.fills = {}

    def step(self, addr0, off0, addr1, off1, mk, pre=None, post=None):
        q = aW + 4 * (self.n % self.nbuf)
        self.n += 1
        rd = list(pre or [])
        rd.append(I('ds_read_b64_tr_b16 %s, v%d offset:%d' % (A(q, 2), addr0, off0)))
        rd.append(I('ds_read_b64_tr_b16 %s, v%d offset:%d' % (A(q + 2, 2), addr1, off1)))
        self.items.append((rd, mk(A(q, 4)), post(q) if post else []))
        return len(self.items) - 1

    def extra(self, m):
        self.items.append(([], m, []))
        return len(self.items) - 1

    def fill(self, idx, grp):
        g = grp if isinstance(grp, list) else [grp]
        ab = OPT['abl']
        if ab and not any(x.kind in ('label', 'sctl') or 'exec' in x.text for x in g):
            if 'v' in ab:
                g = [x for x in g if x.kind != 'valu']
            if 'd' in ab and any(x.kind == 'dma' for x in g):
                g = []
            if 'b' in ab:
                g = [x for x in g if x.kind != 'barrier']
        if g:
            self.fills.setdefault(idx, []).append(g)

    def build(self):
        out = []
        n = len(self.items)
        withrd = [i for i in range(n) if self.items[i][0]]
        nxt = 0
        used = 0
        while nxt < min(self.look, len(withrd)):
            out += self.items[withrd[nxt]][0]
            nxt += 1
        for i in range(n):
            rd, m, post = self.items[i]
            if rd:
                if used % self.wper == 0:
                    m.ahead = 2 * min(self.wper - 1, nxt - used - 1)
                used += 1
            out.append(m)
            gs = self.fills.pop(i, [])
            first = [g for g in gs if g[0].kind == 'barrier']
            rest = [g for g in gs if g[0].kind != 'barrier']
            for g in first:
                out += g
            mem = [g for g in rest if not all(x.kind == 'valu' for x in g)]
            if mem and mem[0][0].kind == 'salu' and mem[0][-1].kind == 'dma':
                out.append(mem[0][0])
                mem[0] = mem[0][1:]
            if rd and nxt < len(withrd):
                out += self.items[withrd[nxt]][0]
                nxt += 1
            for g in mem:
                out += g
            for g in rest:
                if all(x.kind == 'valu' for x in g):
                    out += g
            out += post
        assert not self.fills, list(self.fills)
        return out


def spread(main, fill):
    out = []
    n, m = len(main), len(fill)
    j = 0
    for i, x in enumerate(main):
        out.append(x)
        while j < m and (j + 1) * n <= (i + 1) * (m + 1):
            out.extend(fill[j])
            j += 1
    while j < m:
        out.extend(fill[j])
        j += 1
    return out


def zip_groups(groups):
    out = []
    n = max(len(g) for g in groups)
    for k in range(n):
        for g in groups:
            if k < len(g):
                out.append(g[k])
    return out


def pk(op, d, a, b, c=None, mod=''):
    f = lambda r: r if isinstance(r, str) else V(r, 2)
    return I('v_pk_%s_f32 %s, %s, %s%s %s' % (op, f(d), f(a), f(b), '' if c is None else ', ' + f(c), mod))


def halves_sum(x, t):
    return L('''
    v_mov_b32 v{t}, v{x}
    v_permlane32_swap_b32 v{t}, v{x}
    v_add_f32 v{x}, v{t}, v{x}
    '''.format(t=t, x=x))


def ln_consts(s, q, mean, std, r):
    return L('''
    v_mul_f32 v{a}, 0x{i:x}, v{s}
    v_mul_f32 v{b}, 0x{i:x}, v{q}
    v_fma_f32 v{b}, -v{a}, v{a}, v{b}
    v_max_f32 v{b}, 0, v{b}
    v_cvt_pk_bf16_f32 v{a}, v{a}, v{b}
    v_and_b32 v{b}, 0xffff0000, v{a}
    v_lshlrev_b32 v{a}, 16, v{a}
    v_add_f32 v{b}, 0x{e:x}, v{b}
    v_cvt_pk_bf16_f32 v{b}, v{b}, v{b}
    v_lshlrev_b32 v{b}, 16, v{b}
    v_sqrt_f32 v{b}, v{b}
    v_cvt_pk_bf16_f32 v{b}, v{b}, v{b}
    v_lshlrev_b32 v{b}, 16, v{b}
    v_rcp_f32 v{r}, v{b}
    '''.format(a=mean, b=std, s=s, q=q, r=r, i=INV448, e=EPS5))


def mean_frag(mean, d):
    return L('''
    v_cvt_pk_bf16_f32 v{d}, -v{m}, -v{m}
    v_mov_b32 v{d1}, 0
    v_mov_b32 v{d2}, 0
    v_mov_b32 v{d3}, 0
    v_cndmask_b32 v{d}, v{d}, 0, s[{h}:{h1}]
    '''.format(d=d, d1=d + 1, d2=d + 2, d3=d + 3, m=mean, h=sMaskHi, h1=sMaskHi + 1))


def hilo(c, d, t):
    return L('''
    v_cvt_pk_bf16_f32 v{t}, v{c}, v{c}
    v_lshlrev_b32 v{t}, 16, v{t}
    v_sub_f32 v{t}, v{c}, v{t}
    v_cvt_pk_bf16_f32 v{d}, v{c}, v{t}
    '''.format(c=c, d=d, t=t))


e('s_cmpk_ge_u32 s2, 256')
e('s_cbranch_scc1 L_end')
if OPT.get('fixt') or OPT.get('enc'):
    e('s_memrealtime s[98:99]')
    e('s_memrealtime s[94:95]')
stamp('start')
if DIAG:
    e('s_memtime s[100:101]')
e('s_load_dwordx4 s[4:7], s[0:1], 0')
e('s_load_dwordx2 s[%d:%d], s[0:1], 16' % (sWO, sWO + 1))
e('s_load_dwordx8 s[8:15], s[0:1], 32')
e('s_load_dwordx4 s[20:23], s[0:1], 64')
XP0 = 12
e("""
v_lshrrev_b32 v{t0}, 6, v0
v_and_b32 v0, 63, v0
v_readfirstlane_b32 s{w}, v{t0}
s_lshr_b32 s{idx}, s2, 3
""".format(t0=t0, w=sW, idx=sIdx))
if OPT.get('cpf', 1):
    sCODE = 72
    e('s_getpc_b64 s[%d:%d]' % (sCODE, sCODE + 1))
    e('L_pc:')
    e("""
    s_mov_b32 s{c2}, L_end-L_pc
    s_mov_b32 s{c3}, 0x20000
    s_lshl2_add_u32 s3, s{idx}, s{w}
    s_lshl_b32 s3, s3, 9
    v_and_b32 v{t3}, 3, v0
    v_lshlrev_b32 v{t3}, 7, v{t3}
    buffer_load_dword v{d}, v{t3}, {code}, s3 offen
    """.format(c2=sCODE + 2, c3=sCODE + 3, idx=sIdx, w=sW, t3=t3, d=t5, code=S4(sCODE)))
e("""
s_bfe_u32 s3, s2, 0x20001
s_and_b32 s{gl}, s{idx}, 3
s_lshr_b32 s{cs}, s{idx}, 2
s_lshl2_add_u32 s{g}, s3, s{gl}
s_lshl1_add_u32 s{c0}, s{gl}, s{cs}
s_add_u32 s{c0}, s{c0}, s3
s_mul_i32 s3, s{c0}, 37
s_lshr_b32 s3, s3, 8
s_mul_i32 s3, s3, 7
s_sub_u32 s{c0}, s{c0}, s3
v_lshrrev_b32 v{u0}, 3, v0
v_and_b32 v{u1}, 7, v0
v_lshrrev_b32 v{u2}, 4, v0
s_lshl2_add_u32 s3, s{g}, s{w}
s_mul_i32 s3, s3, 28672
v_mul_u32_u24 v{t0}, 896, v{u0}
v_xor_b32 v{t1}, v{u1}, v{u2}
v_add_u32 v{t0}, s3, v{t0}
v_lshl_add_u32 v{x0}, v{t1}, 4, v{t0}
v_xor_b32 v{t1}, 4, v{t1}
v_lshl_add_u32 v{x1}, v{t1}, 4, v{t0}
v_add_u32 v{x2}, 12288, v{x0}
v_add_u32 v{x3}, 18432, v{x1}
v_add_u32 v{x1}, 6144, v{x1}
s_mul_i32 s{o2}, s{w}, {xs}
s_add_u32 s{o2}, s{o2}, {xb}
s_mov_b32 s{X2}, 1835008
s_mov_b32 s{X3}, 0x20000
""".format(t0=t0, t1=t1, w=sW, idx=sIdx, gl=sGl, cs=sCs, g=sG, c0=sCh, u0=u[0], u1=u[1], u2=u[2],
           x0=vOffX, x1=vOffX + 1, x2=vOffX + 2, x3=vOffX + 3, o2=sOff2, xs=7 * PG, xb=XP0 * PG, X2=sX + 2, X3=sX + 3))


def nextch(i):
    e('s_add_u32 s%d, s%d, 1' % (sCh + i, sCh + i - 1))
    e('s_cmp_ge_u32 s%d, 7' % (sCh + i))
    e('s_cselect_b32 s%d, 0, s%d' % (sCh + i, sCh + i))


def xdma(i):
    r = L('s_add_u32 m0, s%d, %d\ns_lshl_b32 s%d, s%d, 7' % (sOff2, i * PG, sOff, sCh + i))
    for q in range(4):
        r.append(I('buffer_load_dwordx4 v%d, %s, s%d offen%s lds' % (vOffX + q, S4(sX), sOff, ' offset:%d' % (q * 1024) if q else ''), tag='x%d' % i))
    return r


stamp('_prek')
e('@waitlg0')
stamp('_karg')
e('s_mov_b32 s%d, s4' % sX)
e('s_mov_b32 s%d, s5' % (sX + 1))
p.add(xdma(0))
nextch(1)
if OPT.get('sw1') in (4, 5):
    e('''
    s_mul_i32 s3, s{idx}, 14
    s_lshl2_add_u32 s3, s{w}, s3
    s_mul_i32 s3, s3, 2688
    s_and_b32 s16, s2, 1
    s_mul_i32 s16, s16, 384
    s_add_u32 s3, s3, s16
    v_mul_u32_u24 v{t0}, 2688, v{u2}
    v_bfe_u32 v{t1}, v0, 2, 2
    v_min_u32 v{t1}, {np}, v{t1}
    v_mul_u32_u24 v{t1}, 896, v{t1}
    v_and_b32 v{t2}, 3, v0
    v_lshl_add_u32 v{t1}, v{t2}, 7, v{t1}
    v_add3_u32 v{c}, v{t0}, v{t1}, s3
    s_mov_b32 s{q2}, 1204224
    s_mov_b32 s{q3}, 0x20000
    '''.format(idx=sIdx, w=sW, t0=t0, t1=t1, t2=t2, u2=u[2], c=vY + 14, q2=sQKV + 2, q3=sQKV + 3, np=2 if OPT['sw1'] == 4 else 1))
if OPT.get('sw1') in (6, 7):
    e('''
    s_lshl2_add_u32 s3, s2, s{w}
    s_lshr_b32 s16, s3, 1
    s_mul_i32 s16, s16, 2688
    s_and_b32 s3, s3, 1
    s_mul_i32 s3, s3, {hb}
    s_add_u32 s16, s16, s3
    v_min_u32 v{c}, {mx}, v0
    v_lshlrev_b32 v{c}, 7, v{c}
    s_mov_b32 s{q2}, 1204224
    s_mov_b32 s{q3}, 0x20000
    '''.format(w=sW, c=vY + 14, q2=sQKV + 2, q3=sQKV + 3, hb=896 if OPT['sw1'] == 6 else 1408, mx=6 if OPT['sw1'] == 6 else 10))
if OPT.get('sw1') in (4, 5):
    e('s_mov_b32 s%d, s6' % sQKV)
    e('s_mov_b32 s%d, s7' % (sQKV + 1))
    e('buffer_load_dword a249, v%d, %s, 0 offen%s' % (vY + 14, S4(sQKV), '' if OPT['sw1'] == 4 else ' offset:896'))
elif OPT.get('sw1') in (6, 7):
    x_ = L('s_mov_b32 s%d, s6\ns_mov_b32 s%d, s7\nbuffer_load_dword a249, v%d, %s, s16 offen%s' % (sQKV, sQKV + 1, vY + 14, S4(sQKV), ' offset:896' if OPT['sw1'] == 6 else ''))
    p.add(xdma(1) + x_ if OPT.get('swl') else x_ + xdma(1))
else:
    p.add(xdma(1))
stamp('_x01')
for i in range(2, 7):
    nextch(i)
e("""
s_and_b32 s{half}, s2, 1
s_lshl3_add_u32 s{m}, s{half}, s{cs}
s_sub_u32 s{a}, s{m}, s{half}
s_lshl_b32 s{wk}, s{w}, 10
s_lshl_b32 s{cnt}, s{g}, 13
s_and_b32 s{th}, s{w}, 1
s_lshr_b32 s{kh}, s{w}, 1
s_mov_b32 s{q}, s6
s_mov_b32 s{q1}, s7
s_cmp_lt_u32 s{w}, 2
s_cselect_b32 s{gu}, s8, s10
s_cselect_b32 s{gu1}, s9, s11
s_mov_b32 s{wd}, s12
s_mov_b32 s{wd1}, s13
s_mov_b32 s{out}, s14
s_mov_b32 s{out1}, s15
s_mov_b32 s{dbg}, s20
s_mov_b32 s{dbg1}, s21
s_mov_b32 s{ws}, s22
s_mov_b32 s{ws1}, s23
s_cmp_lt_u32 s{cs}, 7
s_cselect_b32 s{wo2}, 401408, 0
s_cselect_b32 s{gu2}, 1605632, 0
s_lshl1_add_u32 s{tt}, s{half}, s{th}
""".format(half=sHalf, m=sM, cs=sCs, a=sA, wk=sWK, w=sW, cnt=sCnt, g=sG, th=sTh, kh=sKh, q=sQKV, q1=sQKV + 1,
           gu=sGU, gu1=sGU + 1, wd=sWD, wd1=sWD + 1, out=sOUT, out1=sOUT + 1, dbg=sDBG, dbg1=sDBG + 1,
           ws=sWS, ws1=sWS + 1, wo2=sWO + 2, gu2=sGU + 2, tt=sTT))
for srd, size in ((sQKV, 1204224), (sWO, None), (sWD, 1605632), (sGU, None), (sOUT, 1835008), (sDBG, 256), (sWS, WS_SIZE)):
    if size:
        e('s_mov_b32 s%d, 0x%x' % (srd + 2, size))
    e('s_mov_b32 s%d, 0x20000' % (srd + 3))
e("""
v_lshlrev_b32 v{l16}, 4, v0
v_lshlrev_b32 v{l8}, 3, v0
v_mov_b32 v{one}, 1
v_and_b32 v{u3}, 31, v0
v_lshrrev_b32 v{u4}, 5, v0
v_bfe_u32 v{u5}, v0, 2, 2
v_and_b32 v{u6}, 3, v0
v_bfe_u32 v{u7}, v0, 4, 1
""".format(l16=vL16, l8=vL8, one=vOne, u3=u[3], u4=u[4], u5=u[5], u6=u[6], u7=u[7]))
e("""
s_cmp_eq_u32 s{m}, 15
s_cselect_b32 s3, 1, 0
s_cmp_eq_u32 s{w}, 0
s_cselect_b32 s{z}, s3, 0
s_cmp_eq_u32 s{z}, 0
s_cbranch_scc1 L_nozero
v_lshlrev_b32 v{t3}, 7, v0
v_mov_b32 v{t4}, 0
""".format(m=sM, w=sW, t3=t3, t4=t4, z=sZero))
e('buffer_store_dword v%d, v%d, %s, s%d offen sc1' % (t4, t3, S4(sWS), sCnt), raw=True)
e('L_nozero:')
e('v_cmp_lt_u32 s[%d:%d], 31, v0' % (sMaskHi, sMaskHi + 1))
e('v_cmp_eq_u32 s[%d:%d], 28, v%d' % (sMask28, sMask28 + 1, u[3]))
e('''
v_lshlrev_b32 v{t0}, 7, v{u3}
v_add_u32 v{t0}, s{xb}, v{t0}
v_bfe_u32 v{t1}, v0, 1, 3
v_xor_b32 v{t1}, v{t1}, v{u4}
'''.format(t0=t0, t1=t1, u3=u[3], u4=u[4], xb=sOff2))
for ks in range(4):
    e('v_xor_b32 v%d, %d, v%d' % (t2, 2 * ks, t1))
    e('v_lshl_add_u32 v%d, v%d, 4, v%d' % (vAdX + ks, t2, t0))
e('''
v_lshlrev_b32 v{t0}, 2, v{u7}
v_xor_b32 v{t0}, v{t0}, v{u1}
v_lshlrev_b32 v{t4}, 4, v{t0}
v_lshrrev_b32 v{t1}, 2, v{t0}
v_and_b32 v{t0}, 3, v{t0}
v_lshlrev_b32 v{t2}, 1, v{t0}
v_min_u32 v{t2}, 5, v{t2}
v_lshlrev_b32 v{t2}, 3, v{t2}
s_movk_i32 s{k}, 896
v_mad_u32_u24 v{t2}, v{t1}, s{k}, v{t2}
v_mad_u32_u24 v{t4}, v{u0}, s{k}, v{t4}
s_lshl_b32 s3, s{w}, 3
v_add_u32 v{t3}, s3, v{u0}
s_movk_i32 s{k}, 2688
v_mad_u32_u24 v{t2}, v{t3}, s{k}, v{t2}
s_mul_i32 s3, s{m}, 56
s_add_u32 s4, s3, 896
v_add_u32 v{kv}, s4, v{t2}
'''.format(t0=t0, t1=t1, t2=t2, t3=t3, t4=t4, u0=u[0], u1=u[1], u7=u[7], k=sOff, w=sW, m=sM, kv=vOffKV))
e('''
s_lshl_b32 s6, s{cs}, 7
s_mul_i32 s4, s{w}, 7168
s_add_u32 s4, s4, s6
v_add_u32 v{wo}, s4, v{t4}
s_mul_i32 s4, s{kh}, 802816
s_mul_i32 s5, s{th}, 7168
s_add_u32 s4, s4, s5
s_add_u32 s4, s4, s6
v_add_u32 v{wd}, s4, v{t4}
'''.format(t4=t4, cs=sCs, w=sW, kh=sKh, th=sTh, wo=vOffWO, wd=vOffWD))
e('''
v_lshlrev_b32 v{t2}, 1, v{u6}
v_min_u32 v{t2}, 5, v{t2}
v_lshlrev_b32 v{t2}, 3, v{t2}
v_lshrrev_b32 v{t3}, 2, v0
v_mul_u32_u24 v{t4}, 896, v{t3}
s_lshl_b32 s4, s{w}, 4
v_add_u32 v{t3}, s4, v{t3}
v_mad_u32_u24 v{t2}, v{t3}, s{k}, v{t2}
v_add_u32 v{q}, s3, v{t2}
s_lshl2_add_u32 s4, s{g}, s{tt}
s_mul_i32 s4, s4, 28672
s_add_u32 s4, s4, s6
s_lshl_b32 s5, s{kh}, 6
s_add_u32 s4, s4, s5
v_lshl_add_u32 v{t4}, v{u6}, 4, v{t4}
v_add_u32 v{xr}, s4, v{t4}
'''.format(t2=t2, t3=t3, t4=t4, u6=u[6], k=sOff, w=sW, q=vOffQ, g=sG, tt=sTT, kh=sKh, xr=vOffXR))
WQP = 14
e('''
v_lshlrev_b32 v{t0}, 3, v{u6}
v_lshl_add_u32 v{t0}, v{u7}, 5, v{t0}
v_lshrrev_b32 v{t1}, 1, v{u6}
v_and_b32 v{t1}, v{t1}, v{u7}
v_lshlrev_b32 v{t1}, 3, v{t1}
v_xor_b32 v{t1}, v{t0}, v{t1}
v_lshrrev_b32 v{t2}, 1, v{u5}
v_lshlrev_b32 v{t2}, 6, v{t2}
v_lshl_add_u32 v{t3}, v{u4}, 3, v{u5}
v_xor_b32 v{t4}, v{t1}, v{t2}
v_lshl_add_u32 v{ak}, v{t3}, 7, v{t4}
v_xor_b32 v{av}, 64, v{ak}
v_lshl_add_u32 v{aq}, v{t3}, 6, v{t1}
v_add_u32 v{aq}, {qb}, v{aq}
'''.format(t0=t0, t1=t1, t2=t2, t3=t3, t4=t4, u4=u[4], u5=u[5], u6=u[6], u7=u[7], ak=vAdK, av=vAdV, aq=vAdQ, qb=WQP * PG))
e('''
v_xor_b32 v{t4}, v{t0}, v{t2}
s_lshl_b32 s3, s{kh}, 6
v_xor_b32 v{t4}, s3, v{t4}
v_lshl_add_u32 v{t4}, v{u5}, 7, v{t4}
s_mul_i32 s3, s{kh}, 28672
v_add_u32 v{p0}, s3, v{t4}
v_xor_b32 v{p1}, 64, v{p0}
v_lshl_add_u32 v{a0}, v{u4}, 9, v{p0}
v_xor_b32 v{a1}, 64, v{a0}
'''.format(t0=t0, t2=t2, t4=t4, u4=u[4], u5=u[5], kh=sKh, p0=vAdWOp, p1=vAdWOp + 1, a0=vAdWO, a1=vAdWO + 1))
e('''
s_lshl_b32 s4, s{kh}, 2
v_lshl_add_u32 v{t0}, v{u7}, 1, s4
v_xor_b32 v{t0}, v{t0}, v{u1}
v_lshlrev_b32 v{t0}, 4, v{t0}
s_movk_i32 s{k}, 3584
v_mad_u32_u24 v{t0}, v{u0}, s{k}, v{t0}
s_mul_i32 s4, s{th}, 28672
s_lshl_b32 s5, s{a}, 8
s_add_u32 s4, s4, s5
v_add_u32 v{gu}, s4, v{t0}
'''.format(t0=t0, u0=u[0], u1=u[1], u7=u[7], k=sOff, kh=sKh, th=sTh, a=sA, gu=vOffGU))
vSw = vY
sSW = 8
e('''
s_mul_i32 s3, s{idx}, 14
s_lshl2_add_u32 s3, s{w}, s3
s_mul_i32 s3, s3, 2688
s_mul_i32 s4, s{half}, 384
s_add_u32 s3, s3, s4
v_mul_u32_u24 v{t0}, 2688, v{u2}
v_bfe_u32 v{t1}, v0, 2, 2
v_min_u32 v{t1}, 2, v{t1}
v_mul_u32_u24 v{t1}, 896, v{t1}
v_and_b32 v{t2}, 3, v0
v_lshl_add_u32 v{t1}, v{t2}, 7, v{t1}
v_add3_u32 v{c}, v{t0}, v{t1}, s3
s_add_u32 s3, s{cs}, 1
s_lshr_b32 s3, s3, 1
s_mul_i32 s4, s{gl}, 5
s_add_u32 s3, s3, s4
s_lshl1_add_u32 s4, s3, s{th}
s_mul_i32 s4, s4, 3
s_bfe_u32 s5, s2, 0x20001
s_mul_i32 s5, s5, 112
s_add_u32 s4, s4, s5
s_mul_i32 s4, s4, 3584
s_mul_i32 s5, s{half}, 1792
s_add_u32 s4, s4, s5
v_min_u32 v{t0}, 2, v{u2}
v_mul_u32_u24 v{t0}, 3584, v{t0}
v_and_b32 v{t1}, {swm}, v0
v_min_u32 v{t1}, {swx}, v{t1}
v_lshl_add_u32 v{t0}, v{t1}, 7, v{t0}
v_add_u32 v{a}, s4, v{t0}
v_min_u32 v{t1}, 6, v{u1}
s_lshl2_add_u32 s3, s3, s{w}
s_min_u32 s3, s3, 55
s_and_b32 s4, s2, 7
s_mul_i32 s4, s4, 56
s_add_u32 s3, s3, s4
s_mul_i32 s3, s3, 896
v_lshlrev_b32 v{t1}, 7, v{t1}
v_add_u32 v{b}, s3, v{t1}
s_mul_i32 s3, s{half}, 42
s_add_u32 s3, s3, 0xab
s_lshr_b32 s3, s3, s{cs}
s_and_b32 s{good}, s3, 1
'''.format(cs=sCs, gl=sGl, th=sTh, half=sHalf, w=sW, t0=t0, t1=t1, t2=t2, u0=u[0], u1=u[1], u2=u[2], a=vSw, b=vSw + 1, c=vY + 13,
           good=sGood, idx=sIdx, swm=14 if OPT.get('swh') else 15, swx=12 if OPT.get('swh') else 13))


if OPT.get('swf', 0):
    e('''
    s_add_u32 s3, s{cs}, 1
    s_lshr_b32 s3, s3, 1
    s_mul_i32 s4, s{gl}, 5
    s_add_u32 s3, s3, s4
    s_lshl1_add_u32 s4, s3, s{th}
    s_mul_i32 s4, s4, 43008
    s_mul_i32 s5, s{half}, 1792
    s_add_u32 s4, s4, s5
    v_min_u32 v{t1}, 6, v{u1}
    v_mul_u32_u24 v{t0}, 3584, v{u0}
    v_lshl_add_u32 v{t0}, v{t1}, 8, v{t0}
    v_add_u32 v{a2}, s4, v{t0}
    v_min_u32 v{t0}, 3, v{u0}
    v_mul_u32_u24 v{t0}, 3584, v{t0}
    v_lshl_add_u32 v{t0}, v{t1}, 8, v{t0}
    s_add_u32 s4, s4, 28672
    v_add_u32 v{a3}, s4, v{t0}
    s_lshl2_add_u32 s3, s3, s{w}
    s_mul_i32 s3, s3, 5376
    v_min_u32 v{t0}, 5, v{u0}
    v_mul_u32_u24 v{t0}, 896, v{t0}
    v_lshl_add_u32 v{t0}, v{t1}, 7, v{t0}
    v_add_u32 v{b}, s3, v{t0}
    '''.format(cs=sCs, gl=sGl, th=sTh, half=sHalf, w=sW, t0=t0, t1=t1, u0=u[0], u1=u[1], a2=vY + 14, a3=vY + 15, b=vSw + 1))


def sweep1():
    return L('buffer_load_dword a249, v%d, %s, 0 offen' % (vY + 13, S4(sQKV))) if OPT.get('sw1', 0) else []


def sweep():
    r = L('''
    s_mov_b32 s{sw}, s{gu}
    s_mov_b32 s{sw1}, s{gu1}
    s_mul_i32 s{sw2}, s{good}, 1605632
    s_mov_b32 s{sw3}, 0x20000
    buffer_load_dword a250, v{a}, {srd}, 0 offen
    s_mov_b32 s{sw}, s{wo}
    s_mov_b32 s{sw1}, s{wo1}
    s_mul_i32 s{sw2}, s{good}, 401408
    buffer_load_dword a251, v{b}, {srd}, 0 offen
    '''.format(sw=sSW, sw1=sSW + 1, sw2=sSW + 2, sw3=sSW + 3, gu=sGU, gu1=sGU + 1, wo=sWO, wo1=sWO + 1, a=vSw, b=vSw + 1,
               srd=S4(sSW), good=sGood))
    if OPT.get('swf', 0):
        x = L('buffer_load_dword a248, v%d, %s, 0 offen\nbuffer_load_dword a247, v%d, %s, 0 offen' % (vY + 14, S4(sSW), vY + 15, S4(sSW)))
        r = r[:4] + x + (r[4:5] if OPT['swf'] == 2 else []) + r[5:]
    return r


def sweep3():
    r = L('''
    s_mul_i32 s3, s{g}, 14
    s_add_u32 s3, s3, s{a}
    s_lshl2_add_u32 s3, s3, s{w}
    s_mul_i32 s3, s3, 1792
    v_min_u32 v{t}, 13, v0
    v_lshlrev_b32 v{t}, 7, v{t}
    buffer_load_dword a252, v{t}, {srd}, s3 offen
    '''.format(g=sG, a=sA, w=sW, t=t5, srd=S4(sWD)))
    return r if OPT.get('sw3', 0) else []


def kvdma(pg):
    pre = ['s_mul_i32 s%d, s%d, 172032' % (sOff, sCh + (pg >> 1))]
    if pg & 1:
        pre.append('s_add_u32 s%d, s%d, 86016' % (sOff, sOff))
    return dma(vOffKV, sQKV, 's%d' % sOff, pg * PG, 'kv%d' % pg, pre)


def qdma(i):
    return dma(vOffQ, sQKV, 's%d' % sOff, (WQP + i) * PG, 'q%d' % i, ['s_mul_i32 s%d, s%d, 172032' % (sOff, sCh + i)])


vS, vQ2, vOnes = u[8], u[9], u[10]
vMean, vStd, vR, vRL = u[6], u[7], u[12], u[14]
e('v_mov_b32 v%d, 0' % vS)
e('v_mov_b32 v%d, 0' % vQ2)
e('v_mov_b32 v%d, 0x3f803f80' % vOnes)
e('v_mov_b32 v%d, 0x3f803f80' % (vOnes + 1))
SCR, KVS, XRP, WOP = 21, 25, 26, 0
e('''
s_lshl_b32 s3, s{w}, 8
s_add_u32 s3, s3, {b}
v_lshl_add_u32 v{a}, v{u3}, 2, s3
v_lshl_add_u32 v{c}, v{u4}, 4, s3
'''.format(w=sW, b=KVS * PG + 2048, a=t3, c=t4, u3=u[3], u4=u[4]))


def xdots(i):
    r = []
    for j in range(16):
        reg = vF + 16 * i + j
        r.append(I('v_dot2c_f32_bf16 v%d, v%d, v%d' % (vS, reg, vOnes)))
        r.append(I('v_dot2c_f32_bf16 v%d, v%d, v%d' % (vQ2, reg, reg)))
    return r


for _ in range(OPT.get('pada', 0)):
    e('s_nop 0')
stamp('_addr')
SW1 = OPT.get('sw1', 0)
if SW1 == 2:
    p.add(sweep1())
if SW1 in (4, 5):
    p.add(xdma(1))
p.add(xdma(2))
if SW1 == 1:
    p.add(sweep1())
kv_next = 0
XD = OPT.get('xd', 1)
XS = OPT.get('xs', [[3], [4], [5], [6], [], [], []])
XW = OPT.get('xw', [[], [], [], [3], [2], [1, 3], [2]])
for i in range(7):
    e('@waitvm x%d' % i)
    stamp('_xl%d' % i)
    if i == 0:
        stamp('x0 landed')
    if i == 2:
        e('s_cmp_eq_u32 s%d, 0' % sZero)
        e('s_cbranch_scc1 L_nozero2')
        e('s_mov_b64 exec, 1')
        e('buffer_atomic_add v%d, off, %s, 0' % (vOne, S4(sDBG)), raw=True)
        e('s_mov_b64 exec, -1')
        e('L_nozero2:')
    for ks in range(4):
        e('ds_read_b128 %s, v%d offset:%d' % (V(vF + 16 * i + 4 * ks, 4), vAdX + ks, i * PG))
    dots = xdots(i - XD) if i >= XD else []
    d = [[], [], [], []]
    xs = XS[i]
    if len(xs) == 1:
        x_ = xdma(xs[0])
        d = [x_[:3], x_[3:4], x_[4:5], x_[5:6]]
    elif len(xs) == 2:
        x_, y_ = xdma(xs[0]), xdma(xs[1])
        d = [x_[:4], x_[4:], y_[:4], y_[4:]]
    for q in XW[i]:
        if kv_next == 0 and SW1 == 3:
            d[q] = d[q] + sweep1()
        d[q] = d[q] + kvdma(kv_next)
        kv_next += 1
    for q in range(4):
        p.add(d[q] + dots[8 * q:8 * q + 8])
for c_ in range(7 - XD, 7):
    p.add(xdots(c_))
    if c_ == 6 or OPT.get('xk'):
        p.add(kvdma(kv_next))
        kv_next += 1
stamp('x read')

aK, aV, vRr = vX, vX + 16, vX + 32
aCK, aCV = 40, 56
vAdKw, vAdVw, vAdQw, vO4, vMA, vCx = vY + 2, vY + 3, vY + 12, vY + 8, vY + 4, vY + 16
e('''
s_lshl_b32 s3, s{w}, 11
v_add_u32 v{kw}, s3, v{k}
v_add_u32 v{vw}, s3, v{v}
v_add_u32 v{qw}, s{wk}, v{q}
'''.format(w=sW, kw=vAdKw, vw=vAdVw, qw=vAdQw, k=vAdK, v=vAdV, q=vAdQ, wk=sWK))
for n in range(4):
    e('v_mov_b32 v%d, 0x3f803f80' % (vO4 + n))


def mfma_ones(acc, b, first):
    return I('v_mfma_f32_32x32x16_bf16 %s, %s, %s, %s' % (A(acc, 16), V(vO4, 4), b, '0' if first else A(acc, 16)))


ws = WStream(look=OPT.get('a1l', 4), wper=OPT.get('a1w', 2))
pgap = {}
kb = OPT.get('kvb', (0, 2, 4, 7, 10, 12, 13))
KVB = dict(zip(kb, kb[1:] + (14,)))
for pg in range(14):
    pre = None
    if pg in KVB:
        pre = L('@waitvm ' + ' '.join('kv%d' % q for q in range(pg, KVB[pg])) + '\ns_barrier')
    if pg & 1:
        for (acc, ad) in ((aCK, vAdKw), (aCV, vAdVw)):
            off = (pg - 1) * PG
            glast = ws.step(ad, off, ad, off + 512, lambda a: mfma_ones(acc, a, pg == 1), pre)
            pre = None
    for ks2 in range(2):
        k = 2 * pg + ks2
        for (acc, ad) in ((aK, vAdK), (aV, vAdV)):
            off = pg * PG + ks2 * 2048
            g_ = ws.step(ad, off, ad, off + 512, lambda a: mfma(acc, V(vF + 4 * k, 4), a, '0' if k == 0 else None), pre)
            pre = None
    pgap[pg] = g_
KVP = OPT.get('kvp')
if KVP:
    for pg in range(kv_next, 14 - len(KVP)):
        p.add(kvdma(pg))
    for n, glw in enumerate(KVP):
        ws.fill(glw, kvdma(14 - len(KVP) + n))
else:
    for pg in range(kv_next, 14):
        glw = max(pgap[max(pg - OPT.get('kvl', 14), 0)], 2 * (pg - kv_next) + 1)
        ws.fill(glw, kvdma(pg))
st = halves_sum(vS, t0) + halves_sum(vQ2, t0) + ln_consts(vS, vQ2, vMean, vStd, vR)
st += L('''
v_mul_f32 v{c}, v{m}, v{r}
v_mul_f32 v{rl}, 0x{l:x}, v{r}
v_sub_f32 v{c}, 0, v{c}
'''.format(c=t0, m=vMean, r=vR, rl=vRL, l=LOG2E))
for n, x in enumerate(st):
    ws.fill(2 + n, x)
ws.fill(28, L('ds_write_b32 v{a}, v{r}\nds_write_b32 v{a}, v{c} offset:128'.format(a=t3, r=vR, c=t0)))
for n in range(8):
    ws.fill(30 + n, I('ds_read_b128 %s, v%d offset:%d' % (V(vRr + 4 * n, 4), t4, (n & 3) * 32 + (n >> 2) * 128)))
pre_e = mean_frag(vMean, vMA) + L('''
v_lshlrev_b32 v{t0}, 3, v{u3}
v_add_u32 v{t5}, {cx}, v{t0}
v_mov_b32 v{c}, 0x{l:x}
v_mov_b32 v{u5}, v{u3}
'''.format(t0=t0, u3=u[3], t5=t5, cx=KVS * PG + 3072, c=u[4], l=LOG2E, u5=u[5]))
for n, x in enumerate(pre_e):
    ws.fill(30 + n, x)
ws.fill(40, L('''
s_lshl_b32 s3, s{w}, 8
v_add_u32 v{t4}, s3, v{t5}
s_lshl4_add_u32 s3, s{m}, s{g}
s_lshl2_add_u32 s3, s3, s{w}
s_lshl_b32 s3, s3, 9
s_add_u32 s{o2}, s3, {base}
'''.format(w=sW, t4=t4, t5=t5, m=sM, g=sG, o2=sOff2, base=WS_KVP)))
ws.fill(44, L('''
s_lshl_b32 s3, s{m}, 6
s_add_u32 s3, s3, s{w}
s_lshl_b32 s3, s3, 7
s_add_u32 s{pl}, s3, {kv}
'''.format(m=sM, w=sW, pl=sPoll, kv=C_KV * 128)))
SW2 = OPT.get('sw2', 1)
if SW2 == 1:
    ws.fill(OPT.get('swp', max(glw + 2, 40)), sweep())
QG = OPT.get('qg', (44, 49, 54, 59, 64))
for n, g_ in enumerate(QG):
    ws.fill(g_, qdma(n))
vRa, vRb = vY + 14, vY + 15
ws.fill(48, L('''
s_lshl_b32 s3, s{w}, 12
s_add_u32 s3, s3, {scr}
v_add_u32 v{t0}, s3, v{l16}
s_add_u32 s3, s{wk}, {scr}
v_add_u32 v{t1}, s3, v{l16}
'''.format(w=sW, wk=sWK, scr=SCR * PG, t0=vRa, t1=vRb, l16=vL16)))
ws.fill(glast + 2, L('''
v_accvgpr_read_b32 v{a}, a{k}
v_accvgpr_read_b32 v{b}, a{v}
ds_write_b64 v{ad}, v[{a}:{b}]
'''.format(a=t0, b=t1, k=aCK, v=aCV, ad=t4)))
xch = L('@waitlg0\ns_barrier')
for n in range(4):
    xch.append(I('ds_read_b64 %s, v%d offset:%d' % (V(vCx + 2 * n, 2), t5, 256 * n)))
ws.fill(glast + 3, xch)
for nm, at in (('_a1', 0), ('_a8', 9), ('_a16', 19), ('_a24', 29), ('_a32', 39), ('_a40', 49), ('_a48', 59)):
    ws.fill(at, mkstamp(nm))
p.add(ws.build())
stamp('A1 mfma')


def phi(acc, dst, pre):
    r = []
    for j in range(0, 16, 4):
        g = []
        for jj in (j, j + 2):
            a = acc + jj
            tp = u[0] + (jj & 2)
            g.append(pre(jj, tp) + L('''
            v_exp_f32 v{t}, v{t} clamp
            v_exp_f32 v{t1}, v{t1} clamp
            v_max_f32 v{a}, 0x{e:x}, v{a}
            v_max_f32 v{a1}, 0x{e:x}, v{a1}
            '''.format(t=tp, t1=tp + 1, a=a, a1=a + 1, e=EPS6)) + [pk('add', a, a, tp), I('v_cvt_pk_bf16_f32 v%d, v%d, v%d' % (dst + jj // 2, a, a + 1))])
        r += zip_groups(g)
    return r


vPK, vVV, aKV = vCx, vY + 24, vX + 32
BC1 = 'op_sel_hi:[1,0]'
ea = [pk('add', vCx, vCx, vCx + 2), pk('add', vCx + 4, vCx + 4, vCx + 6), pk('add', t0, vCx, vCx + 4)]
ea += L('v_mov_b32 v%d, v%d' % (t2, t1))
gv = []
for j in range(0, 16, 2):
    tp = u[0] + (j & 2)
    gv.append([pk('mul', tp, vRr + 16 + j, t2, mod=BC1), pk('fma', aV + j, aV + j, vRr + j, tp),
               I('v_cvt_pk_bf16_f32 v%d, v%d, v%d' % (vVV + j // 2, aV + j, aV + j + 1)),
               I('v_cndmask_b32 v%d, v%d, v%d, s[%d:%d]' % (vVV + j // 2, vVV + j // 2, vOnes, sMask28, sMask28 + 1))])
for j in range(0, 8, 2):
    ea += zip_groups(gv[j:j + 2])
ea += phi(aK, vPK, lambda j, tp: [pk('mul', tp, vRr + 16 + j, t0, mod=BC1), pk('fma', aK + j, aK + j, vRr + j, tp),
                                  pk('mul', tp, aK + j, u[4], mod=BC1)])
QE = OPT.get('qe', 5)
p.add(spread(ea, [qdma(n) for n in range(len(QG), QE)]) if QE > len(QG) else ea)
p.add([mfma(aKV, V(vPK, 4), V(vVV, 4), '0'), mfma(aKV, V(vPK + 4, 4), V(vVV + 4, 4))])
e('''
buffer_load_dword v{p}, off, {dbg}, 0 sc1
v_lshlrev_b32 v{t5}, 2, v{u3}
v_add_u32 v{t5}, {cx}, v{t5}
s_lshl_b32 s3, s{w}, 7
v_add_u32 v{t4}, s3, v{t5}
'''.format(w=sW, wk=sWK, scr=SCR * PG, t0=t0, t1=t1, l16=vL16, p=vP, dbg=S4(sDBG), t4=t4, t5=t5, u3=u[5], cx=KVS * PG + 2048))
for q in range(4):
    e('ds_write_b128 v%d, %s offset:%d' % (vRa, V(aKV + 4 * q, 4), q * 1024))
e('@waitlg0')
e('s_barrier')
for j in range(4):
    e('ds_read_b128 %s, v%d offset:%d' % (V(vX + 4 * j, 4), vRb, j * PG))
for (a, b) in ((0, 4), (2, 6), (8, 12), (10, 14), (0, 8), (2, 10)):
    p.add([pk('add', vX + a, vX + a, vX + b)])
e('v_cvt_pk_bf16_f32 v%d, v%d, v%d' % (vX, vX, vX + 1))
e('v_cvt_pk_bf16_f32 v%d, v%d, v%d' % (vX + 1, vX + 2, vX + 3))
e('buffer_store_dwordx2 %s, v%d, %s, s%d offen sc1' % (V(vX, 2), vL8, S4(sWS), sOff2), tag='kvp')
stamp('kv stored')
for n in range(QE, 7):
    p.add(qdma(n))
p.add(sweep() if SW2 == 2 else [])
if OPT.get('swh') == 2:
    x_ = sweep()[:5]
    x_[4] = I(x_[4].text.replace('a250', 'a248') + ' offset:128')
    p.add(x_)

W1PG = {}
W2PG = {}


def wodma(n):
    c, uu = sCh + (n >> 1), n & 1
    r = L("""
    s_lshl_b32 s{t}, s{c}, 13
    s_add_u32 s{t}, s{t}, s{wk}
    s_add_u32 m0, s{t}, {lo}
    s_mul_i32 s{o}, s{c}, 57344
    """.format(t=sT[3], c=c, wk=sWK, lo=WOP * PG + uu * PG, o=sOff))
    if uu:
        r += L('s_add_u32 s%d, s%d, 28672' % (sOff, sOff))
    return r + dma(vOffWO, sWO, 's%d' % sOff, None, 'wo')


def xrdma(uu):
    return L('s_lshl1_add_u32 s{t}, s{wk}, 0\ns_add_u32 m0, s{t}, {lo}\ns_movk_i32 s{o}, {so}'.format(
        t=sT[3], wk=sWK, lo=XRP * PG + uu * 1024, o=sOff, so=uu * 14336)) + dma(vOffXR, sX, 's%d' % sOff, None, 'xr')


def gudma(half, k, page):
    (W2PG if half else W1PG)[k] = page
    return dma(vGUo + (k & 3) + 4 * half, sGU, 's%d' % sGUt[k >> 2], page * PG, 'gu%d_%d' % (half, k))


aQ, vCQ = vX + 16, vY + 24
ws = WStream(look=OPT.get('a2l', 5), wper=OPT.get('a2w', 2))
for i in range(7):
    pre = None
    if i == 0:
        pre = L('@waitvm q0 q1 q2 q3 q4\ns_barrier')
    if i == 5:
        pre = L('@waitvm q5 q6\ns_barrier')
    glast = ws.step(vAdQw, i * PG, vAdQw, i * PG + 256, lambda a: mfma_ones(aCK, a, i == 0), pre)
    for ks in range(4):
        k = 4 * i + ks
        off = i * PG + ks * 1024
        ws.step(vAdQ, off, vAdQ, off + 256, lambda a: mfma(aQ, a, V(vF + 4 * k, 4), '0' if k == 0 else None))
ws.fill(OPT.get('kvs', 17), L('@waitvm kvp') + poll_check(16, '0', sDBG) + signal(sPoll))
for n in range(1, 4):
    ws.fill(2 + n, I('v_mov_b32 v%d, 0' % (vCQ + n)))
NW = OPT.get('nw', 8)
for n in range(NW):
    ws.fill(OPT.get('kvs', 17) + 1 + 2 * n, wodma(n))
for nm in OPT['st'] or ():
    if nm.startswith('_q'):
        ws.fill(int(nm[2:]), mkstamp(nm))
ws.fill(glast + 2, L('v_accvgpr_read_b32 v{a}, a{k}\nds_write_b32 v{ad}, v{a}'.format(a=t0, k=aCK, ad=t4)))
xch = L('@waitlg0\ns_barrier')
for n in range(4):
    xch.append(I('ds_read_b32 v%d, v%d offset:%d' % (vY + 28 + n, t5, 128 * n)))
ws.fill(glast + 3, xch)
p.add(ws.build())
stamp('A2 mfma')
e('''
v_add_f32 v{a}, v{y0}, v{y1}
v_add_f32 v{b}, v{y2}, v{y3}
v_add_f32 v{a}, v{a}, v{b}
'''.format(a=t0, b=t1, y0=vY + 28, y1=vY + 29, y2=vY + 30, y3=vY + 31))
p.add(hilo(t0, vCQ, t1))
p.add([mfma(aQ, V(vCQ, 4), V(vMA, 4))])
tabs = []
for n in range(8):
    tabs += L('v_add_u32 v%d, %d, v%d' % (vGUo + n, (n & 3) * 57344 + (n >> 2) * 128, vOffGU))
for i in range(7):
    tabs += L('s_mul_i32 s%d, s%d, 229376' % (sGUt[i], sCh + i))
if OPT.get('n0', 0):
    p.add(tabs)
    tabs = []
vPQ = vY
ph = phi(aQ, vPQ, lambda j, tp: [pk('mul', tp, aQ + j, vRL, mod=BC1), pk('mul', aQ + j, aQ + j, vR, mod=BC1)])
free = list(range(28, 40)) + list(range(14, 21))
N0 = OPT.get('n0', 0)
WL = OPT.get('wl', 2)
wrest = [wodma(n) for n in range(NW, 14)] + [xrdma(0), xrdma(1)]
p.add(spread(ph[:40], ([] if WL else wrest) + [gudma(0, k, free[k]) for k in range(N0)]) if (N0 or not WL) else ph[:OPT.get('php', 8)])
stamp('_ph')
p.add(poll_issue(sPoll, OPT.get('kva', 0)))
p.add(ph[40:] if (N0 or not WL) else ph[OPT.get('php', 8):])
e('v_cndmask_b32 v%d, v%d, 0, s[%d:%d]' % (vPQ + 6, vPQ + 6, sMaskHi, sMaskHi + 1))
e('v_cndmask_b32 v%d, v%d, 0, s[%d:%d]' % (vPQ + 7, vPQ + 7, sMaskHi, sMaskHi + 1))
e("""
s_lshl_b32 s3, s{m}, 15
s_lshl_b32 s4, s{w}, 9
s_add_u32 s3, s3, s4
s_add_u32 s{o2}, s3, {base}
s_lshl_b32 s5, s{gl}, 13
s_add_u32 s{o}, s{o2}, s5
v_mov_b32 v{e0}, 0x3f80
v_mov_b32 v{e1}, 0x3f800000
s_add_u32 s4, s4, {kvs}
v_add_u32 v{t0}, s4, v{l8}
v_add_u32 v{t1}, {kvs}, v{l8}
s_lshl2_add_u32 s3, s{g}, s{w}
s_lshl4_add_u32 s3, s3, s{m}
s_lshl_b32 s3, s3, 11
s_add_u32 s{st}, s3, {ob}
s_lshl1_add_u32 s3, s{w}, s{half}
s_lshl_b32 s3, s3, 7
s_add_u32 s{sig}, s3, s{cnt}
""".format(m=sM, w=sW, o=sOff, o2=sOff2, base=WS_KVP, gl=sGl, e0=u[0], e1=u[1], kvs=KVS * PG, t0=t0, t1=t1, l8=vL8,
           g=sG, st=sSt, ob=WS_O, half=sHalf, sig=sSig, cnt=sCnt))
for j in range(4):
    e('v_mov_b32 v%d, 0' % (vX + 32 + j))
stamp('q done')
p.add(poll_check(16, sPoll))
stamp('kv flag')

for gg in range(16):
    if gg and gg % 2 == 0:
        e('s_add_u32 s5, s5, 4096')
        e('s_and_b32 s5, s5, 0x7fff')
        e('s_add_u32 s%d, s%d, s5' % (sOff, sOff2))
    e('buffer_load_dwordx2 %s, v%d, %s, s%d offen%s sc1' % (V(vX + 2 * gg, 2), vL8, S4(sWS), sOff, ' offset:2048' if gg & 1 else ''))
NA = OPT.get('na', 6)
p.add(tabs)
beh = (wrest[::-1] if WL == 1 else wrest[-2:] if WL else []) + [gudma(0, k, free[k]) for k in range(N0, NA)]
dots = []
for gg in range(16):
    for d in range(2):
        dots += L('v_dot2c_f32_bf16 v%d, v%d, v%d' % (vX + 32 + 2 * d, vX + 2 * gg + d, u[0]))
        dots += L('v_dot2c_f32_bf16 v%d, v%d, v%d' % (vX + 33 + 2 * d, vX + 2 * gg + d, u[1]))
DN = OPT.get('dn', 1)
beh2 = []
if DN == 0:
    for x in beh:
        p.add(x)
    p.add(dots)
elif DN == 1:
    p.add(spread(dots, beh))
else:
    p.add(dots)
    beh2 = beh
stamp('kv loaded')
e('v_cvt_pk_bf16_f32 v%d, v%d, v%d' % (vX, vX + 32, vX + 33))
e('v_cvt_pk_bf16_f32 v%d, v%d, v%d' % (vX + 1, vX + 34, vX + 35))
e('ds_write_b64 v%d, %s' % (t0, V(vX, 2)))
for x in beh2[:len(beh2) // 2] if DN == 2 else []:
    p.add(x)
e('@waitlg0')
e('s_barrier')
vKVF = vY + 8
for q in range(4):
    e('ds_read_b64 %s, v%d offset:%d' % (V(vKVF + 2 * q, 2), t1, q * 512))
aO = vX + 16
p.add([mfma(aO, V(vKVF, 4), V(vPQ, 4), '0'), mfma(aO, V(vKVF + 4, 4), V(vPQ + 4, 4))])
for x in (beh2[len(beh2) // 2:] if DN == 2 else beh2[:4]):
    p.add(x)
e('''
v_mov_b32 v{b}, v{d}
v_permlane32_swap_b32 v{d}, v{b}
v_add_f32 v{b}, 0x{eps:x}, v{b}
v_rcp_f32 v{r}, v{b}
v_cndmask_b32 v{r2}, v{r}, 0, s[{mh}:{mh1}]
'''.format(a=t2, b=t3, d=aO + 12, eps=EPS6, r=u[0], r2=u[2], mh=sMaskHi, mh1=sMaskHi + 1))
for hf_ in range(2):
    for j in range(8 * hf_, 8 * hf_ + 8, 2):
        p.add([pk('mul', aO + j, aO + j, u[2] if j >= 12 else u[0], mod=BC1)])
    for j in range(4 * hf_, 4 * hf_ + 4):
        e('v_cvt_pk_bf16_f32 v%d, v%d, v%d' % (vX + j, aO + 2 * j, aO + 2 * j + 1))
    e('buffer_store_dwordx4 %s, v%d, %s, s%d offen%s sc1' % (V(vX + 4 * hf_, 4), vL16, S4(sWS), sSt, ' offset:1024' if hf_ else ''), tag='ost')
e('s_cmp_ge_u32 s%d, 7' % sCs)
e('s_cbranch_scc1 L_idle')
stamp('_os')
for x in beh2[4:] if DN == 3 else []:
    p.add(x)
e('''
s_lshl1_add_u32 s3, s{tt}, s{kh}
s_lshl_b32 s3, s3, 7
s_add_u32 s{pl}, s3, s{cnt}
s_lshl2_add_u32 s3, s{g}, s{tt}
s_lshl1_add_u32 s4, s3, s{kh}
s_lshl_b32 s4, s4, 14
s_add_u32 s{o2}, s4, {ob}
s_lshl1_add_u32 s4, s{cs}, s{kh}
s_lshl4_add_u32 s3, s3, s4
s_lshl_b32 s4, s3, 11
s_add_u32 s{st}, s4, {hb}
s_lshl_b32 s4, s3, 8
s_add_u32 s{st2}, s4, {sb}
s_lshl_b32 s3, s{w}, 11
s_add_u32 s3, s3, {xr}
v_and_b32 v{a}, 31, v0
v_lshrrev_b32 v{b}, 5, v0
v_lshlrev_b32 v{b}, 3, v{b}
v_lshl_add_u32 v{b}, v{a}, 6, v{b}
v_add_u32 v{b}, s3, v{b}
v_lshlrev_b32 v{l8}, 3, v{a}
s_lshl_b32 s3, s{w}, 12
s_add_u32 s3, s3, {scr}
v_add_u32 v{t0}, s3, v{l16}
s_xor_b32 s4, s{w}, 2
s_lshl_b32 s4, s4, 12
s_add_u32 s4, s4, {scr}
v_add_u32 v{t1}, s4, v{l16}
'''.format(tt=sTT, kh=sKh, pl=sPoll, cnt=sCnt, g=sG, o2=sOff2, ob=WS_O, cs=sCs, st=sT[8], hb=WS_H, st2=sT[9], sb=WS_ST,
           w=sW, xr=XRP * PG, a=t2, b=t3, l8=vL8, scr=SCR * PG, t0=t0, t1=t1, l16=vL16))
e('@waitvm ost xr')
p.add(signal(sSig))
stamp('o stored')
if OPT.get('ack'):
    e('@waitvm0')
    stamp('_ack')
if DIAG:
    e('s_mov_b32 s%d, %d' % (sIter, OPT['spin'] + 1))
if STOP <= 1:
    e('s_branch L_fin')

if WL == 1:
    e('s_barrier')
if WL == 2:
    for x in wrest[:-2]:
        p.add(x)
NB = OPT.get('nb', 14)
for k in range(NA, NB):
    p.add(gudma(0, k, free[k]))
PP = OPT.get('pp', 0)
if OPT.setdefault('od', 0):
    e('s_sleep %d' % OPT['od'])
p.add(poll_pipe_issue(sPoll) if PP else poll_issue(sPoll))
stamp('_op')
for bq in range(4):
    e('ds_read_b64 %s, v%d offset:%d' % (V(vY + 2 * bq, 2), t3, 16 * bq))
for j in range(8):
    e('v_lshlrev_b32 v%d, 16, v%d' % (vX + 2 * j, vY + j))
    e('v_and_b32 v%d, 0xffff0000, v%d' % (vX + 1 + 2 * j, vY + j))
e('s_lshl_b32 s3, s%d, 7' % sTT)
e('s_add_u32 s3, s3, s%d' % sCnt)
e('s_add_u32 s%d, s3, %d' % (sSig, C_H * 128))
e('v_mov_b32 v%d, 0' % vS)
e('v_mov_b32 v%d, 0' % vQ2)
sOr = sT[4]
e('''
s_mul_i32 s3, s{kh}, 26624
v_subrev_u32 v{d0}, s3, v{w0}
v_subrev_u32 v{d1}, s3, v{w1}
s_mul_i32 s3, s{cs}, 3584
v_add_u32 v{w0}, s3, v{w0}
v_add_u32 v{w1}, s3, v{w1}
v_add_u32 v{p0}, s3, v{p0}
v_add_u32 v{p1}, s3, v{p1}
s_lshl_b32 s{r}, s{cs}, 11
s_sub_u32 s{r}, s{r}, 2048
s_mov_b32 s6, -25088
'''.format(kh=sKh, d0=vAdD, d1=vAdD + 1, w0=vAdWO, w1=vAdWO + 1, p0=vAdWOp, p1=vAdWOp + 1, cs=sCs, r=sOr))
p.add(poll_pipe_check(8, sPoll) if PP else poll_check(8, sPoll))
stamp('o flag')
if DIAG:
    e('s_sub_u32 s101, %d, s%d' % (OPT['spin'] + 1, sIter))


def oload(j):
    r = []
    if j % 2 == 0:
        r += L('s_add_u32 s{t}, s{t}, 2048\ns_and_b32 s{t}, s{t}, 0x3fff\ns_add_u32 s{o}, s{t}, s{b}'.format(t=sOr, o=sOff, b=sOff2))
    r.append(I('buffer_load_dwordx4 %s, v%d, %s, s%d offen%s sc1' % (A(aF + 4 * j, 4), vL16, S4(sWS), sOff, ' offset:1024' if j % 2 else '')))
    return r


for j in range(8):
    p.add(oload(j))
if WL == 2:
    e('s_barrier')
stamp('_ol')
ws = WStream()
TL = OPT.get('tl', 4)
bo = [(j, ft) for j in range(16 - TL) for ft in range(2)] + [(j, 1) for j in range(16 - TL, 16)] + [(j, 0) for j in range(16 - TL, 16)]
for j, ft in bo:
    hh, s = j >> 1, j & 1
    if 1:
        pre = []
        if s == 0 and hh and (ft == 0 or j >= 16 - TL):
            pre += L('s_cmp_eq_u32 s{c}, {n}\ns_cselect_b32 s{d}, s{wrap}, 3584'.format(c=sCs, n=8 - hh, d=sT[2], wrap=sT[3]))
        if hh:
            r_ = (vAdWO if s == 0 else vAdWOp) + ft
            pre += L('v_add_u32 v%d, s%d, v%d' % (r_, sT[2], r_))
        a1_ = (vAdWOp if s == 1 else vAdWO) + ft
        ws.step(vAdWO + ft, WOP * PG + 16 * s * 128, a1_, WOP * PG + (16 * s + 8) * 128,
                lambda a: mfma(vX + 16 * ft, a, A(aF + 4 * j, 4), '0' if (j == 0 and ft == 1) else None), pre)
assert TL in (0, 2, 4)
for j in range(8, 16):
    ws.fill(j - 8, oload(j))
ws.fill(0, mkstamp('_b0'))
ws.fill(15, mkstamp('_b16'))
ws.fill(8, sweep3())
for n, k in enumerate(range(NB, 19)):
    ws.fill(9 + (OPT.get('bsp', 18) * n) // (19 - NB), gudma(0, k, free[k]))
xw_ = [I('ds_write_b128 v%d, %s offset:%d' % (t0, V(vX + 16 + 4 * q, 4), q * 1024)) for q in range(4)]
xr_ = L('@waitlg0\ns_barrier') + [I('ds_read_b128 %s, v%d offset:%d' % (V(vX + 32 + 4 * q, 4), t1, q * 1024)) for q in range(4)]
if TL >= 4:
    ws.fill(33 - TL, xw_)
    ws.fill(31, xr_)
    p.add(ws.build())
else:
    p.add(ws.build() + xw_ + xr_)
stamp('_bm')
for hf_ in range(2):
    for j in range(8 * hf_, 8 * hf_ + 8, 2):
        p.add([pk('add', vX + j, vX + j, vX + 32 + j)])
    for j in range(4 * hf_, 4 * hf_ + 4):
        e('v_cvt_pk_bf16_f32 v%d, v%d, v%d' % (vY + j, vX + 2 * j, vX + 2 * j + 1))
    e('buffer_store_dwordx4 %s, v%d, %s, s%d offen%s sc1' % (V(vY + 4 * hf_, 4), vL16, S4(sWS), sT[8], ' offset:1024' if hf_ else ''))
for j in range(8):
    e('v_dot2c_f32_bf16 v%d, v%d, v%d' % (vS, vY + j, vOnes))
    e('v_dot2c_f32_bf16 v%d, v%d, v%d' % (vQ2, vY + j, vY + j))
p.add(zip_groups([halves_sum(vS, t2), halves_sum(vQ2, t3)]))
e('buffer_store_dwordx2 %s, v%d, %s, s%d offen sc1' % (V(vS, 2), vL8, S4(sWS), sT[9]))
stamp('_hs')
for j in range(8):
    e('v_accvgpr_write_b32 a%d, v%d' % (aH + j, vY + j))
e('''
v_bfe_u32 v{r}, v0, 2, 2
v_bfe_u32 v{iu}, v0, 4, 1
v_lshrrev_b32 v{hf}, 5, v0
v_lshl_add_u32 v{a}, v{hf}, 2, v{r}
v_lshlrev_b32 v{a}, 7, v{a}
v_lshl_add_u32 v{a}, v{iu}, 11, v{a}
v_and_b32 v{b}, 1, v0
v_lshl_add_u32 v{a}, v{b}, 3, v{a}
v_lshrrev_b32 v{b}, 1, v{r}
v_lshl_add_u32 v{b}, v{iu}, 1, v{b}
v_lshlrev_b32 v{b}, 1, v{b}
v_bfe_u32 v{c}, v0, 1, 1
v_xor_b32 v{b}, v{b}, v{c}
'''.format(r=u[0], iu=u[1], hf=u[2], a=t2, b=t3, c=t4))
for t in range(4):
    e('v_xor_b32 v%d, %d, v%d' % (t4, 2 * t, t3))
    e('v_lshl_add_u32 v%d, v%d, 4, v%d' % (vAdC + t, t4, t2))
sHb, sHo, sStL, sHHst, sCSp = sT[5], sT[6], sT[7], sT[10], sT[4]
e('''
s_movk_i32 s3, 1792
v_mad_u32_u24 v{a}, v{hf}, s3, v{l8}
v_lshlrev_b32 v{l8}, 1, v{l8}
s_lshl2_add_u32 s3, s{g}, s{w}
s_lshl_b32 s4, s3, 12
s_add_u32 s{stl}, s4, {sb}
s_lshl_b32 s4, s3, 15
s_add_u32 s{hb}, s4, {hbase}
s_mul_i32 s3, s3, 14
s_add_u32 s3, s3, s{am}
s_lshl_b32 s3, s3, 13
s_add_u32 s{hst}, s3, {hh}
s_lshl_b32 s3, s{w}, 7
s_add_u32 s3, s3, s{cnt}
s_add_u32 s{pl}, s3, {ch}
s_lshl_b32 s3, s{am}, 13
s_add_u32 s{csp}, s3, {cc}
'''.format(kh=sKh, d0=vAdD, d1=vAdD + 1, w0=vAdWO, w1=vAdWO + 1, a=t4, hf=u[2], l8=vL8, g=sG, w=sW, stl=sStL, sb=WS_ST,
           hb=sHb, hbase=WS_H, am=sA, hst=sHHst, hh=WS_HH, cnt=sCnt, pl=sPoll, ch=C_H * 128, csp=sCSp, cc=C_CS * 128))
e('@waitvm0')
H1S = OPT.get('h1s', 1)
if H1S:
    e('s_barrier')
    e('s_cmp_ge_u32 s%d, 2' % sW)
    e('s_cbranch_scc1 L_nohs')
    for x in signal(sSig):
        x.raw = True
        p.add([x])
    e('L_nohs:')
else:
    p.add(signal(sSig))
stamp('h stored')
if STOP <= 2:
    e('s_branch L_fin')

NC = OPT.get('nc', 0)
N1 = OPT.get('n1', 9)
w1late = [gudma(0, k, n) for n, k in enumerate(range(19, 28))]
for x in w1late[:N1]:
    p.add(x)
for k in range(NC):
    p.add(gudma(1, k, 9 + k))
if OPT.get('hd'):
    e('s_sleep %d' % OPT['hd'])
p.add(poll_pipe_issue(sPoll) if PP else poll_issue(sPoll))
stamp('_hp')
for n in range(8):
    e('v_add_u32 v%d, %d, v%d' % (vWDo + n, n * 14336, vOffWD))
e('v_add_u32 v%d, 4096, v%d' % (vL16b, vL16))
e('''
s_lshl2_add_u32 s3, s{g}, s{tt}
s_lshl1_add_u32 s3, s3, s{kh}
s_mul_i32 s3, s3, 57344
s_add_u32 s4, s3, {base}
s_lshl1_add_u32 s3, s{w}, s{half}
s_lshl_b32 s3, s3, 9
s_add_u32 s3, s3, s{cnt}
s_add_u32 s{sig}, s3, {chh}
s_lshl1_add_u32 s3, s{tt}, s{kh}
s_lshl_b32 s3, s3, 9
s_add_u32 s3, s3, s{cnt}
s_add_u32 s{st}, s3, {chh}
'''.format(g=sG, tt=sTT, kh=sKh, base=WS_HH, w=sW, half=sHalf, cnt=sCnt, sig=sSig, chh=C_HH * 128, st=sSt))
for i in range(7):
    e('s_mul_i32 s%d, s%d, 114688' % (sWDt[i], sCh + i))
    e('s_lshl_b32 s3, s%d, 13' % (sCh + i))
    e('s_add_u32 s%d, s3, s4' % sHHt[i])
e('v_accvgpr_write_b32 a%d, 0' % (aCS + 16))
e('v_accvgpr_write_b32 a%d, 0' % (aCS + 17))


def hload(k):
    r = []
    if k % 4 == 0:
        r += L('s_lshl_b32 s%d, s%d, 12\ns_add_u32 s%d, s%d, s%d' % (sHo, sCh + k // 4, sHo, sHo, sHb))
    r.append(I('buffer_load_dwordx4 %s, v%d, %s, s%d offen%s sc1' % (A(aF + 4 * k, 4), vL16, S4(sWS), sHo, ' offset:%d' % (1024 * (k % 4)) if k % 4 else '')))
    return r


h0 = hload(0)
p.add(h0[:-1])
p.add(poll_pipe_check(14, sPoll) if PP else poll_check(7 if H1S else 14, sPoll))
for _ in range(OPT.get('padc', 0)):
    e('s_nop 0')
stamp('h flag')
HL = OPT.get('hl', 10)
p.add(h0[-1:])
for k in range(1, HL):
    p.add(hload(k))


class Win:
    def __init__(self, regs):
        self.cur = {r: 0 for r in regs}

    def fix(self, reg, off):
        base = (off // 61440) * 61440
        pre = []
        if self.cur[reg] != base:
            d = base - self.cur[reg]
            pre.append(I('v_add_u32 v%d, %d, v%d' % (reg, d, reg)) if d > 0 else I('v_subrev_u32 v%d, %d, v%d' % (reg, -d, reg)))
            self.cur[reg] = base
        return pre, off - base


winC = Win([vAdC + t for t in range(4)])
winD = Win([vAdD, vAdD + 1])
cA, cS = vCc, vCc + 2
acc_of = {0: vX, 1: vX + 16, 2: vY, 3: vY + 16, 4: 200, 5: 216, 6: vX, 7: vX + 16}


def hhstore(tile):
    d = u[8] + (tile & 1) * 4
    return [I('buffer_store_dwordx4 %s, v%d, %s, s%d offen%s sc1' % (V(d, 4), vL16b if tile >= 4 else vL16, S4(sWS), sHHst,
                                                                     ' offset:%d' % (1024 * (tile & 3)) if tile & 3 else ''), tag='hh%d' % tile)]


def eslots(tiles):
    slots = {}

    def put(sl, x):
        slots.setdefault(sl, []).append(x)
    n = 0
    for tile in tiles:
        acc = acc_of[tile]
        for el in range(8):
            tp = u[n % 6]
            put(2 * n, I('v_mul_f32 v%d, v%d, v%d' % (tp, cA, acc + el)))
            put(2 * n + 1, I('v_exp_f32 v%d, v%d' % (tp, tp)))
            put(2 * n + 2, I('v_fma_f32 v%d, v%d, v%d, v%d' % (tp, tp, cS, cS)))
            put(2 * n + 4, I('v_rcp_f32 v%d, v%d' % (tp, tp)))
            put(2 * n + 5, I('v_mul_f32 v%d, v%d, v%d' % (tp, tp, acc + 8 + el)))
            if el & 1:
                put(2 * n + 7, I('v_cvt_pk_bf16_f32 v%d, v%d, v%d' % (u[8] + (tile & 1) * 4 + el // 2, u[(n - 1) % 6], tp)))
            if el == 7:
                put(2 * n + 8, hhstore(tile))
            n += 1
    out = []
    for k in range(max(slots) + 1):
        sl = slots.get(k, [])
        sl.sort(key=lambda x: 0 if (not isinstance(x, list) and x.op in ('v_exp_f32', 'v_rcp_f32')) else 1)
        out.append(sl)
    return out


def efast(tile, tb=u[0]):
    acc = acc_of[tile]
    g = []
    for j in range(0, 8, 2):
        tp = tb + j
        g.append([pk('mul', tp, acc + j, cA, mod=BC1)] + L('v_exp_f32 v{t}, v{t}\nv_exp_f32 v{t1}, v{t1}'.format(t=tp, t1=tp + 1)) +
                 [pk('fma', tp, tp, cS, cS, mod='op_sel_hi:[1,0,0]')] + L('v_rcp_f32 v{t}, v{t}\nv_rcp_f32 v{t1}, v{t1}'.format(t=tp, t1=tp + 1)) +
                 [pk('mul', tp, tp, acc + 8 + j), I('v_cvt_pk_bf16_f32 v%d, v%d, v%d' % (u[8] + (tile & 1) * 4 + j // 2, tp, tp + 1))])
    return zip_groups(g)


def hhsig(stage):
    return L('@waitvm hh%d hh%d' % (2 * stage, 2 * stage + 1)) + signal(sSig, stage * 128)


D_ORDER = [(j, 2 * st_ + t) for st_ in range(4) for j in range(7) for t in range(2)] if OPT.get('jm', 1) else [(j, t) for t in range(8) for j in range(7)]
WDPG = {}
wd_next = [0]


def wddma(page):
    n = wd_next[0]
    wd_next[0] += 1
    j, t = D_ORDER[n]
    WDPG[n] = page
    return dma(vWDo + t, sWD, 's%d' % sWDt[j], page * PG, 'wd%d' % n)


def hhreg(n):
    return A(aR + 4 * n, 4) if n < 21 else (V(vHH + 4 * (n - 21), 4) if n < 28 else A(aF + 4 * (n - 28), 4))


def hhpoll(stage):
    return L('s_add_u32 s%d, s%d, %d' % (sPoll, sSt, stage * 128)) + poll_issue(sPoll, stage in OPT.get('hha', (0, 1, 2, 3)))


def hhload(n):
    j, t = D_ORDER[n]
    return [I('buffer_load_dwordx4 %s, v%d, %s, s%d offen%s sc1' % (hhreg(n), vL16b if t >= 4 else vL16, S4(sWS), sHHt[j],
                                                                     ' offset:%d' % (1024 * (t & 3)) if t & 3 else ''))]


ws = WStream()
BSTEP = OPT.get('bstep', 4)
DL = OPT.get('dl', 12)
freed = [(0, pg) for pg in list(range(9 + NC, 14)) + list(range(21, 28))]
carry = []
XG = OPT.get('xg', 8)
order = [(0, k) for k in range(28)] + [(1, k) for k in range(28)]
for k in range(28 + DL):
    if k < 28:
        order.append((2, k))
    if k >= DL:
        order.append((3, k - DL))
PEND = {}
for ps, k in order:
    tl = (2 * ps, 2 * ps + 1)
    if (ps, k) == (2, 0):
        todo = list(range(NC, 28))
        dslot = 2 * (28 - HL) - 1
        for gfree, pg in freed:
            dslot = max(dslot + 2, gfree + 1)
            ws.fill(dslot, gudma(1, todo.pop(0), pg) if todo else wddma(pg))
        DSLOT1 = dslot
    for t in tl:
        pre = []
        if ps == 0 and t == 0 and k == 0:
            pre += L('@waitvm ' + ' '.join('gu0_%d' % j for j in range(19 + N1)) + '\ns_barrier')
        if ps == 0 and t == 0 and k == 19 + N1:
            pre += L('@waitvm ' + ' '.join('gu0_%d' % j for j in range(19 + N1, 28)) + '\ns_barrier')
        if ps == 2 and t == tl[0] and k in (0, 10, 19):
            hi = {0: 10, 10: 19, 19: 28}[k]
            pre += L('@waitvm ' + ' '.join('gu1_%d' % j for j in range(k, hi)) + '\ns_barrier')
        pr, off = winC.fix(vAdC + (t & 3), (W1PG if ps < 2 else W2PG)[k] * PG)
        g_ = ws.step(vAdC + (t & 3), off, vAdC + (t & 3), off + 1024,
                     lambda a: mfma(acc_of[t], a, A(aF + 4 * k, 4), '0' if k == 0 else None), pre + pr)
    if ps == 0 and k + HL < 28:
        ws.fill(2 * k, hload(k + HL))
    if ps & 1 and k % BSTEP == BSTEP - 1:
        ws.fill(g_, L('s_barrier'))
        (freed if ps == 1 else carry).extend((g_, (W1PG if ps == 1 else W2PG)[kk]) for kk in range(k - BSTEP + 1, k + 1))
    if ps == 1 and k == XG - 1:
        for t in (0, 1):
            X0END = ws.extra(mfma(acc_of[t], A(aCS + 2 * t, 4), V(vMF, 4)))
    if k == 27:
        if ps:
            for t in tl:
                g_ = ws.extra(mfma(acc_of[t], A(aCS + 2 * t, 4), V(vMF, 4)))
        PEND[ps] = g_
P1END, P2END, P3END, P4END = PEND = [PEND[n] for n in range(4)]
for n, x in enumerate(w1late[N1:]):
    ws.fill(1 + 2 * n, x)
for i in range(7):
    ws.fill(1 + 2 * (i + 9 - N1), [I('buffer_load_dwordx2 %s, v%d, %s, s%d offen offset:%d sc1' % (V(vSt + 2 * i, 2), t4, S4(sWS), sStL, 256 * i))])
g1 = X0END - 16
ws.fill(g1 - OPT.get('csd', 24), poll_issue(sCSp, OPT.get('csa', 1)))
cs = poll_check(4, sCSp) + L('s_lshl_b32 s3, s%d, 11\ns_add_u32 s3, s3, %d' % (sA, WS_CS))
for n in range(4):
    cs.append(I('buffer_load_dwordx4 %s, v%d, %s, s3 offen offset:%d sc1' % (A(aCS + 4 * n, 4), vL8, S4(sWS), 512 * n)))
ws.fill(g1, cs)
st = []
for (a, b) in ((0, 2), (4, 6), (8, 10), (0, 4), (8, 12), (0, 8)):
    st += L('v_add_f32 v{a}, v{a}, v{b}\nv_add_f32 v{a1}, v{a1}, v{b1}'.format(a=vSt + a, b=vSt + b, a1=vSt + a + 1, b1=vSt + b + 1))
st += halves_sum(vSt, t2) + halves_sum(vSt + 1, t2) + ln_consts(vSt, vSt + 1, vMean, cS, vR)
st += L('v_mul_f32 v%d, 0x%x, v%d' % (cA, NEGL, vR)) + mean_frag(vMean, vMF)
for n, x in enumerate(st):
    ws.fill(X0END - 24 + n // 2, x)
assert len(st) // 2 < 22
SIGD = OPT.get('sigd', 20)
sig_at = []
spill = []
for stg, e0 in enumerate((X0END + 1, P2END + 1, P3END + 1)):
    es = eslots((2 * stg, 2 * stg + 1))
    for n, sl in enumerate(es):
        for x in sl:
            if e0 + n <= P4END:
                ws.fill(e0 + n, x)
            else:
                spill += x if isinstance(x, list) else [x]
    if stg == 0:
        assert e0 + 34 <= P2END + 1, 'temporaries of consecutive epilogues overlap'
    sig_at.append(e0 + len(es) - 1 + SIGD)
for stg in range(2):
    ws.fill(sig_at[stg], hhsig(stg))
late2 = sig_at[2] - 4 > P4END
if not late2:
    ws.fill(min(sig_at[2], P4END), hhsig(2))
PD = OPT.get('pd', 22)
CD = OPT.get('cd', 24)
busy = set()
for stg in range(2):
    ws.fill(sig_at[stg] + PD, hhpoll(stg))
    hchk = sig_at[stg] + PD + CD
    ws.fill(hchk, poll_check(7, sPoll))
    g_ = hchk - 1
    for n in range(14 * stg, 14 * stg + 14):
        g_ += 2
        if g_ <= P4END:
            ws.fill(g_, hhload(n))
            busy.add(g_)
            HHN = n + 1
    if stg == 0:
        H0 = hchk
    else:
        H1 = hchk
g_ = DSLOT1
while carry:
    g_ = max(g_ + 2, carry[0][0] + 1)
    while g_ in busy or g_ - 1 in busy or g_ + 1 in busy:
        g_ += 1
    if g_ > P4END:
        break
    ws.fill(g_, wddma(carry.pop(0)[1]))
D0 = vX + 32
dinit = []
for j in range(8):
    dinit += L('v_accvgpr_read_b32 v{t}, a{h}\nv_lshlrev_b32 v{a}, 16, v{t}\nv_and_b32 v{b}, 0xffff0000, v{t}'.format(
        t=t2, h=aH + j, a=D0 + 2 * j, b=D0 + 1 + 2 * j))
for n, x in enumerate(dinit):
    ws.fill(2 + n, x)
for nm in OPT['st'] or ():
    if nm.startswith('_g'):
        ws.fill(int(nm[2:]), mkstamp(nm))
for nm, at in (('_m0', 0), ('P1', P1END), ('P2', P2END), ('P3', P3END), ('_h0', H0 - 1), ('_h1', H0 + 1), ('_h2', H1 - 1), ('_h3', H1 + 1)):
    ws.fill(at, mkstamp(nm))
p.add(ws.build())
stamp('P4')
p.add(spill)
stamp('_sp')
WPRE = wd_next[0]
rest = [hhload(n) for n in range(HHN, 28)] + [wddma(pg) for _, pg in carry]
carry = []
NE = min(OPT.get('ne', 0), len(rest))
ef = zip_groups([efast(6, vSt + 8), efast(7, vSt)])
p.add((spread(ef[:40], rest[:NE]) if NE else ef[:40]) + ef[40:56])
rest = rest[NE:]
if late2 and not OPT.get('s2l', 1):
    p.add(hhsig(2))
p.add(ef[56:] + hhstore(6) + hhstore(7))
stamp('_st7')
if late2 and OPT.get('s2l', 1):
    p.add(hhsig(2))
NP = OPT.get('np', 6)
for x in rest[:NP]:
    p.add(x)
rest = rest[NP:]
stamp('_e7')
if STOP <= 3:
    p.add(hhsig(3))
    e('s_branch L_fin')

ws = WStream()
res0 = wd_next[0]
assert wd_next[0] == 40
refill = []
for n in range(16):
    refill.append(wddma(WDPG[n]))
wmid = (WPRE + 40) // 2
wpts = {0: WPRE, WPRE: wmid, wmid: 40, 40: 48, 48: 56}
TD = OPT.get('td', 4)
for n, ft in [(n, ft) for n in range(56 - TD) for ft in range(2)] + [(n, 1) for n in range(56 - TD, 56)] + [(n, 0) for n in range(56 - TD, 56)]:
    if 1:
        pre = []
        if ft == 0 and n in wpts:
            pre += L('@waitvm ' + ' '.join('wd%d' % q for q in range(n, wpts[n])) + '\ns_barrier')
        pr, off = winD.fix(vAdD + ft, WDPG[n] * PG)
        ws.step(vAdD + ft, off, vAdD + ft, off + 1024,
                lambda a: mfma(D0 + 16 * ft, a, hhreg(n), '0' if (n == 0 and ft == 1) else None), pre + pr)
ws.fill(15, L('s_barrier'))
ws.fill(31, L('s_barrier'))
D3 = OPT.get('d3', 8)
seq = [(x, 0) for x in rest]
pos = -1.0
DSTEP = OPT.get('dstep', 1.4)
while seq and pos + DSTEP < D3:
    pos += DSTEP
    ws.fill(int(pos), seq.pop(0)[0])
s3_ = hhsig(3)
P2A = OPT.get('p2a', 0)
ws.fill(D3, s3_[:1] + ([] if P2A else hhpoll(2)) + s3_[1:] + mkstamp('hh stored'))
if P2A:
    ws.fill(P2A, hhpoll(2))
pos = D3
seq += [(x, 16) for x in refill[:8]]
seq += [(poll_check(7, sPoll) + hhload(28), OPT.get('d2', 28))] + [(hhload(n), 0) for n in range(29, 38)]
seq += [(hhpoll(3), OPT.get('d4', 46))] + [(hhload(n), 0) for n in range(38, 42)]
seq += [(x, 32) for x in refill[8:]]
seq += [(poll_check(7, sPoll) + hhload(42), OPT.get('d5', 62))] + [(hhload(n), 0) for n in range(43, 56)]
for grp, earliest in seq:
    pos = max(pos + DSTEP, earliest)
    ws.fill(int(pos), grp)
DPOS = pos
XB = [b for b in range(0, 35) if all(not (b <= WDPG[n] < b + 6) for n in range(47, 56))][0]
FL = OPT.get('fl', 1)
fin = L('''
s_lshl_b32 s3, s{w}, 12
s_xor_b32 s4, s3, 8192
s_add_u32 s3, s3, {xb}
s_add_u32 s4, s4, {xb}
v_add_u32 v{t0}, s3, v{l16}
v_add_u32 v{t1}, s4, v{l16}
'''.format(w=sW, t0=t0, t1=t1, l16=vL16, xb=XB * PG))
if FL:
    fin2 = L('''
    v_and_b32 v{a}, 31, v0
    v_lshrrev_b32 v{b}, 5, v0
    s_lshl_b32 s3, s{kh}, 2
    v_add_u32 v{b}, s3, v{b}
    v_xor_b32 v{b}, v{b}, v{a}
    v_and_b32 v{b}, 7, v{b}
    v_lshlrev_b32 v{a}, 7, v{a}
    v_lshl_add_u32 v{a}, v{b}, 4, v{a}
    s_lshl_b32 s3, s{th}, 12
    s_add_u32 s3, s3, {tb}
    v_add_u32 v{wa}, s3, v{a}
    v_xor_b32 v{wb}, 32, v{wa}
    '''.format(a=t2, b=t3, kh=sKh, th=sTh, tb=(XB + 4) * PG, wa=u[0], wb=u[1]))
    fin3 = L('''
    v_lshrrev_b32 v{a}, 3, v0
    v_xor_b32 v{b}, v{a}, v0
    v_and_b32 v{b}, 7, v{b}
    v_lshlrev_b32 v{b}, 4, v{b}
    v_lshl_add_u32 v{b}, v{a}, 7, v{b}
    s_lshl_b32 s3, s{w}, 11
    s_add_u32 s3, s3, {tb}
    v_add_u32 v{ra}, s3, v{b}
    v_mul_u32_u24 v{a}, 896, v{a}
    v_and_b32 v{b}, 7, v0
    v_lshl_add_u32 v{a}, v{b}, 4, v{a}
    s_lshl1_add_u32 s3, s{g}, s{half}
    s_lshl2_add_u32 s3, s3, s{w}
    s_mul_i32 s3, s3, 14336
    s_lshl_b32 s4, s{cs}, 7
    s_add_u32 s{o}, s3, s4
    s_add_u32 s{o1}, s{o}, 7168
    '''.format(a=t2, b=t3, w=sW, tb=(XB + 4) * PG, ra=u[2], g=sG, half=sHalf, cs=sCs, o=sOff2, o1=sOff))
    ws.fill(92, fin2)
    ws.fill(94, fin3)
else:
    fin += L('''
    s_lshl2_add_u32 s3, s{g}, s{tt}
    s_mul_i32 s3, s3, 28672
    s_lshl1_add_u32 s4, s{cs}, s{kh}
    s_lshl_b32 s4, s4, 6
    s_add_u32 s{o}, s3, s4
    v_and_b32 v{a}, 31, v0
    v_mul_u32_u24 v{a}, 896, v{a}
    v_lshrrev_b32 v{b}, 5, v0
    v_lshl_add_u32 v{a}, v{b}, 4, v{a}
    '''.format(g=sG, tt=sTT, cs=sCs, kh=sKh, o=sOff2, a=t2, b=t3))
ws.fill(96, fin)
for nm in OPT['st'] or ():
    if nm.startswith('_d'):
        ws.fill(int(nm[2:]), mkstamp(nm))
for nm, at in (('D0', 27), ('D1', 55), ('D2', 83)):
    ws.fill(at, mkstamp(nm))
ws.fill(95, L('s_barrier'))
xw_ = [I('ds_write_b128 v%d, %s offset:%d' % (t0, V(D0 + 16 + 4 * q, 4), q * 1024)) for q in range(4)]
xr_ = L('@waitlg0\ns_barrier') + [I('ds_read_b128 %s, v%d offset:%d' % (V(vX + 4 * q, 4), t1, q * 1024)) for q in range(4)]
if TD >= 3:
    ws.fill(112 - TD + 1, xw_)
    ws.fill(111, xr_)
    p.add(ws.build())
else:
    p.add(ws.build() + xw_ + xr_)
stamp('D mfma')
for hf_ in range(2):
    for j in range(8 * hf_, 8 * hf_ + 8, 2):
        p.add([pk('add', D0 + j, D0 + j, vX + j)])
    for j in range(4 * hf_, 4 * hf_ + 4):
        e('v_cvt_pk_bf16_f32 v%d, v%d, v%d' % (vY + j, D0 + 2 * j, D0 + 2 * j + 1))
    bb = 4 * hf_
    e('v_permlane32_swap_b32 v%d, v%d' % (vY + bb, vY + bb + 2))
    e('v_permlane32_swap_b32 v%d, v%d' % (vY + bb + 1, vY + bb + 3))
    if FL:
        e('ds_write_b128 v%d, %s' % (u[hf_], V(vY + bb, 4)))
    else:
        e('buffer_store_dwordx4 %s, v%d, %s, s%d offen%s%s' % (V(vY + bb, 4), t2, S4(sOUT), sOff2, ' offset:32' if hf_ else '', OPT.get('outm', '')))
if FL:
    e('@waitlg0')
    e('s_barrier')
    for q in range(2):
        e('ds_read_b128 %s, v%d offset:%d' % (V(vY + 8 + 4 * q, 4), u[2], 1024 * q))
    for q in range(2):
        e('buffer_store_dwordx4 %s, v%d, %s, s%d offen%s' % (V(vY + 8 + 4 * q, 4), t2, S4(sOUT), sOff if q else sOff2, OPT.get('outm', ' sc1')))
e('s_branch L_fin')

main_ins = p.ins
p.ins = []
e('L_idle:')
e('''
s_lshl1_add_u32 s6, s{g}, s{half}
s_cmp_lt_u32 s6, 28
s_cselect_b32 s{gu2}, 1605632, 0
s_mul_i32 s3, s{th}, 802816
s_lshl_b32 s4, s6, 7
s_add_u32 s{o}, s3, s4
v_lshrrev_b32 v{a}, 3, v0
v_mul_u32_u24 v{a}, 3584, v{a}
v_and_b32 v{b}, 7, v0
v_lshl_add_u32 v{a}, v{b}, 4, v{a}
v_mov_b32 v{e0}, 0x3f80
v_mov_b32 v{e1}, 0x3f800000
'''.format(g=sG, half=sHalf, gu2=sGU + 2, th=sTh, o=sOff, a=t0, b=t1, e0=u[0], e1=u[1]))
for n in range(28):
    e('buffer_load_dwordx4 %s, v%d, %s, s%d offen' % (V(vF + 4 * n, 4), t0, S4(sGU), sOff))
    e('s_add_u32 s%d, s%d, 28672' % (sOff, sOff))
    if n == OPT.get('ipre', 0):
        e('s_waitcnt vmcnt(%d)' % (n + 1))
        p.add(signal(sSig))
        stamp('_i0')
        e('s_barrier')
        e('s_cmp_ge_u32 s6, 28')
        e('s_cbranch_scc1 L_idle2')
stamp('_i1')
for j in range(8):
    e('v_mov_b32 v%d, 0' % (vY + j))
for n in range(28):
    for d in range(4):
        e('v_dot2c_f32_bf16 v%d, v%d, v%d' % (vY + 2 * d, vF + 4 * n + d, u[0]))
        e('v_dot2c_f32_bf16 v%d, v%d, v%d' % (vY + 2 * d + 1, vF + 4 * n + d, u[1]))
stamp('_i2')
for j in range(8):
    e('v_mov_b32 v%d, v%d' % (vY + 8 + j, vY + j))
for j in range(8):
    e('v_permlane32_swap_b32 v%d, v%d' % (vY + 8 + j, vY + j))
for j in range(8):
    e('v_add_f32 v%d, v%d, v%d' % (vY + j, vY + j, vY + 8 + j))
for j in range(8):
    e('v_mov_b32 v%d, v%d' % (vY + 8 + j, vY + j))
for j in range(8):
    e('v_permlane16_swap_b32 v%d, v%d' % (vY + 8 + j, vY + j))
for j in range(8):
    e('v_add_f32 v%d, v%d, v%d' % (vY + j, vY + j, vY + 8 + j))
for j in range(8):
    e('v_add_f32_dpp v%d, v%d, v%d row_ror:8 row_mask:0xf bank_mask:0xf' % (vY + 8 + j, vY + j, vY + j))
e('''
s_lshl_b32 s3, s{w}, 8
v_lshl_add_u32 v{a}, v{b}, 5, s3
ds_write_b128 v{a}, {r0}
ds_write_b128 v{a}, {r1} offset:16
s_waitcnt lgkmcnt(0)
s_barrier
v_bfe_u32 v{a}, v0, 4, 1
v_lshlrev_b32 v{a}, 9, v{a}
v_and_b32 v{b}, 15, v0
v_lshl_add_u32 v{a}, v{b}, 2, v{a}
v_lshrrev_b32 v{b}, 5, v0
v_lshl_add_u32 v{a}, v{b}, 7, v{a}
ds_read_b32 v{y0}, v{a}
ds_read_b32 v{y1}, v{a} offset:256
ds_read_b32 v{y2}, v{a} offset:64
ds_read_b32 v{y3}, v{a} offset:320
v_mov_b32 v{x1}, 0
v_mov_b32 v{x3}, 0
s_lshl_b32 s3, s6, 10
s_add_u32 s3, s3, {base}
s_lshr_b32 s4, s6, 1
s_lshl_b32 s4, s4, 13
s_add_u32 s4, s4, {cc}
v_add_f32 v{y0}, v{y0}, v{y1}
v_add_f32 v{y2}, v{y2}, v{y3}
'''.format(w=sW, a=t0, b=t1, r0=V(vY + 8, 4), r1=V(vY + 12, 4), y0=vY, y1=vY + 1, y2=vY + 2, y3=vY + 3, x1=vX + 1, x3=vX + 3,
           base=WS_CS, cc=C_CS * 128))
p.add(hilo(vY, vX, t2) + hilo(vY + 2, vX + 2, t2))
stamp('_i3')
e('s_cmp_ge_u32 s%d, 2' % sW)
e('s_cbranch_scc1 L_idle1')
e('buffer_store_dwordx4 %s, v%d, %s, s3 offen sc1' % (V(vX, 4), vL16, S4(sWS)))
e('s_waitcnt vmcnt(0)')
p.add(signal(4))
e('s_waitcnt vmcnt(0)')
e('L_idle1:')
e('s_barrier')
e('L_idle2:')
stamp('_i4')
if OPT.get('idlepf', 1):
    e('''
    v_lshlrev_b32 v{a}, 7, v0
    s_lshl2_add_u32 s3, s{gl}, s{w}
    s_and_b32 s4, s2, 7
    s_mul_i32 s4, s4, {st}
    s_add_u32 s3, s3, s4
    '''.format(a=t0, gl=sGl, w=sW, st=32 if OPT.get('ipn', 2) == 13 else 25))
    for n in range(OPT.get('ipn', 2)):
        for x in ['s_cmp_ge_u32 s3, 208', 's_cselect_b32 s4, 208, 0', 's_sub_u32 s3, s3, s4', 's_lshl_b32 s5, s3, 13',
                  'buffer_load_dword v%d, v%d, %s, s5 offen' % (vX + 8 + n, t0, S4(sWD)), 's_add_u32 s3, s3, 16']:
            e(x)
e('L_fin:')
if OPT.get('enc'):
    e('s_waitcnt vmcnt(0) lgkmcnt(0)')
    if OPT['enc'] == 'end':
        e('s_memrealtime s[94:95]')
        e('s_waitcnt lgkmcnt(0)')
    e('s_cmp_ge_u32 s%d, 7' % sCs)
    e('s_cbranch_scc1 L_end')
    e('s_sub_u32 s94, s94, s98')
    e('s_mul_i32 s94, s94, 4')
    e('s_add_u32 s94, s94, 3000')
    e('L_fix:')
    for x in ['s_sleep 4', 's_memrealtime s[96:97]', 's_waitcnt lgkmcnt(0)', 's_sub_u32 s96, s96, s98', 's_cmp_lt_u32 s96, s94', 's_cbranch_scc1 L_fix']:
        e(x, raw=True)
if OPT.get('fixt'):
    e('s_waitcnt vmcnt(0) lgkmcnt(0)')
    e('L_fix:')
    for x in ['s_sleep 2', 's_memrealtime s[96:97]', 's_waitcnt lgkmcnt(0)', 's_sub_u32 s96, s96, s98', 's_cmp_lt_u32 s96, %d' % OPT['fixt'], 's_cbranch_scc1 L_fix']:
        e(x, raw=True)
if DIAG:
    e('s_waitcnt vmcnt(0)')
    e('s_memtime s[76:77]' if OPT['cyc'] else 's_memrealtime s[76:77]')
    e('s_memtime s[74:75]')
    e('s_waitcnt lgkmcnt(0)')
    e('s_sub_u32 s74, s74, s100')
    e('v_mov_b32 v%d, s74' % (vX + 14))
    e('v_mov_b32 v%d, s101' % (vX + 15))
    e('s_lshl_b32 s3, s2, 2')
    e('s_add_u32 s3, s3, s%d' % sW)
    e('s_lshl_b32 s3, s3, 6')
    e('s_add_u32 s3, s3, %d' % WS_TS)
    for n in range(12):
        e('v_mov_b32 v%d, s%d' % (vX + n, sTS + 2 * n))
    e('v_mov_b32 v%d, s76' % (vX + 12))
    e('s_getreg_b32 s4, hwreg(HW_REG_XCC_ID)')
    e('v_mov_b32 v%d, s4' % (vX + 13))
    e('s_mov_b64 exec, 1')
    for q in range(4):
        e('buffer_store_dwordx4 %s, off, %s, s3 offset:%d' % (V(vX + 4 * q, 4), S4(sWS), 16 * q))
e('s_waitcnt vmcnt(0) lgkmcnt(0)')
e('L_end:')
e('s_endpgm')
tail_ins = p.ins

p.ins = main_ins
p.finalize()
body = p.text()
stats = dict(p.stats)
kinds = {}
for i in p.out:
    kinds[i.kind] = kinds.get(i.kind, 0) + 1
p.ins = tail_ins
p.finalize()
body += '\n' + p.text()

hdr = open('sequential_preLN__linear_attn_block__glu_gated_glu__prompt.s.ref').read().split('\n')
head = [l for l in hdr if l.startswith(';') and '@launch' not in l and 'Override' not in l and 'grid=ceil' not in l]
out = '\n'.join(head) + '''
; @launch grid=(256,1,1) block=(256,1,1) lds=163840
.amdgcn_target "amdgcn-amd-amdhsa--gfx950"
.text
.globl {n}
.p2align 8
.type {n},@function
{n}:
{body}
.section .rodata,"a"
.p2align 6
.amdhsa_kernel {n}
  .amdhsa_next_free_vgpr 512
  .amdhsa_next_free_sgpr 102
  .amdhsa_accum_offset 256
  .amdhsa_group_segment_fixed_size 0
  .amdhsa_kernarg_size 80
  .amdhsa_user_sgpr_count 2
  .amdhsa_user_sgpr_kernarg_segment_ptr 1
  .amdhsa_system_sgpr_workgroup_id_x 1
  .amdhsa_float_denorm_mode_32 3
.end_amdhsa_kernel
'''.format(n=NAME, body=body)
open(sys.argv[1], 'w').write(out)
print(kinds, stats, 'wpre', WPRE, 'rest', len(rest), 'spill', len(spill), 'H0', H0, H1, 'HHN', HHN, 'X0END', X0END, PEND, 'sig', sig_at, 'dslot', DSLOT1, 'dpos', DPOS, file=sys.stderr)
```

```python
import sys
from asmlib import Prog, I

NAME = 'sequential_preLN__linear_attn_block__glu_gated_glu__prompt_kernel'

OPT = dict(diag=0, stop=99, spin=200000, abl='', cyc=0, st=None, swh=2, sw1=6, kvp=(2, 8, 14, 20, 26, 32, 38), kvb=(0, 2, 4, 6, 8, 10, 12, 13))
for a in sys.argv[2:]:
    k, v = a.split('=')
    OPT[k] = eval(v)
DIAG = OPT['diag']
STOP = OPT['stop']

WS_CNT = 0
WS_KVP = 0x20000
WS_CS = 0xA0000
WS_O = 0x120000
WS_H = 0x320000
WS_ST = 0x520000
WS_HH = 0x560000
WS_TS = 0xC60000
WS_SIZE = 0xD00000
C_O, C_H, C_KV, C_HH, C_CS = 0, 8, 12, 16, 48

sX, sQKV, sWO, sGU, sWD, sOUT, sWS, sDBG = 24, 28, 32, 36, 40, 44, 48, 52
sOff, sOff2, sIter, sPoll = 56, 57, 58, 59
sG, sM, sW, sCs, sWK, sHalf, sA, sTh, sKh, sCnt = 60, 61, 62, 63, 64, 65, 66, 67, 68, 69
sCh = 70
sIdx = 77
sT = [3, 4, 5, 6, 7, 8, 9, 10, 11, 12, 13]
sMaskHi = 14
sMask28 = 16
sGl, sGood, sSig, sSt, sTT, sZero = 18, 19, 20, 21, 22, 23
sGUt = [28, 29, 30, 31, 52, 53, 54]
sWDt = [24, 25, 26, 27, 32, 33, 34]
sHHt = [0, 1, 16, 17, 19, 23, 55]
sTS = 78


def S4(b):
    return 's[%d:%d]' % (b, b + 3)


def V(b, n=1):
    return 'v%d' % b if n == 1 else 'v[%d:%d]' % (b, b + n - 1)


def A(b, n=1):
    return 'a%d' % b if n == 1 else 'a[%d:%d]' % (b, b + n - 1)


vL16, vOne, vP, vL8 = 1, 2, 3, 4
vOffX = 5
vAdX = 9
vAdC = 9
vOffKV, vAdK, vAdV, vOffQ, vAdQ = 13, 14, 15, 16, 17
vAdD = 14
vOffWO, vOffXR, vOffGU, vOffWD = 18, 19, 20, 21
vAdWO, vAdWOp = 22, 24
vT = 26
vP2, vP3 = 238, 239
vY = 32
vX = 64
vF = 128
vGUo, vWDo, vL16b, vMF, vCc, vSt, vHH = 128, 136, 144, 148, 152, 156, 172
vU = 240
aW = 0
aH = 32
aF = 40
aCS = 152
aR = 172
t0, t1, t2, t3, t4, t5 = range(vT, vT + 6)
u = [vU + i for i in range(16)]

PG = 4096
LOG2E = 0x3fb8aa3b
NEGL = 0xbfb8aa3b
EPS6 = 0x358637bd
EPS5 = 0x3727c5ac
INV448 = 0x3b124925

p = Prog()
e = p.e
nstamp = [0]
nlab = [0]


def L(x):
    return [I(t.strip()) for t in x.strip().split('\n') if t.strip()]


def mkstamp(name):
    if OPT.get('enc') == name:
        return [I('s_memrealtime s[94:95]')]
    if not DIAG:
        return []
    early = ('o flag', 'x0 landed', 'x read', 'A1 mfma', 'kv stored', 'A2 mfma', 'q done', 'kv flag', 'kv loaded', 'o stored')
    if OPT['st'] is not None:
        if name != 'start' and name not in OPT['st']:
            return []
    elif name != 'start' and ((DIAG == 1) != (name in early) or name.startswith('_')):
        return []
    n = nstamp[0]
    assert n < 11
    nstamp[0] += 1
    return [I('%s s[%d:%d] ; @%s' % ('s_memtime' if OPT['cyc'] else 's_memrealtime', sTS + 2 * n, sTS + 2 * n + 1, name))]


def stamp(name):
    p.add(mkstamp(name))


def dma(voff, srd, so, m0, tag, pre=(), imm=0):
    r = []
    if m0 is not None:
        r.append(I('s_add_u32 m0, s%d, 0x%x' % (sWK, m0)))
    r += [I(t) for t in pre]
    nt = ' nt' if any(tag.startswith(x) for x in OPT.get('nt', ())) else ''
    r.append(I('buffer_load_dwordx4 v%d, %s, %s offen%s%s lds' % (voff, S4(srd), so, ' offset:%d' % imm if imm else '', nt), tag=tag))
    return r


def poll_issue(soff, atomic=True):
    if OPT.get('apoll', 1) and atomic:
        return L('v_mov_b32 v%d, 0\ns_mov_b64 exec, 1\nbuffer_atomic_umax v%d, off, %s, s%d sc0\ns_mov_b64 exec, -1' % (vP, vP, S4(sWS), soff))
    return [I('buffer_load_dword v%d, off, %s, s%d sc1' % (vP, S4(sWS), soff))]


def poll_check(expect, soff, srd=sWS):
    n = nlab[0]
    nlab[0] += 1
    t = sT[0]
    so = soff if isinstance(soff, str) else 's%d' % soff
    r = L('''
    v_readfirstlane_b32 s%d, v%d
    s_cmp_ge_u32 s%d, %d
    s_cbranch_scc1 L_ok%d
    s_mov_b32 s%d, %d
    ''' % (t, vP, t, expect, n, sIter, OPT['spin']))
    ld = lambda v: 'buffer_load_dword v%d, off, %s, %s sc1' % (v, S4(srd), so)
    chk = lambda v: ['v_readfirstlane_b32 s%d, v%d' % (t, v), 's_nop 0', 's_cmp_ge_u32 s%d, %d' % (t, expect), 's_cbranch_scc1 L_ok%d' % n]
    loop = ['s_sub_u32 s%d, s%d, 1' % (sIter, sIter), 's_cmp_lg_u32 s%d, 0' % sIter, 's_cbranch_scc1 L_spin%d' % n]
    pm = OPT.get('pm', 0)
    if OPT.get('apoll', 1) and srd == sWS:
        body = ['L_spin%d:' % n] + (['s_sleep %d' % OPT['asl']] if OPT.get('asl') else []) + ['s_mov_b64 exec, 1', 'buffer_atomic_umax v%d, off, %s, %s sc0' % (vP, S4(srd), so), 's_mov_b64 exec, -1',
                's_waitcnt vmcnt(0)'] + chk(vP) + loop
    elif pm == 0:
        body = ['L_spin%d:' % n, ld(vP), 's_waitcnt vmcnt(0)'] + chk(vP) + loop
    elif pm < 0:
        body = ['L_spin%d:' % n, 's_sleep %d' % -pm, ld(vP), 's_waitcnt vmcnt(0)'] + chk(vP) + loop
    else:
        body = [ld(vP), 'L_spin%d:' % n, 's_sleep %d' % pm, ld(vP2), 's_waitcnt vmcnt(1)'] + chk(vP) + \
               ['s_sleep %d' % pm, ld(vP), 's_waitcnt vmcnt(1)'] + chk(vP2) + loop
    for x in body:
        r.append(I(x, raw=True))
    r.append(I('L_ok%d:' % n))
    return r


def poll_pipe_issue(soff):
    return L('v_mov_b32 v%d, 0\nv_mov_b32 v%d, 0' % (vP2, vP3)) + poll_issue(soff)


def poll_pipe_check(expect, soff):
    n = nlab[0]
    nlab[0] += 1
    t = sT[0]
    at = lambda v: 'buffer_atomic_umax v%d, off, %s, s%d sc0' % (v, S4(sWS), soff)
    chk = lambda v: ['s_waitcnt vmcnt(2)', 'v_readfirstlane_b32 s%d, v%d' % (t, v), 's_nop 0', 's_cmp_ge_u32 s%d, %d' % (t, expect),
                     's_cbranch_scc1 L_ok%d' % n]
    sl = 's_sleep %d' % OPT.get('psl', 3)
    body = ['s_mov_b32 s%d, %d' % (sIter, OPT['spin']), 's_mov_b64 exec, 1', at(vP2), sl, 'L_spin%d:' % n, at(vP3)] + chk(vP) + \
           [at(vP)] + chk(vP2) + [at(vP2)] + chk(vP3) + \
           ['s_sub_u32 s%d, s%d, 1' % (sIter, sIter), 's_cmp_lg_u32 s%d, 0' % sIter, 's_cbranch_scc1 L_spin%d' % n]
    r = [I(x, raw=True) for x in body]
    return r + [I('L_ok%d:' % n), I('s_mov_b64 exec, -1'), I('@assumevm0')]


def signal(soff, imm=0):
    return L('''
    s_mov_b64 exec, 1
    buffer_atomic_add v%d, off, %s, s%d%s
    s_mov_b64 exec, -1
    ''' % (vOne, S4(sWS), soff, ' offset:%d' % imm if imm else ''))


def mfma(d, a, b, c=None):
    return I('v_mfma_f32_32x32x16_bf16 %s, %s, %s, %s' % (V(d, 16), a, b, V(d, 16) if c is None else c))


def colsum4(acc, q, first):
    return [I('v_mfma_f32_4x4x4_16b_bf16 %s, %s, %s, %s' % (V(acc + 4 * h, 4), V(vOnes, 2), A(q + 2 * h, 2), '0' if first else V(acc + 4 * h, 4))) for h in range(2)]


class WStream:
    def __init__(self, look=OPT.get('look', 7), nbuf=8, wper=OPT.get('wper', 4)):
        self.items = []
        self.look = look
        self.nbuf = nbuf
        self.wper = wper
        self.n = 0
        self.fills = {}

    def step(self, addr0, off0, addr1, off1, mk, pre=None, post=None):
        q = aW + 4 * (self.n % self.nbuf)
        self.n += 1
        rd = list(pre or [])
        rd.append(I('ds_read_b64_tr_b16 %s, v%d offset:%d' % (A(q, 2), addr0, off0)))
        rd.append(I('ds_read_b64_tr_b16 %s, v%d offset:%d' % (A(q + 2, 2), addr1, off1)))
        self.items.append((rd, mk(A(q, 4)), post(q) if post else []))
        return len(self.items) - 1

    def extra(self, m):
        self.items.append(([], m, []))
        return len(self.items) - 1

    def fill(self, idx, grp):
        g = grp if isinstance(grp, list) else [grp]
        ab = OPT['abl']
        if ab and not any(x.kind in ('label', 'sctl') or 'exec' in x.text for x in g):
            if 'v' in ab:
                g = [x for x in g if x.kind != 'valu']
            if 'd' in ab and any(x.kind == 'dma' for x in g):
                g = []
            if 'b' in ab:
                g = [x for x in g if x.kind != 'barrier']
        if g:
            self.fills.setdefault(idx, []).append(g)

    def build(self):
        out = []
        n = len(self.items)
        withrd = [i for i in range(n) if self.items[i][0]]
        nxt = 0
        used = 0
        while nxt < min(self.look, len(withrd)):
            out += self.items[withrd[nxt]][0]
            nxt += 1
        for i in range(n):
            rd, m, post = self.items[i]
            if rd:
                if used % self.wper == 0:
                    m.ahead = 2 * min(self.wper - 1, nxt - used - 1)
                used += 1
            out.append(m)
            gs = self.fills.pop(i, [])
            first = [g for g in gs if g[0].kind == 'barrier']
            rest = [g for g in gs if g[0].kind != 'barrier']
            for g in first:
                out += g
            mem = [g for g in rest if not all(x.kind == 'valu' for x in g)]
            if mem and mem[0][0].kind == 'salu' and mem[0][-1].kind == 'dma':
                out.append(mem[0][0])
                mem[0] = mem[0][1:]
            if rd and nxt < len(withrd):
                out += self.items[withrd[nxt]][0]
                nxt += 1
            for g in mem:
                out += g
            for g in rest:
                if all(x.kind == 'valu' for x in g):
                    out += g
            out += post
        assert not self.fills, list(self.fills)
        return out


def spread(main, fill):
    out = []
    n, m = len(main), len(fill)
    j = 0
    for i, x in enumerate(main):
        out.append(x)
        while j < m and (j + 1) * n <= (i + 1) * (m + 1):
            out.extend(fill[j])
            j += 1
    while j < m:
        out.extend(fill[j])
        j += 1
    return out


def zip_groups(groups):
    out = []
    n = max(len(g) for g in groups)
    for k in range(n):
        for g in groups:
            if k < len(g):
                out.append(g[k])
    return out


def pk(op, d, a, b, c=None, mod=''):
    f = lambda r: r if isinstance(r, str) else V(r, 2)
    return I('v_pk_%s_f32 %s, %s, %s%s %s' % (op, f(d), f(a), f(b), '' if c is None else ', ' + f(c), mod))


def halves_sum(x, t):
    return L('''
    v_mov_b32 v{t}, v{x}
    v_permlane32_swap_b32 v{t}, v{x}
    v_add_f32 v{x}, v{t}, v{x}
    '''.format(t=t, x=x))


def ln_consts(s, q, mean, std, r):
    return L('''
    v_mul_f32 v{a}, 0x{i:x}, v{s}
    v_mul_f32 v{b}, 0x{i:x}, v{q}
    v_fma_f32 v{b}, -v{a}, v{a}, v{b}
    v_max_f32 v{b}, 0, v{b}
    v_cvt_pk_bf16_f32 v{a}, v{a}, v{b}
    v_and_b32 v{b}, 0xffff0000, v{a}
    v_lshlrev_b32 v{a}, 16, v{a}
    v_add_f32 v{b}, 0x{e:x}, v{b}
    v_cvt_pk_bf16_f32 v{b}, v{b}, v{b}
    v_lshlrev_b32 v{b}, 16, v{b}
    v_sqrt_f32 v{b}, v{b}
    v_cvt_pk_bf16_f32 v{b}, v{b}, v{b}
    v_lshlrev_b32 v{b}, 16, v{b}
    v_rcp_f32 v{r}, v{b}
    '''.format(a=mean, b=std, s=s, q=q, r=r, i=INV448, e=EPS5))


def mean_frag(mean, d):
    return L('''
    v_cvt_pk_bf16_f32 v{d}, -v{m}, -v{m}
    v_mov_b32 v{d1}, 0
    v_mov_b32 v{d2}, 0
    v_mov_b32 v{d3}, 0
    v_cndmask_b32 v{d}, v{d}, 0, s[{h}:{h1}]
    '''.format(d=d, d1=d + 1, d2=d + 2, d3=d + 3, m=mean, h=sMaskHi, h1=sMaskHi + 1))


def hilo(c, d, t):
    return L('''
    v_cvt_pk_bf16_f32 v{t}, v{c}, v{c}
    v_lshlrev_b32 v{t}, 16, v{t}
    v_sub_f32 v{t}, v{c}, v{t}
    v_cvt_pk_bf16_f32 v{d}, v{c}, v{t}
    '''.format(c=c, d=d, t=t))


e('s_cmpk_ge_u32 s2, 256')
e('s_cbranch_scc1 L_end')
if OPT.get('fixt') or OPT.get('enc'):
    e('s_memrealtime s[98:99]')
    e('s_memrealtime s[94:95]')
stamp('start')
if DIAG:
    e('s_memtime s[100:101]')
e('s_load_dwordx4 s[4:7], s[0:1], 0')
e('s_load_dwordx2 s[%d:%d], s[0:1], 16' % (sWO, sWO + 1))
e('s_load_dwordx8 s[8:15], s[0:1], 32')
e('s_load_dwordx4 s[20:23], s[0:1], 64')
XP0 = 12
e("""
v_lshrrev_b32 v{t0}, 6, v0
v_and_b32 v0, 63, v0
v_readfirstlane_b32 s{w}, v{t0}
s_lshr_b32 s{idx}, s2, 3
""".format(t0=t0, w=sW, idx=sIdx))
if OPT.get('cpf', 1):
    sCODE = 72
    e('s_getpc_b64 s[%d:%d]' % (sCODE, sCODE + 1))
    e('L_pc:')
    e("""
    s_mov_b32 s{c2}, L_end-L_pc
    s_mov_b32 s{c3}, 0x20000
    s_lshl2_add_u32 s3, s{idx}, s{w}
    s_lshl_b32 s3, s3, 9
    v_and_b32 v{t3}, 3, v0
    v_lshlrev_b32 v{t3}, 7, v{t3}
    buffer_load_dword v{d}, v{t3}, {code}, s3 offen
    """.format(c2=sCODE + 2, c3=sCODE + 3, idx=sIdx, w=sW, t3=t3, d=t5, code=S4(sCODE)))
e("""
s_bfe_u32 s3, s2, 0x20001
s_and_b32 s{gl}, s{idx}, 3
s_lshr_b32 s{cs}, s{idx}, 2
s_lshl2_add_u32 s{g}, s3, s{gl}
s_lshl1_add_u32 s{c0}, s{gl}, s{cs}
s_add_u32 s{c0}, s{c0}, s3
s_mul_i32 s3, s{c0}, 37
s_lshr_b32 s3, s3, 8
s_mul_i32 s3, s3, 7
s_sub_u32 s{c0}, s{c0}, s3
v_lshrrev_b32 v{u0}, 3, v0
v_and_b32 v{u1}, 7, v0
v_lshrrev_b32 v{u2}, 4, v0
s_lshl2_add_u32 s3, s{g}, s{w}
s_mul_i32 s3, s3, 28672
v_mul_u32_u24 v{t0}, 896, v{u0}
v_xor_b32 v{t1}, v{u1}, v{u2}
v_add_u32 v{t0}, s3, v{t0}
v_lshl_add_u32 v{x0}, v{t1}, 4, v{t0}
v_xor_b32 v{t1}, 4, v{t1}
v_lshl_add_u32 v{x1}, v{t1}, 4, v{t0}
v_add_u32 v{x2}, 12288, v{x0}
v_add_u32 v{x3}, 18432, v{x1}
v_add_u32 v{x1}, 6144, v{x1}
s_mul_i32 s{o2}, s{w}, {xs}
s_add_u32 s{o2}, s{o2}, {xb}
s_mov_b32 s{X2}, 1835008
s_mov_b32 s{X3}, 0x20000
""".format(t0=t0, t1=t1, w=sW, idx=sIdx, gl=sGl, cs=sCs, g=sG, c0=sCh, u0=u[0], u1=u[1], u2=u[2],
           x0=vOffX, x1=vOffX + 1, x2=vOffX + 2, x3=vOffX + 3, o2=sOff2, xs=7 * PG, xb=XP0 * PG, X2=sX + 2, X3=sX + 3))


def nextch(i):
    e('s_add_u32 s%d, s%d, 1' % (sCh + i, sCh + i - 1))
    e('s_cmp_ge_u32 s%d, 7' % (sCh + i))
    e('s_cselect_b32 s%d, 0, s%d' % (sCh + i, sCh + i))


def xdma(i):
    r = L('s_add_u32 m0, s%d, %d\ns_lshl_b32 s%d, s%d, 7' % (sOff2, i * PG, sOff, sCh + i))
    for q in range(4):
        r.append(I('buffer_load_dwordx4 v%d, %s, s%d offen%s%s lds' % (vOffX + q, S4(sX), sOff, ' offset:%d' % (q * 1024) if q else '', ' nt' if 'x' in OPT.get('nt', ()) else ''), tag='x%d' % i))
    return r


stamp('_prek')
e('@waitlg0')
stamp('_karg')
e('s_mov_b32 s%d, s4' % sX)
e('s_mov_b32 s%d, s5' % (sX + 1))
p.add(xdma(0))
nextch(1)
if OPT.get('sw1') in (4, 5):
    e('''
    s_mul_i32 s3, s{idx}, 14
    s_lshl2_add_u32 s3, s{w}, s3
    s_mul_i32 s3, s3, 2688
    s_and_b32 s16, s2, 1
    s_mul_i32 s16, s16, 384
    s_add_u32 s3, s3, s16
    v_mul_u32_u24 v{t0}, 2688, v{u2}
    v_bfe_u32 v{t1}, v0, 2, 2
    v_min_u32 v{t1}, {np}, v{t1}
    v_mul_u32_u24 v{t1}, 896, v{t1}
    v_and_b32 v{t2}, 3, v0
    v_lshl_add_u32 v{t1}, v{t2}, 7, v{t1}
    v_add3_u32 v{c}, v{t0}, v{t1}, s3
    s_mov_b32 s{q2}, 1204224
    s_mov_b32 s{q3}, 0x20000
    '''.format(idx=sIdx, w=sW, t0=t0, t1=t1, t2=t2, u2=u[2], c=vY + 14, q2=sQKV + 2, q3=sQKV + 3, np=2 if OPT['sw1'] == 4 else 1))
if OPT.get('sw1') in (6, 7):
    e('''
    s_lshl2_add_u32 s3, s2, s{w}
    s_lshr_b32 s16, s3, 1
    s_mul_i32 s16, s16, 2688
    s_and_b32 s3, s3, 1
    s_mul_i32 s3, s3, {hb}
    s_add_u32 s16, s16, s3
    v_min_u32 v{c}, {mx}, v0
    v_lshlrev_b32 v{c}, 7, v{c}
    s_mov_b32 s{q2}, 1204224
    s_mov_b32 s{q3}, 0x20000
    '''.format(w=sW, c=vY + 14, q2=sQKV + 2, q3=sQKV + 3, hb=896 if OPT['sw1'] == 6 else 1408, mx=6 if OPT['sw1'] == 6 else 10))
if OPT.get('sw1') in (4, 5):
    e('s_mov_b32 s%d, s6' % sQKV)
    e('s_mov_b32 s%d, s7' % (sQKV + 1))
    e('buffer_load_dword a249, v%d, %s, 0 offen%s' % (vY + 14, S4(sQKV), '' if OPT['sw1'] == 4 else ' offset:896'))
elif OPT.get('sw1') in (6, 7):
    x_ = L('s_mov_b32 s%d, s6\ns_mov_b32 s%d, s7\nbuffer_load_dword a249, v%d, %s, s16 offen%s' % (sQKV, sQKV + 1, vY + 14, S4(sQKV), ' offset:896' if OPT['sw1'] == 6 else ''))
    p.add(xdma(1) + x_ if OPT.get('swl') else x_ + xdma(1))
else:
    p.add(xdma(1))
stamp('_x01')
for i in range(2, 7):
    nextch(i)
e("""
s_and_b32 s{half}, s2, 1
s_lshl3_add_u32 s{m}, s{half}, s{cs}
s_sub_u32 s{a}, s{m}, s{half}
s_lshl_b32 s{wk}, s{w}, 10
s_lshl_b32 s{cnt}, s{g}, 13
s_and_b32 s{th}, s{w}, 1
s_lshr_b32 s{kh}, s{w}, 1
s_mov_b32 s{q}, s6
s_mov_b32 s{q1}, s7
s_cmp_lt_u32 s{w}, 2
s_cselect_b32 s{gu}, s8, s10
s_cselect_b32 s{gu1}, s9, s11
s_mov_b32 s{wd}, s12
s_mov_b32 s{wd1}, s13
s_mov_b32 s{out}, s14
s_mov_b32 s{out1}, s15
s_mov_b32 s{dbg}, s20
s_mov_b32 s{dbg1}, s21
s_mov_b32 s{ws}, s22
s_mov_b32 s{ws1}, s23
s_cmp_lt_u32 s{cs}, 7
s_cselect_b32 s{wo2}, 401408, 0
s_cselect_b32 s{gu2}, 1605632, 0
s_lshl1_add_u32 s{tt}, s{half}, s{th}
""".format(half=sHalf, m=sM, cs=sCs, a=sA, wk=sWK, w=sW, cnt=sCnt, g=sG, th=sTh, kh=sKh, q=sQKV, q1=sQKV + 1,
           gu=sGU, gu1=sGU + 1, wd=sWD, wd1=sWD + 1, out=sOUT, out1=sOUT + 1, dbg=sDBG, dbg1=sDBG + 1,
           ws=sWS, ws1=sWS + 1, wo2=sWO + 2, gu2=sGU + 2, tt=sTT))
for srd, size in ((sQKV, 1204224), (sWO, None), (sWD, 1605632), (sGU, None), (sOUT, 1835008), (sDBG, 256), (sWS, WS_SIZE)):
    if size:
        e('s_mov_b32 s%d, 0x%x' % (srd + 2, size))
    e('s_mov_b32 s%d, 0x20000' % (srd + 3))
e("""
v_lshlrev_b32 v{l16}, 4, v0
v_lshlrev_b32 v{l8}, 3, v0
v_mov_b32 v{one}, 1
v_and_b32 v{u3}, 31, v0
v_lshrrev_b32 v{u4}, 5, v0
v_bfe_u32 v{u5}, v0, 2, 2
v_and_b32 v{u6}, 3, v0
v_bfe_u32 v{u7}, v0, 4, 1
""".format(l16=vL16, l8=vL8, one=vOne, u3=u[3], u4=u[4], u5=u[5], u6=u[6], u7=u[7]))
e("""
s_cmp_eq_u32 s{m}, 15
s_cselect_b32 s3, 1, 0
s_cmp_eq_u32 s{w}, 0
s_cselect_b32 s{z}, s3, 0
s_cmp_eq_u32 s{z}, 0
s_cbranch_scc1 L_nozero
v_lshlrev_b32 v{t3}, 7, v0
v_mov_b32 v{t4}, 0
""".format(m=sM, w=sW, t3=t3, t4=t4, z=sZero))
e('buffer_store_dword v%d, v%d, %s, s%d offen sc1' % (t4, t3, S4(sWS), sCnt), raw=True)
e('L_nozero:')
e('v_cmp_lt_u32 s[%d:%d], 31, v0' % (sMaskHi, sMaskHi + 1))
e('v_cmp_eq_u32 s[%d:%d], 28, v%d' % (sMask28, sMask28 + 1, u[3]))
e('''
v_lshlrev_b32 v{t0}, 7, v{u3}
v_add_u32 v{t0}, s{xb}, v{t0}
v_bfe_u32 v{t1}, v0, 1, 3
v_xor_b32 v{t1}, v{t1}, v{u4}
'''.format(t0=t0, t1=t1, u3=u[3], u4=u[4], xb=sOff2))
for ks in range(4):
    e('v_xor_b32 v%d, %d, v%d' % (t2, 2 * ks, t1))
    e('v_lshl_add_u32 v%d, v%d, 4, v%d' % (vAdX + ks, t2, t0))
e('''
v_lshlrev_b32 v{t0}, 2, v{u7}
v_xor_b32 v{t0}, v{t0}, v{u1}
v_lshlrev_b32 v{t4}, 4, v{t0}
v_lshrrev_b32 v{t1}, 2, v{t0}
v_and_b32 v{t0}, 3, v{t0}
v_lshlrev_b32 v{t2}, 1, v{t0}
v_min_u32 v{t2}, 5, v{t2}
v_lshlrev_b32 v{t2}, 3, v{t2}
s_movk_i32 s{k}, 896
v_mad_u32_u24 v{t2}, v{t1}, s{k}, v{t2}
v_mad_u32_u24 v{t4}, v{u0}, s{k}, v{t4}
s_lshl_b32 s3, s{w}, 3
v_add_u32 v{t3}, s3, v{u0}
s_movk_i32 s{k}, 2688
v_mad_u32_u24 v{t2}, v{t3}, s{k}, v{t2}
s_mul_i32 s3, s{m}, 56
s_add_u32 s4, s3, 896
v_add_u32 v{kv}, s4, v{t2}
'''.format(t0=t0, t1=t1, t2=t2, t3=t3, t4=t4, u0=u[0], u1=u[1], u7=u[7], k=sOff, w=sW, m=sM, kv=vOffKV))
e('''
s_lshl_b32 s6, s{cs}, 7
s_mul_i32 s4, s{w}, 7168
s_add_u32 s4, s4, s6
v_add_u32 v{wo}, s4, v{t4}
s_mul_i32 s4, s{kh}, 802816
s_mul_i32 s5, s{th}, 7168
s_add_u32 s4, s4, s5
s_add_u32 s4, s4, s6
v_add_u32 v{wd}, s4, v{t4}
'''.format(t4=t4, cs=sCs, w=sW, kh=sKh, th=sTh, wo=vOffWO, wd=vOffWD))
e('''
v_lshlrev_b32 v{t2}, 1, v{u6}
v_min_u32 v{t2}, 5, v{t2}
v_lshlrev_b32 v{t2}, 3, v{t2}
v_lshrrev_b32 v{t3}, 2, v0
v_mul_u32_u24 v{t4}, 896, v{t3}
s_lshl_b32 s4, s{w}, 4
v_add_u32 v{t3}, s4, v{t3}
v_mad_u32_u24 v{t2}, v{t3}, s{k}, v{t2}
v_add_u32 v{q}, s3, v{t2}
s_lshl2_add_u32 s4, s{g}, s{tt}
s_mul_i32 s4, s4, 28672
s_add_u32 s4, s4, s6
s_lshl_b32 s5, s{kh}, 6
s_add_u32 s4, s4, s5
v_lshl_add_u32 v{t4}, v{u6}, 4, v{t4}
v_add_u32 v{xr}, s4, v{t4}
'''.format(t2=t2, t3=t3, t4=t4, u6=u[6], k=sOff, w=sW, q=vOffQ, g=sG, tt=sTT, kh=sKh, xr=vOffXR))
WQP = 14
e('''
v_lshlrev_b32 v{t0}, 3, v{u6}
v_lshl_add_u32 v{t0}, v{u7}, 5, v{t0}
v_lshrrev_b32 v{t1}, 1, v{u6}
v_and_b32 v{t1}, v{t1}, v{u7}
v_lshlrev_b32 v{t1}, 3, v{t1}
v_xor_b32 v{t1}, v{t0}, v{t1}
v_lshrrev_b32 v{t2}, 1, v{u5}
v_lshlrev_b32 v{t2}, 6, v{t2}
v_lshl_add_u32 v{t3}, v{u4}, 3, v{u5}
v_xor_b32 v{t4}, v{t1}, v{t2}
v_lshl_add_u32 v{ak}, v{t3}, 7, v{t4}
v_xor_b32 v{av}, 64, v{ak}
v_lshl_add_u32 v{aq}, v{t3}, 6, v{t1}
v_add_u32 v{aq}, {qb}, v{aq}
'''.format(t0=t0, t1=t1, t2=t2, t3=t3, t4=t4, u4=u[4], u5=u[5], u6=u[6], u7=u[7], ak=vAdK, av=vAdV, aq=vAdQ, qb=WQP * PG))
e('''
v_xor_b32 v{t4}, v{t0}, v{t2}
s_lshl_b32 s3, s{kh}, 6
v_xor_b32 v{t4}, s3, v{t4}
v_lshl_add_u32 v{t4}, v{u5}, 7, v{t4}
s_mul_i32 s3, s{kh}, 28672
v_add_u32 v{p0}, s3, v{t4}
v_xor_b32 v{p1}, 64, v{p0}
v_lshl_add_u32 v{a0}, v{u4}, 9, v{p0}
v_xor_b32 v{a1}, 64, v{a0}
'''.format(t0=t0, t2=t2, t4=t4, u4=u[4], u5=u[5], kh=sKh, p0=vAdWOp, p1=vAdWOp + 1, a0=vAdWO, a1=vAdWO + 1))
e('''
s_lshl_b32 s4, s{kh}, 2
v_lshl_add_u32 v{t0}, v{u7}, 1, s4
v_xor_b32 v{t0}, v{t0}, v{u1}
v_lshlrev_b32 v{t0}, 4, v{t0}
s_movk_i32 s{k}, 3584
v_mad_u32_u24 v{t0}, v{u0}, s{k}, v{t0}
s_mul_i32 s4, s{th}, 28672
s_lshl_b32 s5, s{a}, 8
s_add_u32 s4, s4, s5
v_add_u32 v{gu}, s4, v{t0}
'''.format(t0=t0, u0=u[0], u1=u[1], u7=u[7], k=sOff, kh=sKh, th=sTh, a=sA, gu=vOffGU))
vSw = vY
sSW = 8
e('''
s_mul_i32 s3, s{idx}, 14
s_lshl2_add_u32 s3, s{w}, s3
s_mul_i32 s3, s3, 2688
s_mul_i32 s4, s{half}, 384
s_add_u32 s3, s3, s4
v_mul_u32_u24 v{t0}, 2688, v{u2}
v_bfe_u32 v{t1}, v0, 2, 2
v_min_u32 v{t1}, 2, v{t1}
v_mul_u32_u24 v{t1}, 896, v{t1}
v_and_b32 v{t2}, 3, v0
v_lshl_add_u32 v{t1}, v{t2}, 7, v{t1}
v_add3_u32 v{c}, v{t0}, v{t1}, s3
s_add_u32 s3, s{cs}, 1
s_lshr_b32 s3, s3, 1
s_mul_i32 s4, s{gl}, 5
s_add_u32 s3, s3, s4
s_lshl1_add_u32 s4, s3, s{th}
s_mul_i32 s4, s4, 3
s_bfe_u32 s5, s2, 0x20001
s_mul_i32 s5, s5, 112
s_add_u32 s4, s4, s5
s_mul_i32 s4, s4, 3584
s_mul_i32 s5, s{half}, 1792
s_add_u32 s4, s4, s5
v_min_u32 v{t0}, 2, v{u2}
v_mul_u32_u24 v{t0}, 3584, v{t0}
v_and_b32 v{t1}, {swm}, v0
v_min_u32 v{t1}, {swx}, v{t1}
v_lshl_add_u32 v{t0}, v{t1}, 7, v{t0}
v_add_u32 v{a}, s4, v{t0}
v_min_u32 v{t1}, 6, v{u1}
s_lshl2_add_u32 s3, s3, s{w}
s_min_u32 s3, s3, 55
s_and_b32 s4, s2, 7
s_mul_i32 s4, s4, 56
s_add_u32 s3, s3, s4
s_mul_i32 s3, s3, 896
v_lshlrev_b32 v{t1}, 7, v{t1}
v_add_u32 v{b}, s3, v{t1}
s_mul_i32 s3, s{half}, 42
s_add_u32 s3, s3, 0xab
s_lshr_b32 s3, s3, s{cs}
s_and_b32 s{good}, s3, 1
'''.format(cs=sCs, gl=sGl, th=sTh, half=sHalf, w=sW, t0=t0, t1=t1, t2=t2, u0=u[0], u1=u[1], u2=u[2], a=vSw, b=vSw + 1, c=vY + 13,
           good=sGood, idx=sIdx, swm=14 if OPT.get('swh') else 15, swx=12 if OPT.get('swh') else 13))


if OPT.get('swf', 0):
    e('''
    s_add_u32 s3, s{cs}, 1
    s_lshr_b32 s3, s3, 1
    s_mul_i32 s4, s{gl}, 5
    s_add_u32 s3, s3, s4
    s_lshl1_add_u32 s4, s3, s{th}
    s_mul_i32 s4, s4, 43008
    s_mul_i32 s5, s{half}, 1792
    s_add_u32 s4, s4, s5
    v_min_u32 v{t1}, 6, v{u1}
    v_mul_u32_u24 v{t0}, 3584, v{u0}
    v_lshl_add_u32 v{t0}, v{t1}, 8, v{t0}
    v_add_u32 v{a2}, s4, v{t0}
    v_min_u32 v{t0}, 3, v{u0}
    v_mul_u32_u24 v{t0}, 3584, v{t0}
    v_lshl_add_u32 v{t0}, v{t1}, 8, v{t0}
    s_add_u32 s4, s4, 28672
    v_add_u32 v{a3}, s4, v{t0}
    s_lshl2_add_u32 s3, s3, s{w}
    s_mul_i32 s3, s3, 5376
    v_min_u32 v{t0}, 5, v{u0}
    v_mul_u32_u24 v{t0}, 896, v{t0}
    v_lshl_add_u32 v{t0}, v{t1}, 7, v{t0}
    v_add_u32 v{b}, s3, v{t0}
    '''.format(cs=sCs, gl=sGl, th=sTh, half=sHalf, w=sW, t0=t0, t1=t1, u0=u[0], u1=u[1], a2=vY + 14, a3=vY + 15, b=vSw + 1))


def sweep1():
    return L('buffer_load_dword a249, v%d, %s, 0 offen' % (vY + 13, S4(sQKV))) if OPT.get('sw1', 0) else []


def sweep():
    r = L('''
    s_mov_b32 s{sw}, s{gu}
    s_mov_b32 s{sw1}, s{gu1}
    s_mul_i32 s{sw2}, s{good}, 1605632
    s_mov_b32 s{sw3}, 0x20000
    buffer_load_dword a250, v{a}, {srd}, 0 offen
    s_mov_b32 s{sw}, s{wo}
    s_mov_b32 s{sw1}, s{wo1}
    s_mul_i32 s{sw2}, s{good}, 401408
    buffer_load_dword a251, v{b}, {srd}, 0 offen
    '''.format(sw=sSW, sw1=sSW + 1, sw2=sSW + 2, sw3=sSW + 3, gu=sGU, gu1=sGU + 1, wo=sWO, wo1=sWO + 1, a=vSw, b=vSw + 1,
               srd=S4(sSW), good=sGood))
    if OPT.get('swf', 0):
        x = L('buffer_load_dword a248, v%d, %s, 0 offen\nbuffer_load_dword a247, v%d, %s, 0 offen' % (vY + 14, S4(sSW), vY + 15, S4(sSW)))
        r = r[:4] + x + (r[4:5] if OPT['swf'] == 2 else []) + r[5:]
    return r


def sweep3():
    r = L('''
    s_mul_i32 s3, s{g}, 14
    s_add_u32 s3, s3, s{a}
    s_lshl2_add_u32 s3, s3, s{w}
    s_mul_i32 s3, s3, 1792
    v_min_u32 v{t}, 13, v0
    v_lshlrev_b32 v{t}, 7, v{t}
    buffer_load_dword a252, v{t}, {srd}, s3 offen
    '''.format(g=sG, a=sA, w=sW, t=t5, srd=S4(sWD)))
    return r if OPT.get('sw3', 0) else []


def kvdma(pg):
    pre = ['s_mul_i32 s%d, s%d, 172032' % (sOff, sCh + (pg >> 1))]
    if pg & 1:
        pre.append('s_add_u32 s%d, s%d, 86016' % (sOff, sOff))
    return dma(vOffKV, sQKV, 's%d' % sOff, pg * PG, 'kv%d' % pg, pre)


def qdma(i):
    return dma(vOffQ, sQKV, 's%d' % sOff, (WQP + i) * PG, 'q%d' % i, ['s_mul_i32 s%d, s%d, 172032' % (sOff, sCh + i)])


vS, vQ2, vOnes = u[8], u[9], u[10]
vMean, vStd, vR, vRL = u[6], u[7], u[12], u[14]
e('v_mov_b32 v%d, 0' % vS)
e('v_mov_b32 v%d, 0' % vQ2)
e('v_mov_b32 v%d, 0x3f803f80' % vOnes)
e('v_mov_b32 v%d, 0x3f803f80' % (vOnes + 1))
SCR, KVS, XRP, WOP = 21, 25, 26, 0
e('''
s_lshl_b32 s3, s{w}, 8
s_add_u32 s3, s3, {b}
v_lshl_add_u32 v{a}, v{u3}, 2, s3
v_lshl_add_u32 v{c}, v{u4}, 4, s3
'''.format(w=sW, b=KVS * PG + 2048, a=t3, c=t4, u3=u[3], u4=u[4]))


def xdots(i):
    r = []
    for j in range(16):
        reg = vF + 16 * i + j
        r.append(I('v_dot2c_f32_bf16 v%d, v%d, v%d' % (vS, reg, vOnes)))
        r.append(I('v_dot2c_f32_bf16 v%d, v%d, v%d' % (vQ2, reg, reg)))
    return r


for _ in range(OPT.get('pada', 0)):
    e('s_nop 0')
stamp('_addr')
SW1 = OPT.get('sw1', 0)
if SW1 == 2:
    p.add(sweep1())
if SW1 in (4, 5):
    p.add(xdma(1))
p.add(xdma(2))
if SW1 == 1:
    p.add(sweep1())
kv_next = 0
XD = OPT.get('xd', 1)
XS = OPT.get('xs', [[3], [4], [5], [6], [], [], []])
XW = OPT.get('xw', [[], [], [], [3], [2], [1, 3], [2]])
for i in range(7):
    e('@waitvm x%d' % i)
    stamp('_xl%d' % i)
    if i == 0:
        stamp('x0 landed')
    if i == 2:
        e('s_cmp_eq_u32 s%d, 0' % sZero)
        e('s_cbranch_scc1 L_nozero2')
        e('s_mov_b64 exec, 1')
        e('buffer_atomic_add v%d, off, %s, 0' % (vOne, S4(sDBG)), raw=True)
        e('s_mov_b64 exec, -1')
        e('L_nozero2:')
    for ks in range(4):
        e('ds_read_b128 %s, v%d offset:%d' % (V(vF + 16 * i + 4 * ks, 4), vAdX + ks, i * PG))
    dots = xdots(i - XD) if i >= XD else []
    d = [[], [], [], []]
    xs = XS[i]
    if len(xs) == 1:
        x_ = xdma(xs[0])
        d = [x_[:3], x_[3:4], x_[4:5], x_[5:6]]
    elif len(xs) == 2:
        x_, y_ = xdma(xs[0]), xdma(xs[1])
        d = [x_[:4], x_[4:], y_[:4], y_[4:]]
    for q in XW[i]:
        if kv_next == 0 and SW1 == 3:
            d[q] = d[q] + sweep1()
        d[q] = d[q] + kvdma(kv_next)
        kv_next += 1
    for q in range(4):
        p.add(d[q] + dots[8 * q:8 * q + 8])
for c_ in range(7 - XD, 7):
    p.add(xdots(c_))
    if c_ == 6 or OPT.get('xk'):
        p.add(kvdma(kv_next))
        kv_next += 1
stamp('x read')

aK, aV, vRr = vX, vX + 16, vX + 32
aCK, aCV = 40, 56
vAdKw, vAdVw, vAdQw, vO4, vMA, vCx = vY + 2, vY + 3, vY + 12, vY + 8, vY + 4, vY + 16
e('''
s_lshl_b32 s3, s{w}, 11
v_add_u32 v{kw}, s3, v{k}
v_add_u32 v{vw}, s3, v{v}
v_add_u32 v{qw}, s{wk}, v{q}
'''.format(w=sW, kw=vAdKw, vw=vAdVw, qw=vAdQw, k=vAdK, v=vAdV, q=vAdQ, wk=sWK))
for n in range(4):
    e('v_mov_b32 v%d, 0x3f803f80' % (vO4 + n))


def mfma_ones(acc, b, first):
    return I('v_mfma_f32_32x32x16_bf16 %s, %s, %s, %s' % (A(acc, 16), V(vO4, 4), b, '0' if first else A(acc, 16)))


ws = WStream(look=OPT.get('a1l', 4), wper=OPT.get('a1w', 2))
pgap = {}
kb = OPT.get('kvb', (0, 2, 4, 7, 10, 12, 13))
KVB = dict(zip(kb, kb[1:] + (14,)))
for pg in range(14):
    pre = None
    if pg in KVB:
        pre = L('@waitvm ' + ' '.join('kv%d' % q for q in range(pg, KVB[pg])) + '\ns_barrier')
    if pg & 1:
        for (acc, ad) in ((aCK, vAdKw), (aCV, vAdVw)):
            off = (pg - 1) * PG
            glast = ws.step(ad, off, ad, off + 512, lambda a: mfma_ones(acc, a, pg == 1), pre)
            pre = None
    for ks2 in range(2):
        k = 2 * pg + ks2
        for (acc, ad) in ((aK, vAdK), (aV, vAdV)):
            off = pg * PG + ks2 * 2048
            g_ = ws.step(ad, off, ad, off + 512, lambda a: mfma(acc, V(vF + 4 * k, 4), a, '0' if k == 0 else None), pre)
            pre = None
    pgap[pg] = g_
KVP = OPT.get('kvp')
if KVP:
    for pg in range(kv_next, 14 - len(KVP)):
        p.add(kvdma(pg))
    for n, glw in enumerate(KVP):
        ws.fill(glw, kvdma(14 - len(KVP) + n))
else:
    for pg in range(kv_next, 14):
        glw = max(pgap[max(pg - OPT.get('kvl', 14), 0)], 2 * (pg - kv_next) + 1)
        ws.fill(glw, kvdma(pg))
st = halves_sum(vS, t0) + halves_sum(vQ2, t0) + ln_consts(vS, vQ2, vMean, vStd, vR)
st += L('''
v_mul_f32 v{c}, v{m}, v{r}
v_mul_f32 v{rl}, 0x{l:x}, v{r}
v_sub_f32 v{c}, 0, v{c}
'''.format(c=t0, m=vMean, r=vR, rl=vRL, l=LOG2E))
for n, x in enumerate(st):
    ws.fill(2 + n, x)
ws.fill(28, L('ds_write_b32 v{a}, v{r}\nds_write_b32 v{a}, v{c} offset:128'.format(a=t3, r=vR, c=t0)))
for n in range(8):
    ws.fill(30 + n, I('ds_read_b128 %s, v%d offset:%d' % (V(vRr + 4 * n, 4), t4, (n & 3) * 32 + (n >> 2) * 128)))
pre_e = mean_frag(vMean, vMA) + L('''
v_lshlrev_b32 v{t0}, 3, v{u3}
v_add_u32 v{t5}, {cx}, v{t0}
v_mov_b32 v{c}, 0x{l:x}
v_mov_b32 v{u5}, v{u3}
'''.format(t0=t0, u3=u[3], t5=t5, cx=KVS * PG + 3072, c=u[4], l=LOG2E, u5=u[5]))
for n, x in enumerate(pre_e):
    ws.fill(30 + n, x)
ws.fill(40, L('''
s_lshl_b32 s3, s{w}, 8
v_add_u32 v{t4}, s3, v{t5}
s_lshl4_add_u32 s3, s{m}, s{g}
s_lshl2_add_u32 s3, s3, s{w}
s_lshl_b32 s3, s3, 9
s_add_u32 s{o2}, s3, {base}
'''.format(w=sW, t4=t4, t5=t5, m=sM, g=sG, o2=sOff2, base=WS_KVP)))
ws.fill(44, L('''
s_lshl_b32 s3, s{m}, 6
s_add_u32 s3, s3, s{w}
s_lshl_b32 s3, s3, 7
s_add_u32 s{pl}, s3, {kv}
'''.format(m=sM, w=sW, pl=sPoll, kv=C_KV * 128)))
SW2 = OPT.get('sw2', 1)
if SW2 == 1:
    ws.fill(OPT.get('swp', max(glw + 2, 40)), sweep())
QG = OPT.get('qg', (44, 49, 54, 59, 64))
for n, g_ in enumerate(QG):
    ws.fill(g_, qdma(n))
vRa, vRb = vY + 14, vY + 15
ws.fill(48, L('''
s_lshl_b32 s3, s{w}, 12
s_add_u32 s3, s3, {scr}
v_add_u32 v{t0}, s3, v{l16}
s_add_u32 s3, s{wk}, {scr}
v_add_u32 v{t1}, s3, v{l16}
'''.format(w=sW, wk=sWK, scr=SCR * PG, t0=vRa, t1=vRb, l16=vL16)))
ws.fill(glast + 2, L('''
v_accvgpr_read_b32 v{a}, a{k}
v_accvgpr_read_b32 v{b}, a{v}
ds_write_b64 v{ad}, v[{a}:{b}]
'''.format(a=t0, b=t1, k=aCK, v=aCV, ad=t4)))
xch = L('@waitlg0\ns_barrier')
for n in range(4):
    xch.append(I('ds_read_b64 %s, v%d offset:%d' % (V(vCx + 2 * n, 2), t5, 256 * n)))
ws.fill(glast + 3, xch)
for nm, at in (('_a1', 0), ('_a8', 9), ('_a16', 19), ('_a24', 29), ('_a32', 39), ('_a40', 49), ('_a48', 59)):
    ws.fill(at, mkstamp(nm))
p.add(ws.build())
stamp('A1 mfma')


def phi(acc, dst, pre):
    r = []
    for j in range(0, 16, 4):
        g = []
        for jj in (j, j + 2):
            a = acc + jj
            tp = u[0] + (jj & 2)
            g.append(pre(jj, tp) + L('''
            v_exp_f32 v{t}, v{t} clamp
            v_exp_f32 v{t1}, v{t1} clamp
            v_max_f32 v{a}, 0x{e:x}, v{a}
            v_max_f32 v{a1}, 0x{e:x}, v{a1}
            '''.format(t=tp, t1=tp + 1, a=a, a1=a + 1, e=EPS6)) + [pk('add', a, a, tp), I('v_cvt_pk_bf16_f32 v%d, v%d, v%d' % (dst + jj // 2, a, a + 1))])
        r += zip_groups(g)
    return r


vPK, vVV, aKV = vCx, vY + 24, vX + 32
BC1 = 'op_sel_hi:[1,0]'
ea = [pk('add', vCx, vCx, vCx + 2), pk('add', vCx + 4, vCx + 4, vCx + 6), pk('add', t0, vCx, vCx + 4)]
ea += L('v_mov_b32 v%d, v%d' % (t2, t1))
gv = []
for j in range(0, 16, 2):
    tp = u[0] + (j & 2)
    gv.append([pk('mul', tp, vRr + 16 + j, t2, mod=BC1), pk('fma', aV + j, aV + j, vRr + j, tp),
               I('v_cvt_pk_bf16_f32 v%d, v%d, v%d' % (vVV + j // 2, aV + j, aV + j + 1)),
               I('v_cndmask_b32 v%d, v%d, v%d, s[%d:%d]' % (vVV + j // 2, vVV + j // 2, vOnes, sMask28, sMask28 + 1))])
for j in range(0, 8, 2):
    ea += zip_groups(gv[j:j + 2])
ea += phi(aK, vPK, lambda j, tp: [pk('mul', tp, vRr + 16 + j, t0, mod=BC1), pk('fma', aK + j, aK + j, vRr + j, tp),
                                  pk('mul', tp, aK + j, u[4], mod=BC1)])
QE = OPT.get('qe', 5)
p.add(spread(ea, [qdma(n) for n in range(len(QG), QE)]) if QE > len(QG) else ea)
p.add([mfma(aKV, V(vPK, 4), V(vVV, 4), '0'), mfma(aKV, V(vPK + 4, 4), V(vVV + 4, 4))])
e('''
buffer_load_dword v{p}, off, {dbg}, 0 sc1
v_lshlrev_b32 v{t5}, 2, v{u3}
v_add_u32 v{t5}, {cx}, v{t5}
s_lshl_b32 s3, s{w}, 7
v_add_u32 v{t4}, s3, v{t5}
'''.format(w=sW, wk=sWK, scr=SCR * PG, t0=t0, t1=t1, l16=vL16, p=vP, dbg=S4(sDBG), t4=t4, t5=t5, u3=u[5], cx=KVS * PG + 2048))
for q in range(4):
    e('ds_write_b128 v%d, %s offset:%d' % (vRa, V(aKV + 4 * q, 4), q * 1024))
e('@waitlg0')
e('s_barrier')
for j in range(4):
    e('ds_read_b128 %s, v%d offset:%d' % (V(vX + 4 * j, 4), vRb, j * PG))
for (a, b) in ((0, 4), (2, 6), (8, 12), (10, 14), (0, 8), (2, 10)):
    p.add([pk('add', vX + a, vX + a, vX + b)])
e('v_cvt_pk_bf16_f32 v%d, v%d, v%d' % (vX, vX, vX + 1))
e('v_cvt_pk_bf16_f32 v%d, v%d, v%d' % (vX + 1, vX + 2, vX + 3))
e('buffer_store_dwordx2 %s, v%d, %s, s%d offen sc1' % (V(vX, 2), vL8, S4(sWS), sOff2), tag='kvp')
stamp('kv stored')
for n in range(QE, 7):
    p.add(qdma(n))
p.add(sweep() if SW2 == 2 else [])
if OPT.get('swh') == 2:
    x_ = sweep()[:5]
    x_[4] = I(x_[4].text.replace('a250', 'a248') + ' offset:128')
    p.add(x_)

W1PG = {}
W2PG = {}


def wodma(n):
    c, uu = sCh + (n >> 1), n & 1
    r = L("""
    s_lshl_b32 s{t}, s{c}, 13
    s_add_u32 s{t}, s{t}, s{wk}
    s_add_u32 m0, s{t}, {lo}
    s_mul_i32 s{o}, s{c}, 57344
    """.format(t=sT[3], c=c, wk=sWK, lo=WOP * PG + uu * PG, o=sOff))
    if uu:
        r += L('s_add_u32 s%d, s%d, 28672' % (sOff, sOff))
    return r + dma(vOffWO, sWO, 's%d' % sOff, None, 'wo')


def xrdma(uu):
    return L('s_lshl1_add_u32 s{t}, s{wk}, 0\ns_add_u32 m0, s{t}, {lo}\ns_movk_i32 s{o}, {so}'.format(
        t=sT[3], wk=sWK, lo=XRP * PG + uu * 1024, o=sOff, so=uu * 14336)) + dma(vOffXR, sX, 's%d' % sOff, None, 'xr')


def gudma(half, k, page):
    (W2PG if half else W1PG)[k] = page
    return dma(vGUo + (k & 3) + 4 * half, sGU, 's%d' % sGUt[k >> 2], page * PG, 'gu%d_%d' % (half, k))


aQ, vCQ = vX + 16, vY + 24
ws = WStream(look=OPT.get('a2l', 5), wper=OPT.get('a2w', 2))
for i in range(7):
    pre = None
    if i == 0:
        pre = L('@waitvm q0 q1 q2 q3 q4\ns_barrier')
    if i == 5:
        pre = L('@waitvm q5 q6\ns_barrier')
    glast = ws.step(vAdQw, i * PG, vAdQw, i * PG + 256, lambda a: mfma_ones(aCK, a, i == 0), pre)
    for ks in range(4):
        k = 4 * i + ks
        off = i * PG + ks * 1024
        ws.step(vAdQ, off, vAdQ, off + 256, lambda a: mfma(aQ, a, V(vF + 4 * k, 4), '0' if k == 0 else None))
ws.fill(OPT.get('kvs', 17), L('@waitvm kvp') + poll_check(16, '0', sDBG) + signal(sPoll))
for n in range(1, 4):
    ws.fill(2 + n, I('v_mov_b32 v%d, 0' % (vCQ + n)))
NW = OPT.get('nw', 8)
for n in range(NW):
    ws.fill(OPT.get('kvs', 17) + 1 + 2 * n, wodma(n))
for nm in OPT['st'] or ():
    if nm.startswith('_q'):
        ws.fill(int(nm[2:]), mkstamp(nm))
ws.fill(glast + 2, L('v_accvgpr_read_b32 v{a}, a{k}\nds_write_b32 v{ad}, v{a}'.format(a=t0, k=aCK, ad=t4)))
xch = L('@waitlg0\ns_barrier')
for n in range(4):
    xch.append(I('ds_read_b32 v%d, v%d offset:%d' % (vY + 28 + n, t5, 128 * n)))
ws.fill(glast + 3, xch)
p.add(ws.build())
stamp('A2 mfma')
e('''
v_add_f32 v{a}, v{y0}, v{y1}
v_add_f32 v{b}, v{y2}, v{y3}
v_add_f32 v{a}, v{a}, v{b}
'''.format(a=t0, b=t1, y0=vY + 28, y1=vY + 29, y2=vY + 30, y3=vY + 31))
p.add(hilo(t0, vCQ, t1))
p.add([mfma(aQ, V(vCQ, 4), V(vMA, 4))])
tabs = []
for n in range(8):
    tabs += L('v_add_u32 v%d, %d, v%d' % (vGUo + n, (n & 3) * 57344 + (n >> 2) * 128, vOffGU))
for i in range(7):
    tabs += L('s_mul_i32 s%d, s%d, 229376' % (sGUt[i], sCh + i))
if OPT.get('n0', 0):
    p.add(tabs)
    tabs = []
vPQ = vY
ph = phi(aQ, vPQ, lambda j, tp: [pk('mul', tp, aQ + j, vRL, mod=BC1), pk('mul', aQ + j, aQ + j, vR, mod=BC1)])
free = list(range(28, 40)) + list(range(14, 21))
N0 = OPT.get('n0', 0)
WL = OPT.get('wl', 2)
wrest = [wodma(n) for n in range(NW, 14)] + [xrdma(0), xrdma(1)]
p.add(spread(ph[:40], ([] if WL else wrest) + [gudma(0, k, free[k]) for k in range(N0)]) if (N0 or not WL) else ph[:OPT.get('php', 8)])
stamp('_ph')
p.add(poll_issue(sPoll, OPT.get('kva', 1)))
p.add(ph[40:] if (N0 or not WL) else ph[OPT.get('php', 8):])
e('v_cndmask_b32 v%d, v%d, 0, s[%d:%d]' % (vPQ + 6, vPQ + 6, sMaskHi, sMaskHi + 1))
e('v_cndmask_b32 v%d, v%d, 0, s[%d:%d]' % (vPQ + 7, vPQ + 7, sMaskHi, sMaskHi + 1))
e("""
s_lshl_b32 s3, s{m}, 15
s_lshl_b32 s4, s{w}, 9
s_add_u32 s3, s3, s4
s_add_u32 s{o2}, s3, {base}
s_lshl_b32 s5, s{gl}, 13
s_add_u32 s{o}, s{o2}, s5
v_mov_b32 v{e0}, 0x3f80
v_mov_b32 v{e1}, 0x3f800000
s_add_u32 s4, s4, {kvs}
v_add_u32 v{t0}, s4, v{l8}
v_add_u32 v{t1}, {kvs}, v{l8}
s_lshl2_add_u32 s3, s{g}, s{w}
s_lshl4_add_u32 s3, s3, s{m}
s_lshl_b32 s3, s3, 11
s_add_u32 s{st}, s3, {ob}
s_lshl1_add_u32 s3, s{w}, s{half}
s_lshl_b32 s3, s3, 7
s_add_u32 s{sig}, s3, s{cnt}
""".format(m=sM, w=sW, o=sOff, o2=sOff2, base=WS_KVP, gl=sGl, e0=u[0], e1=u[1], kvs=KVS * PG, t0=t0, t1=t1, l8=vL8,
           g=sG, st=sSt, ob=WS_O, half=sHalf, sig=sSig, cnt=sCnt))
for j in range(4):
    e('v_mov_b32 v%d, 0' % (vX + 32 + j))
stamp('q done')
p.add(poll_check(16, sPoll))
stamp('kv flag')

for gg in range(16):
    if gg and gg % 2 == 0:
        e('s_add_u32 s5, s5, 4096')
        e('s_and_b32 s5, s5, 0x7fff')
        e('s_add_u32 s%d, s%d, s5' % (sOff, sOff2))
    e('buffer_load_dwordx2 %s, v%d, %s, s%d offen%s sc1' % (V(vX + 2 * gg, 2), vL8, S4(sWS), sOff, ' offset:2048' if gg & 1 else ''))
NA = OPT.get('na', 6)
p.add(tabs)
beh = (wrest[::-1] if WL == 1 else wrest[-2:] if WL else []) + [gudma(0, k, free[k]) for k in range(N0, NA)]
dots = []
for gg in range(16):
    for d in range(2):
        dots += L('v_dot2c_f32_bf16 v%d, v%d, v%d' % (vX + 32 + 2 * d, vX + 2 * gg + d, u[0]))
        dots += L('v_dot2c_f32_bf16 v%d, v%d, v%d' % (vX + 33 + 2 * d, vX + 2 * gg + d, u[1]))
DN = OPT.get('dn', 1)
beh2 = []
if DN == 0:
    for x in beh:
        p.add(x)
    p.add(dots)
elif DN == 1:
    p.add(spread(dots, beh))
else:
    p.add(dots)
    beh2 = beh
stamp('kv loaded')
e('v_cvt_pk_bf16_f32 v%d, v%d, v%d' % (vX, vX + 32, vX + 33))
e('v_cvt_pk_bf16_f32 v%d, v%d, v%d' % (vX + 1, vX + 34, vX + 35))
e('ds_write_b64 v%d, %s' % (t0, V(vX, 2)))
for x in beh2[:len(beh2) // 2] if DN == 2 else []:
    p.add(x)
e('@waitlg0')
e('s_barrier')
vKVF = vY + 8
for q in range(4):
    e('ds_read_b64 %s, v%d offset:%d' % (V(vKVF + 2 * q, 2), t1, q * 512))
aO = vX + 16
p.add([mfma(aO, V(vKVF, 4), V(vPQ, 4), '0'), mfma(aO, V(vKVF + 4, 4), V(vPQ + 4, 4))])
for x in (beh2[len(beh2) // 2:] if DN == 2 else beh2[:4]):
    p.add(x)
e('''
v_mov_b32 v{b}, v{d}
v_permlane32_swap_b32 v{d}, v{b}
v_add_f32 v{b}, 0x{eps:x}, v{b}
v_rcp_f32 v{r}, v{b}
v_cndmask_b32 v{r2}, v{r}, 0, s[{mh}:{mh1}]
'''.format(a=t2, b=t3, d=aO + 12, eps=EPS6, r=u[0], r2=u[2], mh=sMaskHi, mh1=sMaskHi + 1))
for hf_ in range(2):
    for j in range(8 * hf_, 8 * hf_ + 8, 2):
        p.add([pk('mul', aO + j, aO + j, u[2] if j >= 12 else u[0], mod=BC1)])
    for j in range(4 * hf_, 4 * hf_ + 4):
        e('v_cvt_pk_bf16_f32 v%d, v%d, v%d' % (vX + j, aO + 2 * j, aO + 2 * j + 1))
    e('buffer_store_dwordx4 %s, v%d, %s, s%d offen%s sc1' % (V(vX + 4 * hf_, 4), vL16, S4(sWS), sSt, ' offset:1024' if hf_ else ''), tag='ost')
e('s_cmp_ge_u32 s%d, 7' % sCs)
e('s_cbranch_scc1 L_idle')
stamp('_os')
for x in beh2[4:] if DN == 3 else []:
    p.add(x)
e('''
s_lshl1_add_u32 s3, s{tt}, s{kh}
s_lshl_b32 s3, s3, 7
s_add_u32 s{pl}, s3, s{cnt}
s_lshl2_add_u32 s3, s{g}, s{tt}
s_lshl1_add_u32 s4, s3, s{kh}
s_lshl_b32 s4, s4, 14
s_add_u32 s{o2}, s4, {ob}
s_lshl1_add_u32 s4, s{cs}, s{kh}
s_lshl4_add_u32 s3, s3, s4
s_lshl_b32 s4, s3, 11
s_add_u32 s{st}, s4, {hb}
s_lshl_b32 s4, s3, 8
s_add_u32 s{st2}, s4, {sb}
s_lshl_b32 s3, s{w}, 11
s_add_u32 s3, s3, {xr}
v_and_b32 v{a}, 31, v0
v_lshrrev_b32 v{b}, 5, v0
v_lshlrev_b32 v{b}, 3, v{b}
v_lshl_add_u32 v{b}, v{a}, 6, v{b}
v_add_u32 v{b}, s3, v{b}
v_lshlrev_b32 v{l8}, 3, v{a}
s_lshl_b32 s3, s{w}, 12
s_add_u32 s3, s3, {scr}
v_add_u32 v{t0}, s3, v{l16}
s_xor_b32 s4, s{w}, 2
s_lshl_b32 s4, s4, 12
s_add_u32 s4, s4, {scr}
v_add_u32 v{t1}, s4, v{l16}
'''.format(tt=sTT, kh=sKh, pl=sPoll, cnt=sCnt, g=sG, o2=sOff2, ob=WS_O, cs=sCs, st=sT[8], hb=WS_H, st2=sT[9], sb=WS_ST,
           w=sW, xr=XRP * PG, a=t2, b=t3, l8=vL8, scr=SCR * PG, t0=t0, t1=t1, l16=vL16))
e('@waitvm ost xr')
p.add(signal(sSig))
stamp('o stored')
if OPT.get('ack'):
    e('@waitvm0')
    stamp('_ack')
if DIAG:
    e('s_mov_b32 s%d, %d' % (sIter, OPT['spin'] + 1))
if STOP <= 1:
    e('s_branch L_fin')

if WL == 1:
    e('s_barrier')
if WL == 2:
    for x in wrest[:-2]:
        p.add(x)
NB = OPT.get('nb', 14)
for k in range(NA, NB):
    p.add(gudma(0, k, free[k]))
PP = OPT.get('pp', 0)
if OPT.setdefault('od', 0):
    e('s_sleep %d' % OPT['od'])
p.add(poll_pipe_issue(sPoll) if PP else poll_issue(sPoll, OPT.get('opa', 1)))
stamp('_op')
for bq in range(4):
    e('ds_read_b64 %s, v%d offset:%d' % (V(vY + 2 * bq, 2), t3, 16 * bq))
for j in range(8):
    e('v_lshlrev_b32 v%d, 16, v%d' % (vX + 2 * j, vY + j))
    e('v_and_b32 v%d, 0xffff0000, v%d' % (vX + 1 + 2 * j, vY + j))
e('s_lshl_b32 s3, s%d, 7' % sTT)
e('s_add_u32 s3, s3, s%d' % sCnt)
e('s_add_u32 s%d, s3, %d' % (sSig, C_H * 128))
e('v_mov_b32 v%d, 0' % vS)
e('v_mov_b32 v%d, 0' % vQ2)
sOr = sT[4]
e('''
s_mul_i32 s3, s{kh}, 26624
v_subrev_u32 v{d0}, s3, v{w0}
v_subrev_u32 v{d1}, s3, v{w1}
s_mul_i32 s3, s{cs}, 3584
v_add_u32 v{w0}, s3, v{w0}
v_add_u32 v{w1}, s3, v{w1}
v_add_u32 v{p0}, s3, v{p0}
v_add_u32 v{p1}, s3, v{p1}
s_lshl_b32 s{r}, s{cs}, 11
s_sub_u32 s{r}, s{r}, 2048
s_mov_b32 s6, -25088
'''.format(kh=sKh, d0=vAdD, d1=vAdD + 1, w0=vAdWO, w1=vAdWO + 1, p0=vAdWOp, p1=vAdWOp + 1, cs=sCs, r=sOr))
p.add(poll_pipe_check(8, sPoll) if PP else poll_check(8, sPoll))
stamp('o flag')
if DIAG:
    e('s_sub_u32 s101, %d, s%d' % (OPT['spin'] + 1, sIter))


def oload(j):
    r = []
    if j % 2 == 0:
        r += L('s_add_u32 s{t}, s{t}, 2048\ns_and_b32 s{t}, s{t}, 0x3fff\ns_add_u32 s{o}, s{t}, s{b}'.format(t=sOr, o=sOff, b=sOff2))
    r.append(I('buffer_load_dwordx4 %s, v%d, %s, s%d offen%s sc1' % (A(aF + 4 * j, 4), vL16, S4(sWS), sOff, ' offset:1024' if j % 2 else '')))
    return r


for j in range(8):
    p.add(oload(j))
if WL == 2:
    e('s_barrier')
stamp('_ol')
ws = WStream()
TL = OPT.get('tl', 4)
bo = [(j, ft) for j in range(16 - TL) for ft in range(2)] + [(j, 1) for j in range(16 - TL, 16)] + [(j, 0) for j in range(16 - TL, 16)]
for j, ft in bo:
    hh, s = j >> 1, j & 1
    if 1:
        pre = []
        if s == 0 and hh and (ft == 0 or j >= 16 - TL):
            pre += L('s_cmp_eq_u32 s{c}, {n}\ns_cselect_b32 s{d}, s{wrap}, 3584'.format(c=sCs, n=8 - hh, d=sT[2], wrap=sT[3]))
        if hh:
            r_ = (vAdWO if s == 0 else vAdWOp) + ft
            pre += L('v_add_u32 v%d, s%d, v%d' % (r_, sT[2], r_))
        a1_ = (vAdWOp if s == 1 else vAdWO) + ft
        ws.step(vAdWO + ft, WOP * PG + 16 * s * 128, a1_, WOP * PG + (16 * s + 8) * 128,
                lambda a: mfma(vX + 16 * ft, a, A(aF + 4 * j, 4), '0' if (j == 0 and ft == 1) else None), pre)
assert TL in (0, 2, 4)
for j in range(8, 16):
    ws.fill(j - 8, oload(j))
ws.fill(0, mkstamp('_b0'))
ws.fill(15, mkstamp('_b16'))
ws.fill(8, sweep3())
for n, k in enumerate(range(NB, 19)):
    ws.fill(9 + (OPT.get('bsp', 18) * n) // (19 - NB), gudma(0, k, free[k]))
xw_ = [I('ds_write_b128 v%d, %s offset:%d' % (t0, V(vX + 16 + 4 * q, 4), q * 1024)) for q in range(4)]
xr_ = L('@waitlg0\ns_barrier') + [I('ds_read_b128 %s, v%d offset:%d' % (V(vX + 32 + 4 * q, 4), t1, q * 1024)) for q in range(4)]
if TL >= 4:
    ws.fill(33 - TL, xw_)
    ws.fill(31, xr_)
    p.add(ws.build())
else:
    p.add(ws.build() + xw_ + xr_)
stamp('_bm')
for hf_ in range(2):
    for j in range(8 * hf_, 8 * hf_ + 8, 2):
        p.add([pk('add', vX + j, vX + j, vX + 32 + j)])
    for j in range(4 * hf_, 4 * hf_ + 4):
        e('v_cvt_pk_bf16_f32 v%d, v%d, v%d' % (vY + j, vX + 2 * j, vX + 2 * j + 1))
    e('buffer_store_dwordx4 %s, v%d, %s, s%d offen%s sc1' % (V(vY + 4 * hf_, 4), vL16, S4(sWS), sT[8], ' offset:1024' if hf_ else ''))
for j in range(8):
    e('v_dot2c_f32_bf16 v%d, v%d, v%d' % (vS, vY + j, vOnes))
    e('v_dot2c_f32_bf16 v%d, v%d, v%d' % (vQ2, vY + j, vY + j))
p.add(zip_groups([halves_sum(vS, t2), halves_sum(vQ2, t3)]))
e('buffer_store_dwordx2 %s, v%d, %s, s%d offen sc1' % (V(vS, 2), vL8, S4(sWS), sT[9]))
stamp('_hs')
for j in range(8):
    e('v_accvgpr_write_b32 a%d, v%d' % (aH + j, vY + j))
e('''
v_bfe_u32 v{r}, v0, 2, 2
v_bfe_u32 v{iu}, v0, 4, 1
v_lshrrev_b32 v{hf}, 5, v0
v_lshl_add_u32 v{a}, v{hf}, 2, v{r}
v_lshlrev_b32 v{a}, 7, v{a}
v_lshl_add_u32 v{a}, v{iu}, 11, v{a}
v_and_b32 v{b}, 1, v0
v_lshl_add_u32 v{a}, v{b}, 3, v{a}
v_lshrrev_b32 v{b}, 1, v{r}
v_lshl_add_u32 v{b}, v{iu}, 1, v{b}
v_lshlrev_b32 v{b}, 1, v{b}
v_bfe_u32 v{c}, v0, 1, 1
v_xor_b32 v{b}, v{b}, v{c}
'''.format(r=u[0], iu=u[1], hf=u[2], a=t2, b=t3, c=t4))
for t in range(4):
    e('v_xor_b32 v%d, %d, v%d' % (t4, 2 * t, t3))
    e('v_lshl_add_u32 v%d, v%d, 4, v%d' % (vAdC + t, t4, t2))
sHb, sHo, sStL, sHHst, sCSp = sT[5], sT[6], sT[7], sT[10], sT[4]
e('''
s_movk_i32 s3, 1792
v_mad_u32_u24 v{a}, v{hf}, s3, v{l8}
v_lshlrev_b32 v{l8}, 1, v{l8}
s_lshl2_add_u32 s3, s{g}, s{w}
s_lshl_b32 s4, s3, 12
s_add_u32 s{stl}, s4, {sb}
s_lshl_b32 s4, s3, 15
s_add_u32 s{hb}, s4, {hbase}
s_mul_i32 s3, s3, 14
s_add_u32 s3, s3, s{am}
s_lshl_b32 s3, s3, 13
s_add_u32 s{hst}, s3, {hh}
s_lshl_b32 s3, s{w}, 7
s_add_u32 s3, s3, s{cnt}
s_add_u32 s{pl}, s3, {ch}
s_lshl_b32 s3, s{am}, 13
s_add_u32 s{csp}, s3, {cc}
'''.format(kh=sKh, d0=vAdD, d1=vAdD + 1, w0=vAdWO, w1=vAdWO + 1, a=t4, hf=u[2], l8=vL8, g=sG, w=sW, stl=sStL, sb=WS_ST,
           hb=sHb, hbase=WS_H, am=sA, hst=sHHst, hh=WS_HH, cnt=sCnt, pl=sPoll, ch=C_H * 128, csp=sCSp, cc=C_CS * 128))
e('@waitvm0')
H1S = OPT.get('h1s', 1)
if H1S:
    e('s_barrier')
    e('s_cmp_ge_u32 s%d, 2' % sW)
    e('s_cbranch_scc1 L_nohs')
    for x in signal(sSig):
        x.raw = True
        p.add([x])
    e('L_nohs:')
else:
    p.add(signal(sSig))
stamp('h stored')
if STOP <= 2:
    e('s_branch L_fin')

NC = OPT.get('nc', 0)
N1 = OPT.get('n1', 9)
w1late = [gudma(0, k, n) for n, k in enumerate(range(19, 28))]
for x in w1late[:N1]:
    p.add(x)
for k in range(NC):
    p.add(gudma(1, k, 9 + k))
if OPT.get('hd'):
    e('s_sleep %d' % OPT['hd'])
p.add(poll_pipe_issue(sPoll) if PP else poll_issue(sPoll, OPT.get('hpa', 1)))
stamp('_hp')
for n in range(8):
    e('v_add_u32 v%d, %d, v%d' % (vWDo + n, n * 14336, vOffWD))
e('v_add_u32 v%d, 4096, v%d' % (vL16b, vL16))
e('''
s_lshl2_add_u32 s3, s{g}, s{tt}
s_lshl1_add_u32 s3, s3, s{kh}
s_mul_i32 s3, s3, 57344
s_add_u32 s4, s3, {base}
s_lshl1_add_u32 s3, s{w}, s{half}
s_lshl_b32 s3, s3, 9
s_add_u32 s3, s3, s{cnt}
s_add_u32 s{sig}, s3, {chh}
s_lshl1_add_u32 s3, s{tt}, s{kh}
s_lshl_b32 s3, s3, 9
s_add_u32 s3, s3, s{cnt}
s_add_u32 s{st}, s3, {chh}
'''.format(g=sG, tt=sTT, kh=sKh, base=WS_HH, w=sW, half=sHalf, cnt=sCnt, sig=sSig, chh=C_HH * 128, st=sSt))
for i in range(7):
    e('s_mul_i32 s%d, s%d, 114688' % (sWDt[i], sCh + i))
    e('s_lshl_b32 s3, s%d, 13' % (sCh + i))
    e('s_add_u32 s%d, s3, s4' % sHHt[i])
e('v_accvgpr_write_b32 a%d, 0' % (aCS + 16))
e('v_accvgpr_write_b32 a%d, 0' % (aCS + 17))


def hload(k):
    r = []
    if k % 4 == 0:
        r += L('s_lshl_b32 s%d, s%d, 12\ns_add_u32 s%d, s%d, s%d' % (sHo, sCh + k // 4, sHo, sHo, sHb))
    r.append(I('buffer_load_dwordx4 %s, v%d, %s, s%d offen%s sc1' % (A(aF + 4 * k, 4), vL16, S4(sWS), sHo, ' offset:%d' % (1024 * (k % 4)) if k % 4 else '')))
    return r


h0 = hload(0)
p.add(h0[:-1])
p.add(poll_pipe_check(14, sPoll) if PP else poll_check(7 if H1S else 14, sPoll))
for _ in range(OPT.get('padc', 0)):
    e('s_nop 0')
stamp('h flag')
HL = OPT.get('hl', 10)
p.add(h0[-1:])
for k in range(1, HL):
    p.add(hload(k))


class Win:
    def __init__(self, regs):
        self.cur = {r: 0 for r in regs}

    def fix(self, reg, off):
        base = (off // 61440) * 61440
        pre = []
        if self.cur[reg] != base:
            d = base - self.cur[reg]
            pre.append(I('v_add_u32 v%d, %d, v%d' % (reg, d, reg)) if d > 0 else I('v_subrev_u32 v%d, %d, v%d' % (reg, -d, reg)))
            self.cur[reg] = base
        return pre, off - base


winC = Win([vAdC + t for t in range(4)])
winD = Win([vAdD, vAdD + 1])
cA, cS = vCc, vCc + 2
acc_of = {0: vX, 1: vX + 16, 2: vY, 3: vY + 16, 4: 200, 5: 216, 6: vX, 7: vX + 16}


def hhstore(tile):
    d = u[8] + (tile & 1) * 4
    return [I('buffer_store_dwordx4 %s, v%d, %s, s%d offen%s sc1' % (V(d, 4), vL16b if tile >= 4 else vL16, S4(sWS), sHHst,
                                                                     ' offset:%d' % (1024 * (tile & 3)) if tile & 3 else ''), tag='hh%d' % tile)]


def eslots(tiles):
    slots = {}

    def put(sl, x):
        slots.setdefault(sl, []).append(x)
    n = 0
    for tile in tiles:
        acc = acc_of[tile]
        for el in range(8):
            tp = u[n % 6]
            put(2 * n, I('v_mul_f32 v%d, v%d, v%d' % (tp, cA, acc + el)))
            put(2 * n + 1, I('v_exp_f32 v%d, v%d' % (tp, tp)))
            put(2 * n + 2, I('v_fma_f32 v%d, v%d, v%d, v%d' % (tp, tp, cS, cS)))
            put(2 * n + 4, I('v_rcp_f32 v%d, v%d' % (tp, tp)))
            put(2 * n + 5, I('v_mul_f32 v%d, v%d, v%d' % (tp, tp, acc + 8 + el)))
            if el & 1:
                put(2 * n + 7, I('v_cvt_pk_bf16_f32 v%d, v%d, v%d' % (u[8] + (tile & 1) * 4 + el // 2, u[(n - 1) % 6], tp)))
            if el == 7:
                put(2 * n + 8, hhstore(tile))
            n += 1
    out = []
    for k in range(max(slots) + 1):
        sl = slots.get(k, [])
        sl.sort(key=lambda x: 0 if (not isinstance(x, list) and x.op in ('v_exp_f32', 'v_rcp_f32')) else 1)
        out.append(sl)
    return out


def efast(tile, tb=u[0]):
    acc = acc_of[tile]
    g = []
    for j in range(0, 8, 2):
        tp = tb + j
        g.append([pk('mul', tp, acc + j, cA, mod=BC1)] + L('v_exp_f32 v{t}, v{t}\nv_exp_f32 v{t1}, v{t1}'.format(t=tp, t1=tp + 1)) +
                 [pk('fma', tp, tp, cS, cS, mod='op_sel_hi:[1,0,0]')] + L('v_rcp_f32 v{t}, v{t}\nv_rcp_f32 v{t1}, v{t1}'.format(t=tp, t1=tp + 1)) +
                 [pk('mul', tp, tp, acc + 8 + j), I('v_cvt_pk_bf16_f32 v%d, v%d, v%d' % (u[8] + (tile & 1) * 4 + j // 2, tp, tp + 1))])
    return zip_groups(g)


def hhsig(stage):
    return L('@waitvm hh%d hh%d' % (2 * stage, 2 * stage + 1)) + signal(sSig, stage * 128)


D_ORDER = [(j, 2 * st_ + t) for st_ in range(4) for j in range(7) for t in range(2)] if OPT.get('jm', 1) else [(j, t) for t in range(8) for j in range(7)]
WDPG = {}
wd_next = [0]


def wddma(page):
    n = wd_next[0]
    wd_next[0] += 1
    j, t = D_ORDER[n]
    WDPG[n] = page
    return dma(vWDo + t, sWD, 's%d' % sWDt[j], page * PG, 'wd%d' % n)


def hhreg(n):
    return A(aR + 4 * n, 4) if n < 21 else (V(vHH + 4 * (n - 21), 4) if n < 28 else A(aF + 4 * (n - 28), 4))


def hhpoll(stage):
    return L('s_add_u32 s%d, s%d, %d' % (sPoll, sSt, stage * 128)) + poll_issue(sPoll, stage in OPT.get('hha', (0, 1, 2, 3)))


def hhload(n):
    j, t = D_ORDER[n]
    return [I('buffer_load_dwordx4 %s, v%d, %s, s%d offen%s sc1' % (hhreg(n), vL16b if t >= 4 else vL16, S4(sWS), sHHt[j],
                                                                     ' offset:%d' % (1024 * (t & 3)) if t & 3 else ''))]


ws = WStream()
BSTEP = OPT.get('bstep', 4)
DL = OPT.get('dl', 12)
freed = [(0, pg) for pg in list(range(9 + NC, 14)) + list(range(21, 28))]
carry = []
XG = OPT.get('xg', 8)
DL1 = OPT.get('dl1', 28)
order = []
for k in range(28 + DL1):
    if k < 28:
        order.append((0, k))
    if k >= DL1:
        order.append((1, k - DL1))
XG += 28 - DL1
for k in range(28 + DL):
    if k < 28:
        order.append((2, k))
    if k >= DL:
        order.append((3, k - DL))
PEND = {}
for ps, k in order:
    tl = (2 * ps, 2 * ps + 1)
    if (ps, k) == (2, 0):
        todo = list(range(NC, 28))
        dslot = 2 * (28 - HL) - 1
        for gfree, pg in freed:
            dslot = max(dslot + 2, gfree + 1)
            ws.fill(dslot, gudma(1, todo.pop(0), pg) if todo else wddma(pg))
        DSLOT1 = dslot
    for t in tl:
        pre = []
        if ps == 0 and t == 0 and k == 0:
            pre += L('@waitvm ' + ' '.join('gu0_%d' % j for j in range(19 + N1)) + '\ns_barrier')
        if ps == 0 and t == 0 and k == 19 + N1:
            pre += L('@waitvm ' + ' '.join('gu0_%d' % j for j in range(19 + N1, 28)) + '\ns_barrier')
        if ps == 2 and t == tl[0] and k in (0, 10, 19):
            hi = {0: 10, 10: 19, 19: 28}[k]
            pre += L('@waitvm ' + ' '.join('gu1_%d' % j for j in range(k, hi)) + '\ns_barrier')
        pr, off = winC.fix(vAdC + (t & 3), (W1PG if ps < 2 else W2PG)[k] * PG)
        g_ = ws.step(vAdC + (t & 3), off, vAdC + (t & 3), off + 1024,
                     lambda a: mfma(acc_of[t], a, A(aF + 4 * k, 4), '0' if k == 0 else None), pre + pr)
    if ps == 0 and k + HL < 28:
        ws.fill(2 * k, hload(k + HL))
    if ps & 1 and k % BSTEP == BSTEP - 1:
        ws.fill(g_, L('s_barrier'))
        (freed if ps == 1 else carry).extend((g_, (W1PG if ps == 1 else W2PG)[kk]) for kk in range(k - BSTEP + 1, k + 1))
    if ps == 1 and k == XG - 1:
        for t in (0, 1):
            X0END = ws.extra(mfma(acc_of[t], A(aCS + 2 * t, 4), V(vMF, 4)))
    if k == 27:
        if ps:
            for t in tl:
                g_ = ws.extra(mfma(acc_of[t], A(aCS + 2 * t, 4), V(vMF, 4)))
        PEND[ps] = g_
P1END, P2END, P3END, P4END = PEND = [PEND[n] for n in range(4)]
for n, x in enumerate(w1late[N1:]):
    ws.fill(1 + 2 * n, x)
for i in range(7):
    ws.fill(1 + 2 * (i + 9 - N1), [I('buffer_load_dwordx2 %s, v%d, %s, s%d offen offset:%d sc1' % (V(vSt + 2 * i, 2), t4, S4(sWS), sStL, 256 * i))])
g1 = X0END - 16
ws.fill(g1 - OPT.get('csd', 24), poll_issue(sCSp, OPT.get('csa', 1)))
cs = poll_check(4, sCSp) + L('s_lshl_b32 s3, s%d, 11\ns_add_u32 s3, s3, %d' % (sA, WS_CS))
for n in range(4):
    cs.append(I('buffer_load_dwordx4 %s, v%d, %s, s3 offen offset:%d sc1' % (A(aCS + 4 * n, 4), vL8, S4(sWS), 512 * n)))
ws.fill(g1, cs)
st = []
for (a, b) in ((0, 2), (4, 6), (8, 10), (0, 4), (8, 12), (0, 8)):
    st += L('v_add_f32 v{a}, v{a}, v{b}\nv_add_f32 v{a1}, v{a1}, v{b1}'.format(a=vSt + a, b=vSt + b, a1=vSt + a + 1, b1=vSt + b + 1))
st += halves_sum(vSt, t2) + halves_sum(vSt + 1, t2) + ln_consts(vSt, vSt + 1, vMean, cS, vR)
st += L('v_mul_f32 v%d, 0x%x, v%d' % (cA, NEGL, vR)) + mean_frag(vMean, vMF)
for n, x in enumerate(st):
    ws.fill(X0END - 24 + n // 2, x)
assert len(st) // 2 < 22
SIGD = OPT.get('sigd', 20)
sig_at = []
spill = []
for stg, e0 in enumerate((X0END + 1, P2END + 1, P3END + 1)):
    es = eslots((2 * stg, 2 * stg + 1))
    for n, sl in enumerate(es):
        for x in sl:
            if e0 + n <= P4END:
                ws.fill(e0 + n, x)
            else:
                spill += x if isinstance(x, list) else [x]
    if stg == 0:
        assert e0 + 34 <= P2END + 1, 'temporaries of consecutive epilogues overlap'
    sig_at.append(e0 + len(es) - 1 + SIGD)
for stg in range(2):
    ws.fill(sig_at[stg], hhsig(stg))
late2 = sig_at[2] - 4 > P4END
if not late2:
    ws.fill(min(sig_at[2], P4END), hhsig(2))
PD = OPT.get('pd', 22)
CD = OPT.get('cd', 24)
busy = set()
for stg in range(2):
    ws.fill(sig_at[stg] + PD, hhpoll(stg))
    hchk = sig_at[stg] + PD + CD
    ws.fill(hchk, poll_check(7, sPoll))
    g_ = hchk - 1
    for n in range(14 * stg, 14 * stg + 14):
        g_ += 2
        if g_ <= P4END:
            ws.fill(g_, hhload(n))
            busy.add(g_)
            HHN = n + 1
    if stg == 0:
        H0 = hchk
    else:
        H1 = hchk
g_ = DSLOT1
while carry:
    g_ = max(g_ + 2, carry[0][0] + 1)
    while g_ in busy or g_ - 1 in busy or g_ + 1 in busy:
        g_ += 1
    if g_ > P4END:
        break
    ws.fill(g_, wddma(carry.pop(0)[1]))
D0 = vX + 32
dinit = []
for j in range(8):
    dinit += L('v_accvgpr_read_b32 v{t}, a{h}\nv_lshlrev_b32 v{a}, 16, v{t}\nv_and_b32 v{b}, 0xffff0000, v{t}'.format(
        t=t2, h=aH + j, a=D0 + 2 * j, b=D0 + 1 + 2 * j))
for n, x in enumerate(dinit):
    ws.fill(2 + n, x)
for nm in OPT['st'] or ():
    if nm.startswith('_g'):
        ws.fill(int(nm[2:]), mkstamp(nm))
for nm, at in (('_m0', 0), ('P1', P1END), ('P2', P2END), ('P3', P3END), ('_h0', H0 - 1), ('_h1', H0 + 1), ('_h2', H1 - 1), ('_h3', H1 + 1)):
    ws.fill(at, mkstamp(nm))
p.add(ws.build())
stamp('P4')
p.add(spill)
stamp('_sp')
WPRE = wd_next[0]
rest = [hhload(n) for n in range(HHN, 28)] + [wddma(pg) for _, pg in carry]
carry = []
NE = min(OPT.get('ne', 0), len(rest))
ef = zip_groups([efast(6, vSt + 8), efast(7, vSt)])
p.add((spread(ef[:40], rest[:NE]) if NE else ef[:40]) + ef[40:56])
rest = rest[NE:]
if late2 and not OPT.get('s2l', 1):
    p.add(hhsig(2))
p.add(ef[56:] + hhstore(6) + hhstore(7))
stamp('_st7')
if late2 and OPT.get('s2l', 1):
    p.add(hhsig(2))
NP = OPT.get('np', 6)
for x in rest[:NP]:
    p.add(x)
rest = rest[NP:]
stamp('_e7')
if STOP <= 3:
    p.add(hhsig(3))
    e('s_branch L_fin')

ws = WStream()
res0 = wd_next[0]
assert wd_next[0] == 40
refill = []
for n in range(16):
    refill.append(wddma(WDPG[n]))
wmid = (WPRE + 40) // 2
wpts = {0: WPRE, WPRE: wmid, wmid: 40, 40: 48, 48: 56}
TD = OPT.get('td', 4)
for n, ft in [(n, ft) for n in range(56 - TD) for ft in range(2)] + [(n, 1) for n in range(56 - TD, 56)] + [(n, 0) for n in range(56 - TD, 56)]:
    if 1:
        pre = []
        if ft == 0 and n in wpts:
            pre += L('@waitvm ' + ' '.join('wd%d' % q for q in range(n, wpts[n])) + '\ns_barrier')
        pr, off = winD.fix(vAdD + ft, WDPG[n] * PG)
        ws.step(vAdD + ft, off, vAdD + ft, off + 1024,
                lambda a: mfma(D0 + 16 * ft, a, hhreg(n), '0' if (n == 0 and ft == 1) else None), pre + pr)
ws.fill(15, L('s_barrier'))
ws.fill(31, L('s_barrier'))
D3 = OPT.get('d3', 8)
seq = [(x, 0) for x in rest]
pos = -1.0
DSTEP = OPT.get('dstep', 1.4)
while seq and pos + DSTEP < D3:
    pos += DSTEP
    ws.fill(int(pos), seq.pop(0)[0])
s3_ = hhsig(3)
P2A = OPT.get('p2a', 0)
ws.fill(D3, s3_[:1] + ([] if P2A else hhpoll(2)) + s3_[1:] + mkstamp('hh stored'))
if P2A:
    ws.fill(P2A, hhpoll(2))
pos = D3
seq += [(x, 16) for x in refill[:8]]
seq += [(poll_check(7, sPoll) + hhload(28), OPT.get('d2', 28))] + [(hhload(n), 0) for n in range(29, 38)]
seq += [(hhpoll(3), OPT.get('d4', 46))] + [(hhload(n), 0) for n in range(38, 42)]
seq += [(x, 32) for x in refill[8:]]
seq += [(poll_check(7, sPoll) + hhload(42), OPT.get('d5', 62))] + [(hhload(n), 0) for n in range(43, 56)]
for grp, earliest in seq:
    pos = max(pos + DSTEP, earliest)
    ws.fill(int(pos), grp)
DPOS = pos
XB = [b for b in range(0, 35) if all(not (b <= WDPG[n] < b + 6) for n in range(47, 56))][0]
FL = OPT.get('fl', 1)
fin = L('''
s_lshl_b32 s3, s{w}, 12
s_xor_b32 s4, s3, 8192
s_add_u32 s3, s3, {xb}
s_add_u32 s4, s4, {xb}
v_add_u32 v{t0}, s3, v{l16}
v_add_u32 v{t1}, s4, v{l16}
'''.format(w=sW, t0=t0, t1=t1, l16=vL16, xb=XB * PG))
if FL:
    fin2 = L('''
    v_and_b32 v{a}, 31, v0
    v_lshrrev_b32 v{b}, 5, v0
    s_lshl_b32 s3, s{kh}, 2
    v_add_u32 v{b}, s3, v{b}
    v_xor_b32 v{b}, v{b}, v{a}
    v_and_b32 v{b}, 7, v{b}
    v_lshlrev_b32 v{a}, 7, v{a}
    v_lshl_add_u32 v{a}, v{b}, 4, v{a}
    s_lshl_b32 s3, s{th}, 12
    s_add_u32 s3, s3, {tb}
    v_add_u32 v{wa}, s3, v{a}
    v_xor_b32 v{wb}, 32, v{wa}
    '''.format(a=t2, b=t3, kh=sKh, th=sTh, tb=(XB + 4) * PG, wa=u[0], wb=u[1]))
    fin3 = L('''
    v_lshrrev_b32 v{a}, 3, v0
    v_xor_b32 v{b}, v{a}, v0
    v_and_b32 v{b}, 7, v{b}
    v_lshlrev_b32 v{b}, 4, v{b}
    v_lshl_add_u32 v{b}, v{a}, 7, v{b}
    s_lshl_b32 s3, s{w}, 11
    s_add_u32 s3, s3, {tb}
    v_add_u32 v{ra}, s3, v{b}
    v_mul_u32_u24 v{a}, 896, v{a}
    v_and_b32 v{b}, 7, v0
    v_lshl_add_u32 v{a}, v{b}, 4, v{a}
    s_lshl1_add_u32 s3, s{g}, s{half}
    s_lshl2_add_u32 s3, s3, s{w}
    s_mul_i32 s3, s3, 14336
    s_lshl_b32 s4, s{cs}, 7
    s_add_u32 s{o}, s3, s4
    s_add_u32 s{o1}, s{o}, 7168
    '''.format(a=t2, b=t3, w=sW, tb=(XB + 4) * PG, ra=u[2], g=sG, half=sHalf, cs=sCs, o=sOff2, o1=sOff))
    ws.fill(92, fin2)
    ws.fill(94, fin3)
else:
    fin += L('''
    s_lshl2_add_u32 s3, s{g}, s{tt}
    s_mul_i32 s3, s3, 28672
    s_lshl1_add_u32 s4, s{cs}, s{kh}
    s_lshl_b32 s4, s4, 6
    s_add_u32 s{o}, s3, s4
    v_and_b32 v{a}, 31, v0
    v_mul_u32_u24 v{a}, 896, v{a}
    v_lshrrev_b32 v{b}, 5, v0
    v_lshl_add_u32 v{a}, v{b}, 4, v{a}
    '''.format(g=sG, tt=sTT, cs=sCs, kh=sKh, o=sOff2, a=t2, b=t3))
ws.fill(96, fin)
for nm in OPT['st'] or ():
    if nm.startswith('_d'):
        ws.fill(int(nm[2:]), mkstamp(nm))
for nm, at in (('D0', 27), ('D1', 55), ('D2', 83)):
    ws.fill(at, mkstamp(nm))
ws.fill(95, L('s_barrier'))
xw_ = [I('ds_write_b128 v%d, %s offset:%d' % (t0, V(D0 + 16 + 4 * q, 4), q * 1024)) for q in range(4)]
xr_ = L('@waitlg0\ns_barrier') + [I('ds_read_b128 %s, v%d offset:%d' % (V(vX + 4 * q, 4), t1, q * 1024)) for q in range(4)]
if TD >= 3:
    ws.fill(112 - TD + 1, xw_)
    ws.fill(111, xr_)
    p.add(ws.build())
else:
    p.add(ws.build() + xw_ + xr_)
stamp('D mfma')
for hf_ in range(2):
    for j in range(8 * hf_, 8 * hf_ + 8, 2):
        p.add([pk('add', D0 + j, D0 + j, vX + j)])
    for j in range(4 * hf_, 4 * hf_ + 4):
        e('v_cvt_pk_bf16_f32 v%d, v%d, v%d' % (vY + j, D0 + 2 * j, D0 + 2 * j + 1))
    bb = 4 * hf_
    e('v_permlane32_swap_b32 v%d, v%d' % (vY + bb, vY + bb + 2))
    e('v_permlane32_swap_b32 v%d, v%d' % (vY + bb + 1, vY + bb + 3))
    if FL:
        e('ds_write_b128 v%d, %s' % (u[hf_], V(vY + bb, 4)))
    else:
        e('buffer_store_dwordx4 %s, v%d, %s, s%d offen%s%s' % (V(vY + bb, 4), t2, S4(sOUT), sOff2, ' offset:32' if hf_ else '', OPT.get('outm', '')))
if FL:
    e('@waitlg0')
    e('s_barrier')
    for q in range(2):
        e('ds_read_b128 %s, v%d offset:%d' % (V(vY + 8 + 4 * q, 4), u[2], 1024 * q))
    for q in range(2):
        e('buffer_store_dwordx4 %s, v%d, %s, s%d offen%s' % (V(vY + 8 + 4 * q, 4), t2, S4(sOUT), sOff if q else sOff2, OPT.get('outm', ' sc1')))
e('s_branch L_fin')

main_ins = p.ins
p.ins = []
e('L_idle:')
e('''
s_lshl1_add_u32 s6, s{g}, s{half}
s_cmp_lt_u32 s6, 28
s_cselect_b32 s{gu2}, 1605632, 0
s_mul_i32 s3, s{th}, 802816
s_lshl_b32 s4, s6, 7
s_add_u32 s{o}, s3, s4
v_lshrrev_b32 v{a}, 3, v0
v_mul_u32_u24 v{a}, 3584, v{a}
v_and_b32 v{b}, 7, v0
v_lshl_add_u32 v{a}, v{b}, 4, v{a}
v_mov_b32 v{e0}, 0x3f80
v_mov_b32 v{e1}, 0x3f800000
'''.format(g=sG, half=sHalf, gu2=sGU + 2, th=sTh, o=sOff, a=t0, b=t1, e0=u[0], e1=u[1]))
for n in range(28):
    e('buffer_load_dwordx4 %s, v%d, %s, s%d offen' % (V(vF + 4 * n, 4), t0, S4(sGU), sOff))
    e('s_add_u32 s%d, s%d, 28672' % (sOff, sOff))
    if n == OPT.get('ipre', 0):
        e('s_waitcnt vmcnt(%d)' % (n + 1))
        p.add(signal(sSig))
        stamp('_i0')
        e('s_barrier')
        e('s_cmp_ge_u32 s6, 28')
        e('s_cbranch_scc1 L_idle2')
stamp('_i1')
for j in range(8):
    e('v_mov_b32 v%d, 0' % (vY + j))
for n in range(28):
    for d in range(4):
        e('v_dot2c_f32_bf16 v%d, v%d, v%d' % (vY + 2 * d, vF + 4 * n + d, u[0]))
        e('v_dot2c_f32_bf16 v%d, v%d, v%d' % (vY + 2 * d + 1, vF + 4 * n + d, u[1]))
stamp('_i2')
for j in range(8):
    e('v_mov_b32 v%d, v%d' % (vY + 8 + j, vY + j))
for j in range(8):
    e('v_permlane32_swap_b32 v%d, v%d' % (vY + 8 + j, vY + j))
for j in range(8):
    e('v_add_f32 v%d, v%d, v%d' % (vY + j, vY + j, vY + 8 + j))
for j in range(8):
    e('v_mov_b32 v%d, v%d' % (vY + 8 + j, vY + j))
for j in range(8):
    e('v_permlane16_swap_b32 v%d, v%d' % (vY + 8 + j, vY + j))
for j in range(8):
    e('v_add_f32 v%d, v%d, v%d' % (vY + j, vY + j, vY + 8 + j))
for j in range(8):
    e('v_add_f32_dpp v%d, v%d, v%d row_ror:8 row_mask:0xf bank_mask:0xf' % (vY + 8 + j, vY + j, vY + j))
e('''
s_lshl_b32 s3, s{w}, 8
v_lshl_add_u32 v{a}, v{b}, 5, s3
ds_write_b128 v{a}, {r0}
ds_write_b128 v{a}, {r1} offset:16
s_waitcnt lgkmcnt(0)
s_barrier
v_bfe_u32 v{a}, v0, 4, 1
v_lshlrev_b32 v{a}, 9, v{a}
v_and_b32 v{b}, 15, v0
v_lshl_add_u32 v{a}, v{b}, 2, v{a}
v_lshrrev_b32 v{b}, 5, v0
v_lshl_add_u32 v{a}, v{b}, 7, v{a}
ds_read_b32 v{y0}, v{a}
ds_read_b32 v{y1}, v{a} offset:256
ds_read_b32 v{y2}, v{a} offset:64
ds_read_b32 v{y3}, v{a} offset:320
v_mov_b32 v{x1}, 0
v_mov_b32 v{x3}, 0
s_lshl_b32 s3, s6, 10
s_add_u32 s3, s3, {base}
s_lshr_b32 s4, s6, 1
s_lshl_b32 s4, s4, 13
s_add_u32 s4, s4, {cc}
v_add_f32 v{y0}, v{y0}, v{y1}
v_add_f32 v{y2}, v{y2}, v{y3}
'''.format(w=sW, a=t0, b=t1, r0=V(vY + 8, 4), r1=V(vY + 12, 4), y0=vY, y1=vY + 1, y2=vY + 2, y3=vY + 3, x1=vX + 1, x3=vX + 3,
           base=WS_CS, cc=C_CS * 128))
p.add(hilo(vY, vX, t2) + hilo(vY + 2, vX + 2, t2))
stamp('_i3')
e('s_cmp_ge_u32 s%d, 2' % sW)
e('s_cbranch_scc1 L_idle1')
e('buffer_store_dwordx4 %s, v%d, %s, s3 offen sc1' % (V(vX, 4), vL16, S4(sWS)))
e('s_waitcnt vmcnt(0)')
p.add(signal(4))
e('s_waitcnt vmcnt(0)')
e('L_idle1:')
e('s_barrier')
e('L_idle2:')
stamp('_i4')
if OPT.get('idlepf', 1):
    e('''
    v_lshlrev_b32 v{a}, 7, v0
    s_lshl2_add_u32 s3, s{gl}, s{w}
    s_and_b32 s4, s2, 7
    s_mul_i32 s4, s4, {st}
    s_add_u32 s3, s3, s4
    '''.format(a=t0, gl=sGl, w=sW, st=32 if OPT.get('ipn', 2) == 13 else 25))
    for n in range(OPT.get('ipn', 2)):
        for x in ['s_cmp_ge_u32 s3, 208', 's_cselect_b32 s4, 208, 0', 's_sub_u32 s3, s3, s4', 's_lshl_b32 s5, s3, 13',
                  'buffer_load_dword v%d, v%d, %s, s5 offen' % (vX + 8 + n, t0, S4(sWD)), 's_add_u32 s3, s3, 16']:
            e(x)
e('L_fin:')
if OPT.get('enc'):
    e('s_waitcnt vmcnt(0) lgkmcnt(0)')
    if OPT['enc'] == 'end':
        e('s_memrealtime s[94:95]')
        e('s_waitcnt lgkmcnt(0)')
    e('s_cmp_ge_u32 s%d, 7' % sCs)
    e('s_cbranch_scc1 L_end')
    e('s_sub_u32 s94, s94, s98')
    e('s_mul_i32 s94, s94, 4')
    e('s_add_u32 s94, s94, 3000')
    e('L_fix:')
    for x in ['s_sleep 4', 's_memrealtime s[96:97]', 's_waitcnt lgkmcnt(0)', 's_sub_u32 s96, s96, s98', 's_cmp_lt_u32 s96, s94', 's_cbranch_scc1 L_fix']:
        e(x, raw=True)
if OPT.get('fixt'):
    e('s_waitcnt vmcnt(0) lgkmcnt(0)')
    e('L_fix:')
    for x in ['s_sleep 2', 's_memrealtime s[96:97]', 's_waitcnt lgkmcnt(0)', 's_sub_u32 s96, s96, s98', 's_cmp_lt_u32 s96, %d' % OPT['fixt'], 's_cbranch_scc1 L_fix']:
        e(x, raw=True)
if DIAG:
    e('s_waitcnt vmcnt(0)')
    e('s_memtime s[76:77]' if OPT['cyc'] else 's_memrealtime s[76:77]')
    e('s_memtime s[74:75]')
    e('s_waitcnt lgkmcnt(0)')
    e('s_sub_u32 s74, s74, s100')
    e('v_mov_b32 v%d, s74' % (vX + 14))
    e('v_mov_b32 v%d, s101' % (vX + 15))
    e('s_lshl_b32 s3, s2, 2')
    e('s_add_u32 s3, s3, s%d' % sW)
    e('s_lshl_b32 s3, s3, 6')
    e('s_add_u32 s3, s3, %d' % WS_TS)
    for n in range(12):
        e('v_mov_b32 v%d, s%d' % (vX + n, sTS + 2 * n))
    e('v_mov_b32 v%d, s76' % (vX + 12))
    e('s_getreg_b32 s4, hwreg(HW_REG_XCC_ID)')
    e('v_mov_b32 v%d, s4' % (vX + 13))
    e('s_mov_b64 exec, 1')
    for q in range(4):
        e('buffer_store_dwordx4 %s, off, %s, s3 offset:%d' % (V(vX + 4 * q, 4), S4(sWS), 16 * q))
e('s_waitcnt vmcnt(0) lgkmcnt(0)')
e('L_end:')
e('s_endpgm')
tail_ins = p.ins

p.ins = main_ins
p.finalize()
body = p.text()
stats = dict(p.stats)
kinds = {}
for i in p.out:
    kinds[i.kind] = kinds.get(i.kind, 0) + 1
p.ins = tail_ins
p.finalize()
body += '\n' + p.text()

hdr = open('sequential_preLN__linear_attn_block__glu_gated_glu__prompt.s.ref').read().split('\n')
head = [l for l in hdr if l.startswith(';') and '@launch' not in l and 'Override' not in l and 'grid=ceil' not in l]
out = '\n'.join(head) + '''
; @launch grid=(256,1,1) block=(256,1,1) lds=163840
.amdgcn_target "amdgcn-amd-amdhsa--gfx950"
.text
.globl {n}
.p2align 8
.type {n},@function
{n}:
{body}
.section .rodata,"a"
.p2align 6
.amdhsa_kernel {n}
  .amdhsa_next_free_vgpr 512
  .amdhsa_next_free_sgpr 102
  .amdhsa_accum_offset 256
  .amdhsa_group_segment_fixed_size 0
  .amdhsa_kernarg_size 80
  .amdhsa_user_sgpr_count 2
  .amdhsa_user_sgpr_kernarg_segment_ptr 1
  .amdhsa_system_sgpr_workgroup_id_x 1
  .amdhsa_float_denorm_mode_32 3
.end_amdhsa_kernel
'''.format(n=NAME, body=body)
open(sys.argv[1], 'w').write(out)
print(kinds, stats, 'wpre', WPRE, 'rest', len(rest), 'spill', len(spill), 'H0', H0, H1, 'HHN', HHN, 'X0END', X0END, PEND, 'sig', sig_at, 'dslot', DSLOT1, 'dpos', DPOS, file=sys.stderr)
```
